```python
import torch

def _softmax(x, axis=-1):
    return torch.softmax(x, dim=axis)

def _gelu(x):
    return torch.nn.functional.gelu(x, approximate='tanh')

def _silu(x):
    return torch.nn.functional.silu(x)

def _sigmoid(x):
    return torch.sigmoid(x)

def _layernorm(x, axis=-1, eps=1e-05):
    m = x.mean(dim=axis, keepdim=True)
    v = x.var(dim=axis, keepdim=True, unbiased=False)
    return (x - m) / torch.sqrt(v + eps)

def _scatter_add(tgt, idx, src, axis=0):
    return tgt.clone().index_add_(axis, idx, src)

def _segment_sum(src, seg, n):
    out = torch.zeros((n,) + src.shape[1:], dtype=src.dtype)
    return out.index_add_(0, seg, src)

def _pad(x, pw):
    flat = tuple((v for pair in reversed(pw) for v in pair))
    return torch.nn.functional.pad(x, flat)
kernel_name = 'standalone__neighborhood_nat__vision'

def setup_inputs():

    _w = lambda a: (lambda t: t.to(torch.bfloat16) if t.is_floating_point() else t)(torch.as_tensor(a))
    H = W = 224
    C = 192
    return {'x': _w((lambda *s: torch.randn(*s, dtype=torch.bfloat16) * 0.2)(1, H, W, C)), 'wqkv': _w((lambda *s: torch.randn(*s, dtype=torch.bfloat16) * 0.2)(C, 3 * C)), 'wo': _w((lambda *s: torch.randn(*s, dtype=torch.bfloat16) * 0.05)(C, C))}

def reference(x, wqkv, wo):
    B, H, W, C = x.shape
    ks, dil = (7, 2)
    qkv = x @ wqkv
    q, k, v = (qkv[..., :C].clone(), qkv[..., C:2 * C].clone(), qkv[..., 2 * C:].clone())
    half = (ks - 1) // 2 * dil
    ir = torch.arange(H)
    ic = torch.arange(W)
    off = torch.arange(ks) * dil
    r0 = torch.clip(ir - half, 0, H - 1 - (ks - 1) * dil)
    c0 = torch.clip(ic - half, 0, W - 1 - (ks - 1) * dil)
    ri = r0[:, None] + off[None, :]
    ci = c0[:, None] + off[None, :]
    nidx = (ri[:, None, :, None] * W + ci[None, :, None, :]).reshape(1, H * W * ks * ks, 1)
    kf = k.reshape(B, H * W, C)
    vf = v.reshape(B, H * W, C)
    kn = (lambda x, i, axis: torch.take_along_dim(x, i, dim=axis))(kf, nidx, 1).reshape(B, H * W, ks * ks, C)
    vn = (lambda x, i, axis: torch.take_along_dim(x, i, dim=axis))(vf, nidx, 1).reshape(B, H * W, ks * ks, C)
    qf = q.reshape(B, H * W, C)
    scale = C ** (-0.5)
    logits = torch.einsum('bnc,bnkc->bnk', qf, kn) * scale
    p = _softmax(logits, axis=-1)
    o = torch.einsum('bnk,bnkc->bnc', p, vn) @ wo
    return o.reshape(B, H, W, C)
```

```python
import re

REG_RE = re.compile(r'\b([vsa])\[(\d+):(\d+)\]|\b([vsa])(\d+)\b|\b(vcc|exec|m0|scc)\b')
TRANS = ('v_exp_f32', 'v_log_f32', 'v_rcp_f32', 'v_rsq_f32', 'v_sqrt_f32', 'v_sin_f32', 'v_cos_f32')

def regs_of(tok):
    out = []
    for m in REG_RE.finditer(tok):
        if m.group(1):
            out += [(m.group(1), i) for i in range(int(m.group(2)), int(m.group(3)) + 1)]
        elif m.group(4):
            out.append((m.group(4), int(m.group(5))))
        else:
            out.append((m.group(6), 0))
    return out

def split_ops(rest):
    ops, depth, cur = [], 0, ''
    for ch in rest:
        if ch == '[': depth += 1
        if ch == ']': depth -= 1
        if ch == ',' and depth == 0:
            ops.append(cur.strip()); cur = ''
        else:
            cur += ch
    if cur.strip(): ops.append(cur.strip())
    return ops

class Rec:
    __slots__ = ('op', 'cls', 'w', 'r', 'srcc', 'passes', 'states', 'sdata')
    def __init__(self):
        self.w = set(); self.r = set(); self.srcc = set(); self.passes = 0; self.states = 1; self.sdata = set()

class Asm:
    def __init__(self):
        self.lines = []
        self.reset()
        self.nops = 0
        self.n_inst = 0
        self.maxv = 0
    def reset(self):
        self.hist = []
        self.lgkm = []
        self.vm = []
    def raw(self, s):
        self.lines.append(s)
    def label(self, name, keep=False):
        self.lines.append(name + ':')
        if not keep:
            self.reset_hist_conservative()
    def reset_hist_conservative(self):
        pass
    def comment(self, s):
        self.lines.append('  ; ' + s)
    def parse(self, text):
        t = text.strip()
        sp = t.split(None, 1)
        op = sp[0]; rest = sp[1] if len(sp) > 1 else ''
        ops = split_ops(rest)
        R = Rec(); R.op = op
        def rs(lst):
            s = set()
            for o in lst: s |= set(regs_of(o))
            return s
        if op.startswith('v_mfma'):
            R.cls = 'mfma'; R.w = rs(ops[:1]); R.r = rs(ops[1:4]); R.srcc = rs(ops[3:4])
            R.passes = 4 if '16x16x32' in op else 8
        elif op.startswith('v_'):
            R.cls = 'valu'
            if op.startswith('v_permlane') and 'swap' in op:
                R.w = rs(ops[:2]); R.r = rs(ops[:2]); R.cls = 'permlane'
            elif op.startswith('v_cmp'):
                R.w = rs(ops[:1]); R.r = rs(ops[1:])
            elif op.startswith(('v_add_co', 'v_sub_co', 'v_addc_co')):
                R.w = rs(ops[:2]); R.r = rs(ops[2:])
            else:
                R.w = rs(ops[:1]); R.r = rs(ops[1:])
                if op.startswith(('v_fmac', 'v_dot2c', 'v_pk_fmac')): R.r |= R.w
            if op.startswith(('v_readfirstlane', 'v_readlane')): R.cls = 'readlane'
            if 'dpp' in t or 'row_' in t or 'quad_perm' in t: R.cls = 'dpp'
        elif op.startswith('ds_'):
            R.cls = 'ds'
            if op.startswith(('ds_read', 'ds_bpermute', 'ds_permute', 'ds_swizzle')):
                R.w = rs(ops[:1]); R.r = rs(ops[1:])
            else:
                R.r = rs(ops)
        elif op.startswith(('buffer_', 'global_')):
            R.cls = 'vmem'
            last = ops[-1]
            is_lds = re.search(r'\blds\b', last) is not None
            if 'load' in op and not is_lds:
                R.w = rs(ops[:1]); R.r = rs(ops[1:])
                if 'd16' in op: R.r |= R.w
            elif 'atomic' in op:
                R.r = rs(ops)
                if re.search(r'\bsc0\b', last): R.w = rs(ops[:1])
            else:
                R.r = rs(ops)
                if is_lds: R.r.add(('m0', 0)); R.cls = 'dma'
                if 'store' in op and ('x4' in op or 'x3' in op):
                    R.sdata = rs(ops[:1]) if op.startswith('buffer') else rs(ops[1:2])
        elif op.startswith('s_'):
            R.cls = 'salu'
            if op == 's_nop':
                R.states = int(rest, 0) + 1
            elif op.startswith(('s_waitcnt', 's_barrier', 's_branch', 's_cbranch', 's_endpgm', 's_setprio', 's_sleep')):
                pass
            elif op.startswith('s_cmp'):
                R.r = rs(ops)
            elif op.startswith(('s_load', 's_memtime', 's_memrealtime')):
                R.cls = 'smem'; R.w = rs(ops[:1]); R.r = rs(ops[1:])
            else:
                R.w = rs(ops[:1]); R.r = rs(ops[1:])
        else:
            raise ValueError('unknown op ' + text)
        for (k, i) in R.w | R.r:
            if k == 'v': self.maxv = max(self.maxv, i)
        return R
    def need_states(self, R):
        need = 0
        dist = 0
        isvalu = R.cls in ('valu', 'permlane', 'readlane', 'dpp')
        for P in reversed(self.hist):
            req = 0
            pv = P.cls in ('valu', 'permlane', 'readlane', 'dpp')
            wv = {x for x in P.w if x[0] in ('v', 'a')}
            ws = {x for x in P.w if x[0] in ('s', 'vcc', 'exec')}
            if pv:
                if R.cls == 'mfma' and wv & R.r: req = max(req, 2)
                if R.cls == 'permlane' and wv & R.r: req = max(req, 2)
                if R.cls == 'dpp' and wv & R.r: req = max(req, 2)
                if R.cls == 'readlane' and wv & R.r: req = max(req, 1)
                if P.op.startswith(TRANS) and isvalu and wv & R.r: req = max(req, 1)
                if ws:
                    if R.cls in ('vmem', 'dma') and ws & R.r: req = max(req, 5)
                    if isvalu and ws & R.r: req = max(req, 2)
                    if R.cls == 'salu' and ws & R.r: req = max(req, 1)
                    if ('exec', 0) in ws and R.cls == 'mfma': req = max(req, 4)
                    if ('exec', 0) in ws and R.cls in ('readlane', 'permlane', 'dpp'): req = max(req, 5)
            if P.cls == 'mfma':
                n = {4: 8, 8: 12}[P.passes]
                if R.cls == 'mfma':
                    ab = R.r - R.srcc
                    if P.w & ab: req = max(req, n)
                    if P.w & R.srcc and P.w != R.srcc: req = max(req, {4: 6, 8: 10}[P.passes])
                    if P.w & R.w and not (P.w == R.srcc): req = max(req, n)
                else:
                    if P.w & (R.r | R.w): req = max(req, n)
                    if isvalu and P.srcc & R.w: req = max(req, {4: 3, 8: 7}[P.passes])
            if P.sdata and (R.w & P.sdata): req = max(req, 2)
            if P.cls == 'salu' and ('m0', 0) in P.w and R.cls == 'dma': req = max(req, 1)
            if req > dist: need = max(need, req - dist)
            dist += P.states
            if dist > 20: break
        return need
    def waits(self, R):
        touched = R.r | R.w
        lg = None
        for idx, d in enumerate(self.lgkm):
            if d & touched: lg = len(self.lgkm) - 1 - idx
        vm = None
        for idx, d in enumerate(self.vm):
            if d & touched: vm = len(self.vm) - 1 - idx
        if lg is not None or vm is not None:
            self.wait(vm=vm, lgkm=lg)
    def wait(self, vm=None, lgkm=None):
        parts = []
        if vm is not None:
            vm = min(vm, 63)
            if vm < len(self.vm):
                parts.append(f'vmcnt({vm})'); self.vm = self.vm[len(self.vm) - vm:] if vm else []
        if lgkm is not None:
            lgkm = min(lgkm, 15)
            if lgkm < len(self.lgkm):
                parts.append(f'lgkmcnt({lgkm})'); self.lgkm = self.lgkm[len(self.lgkm) - lgkm:] if lgkm else []
        if parts:
            self._emit('s_waitcnt ' + ' '.join(parts), self.parse('s_waitcnt 0'))
    def force_wait(self, text):
        m = re.search(r'vmcnt\((\d+)\)', text)
        if m:
            n = int(m.group(1)); self.vm = self.vm[len(self.vm) - n:] if n and n < len(self.vm) else ([] if n == 0 else self.vm)
        m = re.search(r'lgkmcnt\((\d+)\)', text)
        if m:
            n = int(m.group(1)); self.lgkm = self.lgkm[len(self.lgkm) - n:] if n and n < len(self.lgkm) else ([] if n == 0 else self.lgkm)
        self._emit(text, self.parse('s_waitcnt 0'))
    def _emit(self, text, R):
        self.lines.append('  ' + text)
        self.hist.append(R)
        if len(self.hist) > 40: self.hist = self.hist[-40:]
        self.n_inst += 1
    def __call__(self, text):
        for t in text.split('\n'):
            t = t.split(';')[0].strip()
            if not t: continue
            if t.startswith('s_waitcnt'):
                self.force_wait(t); continue
            R = self.parse(t)
            self.waits(R)
            n = self.need_states(R)
            while n > 0:
                k = min(n, 16)
                self._emit(f's_nop {k-1}', self.parse(f's_nop {k-1}')); self.nops += 1
                n -= k
            self._emit(t, R)
            if R.cls == 'ds':
                self.lgkm.append(set(R.w))
            elif R.cls == 'smem':
                self.lgkm.append(set(R.w))
            elif R.cls in ('vmem', 'dma'):
                self.vm.append(set(R.w))
    def prewait(self, text):
        self.waits(self.parse(text))
    def skip(self, text):
        R = self.parse(text); R.states = 0
        self._emit(text, R)
    def text(self):
        return '\n'.join(self.lines) + '\n'
```

```python
import sys, struct
sys.path.insert(0, 'gen')
from asmlib import Asm

OPT = dict(a.split('=') if '=' in a else (a, '1') for a in sys.argv[2:])
OUT = sys.argv[1] if len(sys.argv) > 1 else 'standalone__neighborhood_nat__vision.s'
STAMP = 'stamp' in OPT

X_BYTES = 19267584
WS_BYTES = 268435456
ROWB = 7680
MBASE = 92160
SPARE = 153600
def f32bits(x): return struct.unpack('<I', struct.pack('<f', x))[0]
SCALE = f32bits(192 ** -0.5 * 1.4426950408889634)
NEGINF = 0xff800000

A = Asm()
hdr = open('standalone__neighborhood_nat__vision.s.ref').read().split('\n')
for ln in hdr:
    if ln.startswith('; @launch'): break
    A.raw(ln)
A.raw('; @launch kernel=prep_kernel grid=(144,1,1) block=(64,1,1) lds=0')
A.raw('; @launch kernel=main_kernel grid=(256,1,1) block=(512,1,1) lds=163840')
A.raw('.amdgcn_target "amdgcn-amd-amdhsa--gfx950"')
A.raw('.text')

def srd(d, lo, hi, nbytes):
    A(f's_mov_b32 s{d}, s{lo}'); A(f's_and_b32 s{d+1}, s{hi}, 0xffff')
    A(f's_mov_b32 s{d+2}, {nbytes}'); A(f's_mov_b32 s{d+3}, 0x00020000')

def mfma(d, a, b, c):
    cs = '0' if c is None else f'v[{c}:{c+3}]'
    A(f'v_mfma_f32_16x16x32_bf16 v[{d}:{d+3}], v[{a}:{a+3}], v[{b}:{b+3}], {cs}')

def gen_prep():
    A.raw('.globl prep_kernel'); A.raw('.p2align 8'); A.raw('.type prep_kernel,@function')
    A.raw('prep_kernel:'); A.reset()
    A('s_cmp_ge_u32 s2, 144')
    A('s_cbranch_scc1 P_done')
    A('s_load_dwordx4 s[4:7], s[0:1], 8')
    A('s_load_dwordx2 s[8:9], s[0:1], 40')
    A('v_and_b32 v1, 15, v0')
    A('v_lshrrev_b32 v2, 4, v0')
    A('v_lshrrev_b32 v3, 2, v1')
    A('v_lshlrev_b32 v3, 3, v3')
    A('v_and_b32 v4, 3, v1')
    A('v_add_u32 v3, v3, v4')
    A('s_cmp_ge_u32 s2, 72')
    A('s_cselect_b32 s20, 72, 0')
    A('s_sub_u32 s21, s2, s20')
    A('s_mul_hi_u32 s22, s21, 0x15555556')
    A('s_mul_i32 s23, s22, 12')
    A('s_sub_u32 s23, s21, s23')
    A('s_and_b32 s24, s23, 1')
    A('s_lshr_b32 s23, s23, 1')
    A('s_waitcnt lgkmcnt(0)')
    srd(12, 4, 5, 192*576*2)
    srd(16, 6, 7, 192*192*2)
    srd(28, 8, 9, WS_BYTES)
    A('s_lshl_b32 s25, s22, 5')
    A('s_lshl_b32 s26, s24, 2')
    A('s_add_u32 s25, s25, s26')
    A('v_add_u32 v5, s25, v3')
    A('s_lshl_b32 s26, s23, 5')
    A('s_cmp_ge_u32 s2, 72')
    A('s_cbranch_scc1 P_vo')
    A('v_mul_u32_u24 v6, 1152, v5')
    A('v_lshl_add_u32 v6, v2, 4, v6')
    for k in range(6):
        A(f'buffer_load_dwordx4 v[{16+4*k}:{19+4*k}], v6, s[12:15], 0 offen offset:{384+64*k}')
    A('v_add_u32 v7, s26, v3')
    A('v_mul_u32_u24 v7, 1152, v7')
    A('v_lshl_add_u32 v7, v2, 4, v7')
    A('v_add_u32 v8, 4608, v7')
    A(f's_mov_b32 s27, {SCALE}')
    A('s_branch P_common')
    A.label('P_vo'); A.reset()
    A('v_mul_u32_u24 v6, 3072, v2')
    A('v_lshl_add_u32 v6, v5, 1, v6')
    for k in range(6):
        A(f's_mov_b32 s27, {k*32*384}')
        for e in range(8):
            A(f'buffer_load_ushort v{100+8*k+e}, v6, s[16:19], s27 offen offset:{e*384}')
    for k in range(24):
        A(f'v_lshl_or_b32 v{16+k}, v{101+2*k}, 16, v{100+2*k}')
    A('v_add_u32 v7, s26, v1')
    A('v_mul_u32_u24 v7, 1152, v7')
    A('v_lshl_add_u32 v7, v2, 4, v7')
    A('v_add_u32 v7, 768, v7')
    A(f'v_add_u32 v8, {16*1152}, v7')
    A('s_mov_b32 s27, 1.0')
    A.label('P_common'); A.reset()
    for hp in range(2):
        for k in range(6):
            A(f'buffer_load_dwordx4 v[{40+24*hp+4*k}:{43+24*hp+4*k}], v{7+hp}, s[12:15], 0 offen offset:{64*k}')
    A('s_waitcnt vmcnt(0)')
    for k in range(6):
        for hp in range(2):
            mfma(88+4*hp, 40+24*hp+4*k, 16+4*k, None if k == 0 else 88+4*hp)
    for r in range(8):
        A(f'v_mul_f32 v{88+r}, s27, v{88+r}')
    for r in range(4):
        A(f'v_cvt_pk_bf16_f32 v{96+r}, v{88+2*r}, v{89+2*r}')
    A('v_lshlrev_b32 v9, 4, v0')
    A('s_lshl_b32 s26, s2, 10')
    A('buffer_store_dwordx4 v[96:99], v9, s[28:31], s26 offen')
    A.label('P_done')
    A('s_endpgm')

S_X, S_OUT, S_WS = 8, 12, 16
sW, sPR, sPC, sTR, sTC = 20, 21, 22, 23, 24
sKR0, sKC0B = 25, 26
sLOR, sHIR, sSHR, sLOC, sHIC = 27, 28, 29, 30, 31
sBASE = 32
sT0, sT1, sT2, sT3 = 33, 34, 35, 36
sC384, sNEG = 37, 38
sDBG = 40
vL, vG, vN = 1, 2, 3
vT = 4
XQ = 16
SACC = 16
QP = 72
ACC = 120
RING = 152
PP = 184
vAS = 216
vAP = 220
vXA = 228
vWA0, vWA1 = 230, 231
WF = 232
vCB = 240
vR0, vR3 = 242, 243
vINV = 244
OST = 248
vDMA = 184

nstamp = [0]
def stamp():
    if not STAMP: return
    i = nstamp[0]; nstamp[0] += 1
    A.raw(f'  s_memtime s[{48+2*i}:{49+2*i}]')

def dma_addr(dst, j, sF, clamp=True, extra=None):
    A(f'v_add_u32 v{vT}, {60*j}, v{vL}')
    A(f'v_xor_b32 v{vT}, {sF}, v{vT}')
    A(f'v_mul_u32_u24 v{vT+1}, 2731, v{vT}')
    A(f'v_lshrrev_b32 v{vT+1}, 16, v{vT+1}')
    A(f'v_mul_u32_u24 v{vT+1}, 384, v{vT+1}')
    A(f'v_lshl_add_u32 v{vT}, v{vT}, 4, v{vT+1}')
    A(f'v_add_u32 v{dst}, s{sKC0B}, v{vT}')

def row_soff(dst, srow_expr_reg):
    A(f's_add_i32 s{dst}, s{sKR0}, {srow_expr_reg}')
    A(f's_lshl_b32 s{dst}, s{dst}, 1')
    A(f's_add_i32 s{dst}, s{dst}, s{sPR}')
    A(f's_max_i32 s{dst}, s{dst}, 0')
    A(f's_min_i32 s{dst}, s{dst}, 223')
    A(f's_mul_i32 s{dst}, s{dst}, 86016')

def gemm_phase(B, areg0, finish, tag, bar_after=(), pre_bar=None, D=6):
    def rd(f):
        if f >= 70: return
        buf = RING + 4*(f % 8)
        if f < 60: A(f'ds_read_b128 v[{buf}:{buf+3}], v{areg0} offset:{f*1024}')
        else: A(f'ds_read_b128 v[{buf}:{buf+3}], v{vWA1} offset:{(f-60)*1024}')
    for f in range(D): rd(f)
    pend = []
    for f in range(72):
        sig, s, h = f // 12, (f % 12) // 2, f % 2
        rd(f + D)
        a = RING + 4*(f % 8) if f < 70 else WF + 4*(f - 70)
        accb = ACC + 16*(sig & 1)
        for G in range(2):
            d = accb + 8*G + 4*h
            mfma(d, a, B + 24*G + 4*s, None if s == 0 else d)
            if f % 12 >= 3:
                for _ in range(2):
                    if pend: A(pend.pop(0))
        if f % 12 == 11:
            assert not pend
            pend = finish(sig, accb)
            if sig in bar_after:
                if pre_bar and sig in pre_bar: A(pre_bar[sig])
                A('s_barrier')
    return pend

def gen_main():
    A.raw('.globl main_kernel'); A.raw('.p2align 8'); A.raw('.type main_kernel,@function')
    A.raw('main_kernel:'); A.reset()
    A('s_cmp_ge_u32 s2, 256')
    A('s_cbranch_scc1 M_done')
    stamp()
    A('s_load_dwordx2 s[4:5], s[0:1], 0')
    A('s_load_dwordx2 s[6:7], s[0:1], 24')
    A('s_load_dwordx2 s[42:43], s[0:1], 40')
    if STAMP: A(f's_load_dwordx2 s[{sDBG}:{sDBG+1}], s[0:1], 32')
    A(f'v_lshrrev_b32 v{vT}, 6, v0')
    A(f'v_and_b32 v{vL}, 63, v0')
    A(f'v_readfirstlane_b32 s{sW}, v{vT}')
    A(f'v_lshrrev_b32 v{vG}, 4, v{vL}')
    A(f'v_and_b32 v{vN}, 15, v{vL}')
    A(f's_and_b32 s{sT0}, s2, 7')
    A(f's_lshr_b32 s{sT1}, s2, 3')
    A(f's_lshr_b32 s{sPR}, s{sT0}, 2')
    A(f's_bfe_u32 s{sPC}, s{sT0}, 0x10001')
    A(f's_and_b32 s{sT0}, s{sT0}, 1')
    A(f's_lshl_b32 s{sT0}, s{sT0}, 2')
    A(f's_lshr_b32 s{sTR}, s{sT1}, 3')
    A(f's_add_u32 s{sTR}, s{sTR}, s{sT0}')
    A(f's_and_b32 s{sTC}, s{sT1}, 7')
    A(f's_mul_i32 s{sTR}, s{sTR}, 14')
    A(f's_mul_i32 s{sTC}, s{sTC}, 14')
    A(f's_mul_i32 s{sT0}, s{sPR}, 6')
    A(f's_add_i32 s{sKR0}, s{sTR}, s{sT0}')
    A(f's_add_i32 s{sKR0}, s{sKR0}, -6')
    A(f's_cmp_eq_i32 s{sKR0}, -6')
    A(f's_cselect_b32 s{sLOR}, 6, 0')
    A(f's_cmp_eq_i32 s{sKR0}, 98')
    A(f's_cselect_b32 s{sHIR}, 7, 13')
    A(f's_cselect_b32 s{sSHR}, 2, 0')
    A(f's_sub_i32 s{sKR0}, s{sKR0}, s{sSHR}')
    A(f's_mul_i32 s{sT0}, s{sPC}, 6')
    A(f's_add_i32 s{sT1}, s{sTC}, s{sT0}')
    A(f's_add_i32 s{sT1}, s{sT1}, -6')
    A(f's_cmp_eq_i32 s{sT1}, -6')
    A(f's_cselect_b32 s{sLOC}, 6, 0')
    A(f's_cmp_eq_i32 s{sT1}, 98')
    A(f's_cselect_b32 s{sHIC}, 7, 13')
    A(f's_lshl_b32 s{sT1}, s{sT1}, 1')
    A(f's_add_i32 s{sT1}, s{sT1}, s{sPC}')
    A(f's_mul_i32 s{sKC0B}, s{sT1}, 384')
    A(f'v_lshlrev_b32 v{vWA0}, 4, v{vL}')
    A('s_waitcnt lgkmcnt(0)')
    srd(S_X, 4, 5, X_BYTES)
    srd(S_OUT, 6, 7, X_BYTES)
    srd(S_WS, 42, 43, WS_BYTES)
    A(f's_mul_i32 s{sT0}, s{sW}, 9216')
    A(f's_min_u32 s{sT0}, s{sT0}, {61*1024}')
    A(f's_add_u32 s{sT1}, s{sT0}, {MBASE}')
    for blk in range(3):
        A(f's_mov_b32 m0, s{sT1}')
        for i in range(3):
            A(f'buffer_load_dwordx4 v{vWA0}, s[{S_WS}:{S_WS+3}], s{sT0} offen offset:{1024*i} lds')
        if blk < 2:
            A(f's_add_u32 s{sT0}, s{sT0}, 3072')
            A(f's_add_u32 s{sT1}, s{sT1}, 3072')
    A(f's_cmp_eq_u32 s{sW}, 7')
    A('s_cbranch_scc1 M_noxq')
    A(f'v_lshrrev_b32 v{vT}, 3, v{vN}')
    A(f's_lshl_b32 s{sT0}, s{sW}, 1')
    A(f's_add_u32 s{sT1}, s{sT0}, s{sTR}')
    A(f'v_add_u32 v{vT+1}, s{sT1}, v{vT}')
    A(f's_mul_i32 s{sT2}, s{sPR}, 13')
    A(f's_add_i32 s{sT2}, s{sT2}, -6')
    A(f'v_lshl_add_u32 v{vT+2}, v{vT+1}, 1, s{sT2}')
    A(f'v_add_u32 v{vT+3}, 112, v{vT+1}')
    A(f'v_med3_i32 v{vT+1}, v{vT+2}, v{vT+1}, v{vT+3}')
    A(f'v_mul_u32_u24 v{vT+1}, 224, v{vT+1}')
    A(f'v_and_b32 v{vT+4}, 7, v{vN}')
    A(f'v_min_u32 v{vT+4}, 6, v{vT+4}')
    A(f's_mul_i32 s{sT2}, s{sPC}, 13')
    A(f's_add_i32 s{sT2}, s{sT2}, -6')
    for G in range(2):
        A(f's_add_u32 s{sT1}, s{sTC}, {7*G}')
        A(f'v_add_u32 v{vT+5}, s{sT1}, v{vT+4}')
        A(f'v_lshl_add_u32 v{vT+2}, v{vT+5}, 1, s{sT2}')
        A(f'v_add_u32 v{vT+3}, 112, v{vT+5}')
        A(f'v_med3_i32 v{vT+5}, v{vT+2}, v{vT+5}, v{vT+3}')
        A(f'v_add_u32 v{vT+5}, v{vT+5}, v{vT+1}')
        A(f'v_mul_u32_u24 v{vT+5}, 384, v{vT+5}')
        A(f'v_lshl_add_u32 v{vXA+G}, v{vG}, 4, v{vT+5}')
    for s in range(6):
        for G in range(2):
            A(f'buffer_load_dwordx4 v[{XQ+24*G+4*s}:{XQ+24*G+4*s+3}], v{vXA+G}, s[{S_X}:{S_X+3}], 0 offen offset:{64*s}')
    A(f's_mov_b32 s{sT0}, {70*1024}')
    for i in range(2):
        A(f'buffer_load_dwordx4 v[{WF+4*i}:{WF+4*i+3}], v{vWA0}, s[{S_WS}:{S_WS+3}], s{sT0} offen offset:{1024*i}')
    saved_vm = list(A.vm)
    A.label('M_noxq')
    def Fof(dst, src):
        A(f's_and_b32 s{dst}, s{src}, 1')
        A(f's_lshl_b32 s{dst}, s{dst}, 3')
        A(f's_and_b32 s{sT3}, s{src}, 6')
        A(f's_or_b32 s{dst}, s{dst}, s{sT3}')
    Fof(sT0, sW)
    for j in range(4):
        dma_addr(vDMA + j, j, f's{sT0}')
        A(f'v_add_u32 v{vDMA+4+j}, {ROWB}, v{vDMA+j}')
        A(f'v_max_i32 v{vDMA+j}, 0, v{vDMA+j}')
    row_soff(sT1, f's{sW}')
    A(f's_mul_i32 s{sT2}, s{sW}, {ROWB}')
    A('s_mov_b32 exec_hi, 0x0fffffff')
    for j in range(8):
        A(f's_mov_b32 m0, s{sT2}')
        A(f's_add_u32 s{sT2}, s{sT2}, 960')
        A(f'buffer_load_dwordx4 v{vDMA+j}, s[{S_X}:{S_X+3}], s{sT1} offen lds')
    A('s_mov_b64 exec, -1')
    A(f's_and_b32 s{sT2}, s{sW}, 3')
    Fof(sT0, sT2)
    A(f's_lshr_b32 s{sT1}, s{sW}, 2')
    A(f's_mul_i32 s{sT3}, s{sT1}, {ROWB}')
    for j in range(4):
        dma_addr(vDMA + 8 + j, j, f's{sT0}')
        A(f'v_add_u32 v{vDMA+8+j}, s{sT3}, v{vDMA+8+j}')
        A(f'v_max_i32 v{vDMA+8+j}, 0, v{vDMA+8+j}')
    A(f's_add_u32 s{sT2}, s{sT2}, 8')
    A(f's_mul_i32 s{sT0}, s{sT1}, 3840')
    row_soff(sT1, f's{sT2}')
    A(f's_mul_i32 s{sT2}, s{sT2}, {ROWB}')
    A(f's_add_u32 s{sT2}, s{sT2}, s{sT0}')
    A('s_mov_b32 exec_hi, 0x0fffffff')
    for j in range(4):
        A(f's_mov_b32 m0, s{sT2}')
        A(f's_add_u32 s{sT2}, s{sT2}, 960')
        A(f'buffer_load_dwordx4 v{vDMA+8+j}, s[{S_X}:{S_X+3}], s{sT1} offen lds')
    A('s_mov_b64 exec, -1')
    A(f's_cmp_eq_u32 s{sW}, 7')
    A('s_cbranch_scc1 M_helper')
    A(f's_lshl_b32 s{sT0}, s{sW}, 1')
    A(f's_max_i32 s{sBASE}, s{sT0}, s{sLOR}')
    A(f's_min_i32 s{sBASE}, s{sBASE}, s{sHIR}')
    A(f's_and_b32 s{sBASE}, s{sBASE}, -2')
    A(f'v_lshrrev_b32 v{vT}, 3, v{vN}')
    A(f'v_add_u32 v{vT}, s{sT0}, v{vT}')
    A(f'v_max_i32 v{vT}, s{sLOR}, v{vT}')
    A(f'v_min_i32 v{vT}, s{sHIR}, v{vT}')
    A(f'v_subrev_u32 v{vT}, s{sBASE}, v{vT}')
    A(f's_add_u32 s{sBASE}, s{sBASE}, s{sSHR}')
    A(f's_mov_b32 s{sNEG}, {NEGINF}')
    A(f'v_and_b32 v{vT+1}, 1, v{vG}')
    A(f'v_sub_u32 v{vT+2}, v{vT+1}, v{vT}')
    A(f'v_ashrrev_i32 v{vR0}, 31, v{vT+2}')
    A(f'v_and_b32 v{vR0}, s{sNEG}, v{vR0}')
    A(f'v_sub_u32 v{vT+2}, v{vT}, v{vT+1}')
    A(f'v_ashrrev_i32 v{vR3}, 31, v{vT+2}')
    A(f'v_and_b32 v{vR3}, s{sNEG}, v{vR3}')
    A(f'v_and_b32 v{vT}, 7, v{vN}')
    A(f'v_min_u32 v{vT}, 6, v{vT}')
    A(f'v_lshrrev_b32 v{vT+1}, 1, v{vG}')
    A(f'v_mov_b32 v{vT+3}, 0x7f')
    for G in range(2):
        A(f'v_add_u32 v{vT+2}, {7*G}, v{vT}')
        A(f'v_max_i32 v{vT+2}, s{sLOC}, v{vT+2}')
        A(f'v_min_i32 v{vT+2}, s{sHIC}, v{vT+2}')
        A(f'v_lshlrev_b32 v{vT+2}, v{vT+2}, v{vT+3}')
        A(f'v_lshrrev_b32 v{vT+2}, v{vT+1}, v{vT+2}')
        A(f'v_not_b32 v{vCB+G}, v{vT+2}')
    def Fv(dst, row):
        A(f'v_and_b32 v{dst}, 1, v{row}')
        A(f'v_lshlrev_b32 v{dst}, 3, v{dst}')
        A(f'v_and_or_b32 v{dst}, v{row}, 6, v{dst}')
    A(f'v_and_b32 v{vT}, 7, v{vN}')
    A(f'v_add_u32 v{vT}, s{sBASE}, v{vT}')
    Fv(vT+1, vT)
    A(f'v_mul_u32_u24 v{vT}, {ROWB}, v{vT}')
    A(f'v_lshrrev_b32 v{vT+2}, 3, v{vN}')
    A(f'v_mul_u32_u24 v{vT+2}, 24, v{vT+2}')
    A(f'v_add_u32 v{vT+2}, v{vT+2}, v{vG}')
    for s in range(4):
        A(f'v_add_u32 v{vT+3}, {4*s}, v{vT+2}')
        A(f'v_xor_b32 v{vT+3}, v{vT+3}, v{vT+1}')
        A(f'v_lshl_add_u32 v{vAS+s}, v{vT+3}, 4, v{vT}')
    A(f'v_and_b32 v{vT}, 1, v{vG}')
    A(f'v_lshlrev_b32 v{vT}, 2, v{vT}')
    A(f'v_lshrrev_b32 v{vT+1}, 2, v{vN}')
    A(f'v_add3_u32 v{vT}, v{vT}, v{vT+1}, s{sBASE}')
    Fv(vT+1, vT)
    A(f'v_mul_u32_u24 v{vT}, {ROWB}, v{vT}')
    A(f'v_and_b32 v{vT+2}, 1, v{vN}')
    A(f'v_lshl_add_u32 v{vT}, v{vT+2}, 3, v{vT}')
    A(f'v_lshrrev_b32 v{vT+2}, 1, v{vG}')
    A(f'v_mul_u32_u24 v{vT+2}, 24, v{vT+2}')
    A(f'v_bfe_u32 v{vT+3}, v{vN}, 1, 1')
    A(f'v_add_u32 v{vT+2}, v{vT+2}, v{vT+3}')
    for ct in range(8):
        A(f'v_add_u32 v{vT+3}, {2*ct}, v{vT+2}')
        A(f'v_xor_b32 v{vT+3}, v{vT+3}, v{vT+1}')
        A(f'v_lshl_add_u32 v{vAP+ct}, v{vT+3}, 4, v{vT}')
    A(f'v_add_u32 v{vWA1}, {SPARE}, v{vWA0}')
    A(f'v_add_u32 v{vT+7}, {MBASE}, v{vWA0}')
    A('s_waitcnt vmcnt(26)')
    A('s_barrier')
    stamp()
    def finA(sig, accb):
        out = []
        for G in range(2):
            for q in range(4):
                out.append(f'v_cvt_pk_bf16_f32 v{QP+24*G+4*sig+q}, v{accb+8*G+2*q}, v{accb+8*G+2*q+1}')
        return out
    pend = gemm_phase(XQ, vT+7, finA, 'A', bar_after=(1, 3, 5), pre_bar={3: 's_waitcnt vmcnt(0)'})
    stamp()
    A(f's_mov_b32 s{sT0}, {(72+70)*1024}')
    for i in range(2):
        A(f'buffer_load_dwordx4 v[{WF+4*i}:{WF+4*i+3}], v{vWA0}, s[{S_WS}:{S_WS+3}], s{sT0} offen offset:{1024*i}')
    A(f's_cmp_lt_u32 s{sW}, 4')
    A('s_cbranch_scc1 M_e1')
    A.skip('s_barrier')
    A.skip('s_branch M_e1b')
    A.label('M_e1')
    A.skip('s_setprio 1')
    A.label('M_e1b')
    for t in pend: A(t)
    def sreg(G, tl): return SACC + 28*G + 4*tl
    def init_mask(G, tl):
        tau = tl + 3*G
        r = sreg(G, tl)
        return [f'v_bfe_i32 v{r+2}, v{vCB+G}, {2*tau}, 1',
                f'v_and_b32 v{r+1}, s{sNEG}, v{r+2}',
                f'v_and_b32 v{r+2}, s{sNEG}, v{r+2}',
                f'v_or_b32 v{r}, v{r+1}, v{vR0}',
                f'v_or_b32 v{r+3}, v{r+1}, v{vR3}']
    seq = []
    for (t1, t2) in ((0, 3), (1, 4), (2, 5), (7, 6), (8, 9)):
        for s in range(6):
            seq.append((t1, s)); seq.append((t2, s))
    def users(tau):
        u = []
        if tau <= 6: u.append((0, tau))
        if tau >= 3: u.append((1, tau - 3))
        return u
    def rdS(i):
        if i >= len(seq): return
        tau, s = seq[i]
        buf = RING + 4*(i % 8)
        A(f'ds_read_b128 v[{buf}:{buf+3}], v{vAS + (s % 4)} offset:{tau*768 + (256 if s >= 4 else 0)}')
    D = 7
    for i in range(D): rdS(i)
    order = []
    for i in range(0, len(seq), 12):
        order.append([u for tau in (seq[i][0], seq[i+1][0]) for u in users(tau)])
    for (G, tl) in order[0]:
        for t in init_mask(G, tl): A(t)
    pend = []
    for i, (tau, s) in enumerate(seq):
        if i % 12 == 0 and i // 12 + 1 < len(order):
            assert not pend
            pend = [t for (G, tl) in order[i // 12 + 1] for t in init_mask(G, tl)]
        rdS(i + D)
        a = RING + 4*(i % 8)
        for (G, tl) in users(tau):
            r = sreg(G, tl)
            mfma(r, a, QP + 24*G + 4*s, r)
            if pend: A(pend.pop(0))
        if i % 12 == 11:
            while pend: A(pend.pop(0))
    stamp()
    A(f's_cmp_ge_u32 s{sW}, 4')
    A('s_cbranch_scc1 M_l1')
    A.skip('s_barrier')
    A.label('M_l1')
    vM = [vT, vT+1]; vX = [vT+2, vT+3]; vSum = [vT+4, vT+5]
    for G in range(2):
        b = sreg(G, 0)
        A(f'v_max3_f32 v{vM[G]}, v{b}, v{b+1}, v{b+2}')
        A(f'v_max3_f32 v{vX[G]}, v{b+3}, v{b+4}, v{b+5}')
    for k in range(6, 26, 4):
        for G in range(2):
            b = sreg(G, 0)
            A(f'v_max3_f32 v{vM[G]}, v{vM[G]}, v{b+k}, v{b+k+1}')
            A(f'v_max3_f32 v{vX[G]}, v{vX[G]}, v{b+k+2}, v{b+k+3}')
    for G in range(2):
        b = sreg(G, 0)
        A(f'v_max3_f32 v{vM[G]}, v{vM[G]}, v{b+26}, v{b+27}')
    for G in range(2):
        A(f'v_max_f32 v{vM[G]}, v{vM[G]}, v{vX[G]}')
    def xlane(vals, tmps, op):
        for sw in ('v_permlane32_swap_b32', 'v_permlane16_swap_b32'):
            for G in range(2): A(f'v_mov_b32 v{tmps[G]}, v{vals[G]}')
            for G in range(2): A(f'{sw} v{vals[G]}, v{tmps[G]}')
            for G in range(2): A(f'{op} v{vals[G]}, v{vals[G]}, v{tmps[G]}')
    xlane(vM, vX, 'v_max_f32')
    def preg(G, tl):
        return PP + 16*G + 2*(tl + G)
    A(f'v_mov_b32 v{PP+14}, 0'); A(f'v_mov_b32 v{PP+15}, 0')
    A(f'v_mov_b32 v{PP+16}, 0'); A(f'v_mov_b32 v{PP+17}, 0')
    for tl in range(7):
        for G in range(2):
            r = sreg(G, tl)
            for k in range(4): A(f'v_sub_f32 v{r+k}, v{r+k}, v{vM[G]}')
            for k in range(4): A(f'v_exp_f32 v{r+k}, v{r+k}')
        for G in range(2):
            r = sreg(G, tl)
            p = preg(G, tl)
            A(f'v_cvt_pk_bf16_f32 v{p}, v{r}, v{r+1}')
            A(f'v_cvt_pk_bf16_f32 v{p+1}, v{r+2}, v{r+3}')
            A(f'v_add_f32 v{r}, v{r}, v{r+1}')
            A(f'v_add_f32 v{r+2}, v{r+2}, v{r+3}')
            if tl == 0:
                A(f'v_add_f32 v{vSum[G]}, v{r}, v{r+2}')
            else:
                A(f'v_add_f32 v{r}, v{r}, v{r+2}')
                A(f'v_add_f32 v{vSum[G]}, v{vSum[G]}, v{r}')
    xlane(vSum, vX, 'v_add_f32')
    for G in range(2): A(f'v_rcp_f32 v{vINV+G}, v{vSum[G]}')
    stamp()
    A(f's_cmp_lt_u32 s{sW}, 4')
    A('s_cbranch_scc1 M_e2')
    A.skip('s_barrier')
    A.label('M_e2')
    seq = [(sig, u, h) for sig in range(6) for u in range(5) for h in range(2)]
    def rdP(i):
        if i >= len(seq): return
        sig, u, h = seq[i]
        ct = 2*sig + h
        buf = RING + 4*(i % 8)
        for hh in range(2):
            A(f'ds_read_b64_tr_b16 v[{buf+2*hh}:{buf+2*hh+1}], v{vAP + (ct % 8)} offset:{(4*u+2*hh)*384 + (256 if ct >= 8 else 0)}')
    D = 6
    for i in range(D): rdP(i)
    pend = []
    for i, (sig, u, h) in enumerate(seq):
        rdP(i + D)
        a = RING + 4*(i % 8)
        accb = ACC + 16*(sig & 1)
        for G in range(2):
            uu = u - G
            if 0 <= uu <= 3:
                d = accb + 8*G + 4*h
                mfma(d, a, PP + 16*G + 4*uu, None if uu == 0 else d)
                if i % 10 >= 4 and pend: A(pend.pop(0))
        if i % 10 == 9:
            assert not pend
            pend = finA(sig, accb)
    stamp()
    A(f's_cmp_ge_u32 s{sW}, 4')
    A('s_cbranch_scc1 M_l2')
    A.skip('s_barrier')
    A.skip('s_setprio 0')
    A.label('M_l2')
    for t in pend: A(t)
    A(f'v_and_b32 v{vT}, 7, v{vN}')
    A(f'v_cmp_eq_u32 vcc, 7, v{vT}')
    A(f'v_mov_b32 v{vT+1}, 0x7ff00000')
    for G in range(2):
        A(f'v_cndmask_b32 v{vXA+G}, v{vXA+G}, v{vT+1}, vcc')
    A('s_barrier')
    stamp()
    def finE(sig, accb):
        out = []
        for G in range(2):
            for q in range(8):
                out.append(f'v_mul_f32 v{accb+8*G+q}, v{accb+8*G+q}, v{vINV+G}')
            for q in range(4):
                out.append(f'v_cvt_pk_bf16_f32 v{OST+4*G+q}, v{accb+8*G+2*q}, v{accb+8*G+2*q+1}')
            out.append(f'buffer_store_dwordx4 v[{OST+4*G}:{OST+4*G+3}], v{vXA+G}, s[{S_OUT}:{S_OUT+3}], 0 offen offset:{64*sig}')
        return out
    pend = gemm_phase(QP, vWA0, finE, 'E')
    for t in pend: A(t)
    if STAMP:
        stamp()
        A('s_waitcnt vmcnt(0)')
        stamp()
        write_stamps()
    A('s_endpgm')

    A.label('M_helper'); A.reset()
    HA = 16
    A('s_waitcnt vmcnt(12)')
    A('s_barrier')
    for i in range(12, 20):
        F = (i & 6) | ((i & 1) << 3)
        b = HA + 8*(i - 12)
        for j in range(4):
            dma_addr(b + j, j, str(F))
            A(f'v_add_u32 v{b+4+j}, {ROWB}, v{b+j}')
            A(f'v_max_i32 v{b+j}, 0, v{b+j}')
    A('s_mov_b32 exec_hi, 0x0fffffff')
    def rows(lst):
        for i in lst:
            row_soff(sT1, str(i))
            b = HA + 8*(i - 12)
            for j in range(8):
                A(f's_mov_b32 m0, {i*ROWB + 960*j}')
                A(f'buffer_load_dwordx4 v{b+j}, s[{S_X}:{S_X+3}], s{sT1} offen lds')
    A('s_barrier')
    rows([12, 13, 14])
    A('s_barrier')
    rows([15, 16, 17])
    A('s_waitcnt vmcnt(0)')
    A('s_barrier')
    rows([18, 19])
    A('s_mov_b64 exec, -1')
    def wfr(f0, n, lds0):
        for i in range(n):
            if i % 4 == 0:
                A(f's_mov_b32 m0, {lds0 + i*1024}')
                A(f's_mov_b32 s{sT0}, {(72 + f0 + i)*1024}')
            A(f'buffer_load_dwordx4 v{vWA0}, s[{S_WS}:{S_WS+3}], s{sT0} offen offset:{1024*(i%4)} lds')
    wfr(60, 10, SPARE)
    A('s_waitcnt vmcnt(10)')
    A('s_barrier')
    A('s_barrier')
    wfr(0, 60, 0)
    A('s_waitcnt vmcnt(0)')
    A('s_barrier')
    A.label('M_done')
    A('s_endpgm')

def write_stamps():
    n = nstamp[0]
    A('s_waitcnt lgkmcnt(0)')
    A(f'v_mov_b32 v{vT}, 0')
    for i in range(n):
        A(f'v_writelane_b32 v{vT}, s{48+2*i}, {i}')
    A(f's_lshl_b32 s{sT0}, s2, 3')
    A(f's_add_u32 s{sT0}, s{sT0}, s{sW}')
    A(f's_lshl_b32 s{sT0}, s{sT0}, 6')
    A(f's_add_u32 s{sT0}, s{sT0}, 0x100000')
    A(f'v_lshlrev_b32 v{vT+1}, 2, v{vL}')
    A('s_mov_b64 exec, 0xffff')
    A(f'buffer_store_dword v{vT}, v{vT+1}, s[{S_WS}:{S_WS+3}], s{sT0} offen')

gen_prep()
gen_main()
A.raw('.section .rodata,"a"')
for k, nv in (('prep_kernel', 152), ('main_kernel', 256)):
    A.raw('.p2align 6')
    A.raw(f'.amdhsa_kernel {k}')
    A.raw(f'  .amdhsa_next_free_vgpr {nv}')
    A.raw('  .amdhsa_next_free_sgpr 102')
    A.raw(f'  .amdhsa_accum_offset {nv}')
    A.raw('  .amdhsa_group_segment_fixed_size 0')
    A.raw('  .amdhsa_kernarg_size 48')
    A.raw('  .amdhsa_user_sgpr_count 2')
    A.raw('  .amdhsa_user_sgpr_kernarg_segment_ptr 1')
    A.raw('  .amdhsa_system_sgpr_workgroup_id_x 1')
    A.raw('.end_amdhsa_kernel')
open(OUT, 'w').write(A.text())
print('instr', A.n_inst, 'nops', A.nops, 'maxv', A.maxv)
```

```python
import sys, struct
sys.path.insert(0, 'gen')
from asmlib import Asm

OUT = sys.argv[1] if len(sys.argv) > 1 else 'standalone__neighborhood_nat__vision.s'
OPT = dict(a.split('=') if '=' in a else (a, '1') for a in sys.argv[2:])
STAMP = 'stamp' in OPT
XNT = ' nt' if OPT.get('xnt', '1') == '1' else ''
KNT = ' nt' if OPT.get('knt', '0') == '1' else ''
ONT = ' nt' if OPT.get('ont', '0') == '1' else ''
SIG = OPT.get('sig', 'atom')
NAME = 'standalone__neighborhood_nat__vision_kernel'

X_BYTES = 19267584
WS_BYTES = 268435456
ROWB = 7680
MBASE = 92160
SPARE = 153600
STG = 11520
def f32bits(x): return struct.unpack('<I', struct.pack('<f', x))[0]
SCALE = f32bits(192 ** -0.5 * 1.4426950408889634)
NEGINF = 0xff800000

A = Asm()
hdr = open('standalone__neighborhood_nat__vision.s.ref').read().split('\n')
for ln in hdr:
    if ln.startswith('; @launch'): break
    A.raw(ln)
A.raw('; @launch grid=(256,1,1) block=(512,1,1) lds=163840')
A.raw('.amdgcn_target "amdgcn-amd-amdhsa--gfx950"')
A.raw('.text')

def srd(d, lo, hi, nbytes):
    A(f's_mov_b32 s{d}, s{lo}'); A(f's_and_b32 s{d+1}, s{hi}, 0xffff')
    A(f's_mov_b32 s{d+2}, {nbytes}'); A(f's_mov_b32 s{d+3}, 0x00020000')
def mfma(d, a, b, c):
    cs = '0' if c is None else f'v[{c}:{c+3}]'
    A(f'v_mfma_f32_16x16x32_bf16 v[{d}:{d+3}], v[{a}:{a+3}], v[{b}:{b+3}], {cs}')

S_X, S_OUT, S_WS, S_W, S_WO, S_DBG = 16, 20, 24, 28, 32, 36
sW, sPR, sPC, sTR, sTC = 40, 41, 42, 43, 44
sKR0, sKC0B = 45, 46
sLOR, sHIR, sSHR, sLOC, sHIC = 47, 48, 49, 50, 51
sBASE, sSTRIP, sNEG = 52, 53, 54
sT0, sT1, sT2, sT3, sT4, sT5 = 55, 56, 57, 58, 59, 60
sALR, sALC = 61, 62
sST = 64
vL, vG, vN = 1, 2, 3
vT = 4
XQ = 16
PP = 16
vOA = 48
vINV = 56
SACC = 64
OST = 64
QP = 120
ACC = 168
RING = 200
WF = 232
vAS = 240
vAP = 244
vWA0, vWA1, vWAM = 252, 253, 254
vDMA = 120

nstamp = [0]
def stamp(real=None):
    if not STAMP: return
    i = nstamp[0]; nstamp[0] += 1
    A.raw(f'  s_memtime s[{sST+2*i}:{sST+1+2*i}]')
    if real is not None:
        A.raw(f'  s_memrealtime s[{96+2*real}:{97+2*real}]')
def write_stamps():
    n = nstamp[0]
    A('s_waitcnt lgkmcnt(0)')
    A(f'v_mov_b32 v{vT}, 0')
    for i in range(n):
        A(f'v_writelane_b32 v{vT}, s{sST+2*i}, {i}')
    A(f'v_writelane_b32 v{vT}, s96, 14')
    A(f'v_writelane_b32 v{vT}, s98, 15')
    A(f's_lshl_b32 s{sT0}, s2, 3')
    A(f's_add_u32 s{sT0}, s{sT0}, s{sW}')
    A(f's_lshl_b32 s{sT0}, s{sT0}, 6')
    A(f's_add_u32 s{sT0}, s{sT0}, 0x100000')
    A(f'v_lshlrev_b32 v{vT+1}, 2, v{vL}')
    A('s_mov_b64 exec, 0xffff')
    A(f'buffer_store_dword v{vT}, v{vT+1}, s[{S_WS}:{S_WS+3}], s{sT0} offen')

def dma_addr(dst, j, sF):
    A(f'v_add_u32 v{vT}, {60*j}, v{vL}')
    A(f'v_xor_b32 v{vT}, {sF}, v{vT}')
    A(f'v_mul_u32_u24 v{vT+1}, 2731, v{vT}')
    A(f'v_lshrrev_b32 v{vT+1}, 16, v{vT+1}')
    A(f'v_mul_u32_u24 v{vT+1}, 384, v{vT+1}')
    A(f'v_lshl_add_u32 v{vT}, v{vT}, 4, v{vT+1}')
    A(f'v_add_u32 v{dst}, s{sKC0B}, v{vT}')
def row_soff(dst, srow):
    A(f's_add_i32 s{dst}, s{sKR0}, {srow}')
    A(f's_lshl_b32 s{dst}, s{dst}, 1')
    A(f's_add_i32 s{dst}, s{dst}, s{sPR}')
    A(f's_max_i32 s{dst}, s{dst}, 0')
    A(f's_min_i32 s{dst}, s{dst}, 223')
    A(f's_mul_i32 s{dst}, s{dst}, 86016')
def Fof(dst, src):
    A(f's_and_b32 s{dst}, s{src}, 1')
    A(f's_lshl_b32 s{dst}, s{dst}, 3')
    A(f's_and_b32 s{sT5}, s{src}, 6')
    A(f's_or_b32 s{dst}, s{dst}, s{sT5}')
def spix(dst, sa, salpha):
    A(f's_lshl_b32 s{dst}, s{sa}, 1')
    A(f's_add_i32 s{dst}, s{dst}, s{salpha}')
    A(f's_max_i32 s{dst}, s{dst}, s{sa}')
    A(f's_add_i32 s{sT5}, s{sa}, 112')
    A(f's_min_i32 s{dst}, s{dst}, s{sT5}')

def xshare_addr():
    A(f's_mul_i32 s{sT0}, s{sW}, 3')
    A(f's_add_u32 s{sT0}, s{sT0}, 1')
    A(f's_lshr_b32 s{sT0}, s{sT0}, 1')
    A(f's_and_b32 s{sT1}, s{sW}, 1')
    A(f's_lshl_b32 s{sT2}, s{sT1}, 1')
    A(f's_add_u32 s{sT3}, s{sT0}, 1')
    A(f's_sub_u32 s{sT3}, s{sT3}, s{sT2}')
    Fof(sT2, sT0)
    for j in range(4):
        dma_addr(vDMA + j, j, f's{sT2}')
        A(f'v_add_u32 v{vDMA+4+j}, {ROWB}, v{vDMA+j}')
        A(f'v_max_i32 v{vDMA+j}, 0, v{vDMA+j}')
    Fof(sT2, sT3)
    A(f's_mul_i32 s{sT4}, s{sT1}, {ROWB}')
    for j in range(4):
        dma_addr(vDMA + 8 + j, j, f's{sT2}')
        A(f'v_add_u32 v{vDMA+8+j}, s{sT4}, v{vDMA+8+j}')
        A(f'v_max_i32 v{vDMA+8+j}, 0, v{vDMA+8+j}')
def xshare_issue():
    row_soff(sT2, f's{sT0}')
    A(f's_mul_i32 s{sT0}, s{sT0}, {ROWB}')
    A('s_mov_b32 exec_hi, 0x0fffffff')
    for j in range(8):
        A(f's_mov_b32 m0, s{sT0}')
        A(f's_add_u32 s{sT0}, s{sT0}, 960')
        A(f'buffer_load_dwordx4 v{vDMA+j}, s[{S_X}:{S_X+3}], s{sT2} offen{KNT} lds')
    row_soff(sT2, f's{sT3}')
    A(f's_mul_i32 s{sT3}, s{sT3}, {ROWB}')
    A(f's_mul_i32 s{sT1}, s{sT1}, 3840')
    A(f's_add_u32 s{sT3}, s{sT3}, s{sT1}')
    for j in range(4):
        A(f's_mov_b32 m0, s{sT3}')
        A(f's_add_u32 s{sT3}, s{sT3}, 960')
        A(f'buffer_load_dwordx4 v{vDMA+8+j}, s[{S_X}:{S_X+3}], s{sT2} offen{KNT} lds')
    A('s_mov_b32 exec_hi, -1')

def mf(d, a, b, c):
    cs = '0' if c is None else f'v[{c}:{c+3}]'
    return f'v_mfma_f32_16x16x32_bf16 v[{d}:{d+3}], v[{a}:{a+3}], v[{b}:{b+3}], {cs}'

def stream(ms, mem, side, hooks=None, cap=2):
    side = [x if len(x) == 3 else (x[0], x[1], 10**9) for x in side]
    def slots(lo, hi):
        return sum(max(0, cap - len(mem.get(k, []))) for k in range(lo, hi + 1))
    for i, m in enumerate(ms):
        assert not (side and side[0][2] < i), ('deadline missed', side[0], i)
        A(m)
        if i + 1 < len(ms) and not (hooks and i in hooks): A.prewait(ms[i+1])
        n = 0
        for t in mem.get(i, []):
            A(t); n += 1
        c = cap
        if side and side[0][2] < len(ms):
            dl = side[0][2]
            if sum(1 for x in side if x[2] == dl) > slots(i, dl): c = cap + 1
        while side and n < c and side[0][0] <= i:
            A(side.pop(0)[1]); n += 1
        if hooks and i in hooks: hooks[i]()
    return [x[1] for x in side]

def gemm_phase(B, loc, finish, swap=False, hooks=None, D=6, gate=None, side0=()):
    def rd(f):
        l = loc(f)
        if l[0] == 'lds':
            buf = RING + 4*(f % 8)
            return [f'ds_read_b128 v[{buf}:{buf+3}], v{l[1]} offset:{l[2]}']
        return []
    ms, mem, side, hk = [], {}, [(0, t) for t in side0], {}
    for f in range(D):
        for t in rd(f): A(t)
    for f in range(72):
        sig, s, h = f // 12, (f % 12) // 2, f % 2
        l = loc(f)
        a = RING + 4*(f % 8) if l[0] == 'lds' else l[1]
        accb = ACC + 16*(sig & 1)
        for G in range(2):
            d = accb + 8*G + 4*h
            b = B + 24*G + 4*s
            ms.append(mf(d, b, a, None if s == 0 else d) if swap else mf(d, a, b, None if s == 0 else d))
        fn = f + D
        if fn < 72 and not (gate is not None and f < gate <= fn):
            mem[2*f] = rd(fn)
        if f % 12 == 11:
            side += [(2*f + 1 + 3, t, 2*f + 1 + 24) for t in finish(sig, accb)]
            if hooks and sig in hooks:
                def mk(sig=sig, f=f):
                    def h():
                        hooks[sig]()
                        if gate is not None and f + 1 == gate:
                            for k in range(gate, gate + D):
                                for t in rd(k): A(t)
                    return h
                hk[2*f + 1] = mk()
    return stream(ms, mem, side, hk)

def poll(label, off):
    A(f'v_mov_b32 v{vT+2}, 0')
    A(f's_mov_b32 s{sT4}, 0')
    A('s_mov_b64 exec, 1')
    A.label(label)
    A(f'buffer_load_dword v{vT+3}, v{vT+2}, s[{S_DBG}:{S_DBG+3}], 0 offen offset:{off} sc1')
    A('s_waitcnt vmcnt(0)')
    A(f'v_cmp_eq_u32 vcc, 0, v{vT+3}')
    A(f's_add_u32 s{sT4}, s{sT4}, 1')
    A(f's_cmp_gt_u32 s{sT4}, 200000')
    A(f's_cbranch_scc1 {label}_x')
    A('s_cmp_lg_u64 vcc, 0')
    A(f's_cbranch_scc0 {label}_x')
    A(f's_sleep {OPT.get("sleep", "2")}')
    A(f's_branch {label}')
    A.label(label + '_x')
    A('s_mov_b64 exec, -1')

def prep_task():
    A(f's_cmp_ge_u32 s2, 72')
    A(f's_cselect_b32 s{sT0}, 72, 0')
    A(f's_sub_u32 s{sT0}, s2, s{sT0}')
    A(f's_mul_hi_u32 s{sT1}, s{sT0}, 0x15555556')
    A(f's_mul_i32 s{sT2}, s{sT1}, 12')
    A(f's_sub_u32 s{sT2}, s{sT0}, s{sT2}')
    A(f's_and_b32 s{sT3}, s{sT2}, 1')
    A(f's_lshr_b32 s{sT2}, s{sT2}, 1')
    A(f's_lshl_b32 s{sT2}, s{sT2}, 5')
    A(f's_cmp_ge_u32 s2, 72')
    A('s_cbranch_scc1 P_vo')
    A(f'v_lshrrev_b32 v4, 2, v{vN}')
    A(f'v_and_b32 v5, 3, v{vN}')
    A('v_lshl_add_u32 v4, v4, 3, v5')
    A('v_mul_u32_u24 v4, 1152, v4')
    A(f'v_lshl_add_u32 v4, v{vG}, 4, v4')
    A(f's_lshl_b32 s{sT1}, s{sT1}, 5')
    A(f's_lshl_b32 s{sT3}, s{sT3}, 2')
    A(f's_add_u32 s{sT1}, s{sT1}, s{sT3}')
    A(f's_mul_i32 s{sT1}, s{sT1}, 1152')
    A(f's_mul_i32 s{sT2}, s{sT2}, 1152')
    A(f's_add_u32 s{sT3}, s{sT2}, 4608')
    for k in range(6):
        A(f'buffer_load_dwordx4 v[{16+4*k}:{19+4*k}], v4, s[{S_W}:{S_W+3}], s{sT1} offen offset:{384+64*k}')
        A(f'buffer_load_dwordx4 v[{40+4*k}:{43+4*k}], v4, s[{S_W}:{S_W+3}], s{sT2} offen offset:{64*k}')
        A(f'buffer_load_dwordx4 v[{64+4*k}:{67+4*k}], v4, s[{S_W}:{S_W+3}], s{sT3} offen offset:{64*k}')
    A(f's_mov_b32 s{sT4}, {SCALE}')
    A('s_branch P_common')
    A.label('P_vo'); A.reset()
    A(f's_lshl_b32 s{sT1}, s{sT1}, 1')
    A(f's_add_u32 s{sT1}, s{sT1}, s{sT3}')
    A(f's_lshr_b32 s{sT3}, s{sT1}, 2')
    A(f's_lshl_b32 s{sT3}, s{sT3}, 6')
    A(f's_and_b32 s{sT1}, s{sT1}, 3')
    A(f's_add_u32 s{sT1}, s{sT1}, s{sT3}')
    A(f's_lshl_b32 s{sT1}, s{sT1}, 1')
    A(f'v_mul_u32_u24 v6, 3072, v{vG}')
    A(f'v_lshl_add_u32 v6, v{vN}, 3, v6')
    A(f'v_mul_u32_u24 v4, 1152, v{vN}')
    A(f'v_lshl_add_u32 v4, v{vG}, 4, v4')
    A(f's_mul_i32 s{sT2}, s{sT2}, 1152')
    A(f's_add_u32 s{sT3}, s{sT2}, {16*1152}')
    for k in range(6):
        A(f'buffer_load_dwordx4 v[{40+4*k}:{43+4*k}], v4, s[{S_W}:{S_W+3}], s{sT2} offen offset:{768+64*k}')
        A(f'buffer_load_dwordx4 v[{64+4*k}:{67+4*k}], v4, s[{S_W}:{S_W+3}], s{sT3} offen offset:{768+64*k}')
    for k in range(6):
        for e in range(8):
            A(f'buffer_load_ushort v{100+8*k+e}, v6, s[{S_WO}:{S_WO+3}], s{sT1} offen offset:{e*384}')
        A(f's_add_u32 s{sT1}, s{sT1}, {32*384}')
    for k in range(24):
        A(f'v_lshl_or_b32 v{16+k}, v{101+2*k}, 16, v{100+2*k}')
    A(f's_mov_b32 s{sT4}, 1.0')
    A.label('P_common'); A.reset()
    A('s_waitcnt vmcnt(0)')
    stamp()
    for k in range(6):
        for hp in range(2):
            mfma(88+4*hp, 40+24*hp+4*k, 16+4*k, None if k == 0 else 88+4*hp)
    for r in range(8):
        A(f'v_mul_f32 v{88+r}, s{sT4}, v{88+r}')
    for r in range(4):
        A(f'v_cvt_pk_bf16_f32 v{96+r}, v{88+2*r}, v{89+2*r}')
    A(f's_lshl_b32 s{sT0}, s2, 10')
    A(f'buffer_store_dwordx4 v[96:99], v{vWA0}, s[{S_WS}:{S_WS+3}], s{sT0} offen sc1')
    A(f's_cmp_ge_u32 s2, 72')
    A(f's_cselect_b32 s{sT0}, 4, 0')
    A('v_mov_b32 v4, 1')
    A('v_mov_b32 v5, 0')
    A('s_mov_b64 exec, 1')
    A('s_waitcnt vmcnt(0)')
    stamp()
    A(f'buffer_atomic_add v4, v5, s[{S_DBG}:{S_DBG+3}], s{sT0} offen sc0 sc1')
    A('s_waitcnt vmcnt(0)')
    A(f'v_readfirstlane_b32 s{sT1}, v4')
    A(f's_cmp_lg_u32 s{sT1}, 71')
    A('s_cbranch_scc1 P_notlast')
    A(f'buffer_store_dword v4, v5, s[{S_DBG}:{S_DBG+3}], s{sT0} offen offset:128 sc1')
    A.label('P_notlast')
    A('s_mov_b64 exec, -1')

def gen_main():
    A.raw(f'.globl {NAME}'); A.raw('.p2align 8'); A.raw(f'.type {NAME},@function')
    A.raw(f'{NAME}:'); A.reset()
    A('s_cmp_ge_u32 s2, 256')
    A('s_cbranch_scc1 M_done')
    stamp(0)
    A('s_load_dwordx8 s[4:11], s[0:1], 0')
    A('s_load_dwordx4 s[12:15], s[0:1], 32')
    A(f'v_lshrrev_b32 v{vT}, 6, v0')
    A(f'v_and_b32 v{vL}, 63, v0')
    A(f'v_readfirstlane_b32 s{sW}, v{vT}')
    A(f'v_lshrrev_b32 v{vG}, 4, v{vL}')
    A(f'v_and_b32 v{vN}, 15, v{vL}')
    A(f'v_lshlrev_b32 v{vWA0}, 4, v{vL}')
    A(f's_and_b32 s{sT0}, s2, 7')
    A(f's_lshr_b32 s{sT1}, s2, 3')
    A(f's_lshr_b32 s{sPR}, s{sT0}, 2')
    A(f's_bfe_u32 s{sPC}, s{sT0}, 0x10001')
    A(f's_and_b32 s{sT0}, s{sT0}, 1')
    A(f's_lshl_b32 s{sT0}, s{sT0}, 2')
    A(f's_lshr_b32 s{sTR}, s{sT1}, 3')
    A(f's_add_u32 s{sTR}, s{sTR}, s{sT0}')
    A(f's_and_b32 s{sTC}, s{sT1}, 7')
    A(f's_mul_i32 s{sTR}, s{sTR}, 14')
    A(f's_mul_i32 s{sTC}, s{sTC}, 14')
    A(f's_mul_i32 s{sT0}, s{sPR}, 6')
    A(f's_add_i32 s{sKR0}, s{sTR}, s{sT0}')
    A(f's_add_i32 s{sKR0}, s{sKR0}, -6')
    A(f's_cmp_eq_i32 s{sKR0}, -6')
    A(f's_cselect_b32 s{sLOR}, 6, 0')
    A(f's_cmp_eq_i32 s{sKR0}, 98')
    A(f's_cselect_b32 s{sHIR}, 7, 13')
    A(f's_cselect_b32 s{sSHR}, 2, 0')
    A(f's_sub_i32 s{sKR0}, s{sKR0}, s{sSHR}')
    A(f's_mul_i32 s{sT0}, s{sPC}, 6')
    A(f's_add_i32 s{sT1}, s{sTC}, s{sT0}')
    A(f's_add_i32 s{sT1}, s{sT1}, -6')
    A(f's_cmp_eq_i32 s{sT1}, -6')
    A(f's_cselect_b32 s{sLOC}, 6, 0')
    A(f's_cmp_eq_i32 s{sT1}, 98')
    A(f's_cselect_b32 s{sHIC}, 7, 13')
    A(f's_lshl_b32 s{sT1}, s{sT1}, 1')
    A(f's_add_i32 s{sT1}, s{sT1}, s{sPC}')
    A(f's_mul_i32 s{sKC0B}, s{sT1}, 384')
    A(f's_mul_i32 s{sALR}, s{sPR}, 13')
    A(f's_add_i32 s{sALR}, s{sALR}, -6')
    A(f's_mul_i32 s{sALC}, s{sPC}, 13')
    A(f's_add_i32 s{sALC}, s{sALC}, -6')
    A(f's_sub_u32 s{sSTRIP}, s{sW}, 1')
    A(f's_lshl_b32 s{sSTRIP}, s{sSTRIP}, 1')
    A(f'v_cmp_le_u32 vcc, 24, v{vL}')
    A(f'v_subrev_u32 v{vT+1}, 24, v{vL}')
    A(f'v_cndmask_b32 v{vT+1}, v{vL}, v{vT+1}, vcc')
    A(f'v_cndmask_b32 v{vT}, 0, 1, vcc')
    for k in range(4):
        A(f'v_xor_b32 v{vT+2+k}, {2*k}, v{vT+1}')
        A(f'v_lshlrev_b32 v{vT+2+k}, 4, v{vT+2+k}')
    A('s_waitcnt lgkmcnt(0)')
    srd(S_X, 4, 5, X_BYTES)
    srd(S_WS, 14, 15, WS_BYTES)
    A(f's_cmp_eq_u32 s{sW}, 0')
    A('s_cbranch_scc1 M_helper')
    A(f's_mul_i32 s{sT0}, s{sW}, {STG}')
    A('s_mov_b32 exec_hi, 0xffff')
    for rb in range(2):
        A(f's_add_u32 s{sT1}, s{sTR}, s{sSTRIP}')
        if rb: A(f's_add_u32 s{sT1}, s{sT1}, 1')
        spix(sT2, sT1, sALR)
        A(f's_mul_i32 s{sT2}, s{sT2}, 86016')
        for i in range(7):
            A(f's_add_u32 s{sT1}, s{sTC}, {2*i}')
            spix(sT3, sT1, sALC)
            A(f's_add_u32 s{sT1}, s{sT1}, 1')
            spix(sT4, sT1, sALC)
            A(f's_sub_u32 s{sT4}, s{sT4}, s{sT3}')
            A(f's_mul_i32 s{sT4}, s{sT4}, 384')
            A(f's_mul_i32 s{sT3}, s{sT3}, 384')
            A(f's_add_u32 s{sT3}, s{sT3}, s{sT2}')
            sw = ((14*rb + 2*i) & 6) // 2
            A(f'v_mad_u32_u24 v{vT+6}, v{vT}, s{sT4}, v{vT+2+sw}')
            A(f's_mov_b32 m0, s{sT0}')
            A(f's_add_u32 s{sT0}, s{sT0}, 768')
            A(f'buffer_load_dwordx4 v{vT+6}, s[{S_X}:{S_X+3}], s{sT3} offen{XNT} lds')
    A('s_mov_b32 exec_hi, -1')
    srd(S_OUT, 10, 11, X_BYTES)
    A(f's_max_i32 s{sBASE}, s{sSTRIP}, s{sLOR}')
    A(f's_min_i32 s{sBASE}, s{sBASE}, s{sHIR}')
    A(f's_and_b32 s{sBASE}, s{sBASE}, -2')
    A(f'v_lshrrev_b32 v{vT}, 3, v{vN}')
    A(f'v_add_u32 v{vT}, s{sSTRIP}, v{vT}')
    A(f'v_max_i32 v{vT}, s{sLOR}, v{vT}')
    A(f'v_min_i32 v{vT}, s{sHIR}, v{vT}')
    A(f'v_subrev_u32 v{vT}, s{sBASE}, v{vT}')
    A(f's_add_u32 s{sBASE}, s{sBASE}, s{sSHR}')
    A(f's_mov_b32 s{sNEG}, {NEGINF}')
    vR0, vR3, vCB = vT+8, vT+9, vT+10
    A(f'v_and_b32 v{vT+1}, 1, v{vG}')
    A(f'v_sub_u32 v{vT+2}, v{vT+1}, v{vT}')
    A(f'v_ashrrev_i32 v{vR0}, 31, v{vT+2}')
    A(f'v_and_b32 v{vR0}, s{sNEG}, v{vR0}')
    A(f'v_sub_u32 v{vT+2}, v{vT}, v{vT+1}')
    A(f'v_ashrrev_i32 v{vR3}, 31, v{vT+2}')
    A(f'v_and_b32 v{vR3}, s{sNEG}, v{vR3}')
    A(f'v_and_b32 v{vT}, 7, v{vN}')
    A(f'v_min_u32 v{vT}, 6, v{vT}')
    A(f'v_lshrrev_b32 v{vT+1}, 1, v{vG}')
    A(f'v_mov_b32 v{vT+3}, 0x7f')
    for G in range(2):
        A(f'v_add_u32 v{vT+2}, {7*G}, v{vT}')
        A(f'v_max_i32 v{vT+2}, s{sLOC}, v{vT+2}')
        A(f'v_min_i32 v{vT+2}, s{sHIC}, v{vT+2}')
        A(f'v_lshlrev_b32 v{vT+2}, v{vT+2}, v{vT+3}')
        A(f'v_lshrrev_b32 v{vT+2}, v{vT+1}, v{vT+2}')
        A(f'v_not_b32 v{vCB+G}, v{vT+2}')
    def sreg(G, tl): return SACC + 28*G + 4*tl
    for G in range(2):
        for tl in range(7):
            tau = tl + 3*G
            r = sreg(G, tl)
            A(f'v_bfe_i32 v{r+2}, v{vCB+G}, {2*tau}, 1')
            A(f'v_and_b32 v{r+1}, s{sNEG}, v{r+2}')
            A(f'v_and_b32 v{r+2}, s{sNEG}, v{r+2}')
            A(f'v_or_b32 v{r}, v{r+1}, v{vR0}')
            A(f'v_or_b32 v{r+3}, v{r+1}, v{vR3}')
    A(f'v_lshrrev_b32 v{vT+1}, 3, v{vN}')
    A(f'v_mad_u32_u24 v{vT+1}, v{vT+1}, 14, v{vT}')
    A(f's_mul_i32 s{sT0}, s{sW}, {STG}')
    for G in range(2):
        A(f'v_add_u32 v{vT+2}, {7*G}, v{vT+1}')
        A(f'v_and_b32 v{vT+3}, 6, v{vT+2}')
        A(f'v_mul_u32_u24 v{vT+2}, 384, v{vT+2}')
        A(f'v_add_u32 v{vT+2}, s{sT0}, v{vT+2}')
        A(f'v_xor_b32 v{vT+3}, v{vT+3}, v{vG}')
        A(f'v_lshl_add_u32 v{ACC+2*G}, v{vT+3}, 4, v{vT+2}')
        A(f'v_xor_b32 v{vT+3}, 4, v{vT+3}')
        A(f'v_lshl_add_u32 v{ACC+2*G+1}, v{vT+3}, 4, v{vT+2}')
    def Fv(dst, row):
        A(f'v_and_b32 v{dst}, 1, v{row}')
        A(f'v_lshlrev_b32 v{dst}, 3, v{dst}')
        A(f'v_and_or_b32 v{dst}, v{row}, 6, v{dst}')
    A(f'v_and_b32 v{vT}, 7, v{vN}')
    A(f'v_add_u32 v{vT}, s{sBASE}, v{vT}')
    Fv(vT+1, vT)
    A(f'v_mul_u32_u24 v{vT}, {ROWB}, v{vT}')
    A(f'v_lshrrev_b32 v{vT+2}, 3, v{vN}')
    A(f'v_mul_u32_u24 v{vT+2}, 24, v{vT+2}')
    A(f'v_add_u32 v{vT+2}, v{vT+2}, v{vG}')
    for s in range(4):
        A(f'v_add_u32 v{vT+3}, {4*s}, v{vT+2}')
        A(f'v_xor_b32 v{vT+3}, v{vT+3}, v{vT+1}')
        A(f'v_lshl_add_u32 v{vAS+s}, v{vT+3}, 4, v{vT}')
    A(f'v_and_b32 v{vT}, 1, v{vG}')
    A(f'v_lshlrev_b32 v{vT}, 2, v{vT}')
    A(f'v_lshrrev_b32 v{vT+1}, 2, v{vN}')
    A(f'v_add3_u32 v{vT}, v{vT}, v{vT+1}, s{sBASE}')
    Fv(vT+1, vT)
    A(f'v_mul_u32_u24 v{vT}, {ROWB}, v{vT}')
    A(f'v_and_b32 v{vT+2}, 1, v{vN}')
    A(f'v_lshl_add_u32 v{vT}, v{vT+2}, 3, v{vT}')
    A(f'v_lshrrev_b32 v{vT+2}, 1, v{vG}')
    A(f'v_mul_u32_u24 v{vT+2}, 24, v{vT+2}')
    A(f'v_bfe_u32 v{vT+3}, v{vN}, 1, 1')
    A(f'v_add_u32 v{vT+2}, v{vT+2}, v{vT+3}')
    for ct in range(8):
        A(f'v_add_u32 v{vT+3}, {2*ct}, v{vT+2}')
        A(f'v_xor_b32 v{vT+3}, v{vT+3}, v{vT+1}')
        A(f'v_lshl_add_u32 v{vAP+ct}, v{vT+3}, 4, v{vT}')
    A(f'v_add_u32 v{vWA1}, {SPARE}, v{vWA0}')
    A(f'v_add_u32 v{vWAM}, {MBASE}, v{vWA0}')
    xshare_addr()
    stamp()
    A('s_waitcnt vmcnt(0)')
    stamp()
    for s in range(6):
        for G in range(2):
            A(f'ds_read_b128 v[{XQ+24*G+4*s}:{XQ+24*G+4*s+3}], v{ACC+2*G+(s&1)} offset:{128*(s>>1)}')
    A('s_waitcnt lgkmcnt(0)')
    xshare_issue()
    A('s_barrier')
    stamp()
    A(f's_mov_b32 s{sT0}, {70*1024}')
    for i in range(2):
        A(f'buffer_load_dwordx4 v[{WF+4*i}:{WF+4*i+3}], v{vWA0}, s[{S_WS}:{S_WS+3}], s{sT0} offen offset:{1024*i} sc1')
    def finA(sig, accb):
        out = []
        for G in range(2):
            for q in range(4):
                out.append(f'v_cvt_pk_bf16_f32 v{QP+24*G+4*sig+q}, v{accb+8*G+2*q}, v{accb+8*G+2*q+1}')
        return out
    def locA(f):
        if f < 60: return ('lds', vWAM, f*1024)
        if f < 70: return ('lds', vWA1, (f-60)*1024)
        return ('reg', WF + 4*(f-70))
    bar = lambda: A('s_barrier')
    def bar_vm():
        A('s_waitcnt vmcnt(0)'); A('s_barrier')
    pend = gemm_phase(XQ, locA, finA, hooks={1: bar, 3: bar_vm, 4: bar, 5: bar})
    stamp()
    A(f's_mov_b32 s{sT0}, {(72+10)*1024}')
    for i in range(2):
        A(f'buffer_load_dwordx4 v[{WF+4*i}:{WF+4*i+3}], v{vWA0}, s[{S_WS}:{S_WS+3}], s{sT0} offen offset:{1024*i} sc1')
    A('s_setprio 1')
    A(f's_cmp_ge_u32 s{sW}, 5')
    A('s_cbranch_scc1 M_e1')
    A.skip('s_setprio 2')
    A.label('M_e1')
    side = list(pend)
    t0, t1, t2, t3, t4 = vT, vT+1, vT+2, vT+3, vT+4
    A(f's_add_u32 s{sT1}, s{sTR}, s{sSTRIP}')
    A(f's_mov_b32 s{sT2}, 86016')
    A(f's_mov_b32 s{sT3}, 384')
    side += [f'v_lshrrev_b32 v{t0}, 1, v{vG}', f'v_add_u32 v{t0}, s{sT1}, v{t0}',
             f'v_lshl_add_u32 v{t1}, v{t0}, 1, s{sALR}', f'v_add_u32 v{t2}, 112, v{t0}',
             f'v_med3_i32 v{t0}, v{t1}, v{t0}, v{t2}', f'v_mul_lo_u32 v{t0}, v{t0}, s{sT2}',
             f'v_lshl_add_u32 v{t0}, v{vN}, 3, v{t0}',
             f'v_and_b32 v{t3}, 1, v{vG}', f'v_lshl_add_u32 v{t4}, v{t3}, 2, s{sTC}',
             f'v_lshlrev_b32 v{t3}, 30, v{t3}']
    for G in range(2):
        for r in range(4):
            d = vOA + 4*G + r
            side += [f'v_add_u32 v{d}, {7*G+r}, v{t4}', f'v_lshl_add_u32 v{t1}, v{d}, 1, s{sALC}',
                     f'v_add_u32 v{t2}, 112, v{d}', f'v_med3_i32 v{d}, v{t1}, v{d}, v{t2}',
                     f'v_mad_u32_u24 v{d}, v{d}, s{sT3}, v{t0}']
            if r == 3: side += [f'v_add_u32 v{d}, v{d}, v{t3}']
    seq = []
    for (a1, a2) in ((0, 3), (1, 4), (2, 5), (7, 6), (8, 9)):
        for s in range(6):
            seq.append((a1, s)); seq.append((a2, s))
    def users(tau):
        u = []
        if tau <= 6: u.append((0, tau))
        if tau >= 3: u.append((1, tau - 3))
        return u
    def rdS(i):
        tau, s = seq[i]
        buf = RING + 4*(i % 8)
        return f'ds_read_b128 v[{buf}:{buf+3}], v{vAS + (s % 4)} offset:{tau*768 + (256 if s >= 4 else 0)}'
    D = 7
    for i in range(D): A(rdS(i))
    for _ in range(len(pend)): A(side.pop(0))
    ms, mem = [], {}
    for i, (tau, s) in enumerate(seq):
        a = RING + 4*(i % 8)
        us = users(tau)
        for (G, tl) in us:
            r = sreg(G, tl)
            ms.append(mf(r, a, QP + 24*G + 4*s, r))
        if i + D < len(seq): mem[len(ms) - 1] = [rdS(i + D)]
    rest = stream(ms, mem, [(0, t) for t in side])
    assert not rest
    stamp()
    A('s_setprio 0')
    vM = [vT, vT+1]; vX = [vT+2, vT+3]; vSum = [vT+4, vT+5]
    A(f'v_mov_b32 v{PP+14}, 0'); A(f'v_mov_b32 v{PP+15}, 0')
    A(f'v_mov_b32 v{PP+16}, 0'); A(f'v_mov_b32 v{PP+17}, 0')
    for G in range(2):
        b = sreg(G, 0)
        A(f'v_max3_f32 v{vM[G]}, v{b}, v{b+1}, v{b+2}')
        A(f'v_max3_f32 v{vX[G]}, v{b+3}, v{b+4}, v{b+5}')
    for k in range(6, 26, 4):
        for G in range(2):
            b = sreg(G, 0)
            A(f'v_max3_f32 v{vM[G]}, v{vM[G]}, v{b+k}, v{b+k+1}')
            A(f'v_max3_f32 v{vX[G]}, v{vX[G]}, v{b+k+2}, v{b+k+3}')
    for G in range(2):
        b = sreg(G, 0)
        A(f'v_max3_f32 v{vM[G]}, v{vM[G]}, v{b+26}, v{b+27}')
    for G in range(2):
        A(f'v_max_f32 v{vM[G]}, v{vM[G]}, v{vX[G]}')
    def xlane(vals, tmps, op):
        for sw in ('v_permlane32_swap_b32', 'v_permlane16_swap_b32'):
            for G in range(2): A(f'v_mov_b32 v{tmps[G]}, v{vals[G]}')
            for G in range(2): A(f'{sw} v{vals[G]}, v{tmps[G]}')
            for G in range(2): A(f'{op} v{vals[G]}, v{vals[G]}, v{tmps[G]}')
    xlane(vM, vX, 'v_max_f32')
    def preg(G, tl): return PP + 16*G + 2*(tl + G)
    seqP = [(sig, u, h) for sig in range(6) for u in range(5) for h in range(2)]
    def rdP(i):
        sig, u, h = seqP[i]
        ct = 2*sig + h
        buf = RING + 4*(i % 8)
        return [f'ds_read_b64_tr_b16 v[{buf+2*hh}:{buf+2*hh+1}], v{vAP + (ct % 8)} offset:{(4*u+2*hh)*384 + (256 if ct >= 8 else 0)}' for hh in range(2)]
    DP = 6
    for tl in range(7):
        for G in range(2):
            r = sreg(G, tl)
            for k in range(4): A(f'v_sub_f32 v{r+k}, v{r+k}, v{vM[G]}')
            for k in range(4): A(f'v_exp_f32 v{r+k}, v{r+k}')
        for G in range(2):
            r = sreg(G, tl)
            p = preg(G, tl)
            A(f'v_cvt_pk_bf16_f32 v{p}, v{r}, v{r+1}')
            A(f'v_cvt_pk_bf16_f32 v{p+1}, v{r+2}, v{r+3}')
        if tl == 5:
            for i in range(DP):
                for t in rdP(i): A(t)
        if tl == int(OPT.get('b4', '3')):
            A(f's_cmp_lt_u32 s{sW}, 5')
            A('s_cbranch_scc1 M_e2')
            A.skip('s_barrier')
            A.label('M_e2')
    A('s_waitcnt vmcnt(0)')
    stamp()
    A('s_setprio 2')
    ms, first, side, hk = [], [], [], {}
    def b5L():
        A(f's_cmp_lt_u32 s{sW}, 5')
        A('s_cbranch_scc1 M_e3')
        A.skip('s_barrier')
        A.label('M_e3')
    for i, (sig, u, h) in enumerate(seqP):
        a = RING + 4*(i % 8)
        accb = ACC + 16*(sig & 1)
        first.append(len(ms))
        for G in range(2):
            uu = u - G
            if 0 <= uu <= 3:
                d = accb + 8*G + 4*h
                ms.append(mf(d, a, PP + 16*G + 4*uu, None if uu == 0 else d))
        if i % 10 == 9:
            side += [(len(ms) - 1 + 4, t, len(ms) - 1 + 16) for t in finA(sig, accb)]
            if sig == int(OPT.get('b5', '3')): hk[len(ms) - 1] = b5L
    mem = {}
    k = 0
    for j in range(DP, len(seqP)):
        for t in rdP(j):
            gp = (k * 4) // 5
            if j >= 8: gp = max(gp, first[j - 7] - 1)
            assert gp < first[j] - 3, (j, gp, first[j])
            mem.setdefault(gp, []).append(t); k += 1
    pend = stream(ms, mem, side, hk)
    stamp()
    A(f's_cmp_ge_u32 s{sW}, 5')
    A('s_cbranch_scc1 M_l2')
    A.skip('s_barrier')
    A.skip(f's_mul_i32 s{sT0}, s{sW}, 12288')
    A.skip(f's_add_u32 s{sT1}, s{sT0}, {(72+12)*1024}')
    for blk in range(3):
        A.skip(f's_mov_b32 m0, s{sT0}')
        A.skip(f's_add_u32 s{sT0}, s{sT0}, 4096')
        for i in range(4):
            A.raw(f'  buffer_load_dwordx4 v{vWA0}, s[{S_WS}:{S_WS+3}], s{sT1} offen offset:{1024*i} sc1 lds')
        A.skip(f's_add_u32 s{sT1}, s{sT1}, 4096')
    A.label('M_l2')
    A('s_setprio 0')
    for t in pend: A(t)
    for G in range(2):
        b = sreg(G, 0)
        A(f'v_add_f32 v{vSum[G]}, v{b}, v{b+1}')
        A(f'v_add_f32 v{vX[G]}, v{b+2}, v{b+3}')
    for k in range(4, 28, 2):
        for G in range(2):
            b = sreg(G, 0)
            A(f'v_add_f32 v{vSum[G]}, v{vSum[G]}, v{b+k}')
            A(f'v_add_f32 v{vX[G]}, v{vX[G]}, v{b+k+1}')
    for G in range(2):
        A(f'v_add_f32 v{vSum[G]}, v{vSum[G]}, v{vX[G]}')
    xlane(vSum, vX, 'v_add_f32')
    for G in range(2): A(f'v_rcp_f32 v{vSum[G]}, v{vSum[G]}')
    A(f'v_lshlrev_b32 v{vT+6}, 4, v{vG}')
    for G in range(2):
        for r in range(4):
            A(f'ds_bpermute_b32 v{vINV+4*G+r}, v{vT+6}, v{vSum[G]} offset:{4*r}')
    stamp()
    A('s_setprio 1')
    def finE(sig, accb):
        out = []
        for G in range(2):
            for r in range(4):
                for h in range(2):
                    out.append(f'v_mul_f32 v{accb+8*G+4*h+r}, v{accb+8*G+4*h+r}, v{vINV+4*G+r}')
                o = OST + 8*G + 2*r
                out.append(f'v_cvt_pk_bf16_f32 v{o+(sig&1)}, v{accb+8*G+r}, v{accb+8*G+4+r}')
                if sig & 1:
                    out.append(f'buffer_store_dwordx2 v[{o}:{o+1}], v{vOA+4*G+r}, s[{S_OUT}:{S_OUT+3}], 0 offen offset:{128*(sig>>1)}{ONT}')
        return out
    def locE(f):
        if f < 10: return ('lds', vWA1, f*1024)
        if f < 12: return ('reg', WF + 4*(f-10))
        return ('lds', vWA0, (f-12)*1024)
    def b5E():
        A(f's_cmp_ge_u32 s{sW}, 5')
        A('s_cbranch_scc1 M_l3')
        A.raw('  s_waitcnt vmcnt(0)')
        A.skip('s_barrier')
        A.label('M_l3')
        stamp()
    pend = gemm_phase(QP, locE, finE, swap=True, hooks={0: b5E}, gate=12)
    for t in pend: A(t)
    if STAMP:
        stamp()
        A('s_waitcnt vmcnt(0)')
        stamp(1)
        write_stamps()
    A('s_endpgm')

    A.label('M_helper'); A.reset()
    nstamp[0] = 1
    srd(S_W, 6, 7, 192*576*2)
    srd(S_WO, 8, 9, 192*192*2)
    srd(S_DBG, 12, 13, 256)
    A('s_cmp_ge_u32 s2, 144')
    A('s_cbranch_scc1 H_notask')
    prep_task()
    A.label('H_notask'); A.reset()
    stamp()
    xshare_addr()
    HA = 16
    for i in range(12, 20):
        F = (i & 6) | ((i & 1) << 3)
        b = HA + 8*(i - 12)
        for j in range(4):
            dma_addr(b + j, j, str(F))
            A(f'v_add_u32 v{b+4+j}, {ROWB}, v{b+j}')
            A(f'v_max_i32 v{b+j}, 0, v{b+j}')
    stamp()
    poll('H_pollM', 128)
    stamp()
    def wfr(src0, n, lds0):
        for i in range(n):
            if i % 4 == 0:
                A(f's_mov_b32 m0, {lds0 + i*1024}')
                A(f's_mov_b32 s{sT4}, {(src0 + i)*1024}')
            A(f'buffer_load_dwordx4 v{vWA0}, s[{S_WS}:{S_WS+3}], s{sT4} offen offset:{1024*(i%4)} sc1 lds')
    wfr(0, 60, MBASE)
    A('s_waitcnt vmcnt(30)')
    wfr(60, 10, SPARE)
    xshare_issue()
    A('s_waitcnt vmcnt(12)')
    stamp()
    A('s_barrier')
    poll('H_pollV', 132)
    A('s_mov_b32 exec_hi, 0x0fffffff')
    def rows(lst):
        for i in lst:
            row_soff(sT1, str(i))
            b = HA + 8*(i - 12)
            for j in range(8):
                A(f's_mov_b32 m0, {i*ROWB + 960*j}')
                A(f'buffer_load_dwordx4 v{b+j}, s[{S_X}:{S_X+3}], s{sT1} offen{KNT} lds')
    A('s_barrier')
    rows([12, 13, 14])
    A('s_barrier')
    rows([15, 16, 17])
    A('s_barrier')
    rows([18, 19])
    A('s_waitcnt vmcnt(0)')
    stamp()
    A('s_barrier')
    A('s_mov_b32 exec_hi, -1')
    wfr(72, 10, SPARE)
    A('s_waitcnt vmcnt(0)')
    A('s_barrier')
    wfr(72 + 12, 12, 0)
    A('s_waitcnt vmcnt(0)')
    stamp()
    A('s_barrier')
    if STAMP:
        stamp(1)
        write_stamps()
    A.label('M_done')
    A('s_endpgm')

gen_main()
A.raw('.section .rodata,"a"')
A.raw('.p2align 6')
A.raw(f'.amdhsa_kernel {NAME}')
A.raw('  .amdhsa_next_free_vgpr 256')
A.raw('  .amdhsa_next_free_sgpr 102')
A.raw('  .amdhsa_accum_offset 256')
A.raw('  .amdhsa_group_segment_fixed_size 0')
A.raw('  .amdhsa_kernarg_size 48')
A.raw('  .amdhsa_user_sgpr_count 2')
A.raw('  .amdhsa_user_sgpr_kernarg_segment_ptr 1')
A.raw('  .amdhsa_system_sgpr_workgroup_id_x 1')
A.raw('.end_amdhsa_kernel')
open(OUT, 'w').write(A.text())
print('instr', A.n_inst, 'nops', A.nops, 'maxv', A.maxv)
```

```python
import sys, struct
sys.path.insert(0, 'gen')
from asmlib import Asm

OUT = sys.argv[1] if len(sys.argv) > 1 else 'standalone__neighborhood_nat__vision.s'
OPT = dict(a.split('=') if '=' in a else (a, '1') for a in sys.argv[2:])
STAMP = 'stamp' in OPT
XNT = ' nt' if OPT.get('xnt', '1') == '1' else ''
KNT = ' nt' if OPT.get('knt', '0') == '1' else ''
ONT = ' nt' if OPT.get('ont', '0') == '1' else ''
NAME = 'standalone__neighborhood_nat__vision_kernel'

X_BYTES = 19267584
WS_BYTES = 268435456
ROWB = 7680
MB = 90112
SPARE = 153600
def f32bits(x): return struct.unpack('<I', struct.pack('<f', x))[0]
SCALE = f32bits(192 ** -0.5 * 1.4426950408889634)
NEGINF = 0xff800000
PIECE = [0, 64, 128, 192, 256, 320, 384, 416]

A = Asm()
hdr = open('standalone__neighborhood_nat__vision.s.ref').read().split('\n')
for ln in hdr:
    if ln.startswith('; @launch'): break
    A.raw(ln)
A.raw('; @launch grid=(256,1,1) block=(512,1,1) lds=163840')
A.raw('.amdgcn_target "amdgcn-amd-amdhsa--gfx950"')
A.raw('.text')

def srd(d, lo, hi, nbytes):
    A(f's_mov_b32 s{d}, s{lo}'); A(f's_and_b32 s{d+1}, s{hi}, 0xffff')
    A(f's_mov_b32 s{d+2}, {nbytes}'); A(f's_mov_b32 s{d+3}, 0x00020000')
def mf(d, a, b, c):
    cs = '0' if c is None else f'v[{c}:{c+3}]'
    return f'v_mfma_f32_16x16x32_bf16 v[{d}:{d+3}], v[{a}:{a+3}], v[{b}:{b+3}], {cs}'

S_X, S_OUT, S_WS, S_W, S_WO, S_DBG = 16, 20, 24, 28, 32, 36
sW, sPR, sPC, sTR, sTC = 40, 41, 42, 43, 44
sKR0, sKC0B = 45, 46
sLOR, sHIR, sSHR, sLOC, sHIC = 47, 48, 49, 50, 51
sBASE, sSTRIP, sNEG = 52, 53, 54
sT0, sT1, sT2, sT3, sT4, sT5 = 55, 56, 57, 58, 59, 60
sALR, sALC, sSC = 61, 62, 63
sST = 64
sXR, sXL = 100, 101
vL, vG, vN = 1, 2, 3
vT = 4
vR0, vR3, vCB = 12, 13, 14
XQ = 16
PP = 16
vOA = 4
vINV = 56
SACC = 64
OST = 64
QP = 120
ACC = 168
RING = 200
WF = 232
vAS = 240
vAP = 244
vWA0, vWA1, vWAM = 252, 253, 254
vSW, vSR = 255, 199
vWD, vXA = RING, RING + 1
MBQ = 64
MACC = 136
MPK = 184
MWA = 192

nstamp = [0]
def stamp(real=None):
    if not STAMP: return
    i = nstamp[0]; nstamp[0] += 1
    assert i < 14
    A.raw(f'  s_memtime s[{sST+2*i}:{sST+1+2*i}]')
    if real is not None:
        A.raw(f'  s_memrealtime s[{96+2*real}:{97+2*real}]')
def write_stamps():
    n = nstamp[0]
    A('s_waitcnt lgkmcnt(0)')
    A(f'v_mov_b32 v{RING}, 0')
    if 'dbg' in OPT:
        lbl = f'WS_skip{n}'
        A(f's_cmp_lg_u32 s2, {OPT["dbg"].split(",")[0]}')
        A(f's_cbranch_scc1 {lbl}')
        A(f's_cmp_lg_u32 s{sW}, {OPT["dbg"].split(",")[1]}')
        A(f's_cbranch_scc1 {lbl}')
        for i in range(1, n):
            A(f's_sub_u32 s{sT0}, s{sST+2*i}, s{sST}')
            A(f'v_writelane_b32 v{RING}, s{sT0}, {i}')
        A(f's_sub_u32 s{sT0}, s98, s96')
        A(f'v_writelane_b32 v{RING}, s{sT0}, 15')
        srd(S_DBG, 12, 13, 256)
        A(f'v_lshlrev_b32 v{RING+1}, 2, v{vL}')
        A('s_mov_b64 exec, 0xfffe')
        A(f'buffer_store_dword v{RING}, v{RING+1}, s[{S_DBG}:{S_DBG+3}], 0 offen')
        A.label(lbl)
        return
    for i in range(n):
        A(f'v_writelane_b32 v{RING}, s{sST+2*i}, {i}')
    A(f'v_writelane_b32 v{RING}, s96, 14')
    A(f'v_writelane_b32 v{RING}, s98, 15')
    A(f's_lshl_b32 s{sT0}, s2, 3')
    A(f's_add_u32 s{sT0}, s{sT0}, s{sW}')
    A(f's_lshl_b32 s{sT0}, s{sT0}, 6')
    A(f's_add_u32 s{sT0}, s{sT0}, 0x100000')
    A(f'v_lshlrev_b32 v{RING+1}, 2, v{vL}')
    A('s_mov_b64 exec, 0xffff')
    A(f'buffer_store_dword v{RING}, v{RING+1}, s[{S_WS}:{S_WS+3}], s{sT0} offen')

def row_addrs(b, sF):
    for j in (0, 1, 2, 7):
        A(f'v_add_u32 v{vT}, {PIECE[j]}, v{vL}')
        A(f'v_xor_b32 v{vT}, {sF}, v{vT}')
        A(f'v_mul_u32_u24 v{vT+1}, 2731, v{vT}')
        A(f'v_lshrrev_b32 v{vT+1}, 16, v{vT+1}')
        A(f'v_mul_u32_u24 v{vT+1}, 384, v{vT+1}')
        A(f'v_lshl_add_u32 v{vT}, v{vT}, 4, v{vT+1}')
        A(f'v_add_u32 v{b+j}, s{sKC0B}, v{vT}')
        if j < 3:
            A(f'v_add_u32 v{b+j+3}, {8*768}, v{b+j}')
            if j == 0: A(f'v_add_u32 v{b+6}, {16*768}, v{b}')
            A(f'v_max_i32 v{b+j}, 0, v{b+j}')
def row_soff(dst, srow):
    A(f's_add_i32 s{dst}, s{sKR0}, {srow}')
    A(f's_lshl_b32 s{dst}, s{dst}, 1')
    A(f's_add_i32 s{dst}, s{dst}, s{sPR}')
    A(f's_max_i32 s{dst}, s{dst}, 0')
    A(f's_min_i32 s{dst}, s{dst}, 223')
    A(f's_mul_i32 s{dst}, s{dst}, 86016')

def stream(ms, mem, side, hooks=None, cap=2, bg=None):
    side = [x if len(x) == 3 else (x[0], x[1], 10**9) for x in side]
    bg = bg if bg is not None else []
    def slots(lo, hi):
        return sum(max(0, cap - len(mem.get(k, []))) for k in range(lo, hi + 1))
    for i, m in enumerate(ms):
        assert not (side and side[0][2] < i), ('deadline missed', side[0], i)
        A(m)
        if i + 1 < len(ms) and not (hooks and i in hooks): A.prewait(ms[i+1])
        n = 0
        for t in mem.get(i, []):
            A(t); n += 1
        c = cap
        if side and side[0][2] < len(ms):
            dl = side[0][2]
            if sum(1 for x in side if x[2] == dl) > slots(i, dl): c = cap + 1
        while side and n < c and side[0][0] <= i:
            A(side.pop(0)[1]); n += 1
        while bg and n < cap:
            A(bg.pop(0)); n += 1
        if hooks and i in hooks: hooks[i]()
    return [x[1] for x in side]

def gemm_phase(B, loc, finish, swap=False, hooks=None, D=6, gate=None, bg=None, extra_mem=None, ghooks=None):
    def rd(f):
        l = loc(f)
        if l[0] == 'lds':
            buf = RING + 4*(f % 8)
            return [f'ds_read_b128 v[{buf}:{buf+3}], v{l[1]} offset:{l[2]}']
        return []
    ms, mem, side, hk = [], dict(extra_mem or {}), [], dict(ghooks or {})
    for f in range(D):
        for t in rd(f): A(t)
    for f in range(72):
        sig, s, h = f // 12, (f % 12) // 2, f % 2
        l = loc(f)
        a = RING + 4*(f % 8) if l[0] == 'lds' else l[1]
        accb = ACC + 16*(sig & 1)
        for G in range(2):
            d = accb + 8*G + 4*h
            b = B + 24*G + 4*s
            ms.append(mf(d, b, a, None if s == 0 else d) if swap else mf(d, a, b, None if s == 0 else d))
        fn = f + D
        if fn < 72 and not (gate is not None and f < gate <= fn):
            mem[2*f] = rd(fn)
        if f % 12 == 11:
            side += [(2*f + 1 + 3, t, 2*f + 1 + 24) for t in finish(sig, accb)]
            if hooks and sig in hooks:
                def mk(sig=sig, f=f):
                    def h():
                        hooks[sig]()
                        if gate is not None and f + 1 == gate:
                            for k in range(gate, gate + D):
                                for t in rd(k): A(t)
                    return h
                hk[2*f + 1] = mk()
    return stream(ms, mem, side, hk, bg=bg)

def poll(label, off):
    A(f'v_mov_b32 v{vT+2}, 0')
    A(f's_mov_b32 s{sT4}, 0')
    A('s_mov_b64 exec, 1')
    A.label(label)
    A(f'buffer_load_dword v{vT+3}, v{vT+2}, s[{S_DBG}:{S_DBG+3}], 0 offen offset:{off} sc1')
    A('s_waitcnt vmcnt(0)')
    A(f'v_cmp_eq_u32 vcc, 0, v{vT+3}')
    A(f's_add_u32 s{sT4}, s{sT4}, 1')
    A(f's_cmp_gt_u32 s{sT4}, 200000')
    A(f's_cbranch_scc1 {label}_x')
    A('s_cmp_lg_u64 vcc, 0')
    A(f's_cbranch_scc0 {label}_x')
    A('s_sleep 2')
    A(f's_branch {label}')
    A.label(label + '_x')
    A('s_mov_b64 exec, -1')

def cond(lbl, isE, body):
    A(f's_cmp_ge_u32 s{sW}, 5' if isE else f's_cmp_lt_u32 s{sW}, 5')
    A(f's_cbranch_scc1 {lbl}')
    body()
    A.label(lbl)

def gen_main():
    A.raw(f'.globl {NAME}'); A.raw('.p2align 8'); A.raw(f'.type {NAME},@function')
    A.raw(f'{NAME}:'); A.reset()
    A('s_cmp_ge_u32 s2, 256')
    A('s_cbranch_scc1 M_done')
    stamp(0)
    A('s_load_dwordx8 s[4:11], s[0:1], 0')
    A('s_load_dwordx4 s[12:15], s[0:1], 32')
    A(f'v_lshrrev_b32 v{vT}, 6, v0')
    A(f'v_and_b32 v{vL}, 63, v0')
    A(f'v_readfirstlane_b32 s{sW}, v{vT}')
    A(f'v_lshrrev_b32 v{vG}, 4, v{vL}')
    A(f'v_and_b32 v{vN}, 15, v{vL}')
    A(f'v_lshlrev_b32 v{vWA0}, 4, v{vL}')
    if OPT.get('cpf', '0') != '0':
        A('s_getpc_b64 s[16:17]')
        A('s_and_b32 s16, s16, -256')
        A('s_and_b32 s17, s17, 0xffff')
        A('s_mov_b32 s18, CODE_END-' + NAME)
        A('s_mov_b32 s19, 0x00020000')
        if OPT['cpf'] == '1':
            A(f's_lshr_b32 s{sT0}, s2, 3')
            A(f's_lshl_b32 s{sT0}, s{sT0}, 10')
            A(f's_cmp_lg_u32 s{sW}, 7')
            A('s_cbranch_scc1 M_nocpf')
            A.raw(f'  buffer_load_dwordx4 v[{ACC}:{ACC+3}], v{vWA0}, s[16:19], s{sT0} offen')
        else:
            A(f's_lshl_b32 s{sT0}, s{sW}, 12')
            for i in range(4):
                A.raw(f'  buffer_load_dwordx4 v[{ACC+4*i}:{ACC+4*i+3}], v{vWA0}, s[16:19], s{sT0} offen offset:{1024*i}')
        A.label('M_nocpf')
    A(f'v_lshrrev_b32 v{vT}, 4, v{vL}')
    A(f'v_bfe_u32 v{vT+1}, v{vL}, 2, 2')
    A(f'v_lshl_add_u32 v{vT}, v{vT}, 3, v{vT+1}')
    A(f'v_mul_u32_u24 v{vT}, 1152, v{vT}')
    A(f'v_lshrrev_b32 v{vT+1}, 5, v{vL}')
    A(f'v_lshlrev_b32 v{vT+1}, 1, v{vT+1}')
    A(f'v_and_b32 v{vT+2}, 3, v{vL}')
    A(f'v_xor_b32 v{vT+2}, v{vT+1}, v{vT+2}')
    A(f'v_lshl_add_u32 v{vWD}, v{vT+2}, 4, v{vT}')
    A(f's_and_b32 s{sT0}, s2, 7')
    A(f's_lshr_b32 s{sT1}, s2, 3')
    A(f's_lshr_b32 s{sPR}, s{sT0}, 2')
    A(f's_bfe_u32 s{sPC}, s{sT0}, 0x10001')
    A(f's_and_b32 s{sT0}, s{sT0}, 1')
    A(f's_lshl_b32 s{sT0}, s{sT0}, 2')
    A(f's_lshr_b32 s{sTR}, s{sT1}, 3')
    A(f's_add_u32 s{sTR}, s{sTR}, s{sT0}')
    A(f's_and_b32 s{sTC}, s{sT1}, 7')
    A(f's_mul_i32 s{sTR}, s{sTR}, 14')
    A(f's_mul_i32 s{sTC}, s{sTC}, 14')
    A(f's_mul_i32 s{sALR}, s{sPR}, 13')
    A(f's_add_i32 s{sALR}, s{sALR}, -6')
    A(f's_mul_i32 s{sALC}, s{sPC}, 13')
    A(f's_add_i32 s{sALC}, s{sALC}, -6')
    A(f's_sub_u32 s{sSTRIP}, s{sW}, 1')
    A(f's_lshl_b32 s{sSTRIP}, s{sSTRIP}, 1')
    A(f'v_lshrrev_b32 v{vT}, 5, v{vL}')
    A(f's_add_u32 s{sT3}, s{sTR}, s{sSTRIP}')
    A(f'v_add_u32 v{vT}, s{sT3}, v{vT}')
    A(f'v_lshl_add_u32 v{vT+1}, v{vT}, 1, s{sALR}')
    A(f'v_add_u32 v{vT+3}, 112, v{vT}')
    A(f'v_med3_i32 v{vT}, v{vT+1}, v{vT}, v{vT+3}')
    A(f'v_mul_u32_u24 v{vT}, 224, v{vT}')
    A(f'v_bfe_u32 v{vT+7}, v{vL}, 2, 3')
    A(f'v_min_u32 v{vT+7}, 6, v{vT+7}')
    A(f'v_add_u32 v{vT+7}, s{sTC}, v{vT+7}')
    for G in range(2):
        d = vXA + G
        if G: A(f'v_add_u32 v{vT+7}, 7, v{vT+7}')
        A(f'v_lshl_add_u32 v{vT+1}, v{vT+7}, 1, s{sALC}')
        A(f'v_add_u32 v{vT+3}, 112, v{vT+7}')
        A(f'v_med3_i32 v{d}, v{vT+1}, v{vT+7}, v{vT+3}')
        A(f'v_add_u32 v{d}, v{d}, v{vT}')
        A(f'v_mul_u32_u24 v{d}, 384, v{d}')
        A(f'v_lshl_add_u32 v{d}, v{vT+2}, 4, v{d}')
    A('s_waitcnt lgkmcnt(0)')
    srd(S_W, 6, 7, 192*576*2)
    srd(S_X, 4, 5, X_BYTES)
    def wdma(lds0, go):
        A(f's_and_b32 s{sT0}, s{sW}, 3')
        A(f's_mul_i32 s{sT2}, s{sT0}, 18432')
        A(f's_mul_i32 s{sT0}, s{sT0}, 3')
        for i in range(3):
            A(f's_add_u32 s{sT1}, s{sT0}, {i}')
            A(f's_lshr_b32 s{sT3}, s{sT1}, 1')
            A(f's_mul_i32 s{sT3}, s{sT3}, {32*1152}')
            A(f's_and_b32 s{sT1}, s{sT1}, 1')
            A(f's_mul_i32 s{sT1}, s{sT1}, 4608')
            A(f's_add_u32 s{sT1}, s{sT1}, s{sT3}')
            for k in range(6):
                A(f's_add_u32 m0, s{sT2}, {lds0 + (6*i + k)*1024 - go - 64*k}')
                A(f'buffer_load_dwordx4 v{vWD}, s[{S_W}:{S_W+3}], s{sT1} offen offset:{go + 64*k} lds')
    A(f's_cmp_ge_u32 s{sW}, 4')
    A('s_cbranch_scc1 M_now')
    if OPT.get('warm', '1') == '1':
        A(f's_cmp_lg_u32 s{sW}, 0')
        A('s_cbranch_scc1 M_nowarm')
        A(f's_lshr_b32 s{sT0}, s2, 3')
        A(f's_mul_i32 s{sT0}, s{sT0}, 6912')
        A(f's_add_u32 s{sT1}, s{sT0}, 4096')
        for i in range(7):
            A(f'buffer_load_dwordx4 v[{XQ+4*i}:{XQ+4*i+3}], v{vWA0}, s[{S_W}:{S_W+3}], s{sT0 + i//4} offen offset:{1024*(i%4)}')
        A.label('M_nowarm')
    wdma(MB, 384)
    A.label('M_now'); A.reset()
    stamp()
    srd(S_WS, 14, 15, WS_BYTES)
    srd(S_OUT, 10, 11, X_BYTES)
    A(f's_mul_i32 s{sT0}, s{sPR}, 6')
    A(f's_add_i32 s{sKR0}, s{sTR}, s{sT0}')
    A(f's_add_i32 s{sKR0}, s{sKR0}, -6')
    A(f's_cmp_eq_i32 s{sKR0}, -6')
    A(f's_cselect_b32 s{sLOR}, 6, 0')
    A(f's_cmp_eq_i32 s{sKR0}, 98')
    A(f's_cselect_b32 s{sHIR}, 7, 13')
    A(f's_cselect_b32 s{sSHR}, 2, 0')
    A(f's_sub_i32 s{sKR0}, s{sKR0}, s{sSHR}')
    A(f's_mul_i32 s{sT0}, s{sPC}, 6')
    A(f's_add_i32 s{sT1}, s{sTC}, s{sT0}')
    A(f's_add_i32 s{sT1}, s{sT1}, -6')
    A(f's_cmp_eq_i32 s{sT1}, -6')
    A(f's_cselect_b32 s{sLOC}, 6, 0')
    A(f's_cmp_eq_i32 s{sT1}, 98')
    A(f's_cselect_b32 s{sHIC}, 7, 13')
    A(f's_lshl_b32 s{sT1}, s{sT1}, 1')
    A(f's_add_i32 s{sT1}, s{sT1}, s{sPC}')
    A(f's_mul_i32 s{sKC0B}, s{sT1}, 384')
    A(f'v_lshrrev_b32 v{vT}, 3, v{vN}')
    A(f'v_lshlrev_b32 v{vT}, 1, v{vT}')
    A(f'v_xor_b32 v{vT}, v{vT}, v{vG}')
    A(f'v_lshl_add_u32 v{vT}, v{vN}, 2, v{vT}')
    A(f'v_lshlrev_b32 v{vT}, 4, v{vT}')
    A(f's_lshl_b32 s{sT0}, s{sW}, 11')
    A(f's_add_u32 s{sT0}, s{sT0}, {9*ROWB - 2048}')
    A(f'v_add_u32 v{vSW}, s{sT0}, v{vWA0}')
    A(f'v_add_u32 v0, s{sT0}, v{vT}')
    A(f's_mul_i32 s{sT2}, s{sW}, 18432')
    A(f's_add_u32 s{sT2}, s{sT2}, {MB}')
    A(f'v_add_u32 v{MPK}, s{sT2}, v{vT}')
    A(f'v_mov_b32 v{MWA+3}, v{vT}')
    A(f'v_add_u32 v{MWA+4}, 36864, v{vT}')
    A(f's_mul_i32 s{sT0}, s{sW}, 3')
    for i in range(3):
        A(f's_add_u32 s{sT2}, s{sT0}, {i}')
        A(f's_lshr_b32 s{sT3}, s{sT2}, 1')
        A(f's_mul_i32 s{sT3}, s{sT3}, 12')
        A(f's_and_b32 s{sT2}, s{sT2}, 1')
        A(f's_add_u32 s{sT3}, s{sT3}, s{sT2}')
        A(f's_lshl_b32 s{sT3}, s{sT3}, 10')
        A(f's_add_u32 s{sT3}, s{sT3}, {MB}')
        A(f'v_add_u32 v{MWA+i}, s{sT3}, v{vWA0}')
    A(f's_max_i32 s{sBASE}, s{sSTRIP}, s{sLOR}')
    A(f's_min_i32 s{sBASE}, s{sBASE}, s{sHIR}')
    A(f's_and_b32 s{sBASE}, s{sBASE}, -2')
    A(f'v_lshrrev_b32 v{vT}, 3, v{vN}')
    A(f'v_add_u32 v{vT}, s{sSTRIP}, v{vT}')
    A(f'v_max_i32 v{vT}, s{sLOR}, v{vT}')
    A(f'v_min_i32 v{vT}, s{sHIR}, v{vT}')
    A(f'v_subrev_u32 v{vT}, s{sBASE}, v{vT}')
    A(f's_add_u32 s{sBASE}, s{sBASE}, s{sSHR}')
    A(f's_mov_b32 s{sNEG}, {NEGINF}')
    A(f's_mov_b32 s{sSC}, {SCALE}')
    A(f'v_and_b32 v{vT+1}, 1, v{vG}')
    A(f'v_sub_u32 v{vT+2}, v{vT+1}, v{vT}')
    A(f'v_ashrrev_i32 v{vR0}, 31, v{vT+2}')
    A(f'v_and_b32 v{vR0}, s{sNEG}, v{vR0}')
    A(f'v_sub_u32 v{vT+2}, v{vT}, v{vT+1}')
    A(f'v_ashrrev_i32 v{vR3}, 31, v{vT+2}')
    A(f'v_and_b32 v{vR3}, s{sNEG}, v{vR3}')
    A(f'v_and_b32 v{vT}, 7, v{vN}')
    A(f'v_min_u32 v{vT}, 6, v{vT}')
    A(f'v_lshrrev_b32 v{vT+1}, 1, v{vG}')
    A(f'v_mov_b32 v{vT+3}, 0x7f')
    for G in range(2):
        A(f'v_add_u32 v{vT+2}, {7*G}, v{vT}')
        A(f'v_max_i32 v{vT+2}, s{sLOC}, v{vT+2}')
        A(f'v_min_i32 v{vT+2}, s{sHIC}, v{vT+2}')
        A(f'v_lshlrev_b32 v{vT+2}, v{vT+2}, v{vT+3}')
        A(f'v_lshrrev_b32 v{vT+2}, v{vT+1}, v{vT+2}')
        A(f'v_not_b32 v{vCB+G}, v{vT+2}')
    def Fv(dst, row):
        A(f'v_and_b32 v{dst}, 1, v{row}')
        A(f'v_lshlrev_b32 v{dst}, 3, v{dst}')
        A(f'v_and_or_b32 v{dst}, v{row}, 6, v{dst}')
    A(f'v_and_b32 v{vT}, 7, v{vN}')
    A(f'v_add_u32 v{vT}, s{sBASE}, v{vT}')
    Fv(vT+1, vT)
    A(f'v_mul_u32_u24 v{vT}, {ROWB}, v{vT}')
    A(f'v_lshrrev_b32 v{vT+2}, 3, v{vN}')
    A(f'v_mul_u32_u24 v{vT+2}, 24, v{vT+2}')
    A(f'v_add_u32 v{vT+2}, v{vT+2}, v{vG}')
    for s in range(4):
        A(f'v_add_u32 v{vT+3}, {4*s}, v{vT+2}')
        A(f'v_xor_b32 v{vT+3}, v{vT+3}, v{vT+1}')
        A(f'v_lshl_add_u32 v{vAS+s}, v{vT+3}, 4, v{vT}')
    A(f'v_and_b32 v{vT}, 1, v{vG}')
    A(f'v_lshlrev_b32 v{vT}, 2, v{vT}')
    A(f'v_lshrrev_b32 v{vT+1}, 2, v{vN}')
    A(f'v_add3_u32 v{vT}, v{vT}, v{vT+1}, s{sBASE}')
    Fv(vT+1, vT)
    A(f'v_mul_u32_u24 v{vT}, {ROWB}, v{vT}')
    A(f'v_and_b32 v{vT+2}, 1, v{vN}')
    A(f'v_lshl_add_u32 v{vT}, v{vT+2}, 3, v{vT}')
    A(f'v_lshrrev_b32 v{vT+2}, 1, v{vG}')
    A(f'v_mul_u32_u24 v{vT+2}, 24, v{vT+2}')
    A(f'v_bfe_u32 v{vT+3}, v{vN}, 1, 1')
    A(f'v_add_u32 v{vT+2}, v{vT+2}, v{vT+3}')
    for ct in range(8):
        A(f'v_add_u32 v{vT+3}, {2*ct}, v{vT+2}')
        A(f'v_xor_b32 v{vT+3}, v{vT+3}, v{vT+1}')
        A(f'v_lshl_add_u32 v{vAP+ct}, v{vT+3}, 4, v{vT}')
    A(f'v_add_u32 v{vWA1}, {SPARE}, v{vWA0}')
    A(f'v_add_u32 v{vWAM}, {MB}, v{vWA0}')
    A(f's_and_b32 s{sT0}, s{sW}, 1')
    A(f's_lshl_b32 s{sT0}, s{sT0}, 3')
    A(f's_and_b32 s{sT1}, s{sW}, 6')
    A(f's_or_b32 s{sT0}, s{sT0}, s{sT1}')
    row_addrs(WF, f's{sT0}')
    A(f's_add_u32 s{sT1}, s{sW}, 8')
    row_soff(sXR, f's{sT1}')
    A(f's_mul_i32 s{sXL}, s{sT1}, {ROWB}')
    stamp()
    def xloads():
        for s in range(6):
            for G in range(2):
                A.raw(f'  buffer_load_dwordx4 v[{XQ+24*G+4*s}:{XQ+24*G+4*s+3}], v{vXA+G}, s[{S_X}:{S_X+3}], 0 offen offset:{64*s}{XNT}')
    A(f's_cmp_lt_u32 s{sW}, 4')
    A('s_cbranch_scc1 M_mw')
    wdma(0, 0)
    A('s_barrier')
    stamp()
    A('s_waitcnt vmcnt(0)')
    A('s_barrier')
    stamp()
    xloads()
    A('s_branch M_b0')
    A.label('M_mw'); A.reset()
    nstamp[0] -= 2
    A('s_barrier')
    stamp()
    A(f's_cmp_eq_u32 s{sW}, 0')
    A('s_cbranch_scc1 M_nox')
    xloads()
    A.raw('  s_waitcnt vmcnt(12)')
    A('s_branch M_nox2')
    A.label('M_nox')
    A.raw('  s_waitcnt vmcnt(0)')
    A.label('M_nox2')
    for i in range(18):
        A(f'ds_read_b128 v[{MBQ+4*i}:{MBQ+4*i+3}], v{MPK} offset:{1024*i}')
        if i == 13: A('s_waitcnt lgkmcnt(8)')
    A('s_waitcnt lgkmcnt(0)')
    A('s_barrier')
    stamp()
    seqM = [(sp, k, hp) for sp in range(6) for k in range(6) for hp in range(2)]
    def rdM(i):
        sp, k, hp = seqM[i]
        buf = RING + 4*(i % 8)
        return f'ds_read_b128 v[{buf}:{buf+3}], v{MWA+3+sp//3} offset:{((2*(sp%3)+hp)*6 + k)*1024}'
    DM = 6
    for i in range(DM): A(rdM(i))
    ms, mem, side = [], {}, []
    for i, (sp, k, hp) in enumerate(seqM):
        a = RING + 4*(i % 8)
        ab = MACC + 24*(sp & 1)
        if i + DM < len(seqM): mem[len(ms)] = [rdM(i + DM)]
        for t in range(3):
            d = ab + 8*t + 4*hp
            ms.append(mf(d, a, MBQ + 24*t + 4*k, None if k == 0 else d))
        if i % 12 == 11:
            for t in range(3):
                pk = MPK + 4*(t & 1)
                e0 = len(ms) + 3 + 6*t
                for q in range(4):
                    side.append((e0, f'v_cvt_pk_bf16_f32 v{pk+q}, v{ab+8*t+2*q}, v{ab+8*t+2*q+1}', len(ms) + 35))
                wr = f'ds_write_b128 v{MWA+t}, v[{pk}:{pk+3}] offset:{2048*sp}'
                if sp < 5: mem[e0 + 4] = [wr]
                else: side.append((e0, wr))
    for t in stream(ms, mem, side): A(t)
    A('s_waitcnt lgkmcnt(0)')
    A.label('M_b0'); A.reset()
    A('s_barrier')
    stamp()
    A(f's_cmp_eq_u32 s{sW}, 0')
    A('s_cbranch_scc1 M_helper')
    def xt(s):
        o = [f's_waitcnt vmcnt({10 - 2*s})']
        for G in range(2):
            r = XQ + 24*G + 4*s
            o.append(f'ds_write_b128 v{vSW}, v[{r}:{r+3}] offset:{1024*G}')
        for G in range(2):
            r = XQ + 24*G + 4*s
            o.append(f'ds_read_b128 v[{r}:{r+3}], v0 offset:{1024*G}')
        return o
    A.vm = [set() for _ in range(12)]
    for s in range(2):
        for t in xt(s): A(t)
    stamp()
    def sreg(G, tl): return SACC + 28*G + 4*tl
    bgA = []
    for G in range(2):
        for tl in range(7):
            tau = tl + 3*G
            r = sreg(G, tl)
            bgA += [f'v_bfe_i32 v{r+2}, v{vCB+G}, {2*tau}, 1', f'v_and_b32 v{r+1}, s{sNEG}, v{r+2}',
                    f'v_and_b32 v{r+2}, s{sNEG}, v{r+2}', f'v_or_b32 v{r}, v{r+1}, v{vR0}', f'v_or_b32 v{r+3}, v{r+1}, v{vR3}']
    side = []
    t0, t1, t2, t3, t4 = QP+20, QP+21, QP+22, QP+23, QP+44
    A(f's_add_u32 s{sT1}, s{sTR}, s{sSTRIP}')
    A(f's_mov_b32 s{sT2}, 86016')
    A(f's_mov_b32 s{sT3}, 384')
    side += [f'v_lshrrev_b32 v{t0}, 1, v{vG}', f'v_add_u32 v{t0}, s{sT1}, v{t0}',
             f'v_lshl_add_u32 v{t1}, v{t0}, 1, s{sALR}', f'v_add_u32 v{t2}, 112, v{t0}',
             f'v_med3_i32 v{t0}, v{t1}, v{t0}, v{t2}', f'v_mul_lo_u32 v{t0}, v{t0}, s{sT2}',
             f'v_lshl_add_u32 v{t0}, v{vN}, 3, v{t0}',
             f'v_and_b32 v{t3}, 1, v{vG}', f'v_lshl_add_u32 v{t4}, v{t3}, 2, s{sTC}',
             f'v_lshlrev_b32 v{t3}, 30, v{t3}']
    for G in range(2):
        for r in range(4):
            d = vOA + 4*G + r
            side += [f'v_add_u32 v{d}, {7*G+r}, v{t4}', f'v_lshl_add_u32 v{t1}, v{d}, 1, s{sALC}',
                     f'v_add_u32 v{t2}, 112, v{d}', f'v_med3_i32 v{d}, v{t1}, v{d}, v{t2}',
                     f'v_mad_u32_u24 v{d}, v{d}, s{sT3}, v{t0}']
            if r == 3: side += [f'v_add_u32 v{d}, v{d}, v{t3}']
    oaddr = side
    xrow = []
    for j in range(8):
        xrow.append(f's_add_u32 m0, s{sXL}, {16*PIECE[j]}\n s_nop 0\n buffer_load_dwordx4 v{WF+j}, s[{S_X}:{S_X+3}], s{sXR} offen{KNT} lds')
    bgA += oaddr
    def finA(sig, accb):
        out = []
        for G in range(2):
            for q in range(4):
                out.append(f'v_cvt_pk_bf16_f32 v{QP+24*G+4*sig+q}, v{accb+8*G+2*q}, v{accb+8*G+2*q+1}')
        return out
    def locA(f):
        if f < 60: return ('lds', vWAM, f*1024)
        if f < 62: return ('reg', WF + 4*(f-60))
        return ('lds', vWA1, (f-62)*1024)
    def bar():
        A('s_barrier')
        bgA[0:0] = xrow
    def bar4():
        A('s_waitcnt vmcnt(0)'); A('s_barrier')
        A('s_setprio 1')
        cond('M_e1', True, lambda: A.skip('s_setprio 2'))
    xm0 = {}
    for s in range(2, 6):
        o = xt(s)
        b = 4*(s - 2)
        xm0[b + 1] = [o[0] + '\n' + o[1], o[2]]
        xm0[b + 3] = [o[3], o[4]]
    xm = {**xm0, 2*48+1: [f'ds_read_b128 v[{WF}:{WF+3}], v{vWAM} offset:{60*1024}'],
          2*49+1: [f'ds_read_b128 v[{WF+4}:{WF+7}], v{vWAM} offset:{61*1024}']}
    pend = gemm_phase(XQ, locA, finA, hooks={2: bar, 4: bar4}, bg=bgA, extra_mem=xm)
    assert not bgA
    stamp()
    cond('M_l1', False, lambda: A.skip('s_barrier'))
    seq = []
    for (a1, a2) in ((0, 3), (1, 4), (2, 5), (7, 6), (8, 9)):
        for s in range(6):
            seq.append((a1, s)); seq.append((a2, s))
    def users(tau):
        u = []
        if tau <= 6: u.append((0, tau))
        if tau >= 3: u.append((1, tau - 3))
        return u
    def rdS(i):
        tau, s = seq[i]
        buf = RING + 4*(i % 8)
        return f'ds_read_b128 v[{buf}:{buf+3}], v{vAS + (s % 4)} offset:{tau*768 + (256 if s >= 4 else 0)}'
    D = 7
    for i in range(D): A(rdS(i))
    for t in pend: A(t)
    ms, mem = [], {}
    for i, (tau, s) in enumerate(seq):
        a = RING + 4*(i % 8)
        for (G, tl) in users(tau):
            r = sreg(G, tl)
            ms.append(mf(r, a, QP + 24*G + 4*s, r))
        if i + D < len(seq): mem[len(ms) - 1] = [rdS(i + D)]
    stream(ms, mem, [])
    stamp()
    A('s_setprio 0')
    vM = [12, 13]; vX = [14, 15]
    A(f'v_mov_b32 v{PP+14}, 0'); A(f'v_mov_b32 v{PP+15}, 0')
    A(f'v_mov_b32 v{PP+16}, 0'); A(f'v_mov_b32 v{PP+17}, 0')
    for G in range(2):
        b = sreg(G, 0)
        A(f'v_max3_f32 v{vM[G]}, v{b}, v{b+1}, v{b+2}')
        A(f'v_max3_f32 v{vX[G]}, v{b+3}, v{b+4}, v{b+5}')
    for k in range(6, 26, 4):
        for G in range(2):
            b = sreg(G, 0)
            A(f'v_max3_f32 v{vM[G]}, v{vM[G]}, v{b+k}, v{b+k+1}')
            A(f'v_max3_f32 v{vX[G]}, v{vX[G]}, v{b+k+2}, v{b+k+3}')
    for G in range(2):
        b = sreg(G, 0)
        A(f'v_max3_f32 v{vM[G]}, v{vM[G]}, v{b+26}, v{b+27}')
    for G in range(2):
        A(f'v_max_f32 v{vM[G]}, v{vM[G]}, v{vX[G]}')
    for sw in ('v_permlane32_swap_b32', 'v_permlane16_swap_b32'):
        for G in range(2): A(f'v_mov_b32 v{vX[G]}, v{vM[G]}')
        for G in range(2): A(f'{sw} v{vM[G]}, v{vX[G]}')
        for G in range(2): A(f'v_max_f32 v{vM[G]}, v{vM[G]}, v{vX[G]}')
    for G in range(2): A(f'v_mul_f32 v{vM[G]}, s{sSC}, v{vM[G]}')
    def preg(G, tl): return PP + 16*G + 2*(tl + G)
    seqP = [(sig, u, h) for sig in range(6) for u in range(5) for h in range(2)]
    def rdP(i):
        sig, u, h = seqP[i]
        ct = 2*sig + h
        buf = RING + 4*(i % 8)
        return [f'ds_read_b64_tr_b16 v[{buf+2*hh}:{buf+2*hh+1}], v{vAP + (ct % 8)} offset:{(4*u+2*hh)*384 + (256 if ct >= 8 else 0)}' for hh in range(2)]
    DP = 6
    def wf_load():
        A.skip(f's_mov_b32 s{sT0}, {10*1024}')
        for i in range(2):
            A.raw(f'  buffer_load_dwordx4 v[{WF+4*i}:{WF+4*i+3}], v{vWA0}, s[{S_WS}:{S_WS+3}], s{sT0} offen offset:{1024*i} sc1')
    def b4L():
        A.skip('s_barrier'); wf_load()
    B3AT, B4AT = int(OPT.get('b3', '-1')), int(OPT.get('b4', '3'))
    if B3AT < 0: cond('M_e2', True, lambda: A.skip('s_barrier'))
    for tl in range(7):
        for G in range(2):
            r = sreg(G, tl)
            for k in range(4): A(f'v_fma_f32 v{r+k}, v{r+k}, s{sSC}, -v{vM[G]}')
            for k in range(4): A(f'v_exp_f32 v{r+k}, v{r+k}')
        for G in range(2):
            r = sreg(G, tl)
            p = preg(G, tl)
            A(f'v_cvt_pk_bf16_f32 v{p}, v{r}, v{r+1}')
            A(f'v_cvt_pk_bf16_f32 v{p+1}, v{r+2}, v{r+3}')
        if tl == 5:
            for i in range(DP):
                for t in rdP(i): A(t)
        if tl == B3AT: cond('M_e2', True, lambda: A.skip('s_barrier'))
        if tl == B4AT: cond('M_l2', False, b4L)
    ONES = SACC + 16
    for q in range(4): A(f'v_mov_b32 v{ONES+q}, 0x3f803f80')
    stamp()
    A('s_setprio 3')
    ms, first, side, hk = [], [], [], {}
    def b5L():
        def body():
            A.raw('  s_waitcnt vmcnt(0)'); A.skip('s_barrier')
        cond('M_l3', False, body)
    sums = [mf(vINV + 4*G, PP + 16*G + 4*u, ONES, None if u == 0 else vINV + 4*G) for u in range(4) for G in range(2)]
    for i, (sig, u, h) in enumerate(seqP):
        a = RING + 4*(i % 8)
        accb = ACC + 16*(sig & 1)
        first.append(len(ms))
        for G in range(2):
            uu = u - G
            if 0 <= uu <= 3:
                d = accb + 8*G + 4*h
                ms.append(mf(d, a, PP + 16*G + 4*uu, None if uu == 0 else d))
        if i % 10 in (1, 9) and 1 <= sig <= 4: ms.append(sums.pop(0))
        if i % 10 == 9:
            e = len(ms) - 1
            side += [(e + 4, t, e + 16) for t in finA(sig, accb)]
            if sig == int(OPT.get('b5', '3')): hk[e] = b5L
    assert not sums
    mem = {}
    k = 0
    nrd = 2*(len(seqP) - DP)
    ngap = first[-1] - 5
    for j in range(DP, len(seqP)):
        for t in rdP(j):
            gp = (k * ngap) // nrd
            if j >= 8: gp = max(gp, first[j - 7] - 1)
            assert gp < first[j] - 3, (j, gp, first[j])
            mem.setdefault(gp, []).append(t); k += 1
    pend = stream(ms, mem, side, hk)
    stamp()
    def b4E():
        A.skip('s_barrier')
        wf_load()
        A.skip(f's_mul_i32 s{sT0}, s{sW}, 12288')
        A.skip(f's_add_u32 s{sT4}, s{sT0}, {12*1024}')
        for blk in range(3):
            A.skip(f's_mov_b32 m0, s{sT0}')
            A.skip(f's_add_u32 s{sT0}, s{sT0}, 4096')
            for i in range(4):
                A.raw(f'  buffer_load_dwordx4 v{vWA0}, s[{S_WS}:{S_WS+3}], s{sT4} offen offset:{1024*i} sc1 lds')
            A.skip(f's_add_u32 s{sT4}, s{sT4}, 4096')
    cond('M_e3', True, b4E)
    def finE(sig, accb):
        out = []
        for G in range(2):
            for r in range(4):
                for h in range(2):
                    out.append(f'v_mul_f32 v{accb+8*G+4*h+r}, v{accb+8*G+4*h+r}, v{vINV+4*G+r}')
                o = OST + 8*G + 2*r
                out.append(f'v_cvt_pk_bf16_f32 v{o+(sig&1)}, v{accb+8*G+r}, v{accb+8*G+4+r}')
                if sig & 1:
                    out.append(f'buffer_store_dwordx2 v[{o}:{o+1}], v{vOA+4*G+r}, s[{S_OUT}:{S_OUT+3}], 0 offen offset:{128*(sig>>1)}{ONT}')
        return out
    def locE(f):
        if f < 10: return ('lds', vWA1, f*1024)
        if f < 12: return ('reg', WF + 4*(f-10))
        return ('lds', vWA0, (f-12)*1024)
    def b5E():
        def body():
            A.raw('  s_waitcnt vmcnt(0)'); A.skip('s_barrier')
        cond('M_e4', True, body)
        stamp()
    hooksE = {0: b5E, 1: lambda: A('s_setprio 2'), 3: lambda: A('s_setprio 1'), 4: lambda: A('s_setprio 0')}
    for t in pend: A(t)
    bgE = [f'v_rcp_f32 v{vINV+q}, v{vINV+q}' for q in range(8)]
    pend = gemm_phase(QP, locE, finE, swap=True, hooks=hooksE, gate=12, bg=bgE,
                      ghooks={2*10-1: lambda: A.raw('  s_waitcnt vmcnt(12)')})
    for t in pend: A(t)
    if STAMP:
        stamp()
        A('s_waitcnt vmcnt(0)')
        stamp(1)
        write_stamps()
    A('s_endpgm')

    A.label('M_helper'); A.reset()
    nstamp[0] = 6
    HA = 16
    def rows(lst):
        for i in lst:
            row_soff(sT1, str(i))
            b = HA + 8*(i % 8)
            for j in range(8):
                A(f's_mov_b32 m0, {i*ROWB + 16*PIECE[j]}')
                A(f'buffer_load_dwordx4 v{b+j}, s[{S_X}:{S_X+3}], s{sT1} offen{KNT} lds')
    def variant(i): row_addrs(HA + 8*i, str((i & 6) | ((i & 1) << 3)))
    variant(0); rows([0, 8])
    for i in range(1, 8):
        variant(i)
        if i == 6: A('s_waitcnt vmcnt(40)')
        rows([i])
    srd(S_WO, 8, 9, 192*192*2)
    srd(S_DBG, 12, 13, 256)
    VB, VA, VU = 96, 120, 168
    A('s_cmp_ge_u32 s2, 72')
    A('s_cbranch_scc1 H_1')
    A(f's_mul_hi_u32 s{sT1}, s2, 0x15555556')
    A(f's_mul_i32 s{sT2}, s{sT1}, 12')
    A(f's_sub_u32 s{sT2}, s2, s{sT2}')
    A(f's_and_b32 s{sT3}, s{sT2}, 1')
    A(f's_lshr_b32 s{sT2}, s{sT2}, 1')
    A(f's_lshl_b32 s{sT1}, s{sT1}, 1')
    A(f's_add_u32 s{sT1}, s{sT1}, s{sT3}')
    A(f's_lshr_b32 s{sT3}, s{sT1}, 2')
    A(f's_lshl_b32 s{sT3}, s{sT3}, 6')
    A(f's_and_b32 s{sT1}, s{sT1}, 3')
    A(f's_add_u32 s{sT1}, s{sT1}, s{sT3}')
    A(f's_lshl_b32 s{sT1}, s{sT1}, 1')
    A(f'v_mul_u32_u24 v{vT+6}, 3072, v{vG}')
    A(f'v_lshl_add_u32 v{vT+6}, v{vN}, 3, v{vT+6}')
    A(f'v_mul_u32_u24 v{vT+4}, 1152, v{vN}')
    A(f'v_lshl_add_u32 v{vT+4}, v{vG}, 4, v{vT+4}')
    A(f's_mul_i32 s{sT2}, s{sT2}, {32*1152}')
    A(f's_add_u32 s{sT3}, s{sT2}, {16*1152}')
    A('s_waitcnt vmcnt(2)')
    for k in range(6):
        for e in range(8):
            A(f'buffer_load_ushort v{VU+8*k+e}, v{vT+6}, s[{S_WO}:{S_WO+3}], s{sT1} offen offset:{e*384}')
        A(f's_add_u32 s{sT1}, s{sT1}, {32*384}')
    for k in range(6):
        A(f'buffer_load_dwordx4 v[{VA+4*k}:{VA+3+4*k}], v{vT+4}, s[{S_W}:{S_W+3}], s{sT2} offen offset:{768+64*k}')
        A(f'buffer_load_dwordx4 v[{VA+24+4*k}:{VA+27+4*k}], v{vT+4}, s[{S_W}:{S_W+3}], s{sT3} offen offset:{768+64*k}')
    A.label('H_1'); A.reset()
    stamp()
    A('s_barrier')
    A('s_cmp_ge_u32 s2, 72')
    A('s_cbranch_scc1 H_2')
    A('s_waitcnt vmcnt(0)')
    for k in range(24):
        A(f'v_lshl_or_b32 v{VB+k}, v{VU+1+2*k}, 16, v{VU+2*k}')
    for k in range(6):
        for hp in range(2):
            A(mf(88+4*hp, VA+24*hp+4*k, VB+4*k, None if k == 0 else 88+4*hp))
    for r in range(4):
        A(f'v_cvt_pk_bf16_f32 v{84+r}, v{88+2*r}, v{89+2*r}')
    A(f's_lshl_b32 s{sT0}, s2, 10')
    A(f'buffer_store_dwordx4 v[84:87], v{vWA0}, s[{S_WS}:{S_WS+3}], s{sT0} offen sc1')
    A('s_branch H_2b')
    A.label('H_2'); A.reset()
    A('s_waitcnt vmcnt(0)')
    A.label('H_2b'); A.reset()
    stamp()
    A('s_barrier')
    rows([16, 17, 18, 19])
    A('s_cmp_ge_u32 s2, 72')
    A('s_cbranch_scc1 H_3')
    A(f'v_mov_b32 v{vT}, 1')
    A(f'v_mov_b32 v{vT+1}, 0')
    A('s_mov_b64 exec, 1')
    A('s_waitcnt vmcnt(32)')
    A(f'buffer_atomic_add v{vT}, v{vT+1}, s[{S_DBG}:{S_DBG+3}], 0 offen sc0 sc1')
    A('s_waitcnt vmcnt(0)')
    A(f'v_readfirstlane_b32 s{sT1}, v{vT}')
    A(f's_cmp_lg_u32 s{sT1}, 71')
    A('s_cbranch_scc1 H_notlast')
    A(f'buffer_store_dword v{vT}, v{vT+1}, s[{S_DBG}:{S_DBG+3}], 0 offen offset:128 sc1')
    A.label('H_notlast')
    A('s_mov_b64 exec, -1')
    A.label('H_3'); A.reset()
    A('s_waitcnt vmcnt(0)')
    stamp()
    A('s_barrier')
    poll('H_pollV', 128)
    stamp()
    def wfr(src0, n, lds0):
        for i in range(n):
            if i % 4 == 0:
                A(f's_mov_b32 m0, {lds0 + i*1024}')
                A(f's_mov_b32 s{sT4}, {(src0 + i)*1024}')
            A(f'buffer_load_dwordx4 v{vWA0}, s[{S_WS}:{S_WS+3}], s{sT4} offen offset:{1024*(i%4)} sc1 lds')
    wfr(0, 10, SPARE)
    A('s_waitcnt vmcnt(0)')
    stamp()
    A('s_barrier')
    wfr(12, 12, 0)
    A('s_waitcnt vmcnt(0)')
    stamp()
    A('s_barrier')
    if STAMP:
        stamp(1)
        write_stamps()
    A.label('M_done')
    A('s_endpgm')
    A.label('CODE_END')

gen_main()
A.raw('.section .rodata,"a"')
A.raw('.p2align 6')
A.raw(f'.amdhsa_kernel {NAME}')
A.raw('  .amdhsa_next_free_vgpr 256')
A.raw('  .amdhsa_next_free_sgpr 102')
A.raw('  .amdhsa_accum_offset 256')
A.raw('  .amdhsa_group_segment_fixed_size 0')
A.raw('  .amdhsa_kernarg_size 48')
A.raw('  .amdhsa_user_sgpr_count 2')
A.raw('  .amdhsa_user_sgpr_kernarg_segment_ptr 1')
A.raw('  .amdhsa_system_sgpr_workgroup_id_x 1')
A.raw('.end_amdhsa_kernel')
open(OUT, 'w').write(A.text())
print('instr', A.n_inst, 'nops', A.nops, 'maxv', A.maxv)
```

```python
import sys, struct
sys.path.insert(0, 'gen')
from asmlib import Asm

OUT = sys.argv[1] if len(sys.argv) > 1 else 'standalone__neighborhood_nat__vision.s'
OPT = dict(a.split('=') if '=' in a else (a, '1') for a in sys.argv[2:])
STAMP = 'stamp' in OPT
XNT = ' nt' if OPT.get('xnt', '1') == '1' else ''
KNT = ' nt' if OPT.get('knt', '0') == '1' else ''
ONT = {'0': '', '1': ' nt', '2': ' sc1', '3': ' sc0 sc1', '4': ' sc0 sc1 nt'}[OPT.get('ont', '0')]
NAME = 'standalone__neighborhood_nat__vision_kernel'

X_BYTES = 19267584
WS_BYTES = 268435456
ROWB = 7680
MB = 90112
SPARE = 153600
def f32bits(x): return struct.unpack('<I', struct.pack('<f', x))[0]
SCALE = f32bits(192 ** -0.5 * 1.4426950408889634)
NEGINF = 0xff800000
PIECE = [0, 64, 128, 192, 256, 320, 384, 416]

A = Asm()
hdr = open('standalone__neighborhood_nat__vision.s.ref').read().split('\n')
for ln in hdr:
    if ln.startswith('; @launch'): break
    A.raw(ln)
A.raw('; @launch grid=(256,1,1) block=(512,1,1) lds=163840')
A.raw('.amdgcn_target "amdgcn-amd-amdhsa--gfx950"')
A.raw('.text')

def srd(d, lo, hi, nbytes):
    A(f's_mov_b32 s{d}, s{lo}'); A(f's_and_b32 s{d+1}, s{hi}, 0xffff')
    A(f's_mov_b32 s{d+2}, {nbytes}'); A(f's_mov_b32 s{d+3}, 0x00020000')
def mf(d, a, b, c):
    cs = '0' if c is None else f'v[{c}:{c+3}]'
    return f'v_mfma_f32_16x16x32_bf16 v[{d}:{d+3}], v[{a}:{a+3}], v[{b}:{b+3}], {cs}'

S_X, S_OUT, S_WS, S_W, S_WO, S_DBG = 16, 20, 24, 28, 32, 36
sW, sPR, sPC, sTR, sTC = 40, 41, 42, 43, 44
sKR0, sKC0B = 45, 46
sLOR, sHIR, sSHR, sLOC, sHIC = 47, 48, 49, 50, 51
sBASE, sSTRIP, sNEG = 52, 53, 54
sT0, sT1, sT2, sT3, sT4, sT5 = 55, 56, 57, 58, 59, 60
sALR, sALC, sSC = 61, 62, 63
sST = 64
sXR, sXL = 100, 101
vL, vG, vN = 1, 2, 3
vT = 4
vR0, vR3, vCB = 12, 13, 14
XQ = 16
PP = 16
vOA = 4
vINV = 56
SACC = 64
OST = 64
QP = 120
ACC = 168
RING = 200
WF = 232
vAS = 240
vAP = 244
vWA0, vWA1, vWAM = 252, 253, 254
vSW, vSR = 255, 199
vWD, vXA = RING, RING + 1
MBQ = 64
MACC = 136
MPK = 184
MWA = 192

nstamp = [0]
def stamp(real=None):
    if not STAMP: return
    i = nstamp[0]; nstamp[0] += 1
    assert i < 14
    A.raw(f'  s_memtime s[{sST+2*i}:{sST+1+2*i}]')
    if real is not None:
        A.raw(f'  s_memrealtime s[{96+2*real}:{97+2*real}]')
def write_stamps():
    n = nstamp[0]
    A('s_waitcnt lgkmcnt(0)')
    A(f'v_mov_b32 v{RING}, 0')
    if 'dbg' in OPT:
        lbl = f'WS_skip{n}'
        A(f's_cmp_lg_u32 s2, {OPT["dbg"].split(",")[0]}')
        A(f's_cbranch_scc1 {lbl}')
        A(f's_cmp_lg_u32 s{sW}, {OPT["dbg"].split(",")[1]}')
        A(f's_cbranch_scc1 {lbl}')
        for i in range(1, n):
            A(f's_sub_u32 s{sT0}, s{sST+2*i}, s{sST}')
            A(f'v_writelane_b32 v{RING}, s{sT0}, {i}')
        A(f's_sub_u32 s{sT0}, s98, s96')
        A(f'v_writelane_b32 v{RING}, s{sT0}, 15')
        srd(S_DBG, 12, 13, 256)
        A(f'v_lshlrev_b32 v{RING+1}, 2, v{vL}')
        A('s_mov_b64 exec, 0xfffe')
        A(f'buffer_store_dword v{RING}, v{RING+1}, s[{S_DBG}:{S_DBG+3}], 0 offen')
        A.label(lbl)
        return
    for i in range(n):
        A(f'v_writelane_b32 v{RING}, s{sST+2*i}, {i}')
    A(f'v_writelane_b32 v{RING}, s96, 14')
    A(f'v_writelane_b32 v{RING}, s98, 15')
    A(f's_lshl_b32 s{sT0}, s2, 3')
    A(f's_add_u32 s{sT0}, s{sT0}, s{sW}')
    A(f's_lshl_b32 s{sT0}, s{sT0}, 6')
    A(f's_add_u32 s{sT0}, s{sT0}, 0x100000')
    A(f'v_lshlrev_b32 v{RING+1}, 2, v{vL}')
    A('s_mov_b64 exec, 0xffff')
    A(f'buffer_store_dword v{RING}, v{RING+1}, s[{S_WS}:{S_WS+3}], s{sT0} offen')

def row_addrs(b, sF):
    for j in (0, 1, 2, 7):
        A(f'v_add_u32 v{vT}, {PIECE[j]}, v{vL}')
        A(f'v_xor_b32 v{vT}, {sF}, v{vT}')
        A(f'v_mul_u32_u24 v{vT+1}, 2731, v{vT}')
        A(f'v_lshrrev_b32 v{vT+1}, 16, v{vT+1}')
        A(f'v_mul_u32_u24 v{vT+1}, 384, v{vT+1}')
        A(f'v_lshl_add_u32 v{vT}, v{vT}, 4, v{vT+1}')
        A(f'v_add_u32 v{b+j}, s{sKC0B}, v{vT}')
        if j < 3:
            A(f'v_add_u32 v{b+j+3}, {8*768}, v{b+j}')
            if j == 0: A(f'v_add_u32 v{b+6}, {16*768}, v{b}')
            A(f'v_max_i32 v{b+j}, 0, v{b+j}')
def row_soff(dst, srow):
    A(f's_add_i32 s{dst}, s{sKR0}, {srow}')
    A(f's_lshl_b32 s{dst}, s{dst}, 1')
    A(f's_add_i32 s{dst}, s{dst}, s{sPR}')
    A(f's_max_i32 s{dst}, s{dst}, 0')
    A(f's_min_i32 s{dst}, s{dst}, 223')
    A(f's_mul_i32 s{dst}, s{dst}, 86016')

def stream(ms, mem, side, hooks=None, cap=2, bg=None):
    side = [x if len(x) == 3 else (x[0], x[1], 10**9) for x in side]
    bg = bg if bg is not None else []
    def slots(lo, hi):
        return sum(max(0, cap - len(mem.get(k, []))) for k in range(lo, hi + 1))
    for i, m in enumerate(ms):
        assert not (side and side[0][2] < i), ('deadline missed', side[0], i)
        A(m)
        if i + 1 < len(ms) and not (hooks and i in hooks): A.prewait(ms[i+1])
        n = 0
        for t in mem.get(i, []):
            A(t); n += 1
        c = cap
        if side and side[0][2] < len(ms):
            dl = side[0][2]
            if sum(1 for x in side if x[2] == dl) > slots(i, dl): c = cap + 1
        while side and n < c and side[0][0] <= i:
            A(side.pop(0)[1]); n += 1
        while bg and n < cap:
            A(bg.pop(0)); n += 1
        if hooks and i in hooks: hooks[i]()
    return [x[1] for x in side]

def gemm_phase(B, loc, finish, swap=False, hooks=None, D=6, gate=None, bg=None, extra_mem=None, ghooks=None):
    def rd(f):
        l = loc(f)
        if l[0] == 'lds':
            buf = RING + 4*(f % 8)
            return [f'ds_read_b128 v[{buf}:{buf+3}], v{l[1]} offset:{l[2]}']
        return []
    ms, mem, side, hk = [], dict(extra_mem or {}), [], dict(ghooks or {})
    for f in range(D):
        for t in rd(f): A(t)
    for f in range(72):
        sig, s, h = f // 12, (f % 12) // 2, f % 2
        l = loc(f)
        a = RING + 4*(f % 8) if l[0] == 'lds' else l[1]
        accb = ACC + 16*(sig & 1)
        for G in range(2):
            d = accb + 8*G + 4*h
            b = B + 24*G + 4*s
            ms.append(mf(d, b, a, None if s == 0 else d) if swap else mf(d, a, b, None if s == 0 else d))
        fn = f + D
        if fn < 72 and not (gate is not None and f < gate <= fn):
            mem[2*f] = rd(fn)
        if f % 12 == 11:
            side += [(2*f + 1 + 3, t, 2*f + 1 + 24) for t in finish(sig, accb)]
            if hooks and sig in hooks:
                def mk(sig=sig, f=f):
                    def h():
                        hooks[sig]()
                        if gate is not None and f + 1 == gate:
                            for k in range(gate, gate + D):
                                for t in rd(k): A(t)
                    return h
                hk[2*f + 1] = mk()
    return stream(ms, mem, side, hk, bg=bg)

def poll(label, off):
    A(f'v_mov_b32 v{vT+2}, 0')
    A(f's_mov_b32 s{sT4}, 0')
    A('s_mov_b64 exec, 1')
    A.label(label)
    A(f'buffer_load_dword v{vT+3}, v{vT+2}, s[{S_DBG}:{S_DBG+3}], 0 offen offset:{off} sc1')
    A('s_waitcnt vmcnt(0)')
    A(f'v_cmp_eq_u32 vcc, 0, v{vT+3}')
    A(f's_add_u32 s{sT4}, s{sT4}, 1')
    A(f's_cmp_gt_u32 s{sT4}, 200000')
    A(f's_cbranch_scc1 {label}_x')
    A('s_cmp_lg_u64 vcc, 0')
    A(f's_cbranch_scc0 {label}_x')
    A('s_sleep 2')
    A(f's_branch {label}')
    A.label(label + '_x')
    A('s_mov_b64 exec, -1')

def cond(lbl, isE, body):
    A(f's_cmp_ge_u32 s{sW}, 5' if isE else f's_cmp_lt_u32 s{sW}, 5')
    A(f's_cbranch_scc1 {lbl}')
    body()
    A.label(lbl)

def gen_main():
    A.raw(f'.globl {NAME}'); A.raw('.p2align 8'); A.raw(f'.type {NAME},@function')
    A.raw(f'{NAME}:'); A.reset()
    A('s_cmp_ge_u32 s2, 256')
    A('s_cbranch_scc1 M_done')
    stamp(0)
    if 'pad' in OPT: A.raw('  s_memrealtime s[96:97]')
    A('s_load_dwordx8 s[4:11], s[0:1], 0')
    A('s_load_dwordx4 s[12:15], s[0:1], 32')
    A(f'v_lshrrev_b32 v{vT}, 6, v0')
    A(f'v_and_b32 v{vL}, 63, v0')
    A(f'v_readfirstlane_b32 s{sW}, v{vT}')
    A(f'v_lshrrev_b32 v{vG}, 4, v{vL}')
    A(f'v_and_b32 v{vN}, 15, v{vL}')
    A(f'v_lshlrev_b32 v{vWA0}, 4, v{vL}')
    if OPT.get('cpf', '0') != '0':
        A('s_getpc_b64 s[16:17]')
        A('s_and_b32 s16, s16, -256')
        A('s_and_b32 s17, s17, 0xffff')
        A('s_mov_b32 s18, CODE_END-' + NAME)
        A('s_mov_b32 s19, 0x00020000')
        if OPT['cpf'] == '1':
            A(f's_lshr_b32 s{sT0}, s2, 3')
            A(f's_lshl_b32 s{sT0}, s{sT0}, 10')
            A(f's_cmp_lg_u32 s{sW}, 7')
            A('s_cbranch_scc1 M_nocpf')
            A.raw(f'  buffer_load_dwordx4 v[{ACC}:{ACC+3}], v{vWA0}, s[16:19], s{sT0} offen')
        else:
            A(f's_lshl_b32 s{sT0}, s{sW}, 12')
            for i in range(4):
                A.raw(f'  buffer_load_dwordx4 v[{ACC+4*i}:{ACC+4*i+3}], v{vWA0}, s[16:19], s{sT0} offen offset:{1024*i}')
        A.label('M_nocpf')
    A(f'v_lshrrev_b32 v{vT}, 4, v{vL}')
    A(f'v_bfe_u32 v{vT+1}, v{vL}, 2, 2')
    A(f'v_lshl_add_u32 v{vT}, v{vT}, 3, v{vT+1}')
    A(f'v_mul_u32_u24 v{vT}, 1152, v{vT}')
    A(f'v_lshrrev_b32 v{vT+1}, 5, v{vL}')
    A(f'v_lshlrev_b32 v{vT+1}, 1, v{vT+1}')
    A(f'v_and_b32 v{vT+2}, 3, v{vL}')
    A(f'v_xor_b32 v{vT+2}, v{vT+1}, v{vT+2}')
    A(f'v_lshl_add_u32 v{vWD}, v{vT+2}, 4, v{vT}')
    A(f's_and_b32 s{sT0}, s2, 7')
    A(f's_lshr_b32 s{sT1}, s2, 3')
    A(f's_lshr_b32 s{sPR}, s{sT0}, 2')
    A(f's_bfe_u32 s{sPC}, s{sT0}, 0x10001')
    A(f's_and_b32 s{sT0}, s{sT0}, 1')
    A(f's_lshl_b32 s{sT0}, s{sT0}, 2')
    A(f's_lshr_b32 s{sTR}, s{sT1}, 3')
    A(f's_add_u32 s{sTR}, s{sTR}, s{sT0}')
    A(f's_and_b32 s{sTC}, s{sT1}, 7')
    A(f's_mul_i32 s{sTR}, s{sTR}, 14')
    A(f's_mul_i32 s{sTC}, s{sTC}, 14')
    A(f's_mul_i32 s{sALR}, s{sPR}, 13')
    A(f's_add_i32 s{sALR}, s{sALR}, -6')
    A(f's_mul_i32 s{sALC}, s{sPC}, 13')
    A(f's_add_i32 s{sALC}, s{sALC}, -6')
    A(f's_sub_u32 s{sSTRIP}, s{sW}, 1')
    A(f's_lshl_b32 s{sSTRIP}, s{sSTRIP}, 1')
    A(f'v_lshrrev_b32 v{vT}, 5, v{vL}')
    A(f's_add_u32 s{sT3}, s{sTR}, s{sSTRIP}')
    A(f'v_add_u32 v{vT}, s{sT3}, v{vT}')
    A(f'v_lshl_add_u32 v{vT+1}, v{vT}, 1, s{sALR}')
    A(f'v_add_u32 v{vT+3}, 112, v{vT}')
    A(f'v_med3_i32 v{vT}, v{vT+1}, v{vT}, v{vT+3}')
    A(f'v_mul_u32_u24 v{vT}, 224, v{vT}')
    A(f'v_bfe_u32 v{vT+7}, v{vL}, 2, 3')
    A(f'v_min_u32 v{vT+7}, 6, v{vT+7}')
    A(f'v_add_u32 v{vT+7}, s{sTC}, v{vT+7}')
    for G in range(2):
        d = vXA + G
        if G: A(f'v_add_u32 v{vT+7}, 7, v{vT+7}')
        A(f'v_lshl_add_u32 v{vT+1}, v{vT+7}, 1, s{sALC}')
        A(f'v_add_u32 v{vT+3}, 112, v{vT+7}')
        A(f'v_med3_i32 v{d}, v{vT+1}, v{vT+7}, v{vT+3}')
        A(f'v_add_u32 v{d}, v{d}, v{vT}')
        A(f'v_mul_u32_u24 v{d}, 384, v{d}')
        A(f'v_lshl_add_u32 v{d}, v{vT+2}, 4, v{d}')
    A('s_waitcnt lgkmcnt(0)')
    srd(S_W, 6, 7, 192*576*2)
    srd(S_X, 4, 5, X_BYTES)
    def wdma(lds0, go):
        A(f's_and_b32 s{sT0}, s{sW}, 3')
        A(f's_mul_i32 s{sT2}, s{sT0}, 18432')
        A(f's_mul_i32 s{sT0}, s{sT0}, 3')
        for i in range(3):
            A(f's_add_u32 s{sT1}, s{sT0}, {i}')
            A(f's_lshr_b32 s{sT3}, s{sT1}, 1')
            A(f's_mul_i32 s{sT3}, s{sT3}, {32*1152}')
            A(f's_and_b32 s{sT1}, s{sT1}, 1')
            A(f's_mul_i32 s{sT1}, s{sT1}, 4608')
            A(f's_add_u32 s{sT1}, s{sT1}, s{sT3}')
            for k in range(6):
                A(f's_add_u32 m0, s{sT2}, {lds0 + (6*i + k)*1024 - go - 64*k}')
                A(f'buffer_load_dwordx4 v{vWD}, s[{S_W}:{S_W+3}], s{sT1} offen offset:{go + 64*k} lds')
    A(f's_cmp_ge_u32 s{sW}, 4')
    A('s_cbranch_scc1 M_now')
    if OPT.get('warm', '1') == '1':
        A(f's_cmp_lg_u32 s{sW}, 0')
        A('s_cbranch_scc1 M_nowarm')
        A(f's_lshr_b32 s{sT0}, s2, 3')
        A(f's_mul_i32 s{sT0}, s{sT0}, 6912')
        A(f's_add_u32 s{sT1}, s{sT0}, 4096')
        for i in range(7):
            A(f'buffer_load_dwordx4 v[{XQ+4*i}:{XQ+4*i+3}], v{vWA0}, s[{S_W}:{S_W+3}], s{sT0 + i//4} offen offset:{1024*(i%4)}')
        A.label('M_nowarm')
    wdma(MB, 384)
    A.label('M_now'); A.reset()
    stamp()
    srd(S_WS, 14, 15, WS_BYTES)
    srd(S_OUT, 10, 11, X_BYTES)
    A(f's_mul_i32 s{sT0}, s{sPR}, 6')
    A(f's_add_i32 s{sKR0}, s{sTR}, s{sT0}')
    A(f's_add_i32 s{sKR0}, s{sKR0}, -6')
    A(f's_cmp_eq_i32 s{sKR0}, -6')
    A(f's_cselect_b32 s{sLOR}, 6, 0')
    A(f's_cmp_eq_i32 s{sKR0}, 98')
    A(f's_cselect_b32 s{sHIR}, 7, 13')
    A(f's_cselect_b32 s{sSHR}, 2, 0')
    A(f's_sub_i32 s{sKR0}, s{sKR0}, s{sSHR}')
    A(f's_mul_i32 s{sT0}, s{sPC}, 6')
    A(f's_add_i32 s{sT1}, s{sTC}, s{sT0}')
    A(f's_add_i32 s{sT1}, s{sT1}, -6')
    A(f's_cmp_eq_i32 s{sT1}, -6')
    A(f's_cselect_b32 s{sLOC}, 6, 0')
    A(f's_cmp_eq_i32 s{sT1}, 98')
    A(f's_cselect_b32 s{sHIC}, 7, 13')
    A(f's_lshl_b32 s{sT1}, s{sT1}, 1')
    A(f's_add_i32 s{sT1}, s{sT1}, s{sPC}')
    A(f's_mul_i32 s{sKC0B}, s{sT1}, 384')
    A(f'v_lshrrev_b32 v{vT}, 3, v{vN}')
    A(f'v_lshlrev_b32 v{vT}, 1, v{vT}')
    A(f'v_xor_b32 v{vT}, v{vT}, v{vG}')
    A(f'v_lshl_add_u32 v{vT}, v{vN}, 2, v{vT}')
    A(f'v_lshlrev_b32 v{vT}, 4, v{vT}')
    A(f's_lshl_b32 s{sT0}, s{sW}, 11')
    A(f's_add_u32 s{sT0}, s{sT0}, {9*ROWB - 2048}')
    A(f'v_add_u32 v{vSW}, s{sT0}, v{vWA0}')
    A(f'v_add_u32 v0, s{sT0}, v{vT}')
    A(f's_mul_i32 s{sT2}, s{sW}, 18432')
    A(f's_add_u32 s{sT2}, s{sT2}, {MB}')
    A(f'v_add_u32 v{MPK}, s{sT2}, v{vT}')
    A(f'v_mov_b32 v{MWA+3}, v{vT}')
    A(f'v_add_u32 v{MWA+4}, 36864, v{vT}')
    A(f's_mul_i32 s{sT0}, s{sW}, 3')
    for i in range(3):
        A(f's_add_u32 s{sT2}, s{sT0}, {i}')
        A(f's_lshr_b32 s{sT3}, s{sT2}, 1')
        A(f's_mul_i32 s{sT3}, s{sT3}, 12')
        A(f's_and_b32 s{sT2}, s{sT2}, 1')
        A(f's_add_u32 s{sT3}, s{sT3}, s{sT2}')
        A(f's_lshl_b32 s{sT3}, s{sT3}, 10')
        A(f's_add_u32 s{sT3}, s{sT3}, {MB}')
        A(f'v_add_u32 v{MWA+i}, s{sT3}, v{vWA0}')
    A(f's_max_i32 s{sBASE}, s{sSTRIP}, s{sLOR}')
    A(f's_min_i32 s{sBASE}, s{sBASE}, s{sHIR}')
    A(f's_and_b32 s{sBASE}, s{sBASE}, -2')
    A(f'v_lshrrev_b32 v{vT}, 3, v{vN}')
    A(f'v_add_u32 v{vT}, s{sSTRIP}, v{vT}')
    A(f'v_max_i32 v{vT}, s{sLOR}, v{vT}')
    A(f'v_min_i32 v{vT}, s{sHIR}, v{vT}')
    A(f'v_subrev_u32 v{vT}, s{sBASE}, v{vT}')
    A(f's_add_u32 s{sBASE}, s{sBASE}, s{sSHR}')
    A(f's_mov_b32 s{sNEG}, {NEGINF}')
    A(f's_mov_b32 s{sSC}, {SCALE}')
    A(f'v_and_b32 v{vT+1}, 1, v{vG}')
    A(f'v_sub_u32 v{vT+2}, v{vT+1}, v{vT}')
    A(f'v_ashrrev_i32 v{vR0}, 31, v{vT+2}')
    A(f'v_and_b32 v{vR0}, s{sNEG}, v{vR0}')
    A(f'v_sub_u32 v{vT+2}, v{vT}, v{vT+1}')
    A(f'v_ashrrev_i32 v{vR3}, 31, v{vT+2}')
    A(f'v_and_b32 v{vR3}, s{sNEG}, v{vR3}')
    A(f'v_and_b32 v{vT}, 7, v{vN}')
    A(f'v_min_u32 v{vT}, 6, v{vT}')
    A(f'v_lshrrev_b32 v{vT+1}, 1, v{vG}')
    A(f'v_mov_b32 v{vT+3}, 0x7f')
    for G in range(2):
        A(f'v_add_u32 v{vT+2}, {7*G}, v{vT}')
        A(f'v_max_i32 v{vT+2}, s{sLOC}, v{vT+2}')
        A(f'v_min_i32 v{vT+2}, s{sHIC}, v{vT+2}')
        A(f'v_lshlrev_b32 v{vT+2}, v{vT+2}, v{vT+3}')
        A(f'v_lshrrev_b32 v{vT+2}, v{vT+1}, v{vT+2}')
        A(f'v_not_b32 v{vCB+G}, v{vT+2}')
    def Fv(dst, row):
        A(f'v_and_b32 v{dst}, 1, v{row}')
        A(f'v_lshlrev_b32 v{dst}, 3, v{dst}')
        A(f'v_and_or_b32 v{dst}, v{row}, 6, v{dst}')
    A(f'v_and_b32 v{vT}, 7, v{vN}')
    A(f'v_add_u32 v{vT}, s{sBASE}, v{vT}')
    Fv(vT+1, vT)
    A(f'v_mul_u32_u24 v{vT}, {ROWB}, v{vT}')
    A(f'v_lshrrev_b32 v{vT+2}, 3, v{vN}')
    A(f'v_mul_u32_u24 v{vT+2}, 24, v{vT+2}')
    A(f'v_add_u32 v{vT+2}, v{vT+2}, v{vG}')
    for s in range(4):
        A(f'v_add_u32 v{vT+3}, {4*s}, v{vT+2}')
        A(f'v_xor_b32 v{vT+3}, v{vT+3}, v{vT+1}')
        A(f'v_lshl_add_u32 v{vAS+s}, v{vT+3}, 4, v{vT}')
    A(f'v_and_b32 v{vT}, 1, v{vG}')
    A(f'v_lshlrev_b32 v{vT}, 2, v{vT}')
    A(f'v_lshrrev_b32 v{vT+1}, 2, v{vN}')
    A(f'v_add3_u32 v{vT}, v{vT}, v{vT+1}, s{sBASE}')
    Fv(vT+1, vT)
    A(f'v_mul_u32_u24 v{vT}, {ROWB}, v{vT}')
    A(f'v_and_b32 v{vT+2}, 1, v{vN}')
    A(f'v_lshl_add_u32 v{vT}, v{vT+2}, 3, v{vT}')
    A(f'v_lshrrev_b32 v{vT+2}, 1, v{vG}')
    A(f'v_mul_u32_u24 v{vT+2}, 24, v{vT+2}')
    A(f'v_bfe_u32 v{vT+3}, v{vN}, 1, 1')
    A(f'v_add_u32 v{vT+2}, v{vT+2}, v{vT+3}')
    for ct in range(8):
        A(f'v_add_u32 v{vT+3}, {2*ct}, v{vT+2}')
        A(f'v_xor_b32 v{vT+3}, v{vT+3}, v{vT+1}')
        A(f'v_lshl_add_u32 v{vAP+ct}, v{vT+3}, 4, v{vT}')
    A(f'v_add_u32 v{vWA1}, {SPARE}, v{vWA0}')
    A(f'v_add_u32 v{vWAM}, {MB}, v{vWA0}')
    A(f's_and_b32 s{sT0}, s{sW}, 1')
    A(f's_lshl_b32 s{sT0}, s{sT0}, 3')
    A(f's_and_b32 s{sT1}, s{sW}, 6')
    A(f's_or_b32 s{sT0}, s{sT0}, s{sT1}')
    row_addrs(WF, f's{sT0}')
    A(f's_add_u32 s{sT1}, s{sW}, 8')
    row_soff(sXR, f's{sT1}')
    A(f's_mul_i32 s{sXL}, s{sT1}, {ROWB}')
    stamp()
    def xloads():
        for s in range(6):
            for G in range(2):
                A.raw(f'  buffer_load_dwordx4 v[{XQ+24*G+4*s}:{XQ+24*G+4*s+3}], v{vXA+G}, s[{S_X}:{S_X+3}], 0 offen offset:{64*s}{XNT}')
    A(f's_cmp_lt_u32 s{sW}, 4')
    A('s_cbranch_scc1 M_mw')
    wdma(0, 0)
    A('s_barrier')
    stamp()
    A('s_waitcnt vmcnt(0)')
    A('s_barrier')
    stamp()
    xloads()
    A('s_branch M_b0')
    A.label('M_mw'); A.reset()
    nstamp[0] -= 2
    A('s_barrier')
    stamp()
    A(f's_cmp_eq_u32 s{sW}, 0')
    A('s_cbranch_scc1 M_nox')
    xloads()
    A.raw('  s_waitcnt vmcnt(12)')
    A('s_branch M_nox2')
    A.label('M_nox')
    A.raw('  s_waitcnt vmcnt(0)')
    A.label('M_nox2')
    for i in range(18):
        A(f'ds_read_b128 v[{MBQ+4*i}:{MBQ+4*i+3}], v{MPK} offset:{1024*i}')
        if i == 13: A('s_waitcnt lgkmcnt(8)')
    A('s_waitcnt lgkmcnt(0)')
    A('s_barrier')
    stamp()
    seqM = [(sp, k, hp) for sp in range(6) for k in range(6) for hp in range(2)]
    def rdM(i):
        sp, k, hp = seqM[i]
        buf = RING + 4*(i % 8)
        return f'ds_read_b128 v[{buf}:{buf+3}], v{MWA+3+sp//3} offset:{((2*(sp%3)+hp)*6 + k)*1024}'
    DM = 6
    for i in range(DM): A(rdM(i))
    ms, mem, side = [], {}, []
    for i, (sp, k, hp) in enumerate(seqM):
        a = RING + 4*(i % 8)
        ab = MACC + 24*(sp & 1)
        if i + DM < len(seqM): mem[len(ms)] = [rdM(i + DM)]
        for t in range(3):
            d = ab + 8*t + 4*hp
            ms.append(mf(d, a, MBQ + 24*t + 4*k, None if k == 0 else d))
        if i % 12 == 11:
            for t in range(3):
                pk = MPK + 4*(t & 1)
                e0 = len(ms) + 3 + 6*t
                for q in range(4):
                    side.append((e0, f'v_cvt_pk_bf16_f32 v{pk+q}, v{ab+8*t+2*q}, v{ab+8*t+2*q+1}', len(ms) + 35))
                wr = f'ds_write_b128 v{MWA+t}, v[{pk}:{pk+3}] offset:{2048*sp}'
                if sp < 5: mem[e0 + 4] = [wr]
                else: side.append((e0, wr))
    for t in stream(ms, mem, side): A(t)
    A('s_waitcnt lgkmcnt(0)')
    A.label('M_b0'); A.reset()
    A('s_barrier')
    stamp()
    A(f's_cmp_eq_u32 s{sW}, 0')
    A('s_cbranch_scc1 M_helper')
    def xt(s):
        o = [f's_waitcnt vmcnt({10 - 2*s})']
        for G in range(2):
            r = XQ + 24*G + 4*s
            o.append(f'ds_write_b128 v{vSW}, v[{r}:{r+3}] offset:{1024*G}')
        for G in range(2):
            r = XQ + 24*G + 4*s
            o.append(f'ds_read_b128 v[{r}:{r+3}], v0 offset:{1024*G}')
        return o
    A.vm = [set() for _ in range(12)]
    for s in range(2):
        for t in xt(s): A(t)
    stamp()
    def sreg(G, tl): return SACC + 28*G + 4*tl
    bgA = []
    for G in range(2):
        for tl in range(7):
            tau = tl + 3*G
            r = sreg(G, tl)
            bgA += [f'v_bfe_i32 v{r+2}, v{vCB+G}, {2*tau}, 1', f'v_and_b32 v{r+1}, s{sNEG}, v{r+2}',
                    f'v_and_b32 v{r+2}, s{sNEG}, v{r+2}', f'v_or_b32 v{r}, v{r+1}, v{vR0}', f'v_or_b32 v{r+3}, v{r+1}, v{vR3}']
    side = []
    t0, t1, t2, t3, t4 = QP+20, QP+21, QP+22, QP+23, QP+44
    A(f's_add_u32 s{sT1}, s{sTR}, s{sSTRIP}')
    A(f's_mov_b32 s{sT2}, 86016')
    A(f's_mov_b32 s{sT3}, 384')
    side += [f'v_lshrrev_b32 v{t0}, 1, v{vG}', f'v_add_u32 v{t0}, s{sT1}, v{t0}',
             f'v_lshl_add_u32 v{t1}, v{t0}, 1, s{sALR}', f'v_add_u32 v{t2}, 112, v{t0}',
             f'v_med3_i32 v{t0}, v{t1}, v{t0}, v{t2}', f'v_mul_lo_u32 v{t0}, v{t0}, s{sT2}',
             f'v_lshl_add_u32 v{t0}, v{vN}, 3, v{t0}',
             f'v_and_b32 v{t3}, 1, v{vG}', f'v_lshl_add_u32 v{t4}, v{t3}, 2, s{sTC}',
             f'v_lshlrev_b32 v{t3}, 30, v{t3}']
    for G in range(2):
        for r in range(4):
            d = vOA + 4*G + r
            side += [f'v_add_u32 v{d}, {7*G+r}, v{t4}', f'v_lshl_add_u32 v{t1}, v{d}, 1, s{sALC}',
                     f'v_add_u32 v{t2}, 112, v{d}', f'v_med3_i32 v{d}, v{t1}, v{d}, v{t2}',
                     f'v_mad_u32_u24 v{d}, v{d}, s{sT3}, v{t0}']
            if r == 3: side += [f'v_add_u32 v{d}, v{d}, v{t3}']
    oaddr = side
    xrow = []
    for j in range(8):
        xrow.append(f's_add_u32 m0, s{sXL}, {16*PIECE[j]}\n s_nop 0\n buffer_load_dwordx4 v{WF+j}, s[{S_X}:{S_X+3}], s{sXR} offen{KNT} lds')
    bgA += oaddr
    def finA(sig, accb):
        out = []
        for G in range(2):
            for q in range(4):
                out.append(f'v_cvt_pk_bf16_f32 v{QP+24*G+4*sig+q}, v{accb+8*G+2*q}, v{accb+8*G+2*q+1}')
        return out
    def locA(f):
        if f < 60: return ('lds', vWAM, f*1024)
        if f < 62: return ('reg', WF + 4*(f-60))
        return ('lds', vWA1, (f-62)*1024)
    def bar():
        A('s_barrier')
        bgA[0:0] = xrow
    def bar4():
        A('s_waitcnt vmcnt(0)'); A('s_barrier')
        A('s_setprio 1')
        cond('M_e1', True, lambda: A.skip('s_setprio 2'))
    xm0 = {}
    for s in range(2, 6):
        o = xt(s)
        b = 4*(s - 2)
        xm0[b + 1] = [o[0] + '\n' + o[1], o[2]]
        xm0[b + 3] = [o[3], o[4]]
    xm = {**xm0, 2*48+1: [f'ds_read_b128 v[{WF}:{WF+3}], v{vWAM} offset:{60*1024}'],
          2*49+1: [f'ds_read_b128 v[{WF+4}:{WF+7}], v{vWAM} offset:{61*1024}']}
    pend = gemm_phase(XQ, locA, finA, hooks={2: bar, 4: bar4}, bg=bgA, extra_mem=xm)
    assert not bgA
    stamp()
    cond('M_l1', False, lambda: A.skip('s_barrier'))
    seq = []
    for (a1, a2) in ((0, 3), (1, 4), (2, 5), (7, 6), (8, 9)):
        for s in range(6):
            seq.append((a1, s)); seq.append((a2, s))
    def users(tau):
        u = []
        if tau <= 6: u.append((0, tau))
        if tau >= 3: u.append((1, tau - 3))
        return u
    def rdS(i):
        tau, s = seq[i]
        buf = RING + 4*(i % 8)
        return f'ds_read_b128 v[{buf}:{buf+3}], v{vAS + (s % 4)} offset:{tau*768 + (256 if s >= 4 else 0)}'
    D = 7
    for i in range(D): A(rdS(i))
    for t in pend: A(t)
    ms, mem = [], {}
    for i, (tau, s) in enumerate(seq):
        a = RING + 4*(i % 8)
        for (G, tl) in users(tau):
            r = sreg(G, tl)
            ms.append(mf(r, a, QP + 24*G + 4*s, r))
        if i + D < len(seq): mem[len(ms) - 1] = [rdS(i + D)]
    stream(ms, mem, [])
    stamp()
    A('s_setprio 0')
    vM = [12, 13]; vX = [14, 15]
    A(f'v_mov_b32 v{PP+14}, 0'); A(f'v_mov_b32 v{PP+15}, 0')
    A(f'v_mov_b32 v{PP+16}, 0'); A(f'v_mov_b32 v{PP+17}, 0')
    for G in range(2):
        b = sreg(G, 0)
        A(f'v_max3_f32 v{vM[G]}, v{b}, v{b+1}, v{b+2}')
        A(f'v_max3_f32 v{vX[G]}, v{b+3}, v{b+4}, v{b+5}')
    for k in range(6, 26, 4):
        for G in range(2):
            b = sreg(G, 0)
            A(f'v_max3_f32 v{vM[G]}, v{vM[G]}, v{b+k}, v{b+k+1}')
            A(f'v_max3_f32 v{vX[G]}, v{vX[G]}, v{b+k+2}, v{b+k+3}')
    for G in range(2):
        b = sreg(G, 0)
        A(f'v_max3_f32 v{vM[G]}, v{vM[G]}, v{b+26}, v{b+27}')
    for G in range(2):
        A(f'v_max_f32 v{vM[G]}, v{vM[G]}, v{vX[G]}')
    for sw in ('v_permlane32_swap_b32', 'v_permlane16_swap_b32'):
        for G in range(2): A(f'v_mov_b32 v{vX[G]}, v{vM[G]}')
        for G in range(2): A(f'{sw} v{vM[G]}, v{vX[G]}')
        for G in range(2): A(f'v_max_f32 v{vM[G]}, v{vM[G]}, v{vX[G]}')
    for G in range(2): A(f'v_mul_f32 v{vM[G]}, s{sSC}, v{vM[G]}')
    def preg(G, tl): return PP + 16*G + 2*(tl + G)
    seqP = [(sig, u, h) for sig in range(6) for u in range(5) for h in range(2)]
    def rdP(i):
        sig, u, h = seqP[i]
        ct = 2*sig + h
        buf = RING + 4*(i % 8)
        return [f'ds_read_b64_tr_b16 v[{buf+2*hh}:{buf+2*hh+1}], v{vAP + (ct % 8)} offset:{(4*u+2*hh)*384 + (256 if ct >= 8 else 0)}' for hh in range(2)]
    DP = 6
    def wf_load():
        A.skip(f's_mov_b32 s{sT0}, {10*1024}')
        for i in range(2):
            A.raw(f'  buffer_load_dwordx4 v[{WF+4*i}:{WF+4*i+3}], v{vWA0}, s[{S_WS}:{S_WS+3}], s{sT0} offen offset:{1024*i} sc1')
    def b4L():
        A.skip('s_barrier'); wf_load()
    B3AT, B4AT = int(OPT.get('b3', '-1')), int(OPT.get('b4', '3'))
    if B3AT < 0: cond('M_e2', True, lambda: A.skip('s_barrier'))
    for tl in range(7):
        for G in range(2):
            r = sreg(G, tl)
            for k in range(4): A(f'v_fma_f32 v{r+k}, v{r+k}, s{sSC}, -v{vM[G]}')
            for k in range(4): A(f'v_exp_f32 v{r+k}, v{r+k}')
        for G in range(2):
            r = sreg(G, tl)
            p = preg(G, tl)
            A(f'v_cvt_pk_bf16_f32 v{p}, v{r}, v{r+1}')
            A(f'v_cvt_pk_bf16_f32 v{p+1}, v{r+2}, v{r+3}')
        if tl == 5:
            for i in range(DP):
                for t in rdP(i): A(t)
        if tl == B3AT: cond('M_e2', True, lambda: A.skip('s_barrier'))
        if tl == B4AT: cond('M_l2', False, b4L)
    ONES = SACC + 16
    for q in range(4): A(f'v_mov_b32 v{ONES+q}, 0x3f803f80')
    stamp()
    A('s_setprio 3')
    ms, first, side, hk = [], [], [], {}
    def b5L():
        def body():
            A.raw('  s_waitcnt vmcnt(0)'); A.skip('s_barrier')
        cond('M_l3', False, body)
    sums = [mf(vINV + 4*G, PP + 16*G + 4*u, ONES, None if u == 0 else vINV + 4*G) for u in range(4) for G in range(2)]
    for i, (sig, u, h) in enumerate(seqP):
        a = RING + 4*(i % 8)
        accb = ACC + 16*(sig & 1)
        first.append(len(ms))
        for G in range(2):
            uu = u - G
            if 0 <= uu <= 3:
                d = accb + 8*G + 4*h
                ms.append(mf(d, a, PP + 16*G + 4*uu, None if uu == 0 else d))
        if i % 10 in (1, 9) and 1 <= sig <= 4: ms.append(sums.pop(0))
        if i % 10 == 9:
            e = len(ms) - 1
            side += [(e + 4, t, e + 16) for t in finA(sig, accb)]
            if sig == int(OPT.get('b5', '3')): hk[e] = b5L
    assert not sums
    mem = {}
    k = 0
    nrd = 2*(len(seqP) - DP)
    ngap = first[-1] - 5
    for j in range(DP, len(seqP)):
        for t in rdP(j):
            gp = (k * ngap) // nrd
            if j >= 8: gp = max(gp, first[j - 7] - 1)
            assert gp < first[j] - 3, (j, gp, first[j])
            mem.setdefault(gp, []).append(t); k += 1
    pend = stream(ms, mem, side, hk)
    stamp()
    def b4E():
        A.skip('s_barrier')
        wf_load()
        A.skip(f's_mul_i32 s{sT0}, s{sW}, 12288')
        A.skip(f's_add_u32 s{sT4}, s{sT0}, {12*1024}')
        for blk in range(3):
            A.skip(f's_mov_b32 m0, s{sT0}')
            A.skip(f's_add_u32 s{sT0}, s{sT0}, 4096')
            for i in range(4):
                A.raw(f'  buffer_load_dwordx4 v{vWA0}, s[{S_WS}:{S_WS+3}], s{sT4} offen offset:{1024*i} sc1 lds')
            A.skip(f's_add_u32 s{sT4}, s{sT4}, 4096')
    cond('M_e3', True, b4E)
    def finE(sig, accb):
        out = []
        for G in range(2):
            for r in range(4):
                for h in range(2):
                    out.append(f'v_mul_f32 v{accb+8*G+4*h+r}, v{accb+8*G+4*h+r}, v{vINV+4*G+r}')
                o = OST + 8*G + 2*r
                out.append(f'v_cvt_pk_bf16_f32 v{o+(sig&1)}, v{accb+8*G+r}, v{accb+8*G+4+r}')
                if sig & 1:
                    out.append(f'buffer_store_dwordx2 v[{o}:{o+1}], v{vOA+4*G+r}, s[{S_OUT}:{S_OUT+3}], 0 offen offset:{128*(sig>>1)}{ONT}')
        return out
    def locE(f):
        if f < 10: return ('lds', vWA1, f*1024)
        if f < 12: return ('reg', WF + 4*(f-10))
        return ('lds', vWA0, (f-12)*1024)
    def b5E():
        def body():
            A.raw('  s_waitcnt vmcnt(0)'); A.skip('s_barrier')
        cond('M_e4', True, body)
        stamp()
    hooksE = {0: b5E, 1: lambda: A('s_setprio 2'), 3: lambda: A('s_setprio 1'), 4: lambda: A('s_setprio 0')}
    for t in pend: A(t)
    bgE = [f'v_rcp_f32 v{vINV+q}, v{vINV+q}' for q in range(8)]
    pend = gemm_phase(QP, locE, finE, swap=True, hooks=hooksE, gate=12, bg=bgE,
                      ghooks={2*10-1: lambda: A.raw('  s_waitcnt vmcnt(12)')})
    for t in pend: A(t)
    if STAMP:
        stamp()
        A('s_waitcnt vmcnt(0)')
        stamp(1)
        write_stamps()
    if 'pad' in OPT:
        A('s_waitcnt vmcnt(0)')
        A.label('PADL')
        A.raw('  s_memrealtime s[98:99]')
        A.raw('  s_waitcnt lgkmcnt(0)')
        A('s_sub_u32 s98, s98, s96')
        A(f's_cmp_lt_u32 s98, {OPT["pad"]}')
        A('s_cbranch_scc1 PADL')
    A('s_endpgm')

    A.label('M_helper'); A.reset()
    nstamp[0] = 6
    HA = 16
    def rows(lst):
        for i in lst:
            row_soff(sT1, str(i))
            b = HA + 8*(i % 8)
            for j in range(8):
                A(f's_mov_b32 m0, {i*ROWB + 16*PIECE[j]}')
                A(f'buffer_load_dwordx4 v{b+j}, s[{S_X}:{S_X+3}], s{sT1} offen{KNT} lds')
    def variant(i): row_addrs(HA + 8*i, str((i & 6) | ((i & 1) << 3)))
    variant(0); rows([0, 8])
    for i in range(1, 8):
        variant(i)
        if i == 6: A('s_waitcnt vmcnt(40)')
        rows([i])
    srd(S_WO, 8, 9, 192*192*2)
    srd(S_DBG, 12, 13, 256)
    VB, VA, VU = 96, 120, 168
    A('s_cmp_ge_u32 s2, 72')
    A('s_cbranch_scc1 H_1')
    A(f's_mul_hi_u32 s{sT1}, s2, 0x15555556')
    A(f's_mul_i32 s{sT2}, s{sT1}, 12')
    A(f's_sub_u32 s{sT2}, s2, s{sT2}')
    A(f's_and_b32 s{sT3}, s{sT2}, 1')
    A(f's_lshr_b32 s{sT2}, s{sT2}, 1')
    A(f's_lshl_b32 s{sT1}, s{sT1}, 1')
    A(f's_add_u32 s{sT1}, s{sT1}, s{sT3}')
    A(f's_lshr_b32 s{sT3}, s{sT1}, 2')
    A(f's_lshl_b32 s{sT3}, s{sT3}, 6')
    A(f's_and_b32 s{sT1}, s{sT1}, 3')
    A(f's_add_u32 s{sT1}, s{sT1}, s{sT3}')
    A(f's_lshl_b32 s{sT1}, s{sT1}, 1')
    A(f'v_mul_u32_u24 v{vT+6}, 3072, v{vG}')
    A(f'v_lshl_add_u32 v{vT+6}, v{vN}, 3, v{vT+6}')
    A(f'v_mul_u32_u24 v{vT+4}, 1152, v{vN}')
    A(f'v_lshl_add_u32 v{vT+4}, v{vG}, 4, v{vT+4}')
    A(f's_mul_i32 s{sT2}, s{sT2}, {32*1152}')
    A(f's_add_u32 s{sT3}, s{sT2}, {16*1152}')
    A('s_waitcnt vmcnt(2)')
    for k in range(6):
        for e in range(8):
            A(f'buffer_load_ushort v{VU+8*k+e}, v{vT+6}, s[{S_WO}:{S_WO+3}], s{sT1} offen offset:{e*384}')
        A(f's_add_u32 s{sT1}, s{sT1}, {32*384}')
    for k in range(6):
        A(f'buffer_load_dwordx4 v[{VA+4*k}:{VA+3+4*k}], v{vT+4}, s[{S_W}:{S_W+3}], s{sT2} offen offset:{768+64*k}')
        A(f'buffer_load_dwordx4 v[{VA+24+4*k}:{VA+27+4*k}], v{vT+4}, s[{S_W}:{S_W+3}], s{sT3} offen offset:{768+64*k}')
    A.label('H_1'); A.reset()
    stamp()
    A('s_barrier')
    A('s_cmp_ge_u32 s2, 72')
    A('s_cbranch_scc1 H_2')
    A('s_waitcnt vmcnt(0)')
    for k in range(24):
        A(f'v_lshl_or_b32 v{VB+k}, v{VU+1+2*k}, 16, v{VU+2*k}')
    for k in range(6):
        for hp in range(2):
            A(mf(88+4*hp, VA+24*hp+4*k, VB+4*k, None if k == 0 else 88+4*hp))
    for r in range(4):
        A(f'v_cvt_pk_bf16_f32 v{84+r}, v{88+2*r}, v{89+2*r}')
    A(f's_lshl_b32 s{sT0}, s2, 10')
    A(f'buffer_store_dwordx4 v[84:87], v{vWA0}, s[{S_WS}:{S_WS+3}], s{sT0} offen sc1')
    A('s_branch H_2b')
    A.label('H_2'); A.reset()
    A('s_waitcnt vmcnt(0)')
    A.label('H_2b'); A.reset()
    stamp()
    A('s_barrier')
    rows([16, 17, 18, 19])
    A('s_cmp_ge_u32 s2, 72')
    A('s_cbranch_scc1 H_3')
    A(f'v_mov_b32 v{vT}, 1')
    A(f'v_mov_b32 v{vT+1}, 0')
    A('s_mov_b64 exec, 1')
    A('s_waitcnt vmcnt(32)')
    A(f'buffer_atomic_add v{vT}, v{vT+1}, s[{S_DBG}:{S_DBG+3}], 0 offen sc0 sc1')
    A('s_waitcnt vmcnt(0)')
    A(f'v_readfirstlane_b32 s{sT1}, v{vT}')
    A(f's_cmp_lg_u32 s{sT1}, 71')
    A('s_cbranch_scc1 H_notlast')
    A(f'buffer_store_dword v{vT}, v{vT+1}, s[{S_DBG}:{S_DBG+3}], 0 offen offset:128 sc1')
    A.label('H_notlast')
    A('s_mov_b64 exec, -1')
    A.label('H_3'); A.reset()
    A('s_waitcnt vmcnt(0)')
    stamp()
    A('s_barrier')
    poll('H_pollV', 128)
    stamp()
    def wfr(src0, n, lds0):
        for i in range(n):
            if i % 4 == 0:
                A(f's_mov_b32 m0, {lds0 + i*1024}')
                A(f's_mov_b32 s{sT4}, {(src0 + i)*1024}')
            A(f'buffer_load_dwordx4 v{vWA0}, s[{S_WS}:{S_WS+3}], s{sT4} offen offset:{1024*(i%4)} sc1 lds')
    wfr(0, 10, SPARE)
    A('s_waitcnt vmcnt(0)')
    stamp()
    A('s_barrier')
    wfr(12, 12, 0)
    A('s_waitcnt vmcnt(0)')
    stamp()
    A('s_barrier')
    if STAMP:
        stamp(1)
        write_stamps()
    A.label('M_done')
    A('s_endpgm')
    A.label('CODE_END')

gen_main()
A.raw('.section .rodata,"a"')
A.raw('.p2align 6')
A.raw(f'.amdhsa_kernel {NAME}')
A.raw('  .amdhsa_next_free_vgpr 256')
A.raw('  .amdhsa_next_free_sgpr 102')
A.raw('  .amdhsa_accum_offset 256')
A.raw('  .amdhsa_group_segment_fixed_size 0')
A.raw('  .amdhsa_kernarg_size 48')
A.raw('  .amdhsa_user_sgpr_count 2')
A.raw('  .amdhsa_user_sgpr_kernarg_segment_ptr 1')
A.raw('  .amdhsa_system_sgpr_workgroup_id_x 1')
A.raw('.end_amdhsa_kernel')
open(OUT, 'w').write(A.text())
print('instr', A.n_inst, 'nops', A.nops, 'maxv', A.maxv)
```

```python
import sys, struct
sys.path.insert(0, 'gen')
from asmlib import Asm

OUT = sys.argv[1] if len(sys.argv) > 1 else 'standalone__neighborhood_nat__vision.s'
OPT = dict(a.split('=') if '=' in a else (a, '1') for a in sys.argv[2:])
STAMP = 'stamp' in OPT
XNT = ' nt' if OPT.get('xnt', '0') == '1' else ''
KNT = ' nt' if OPT.get('knt', '0') == '1' else ''
ONT = {'0': '', '1': ' nt', '2': ' sc1', '3': ' sc0 sc1', '4': ' sc0 sc1 nt'}[OPT.get('ont', '2')]
NAME = 'standalone__neighborhood_nat__vision_kernel'

X_BYTES = 19267584
WS_BYTES = 268435456
ROWB = 7680
MB = 90112
SPARE = 153600
GAP = 73728
def f32bits(x): return struct.unpack('<I', struct.pack('<f', x))[0]
SCALE = f32bits(192 ** -0.5 * 1.4426950408889634)
NEGINF = 0xff800000
PIECE = [0, 64, 128, 192, 256, 320, 384, 416]

A = Asm()
hdr = open('standalone__neighborhood_nat__vision.s.ref').read().split('\n')
for ln in hdr:
    if ln.startswith('; @launch'): break
    A.raw(ln)
A.raw('; @launch grid=(256,1,1) block=(512,1,1) lds=163840')
A.raw('.amdgcn_target "amdgcn-amd-amdhsa--gfx950"')
A.raw('.text')

def srd(d, lo, hi, nbytes):
    A(f's_mov_b32 s{d}, s{lo}'); A(f's_and_b32 s{d+1}, s{hi}, 0xffff')
    A(f's_mov_b32 s{d+2}, {nbytes}'); A(f's_mov_b32 s{d+3}, 0x00020000')
def mf(d, a, b, c):
    cs = '0' if c is None else f'v[{c}:{c+3}]'
    return f'v_mfma_f32_16x16x32_bf16 v[{d}:{d+3}], v[{a}:{a+3}], v[{b}:{b+3}], {cs}'

S_X, S_OUT, S_WS, S_W, S_WO, S_DBG = 16, 20, 24, 28, 32, 36
sW, sPR, sPC, sTR, sTC = 40, 41, 42, 43, 44
sKR0, sKC0B = 45, 46
sLOR, sHIR, sSHR, sLOC, sHIC = 47, 48, 49, 50, 51
sBASE, sSTRIP, sNEG = 52, 53, 54
sT0, sT1, sT2, sT3, sT4, sT5 = 55, 56, 57, 58, 59, 60
sALR, sALC, sSC = 61, 62, 63
sST = 64
sXR, sXL = 100, 101
sOA = 32
sVT, sVO = 94, 95
vL, vG, vN = 1, 2, 3
vT = 4
vR0, vR3, vCB = 12, 13, 14
XQ = 16
PP = 16
vOA = 4
vINV = 56
SACC = 64
OST = 16
W1 = 64
ONES = 48
QP = 120
ACC = 168
RING = 200
WF = 232
vAS = 240
vAP = 244
vWA0, vWA1, vWAM = 252, 253, 254
vSW, vSR = 255, 199
vWD, vXA = RING, 197
MBQ = 64
MACC = 136
MPK = 184
MWA = 192

nstamp = [0]
def stamp(real=None):
    if not STAMP: return
    i = nstamp[0]; nstamp[0] += 1
    assert i < 14
    A.raw(f'  s_mem{"real" if "rt" in OPT else ""}time s[{sST+2*i}:{sST+1+2*i}]')
    if real is not None:
        A.raw(f'  s_memrealtime s[{96+2*real}:{97+2*real}]')
def write_stamps():
    n = nstamp[0]
    A('s_waitcnt lgkmcnt(0)')
    A(f'v_mov_b32 v{RING}, 0')
    if 'dbg' in OPT:
        lbl = f'WS_skip{n}'
        A(f's_cmp_lg_u32 s2, {OPT["dbg"].split(",")[0]}')
        A(f's_cbranch_scc1 {lbl}')
        A(f's_cmp_lg_u32 s{sW}, {OPT["dbg"].split(",")[1]}')
        A(f's_cbranch_scc1 {lbl}')
        for i in range(1, n):
            A(f's_sub_u32 s{sT0}, s{sST+2*i}, s{sST}')
            A(f'v_writelane_b32 v{RING}, s{sT0}, {i}')
        A(f's_sub_u32 s{sT0}, s98, s96')
        A(f'v_writelane_b32 v{RING}, s{sT0}, 15')
        srd(S_DBG, 12, 13, 256)
        A(f'v_lshlrev_b32 v{RING+1}, 2, v{vL}')
        A('s_mov_b64 exec, 0xfffe')
        A(f'buffer_store_dword v{RING}, v{RING+1}, s[{S_DBG}:{S_DBG+3}], 0 offen')
        A.label(lbl)
        return
    for i in range(n):
        A(f'v_writelane_b32 v{RING}, s{sST+2*i}, {i}')
    A(f'v_writelane_b32 v{RING}, s96, 14')
    A(f'v_writelane_b32 v{RING}, s98, 15')
    A(f's_lshl_b32 s{sT0}, s2, 3')
    A(f's_add_u32 s{sT0}, s{sT0}, s{sW}')
    A(f's_lshl_b32 s{sT0}, s{sT0}, 6')
    A(f's_add_u32 s{sT0}, s{sT0}, 0x100000')
    A(f'v_lshlrev_b32 v{RING+1}, 2, v{vL}')
    A('s_mov_b64 exec, 0xffff')
    A(f'buffer_store_dword v{RING}, v{RING+1}, s[{S_WS}:{S_WS+3}], s{sT0} offen')

def row_addrs(b, sF):
    for j in (0, 1, 2, 7):
        A(f'v_add_u32 v{vT}, {PIECE[j]}, v{vL}')
        A(f'v_xor_b32 v{vT}, {sF}, v{vT}')
        A(f'v_mul_u32_u24 v{vT+1}, 2731, v{vT}')
        A(f'v_lshrrev_b32 v{vT+1}, 16, v{vT+1}')
        A(f'v_mul_u32_u24 v{vT+1}, 384, v{vT+1}')
        A(f'v_lshl_add_u32 v{vT}, v{vT}, 4, v{vT+1}')
        A(f'v_add_u32 v{b+j}, s{sKC0B}, v{vT}')
        if j < 3:
            A(f'v_add_u32 v{b+j+3}, {8*768}, v{b+j}')
            if j == 0: A(f'v_add_u32 v{b+6}, {16*768}, v{b}')
            A(f'v_max_i32 v{b+j}, 0, v{b+j}')
def row_soff(dst, srow):
    A(f's_add_i32 s{dst}, s{sKR0}, {srow}')
    A(f's_lshl_b32 s{dst}, s{dst}, 1')
    A(f's_add_i32 s{dst}, s{dst}, s{sPR}')
    A(f's_max_i32 s{dst}, s{dst}, 0')
    A(f's_min_i32 s{dst}, s{dst}, 223')
    A(f's_mul_i32 s{dst}, s{dst}, 86016')

def stream(ms, mem, side, hooks=None, cap=2, bg=None, flush=()):
    side = [x if len(x) == 3 else (x[0], x[1], 10**9) for x in side]
    bg = bg if bg is not None else []
    def slots(lo, hi):
        return sum(max(0, cap - len(mem.get(k, []))) for k in range(lo, hi + 1))
    for i, m in enumerate(ms):
        assert not (side and side[0][2] < i), ('deadline missed', side[0], i)
        A(m)
        if i + 1 < len(ms) and not (hooks and i in hooks): A.prewait(ms[i+1])
        n = 0
        for t in mem.get(i, []):
            A(t); n += 1
        c = cap
        if side and side[0][2] < len(ms):
            dl = side[0][2]
            if sum(1 for x in side if x[2] == dl) > slots(i, dl): c = cap + 1
        while side and n < c and side[0][0] <= i:
            A(side.pop(0)[1]); n += 1
        while bg and n < cap:
            A(bg.pop(0)); n += 1
        if i in flush:
            while side and side[0][0] <= i + 4: A(side.pop(0)[1])
        if hooks and i in hooks: hooks[i]()
    return [x[1] for x in side]

def gemm_phase(B, loc, finish, swap=False, hooks=None, D=6, gate=None, bg=None, extra_mem=None, ghooks=None, flush=()):
    def rd(f):
        l = loc(f)
        if l[0] == 'lds':
            buf = RING + 4*(f % 8)
            return [f'ds_read_b128 v[{buf}:{buf+3}], v{l[1]} offset:{l[2]}']
        return []
    ms, mem, side, hk = [], dict(extra_mem or {}), [], dict(ghooks or {})
    for f in range(D):
        for t in rd(f): A(t)
    for f in range(72):
        sig, s, h = f // 12, (f % 12) // 2, f % 2
        l = loc(f)
        a = RING + 4*(f % 8) if l[0] == 'lds' else l[1]
        accb = ACC + 16*(sig & 1)
        for G in range(2):
            d = accb + 8*G + 4*h
            b = B + 24*G + 4*s
            ms.append(mf(d, b, a, None if s == 0 else d) if swap else mf(d, a, b, None if s == 0 else d))
        fn = f + D
        if fn < 72 and not (gate is not None and f < gate <= fn):
            mem[2*f] = rd(fn)
        if f % 12 == 11:
            side += [(2*f + 1 + 3, t, 2*f + 1 + 24) for t in finish(sig, accb)]
            if hooks and sig in hooks:
                def mk(sig=sig, f=f):
                    def h():
                        hooks[sig]()
                        if gate is not None and f + 1 == gate:
                            for k in range(gate, gate + D):
                                for t in rd(k): A(t)
                    return h
                hk[2*f + 1] = mk()
    return stream(ms, mem, side, hk, bg=bg, flush=flush)

def poll(label, off):
    A(f'v_mov_b32 v{vT+2}, 0')
    A(f's_mov_b32 s{sT4}, 0')
    A('s_mov_b64 exec, 1')
    A.label(label)
    A(f'buffer_load_dword v{vT+3}, v{vT+2}, s[{S_DBG}:{S_DBG+3}], 0 offen offset:{off} sc1')
    A('s_waitcnt vmcnt(0)')
    A(f'v_cmp_eq_u32 vcc, 0, v{vT+3}')
    A(f's_add_u32 s{sT4}, s{sT4}, 1')
    A(f's_cmp_gt_u32 s{sT4}, 200000')
    A(f's_cbranch_scc1 {label}_x')
    A('s_cmp_lg_u64 vcc, 0')
    A(f's_cbranch_scc0 {label}_x')
    A('s_sleep 2')
    A(f's_branch {label}')
    A.label(label + '_x')
    A('s_mov_b64 exec, -1')

def cond(lbl, isE, body):
    A(f's_cmp_lt_u32 s{sW}, 4' if isE else f's_cmp_ge_u32 s{sW}, 4')
    A(f's_cbranch_scc1 {lbl}')
    body()
    A.label(lbl)

nprio = [0]
def prio(e, l):
    nprio[0] += 1
    A(f's_setprio {l}')
    if e != l: cond(f'M_pr{nprio[0]}', True, lambda: A.skip(f's_setprio {e}'))

def gen_main():
    A.raw(f'.globl {NAME}'); A.raw('.p2align 8'); A.raw(f'.type {NAME},@function')
    A.raw(f'{NAME}:'); A.reset()
    A('s_cmp_ge_u32 s2, 256')
    A('s_cbranch_scc1 M_done')
    stamp(0)
    if 'pad' in OPT: A.raw('  s_memrealtime s[96:97]')
    A('s_load_dwordx8 s[4:11], s[0:1], 0')
    A('s_load_dwordx4 s[12:15], s[0:1], 32')
    A(f'v_lshrrev_b32 v{vT}, 6, v0')
    A(f'v_and_b32 v{vL}, 63, v0')
    A(f'v_readfirstlane_b32 s{sW}, v{vT}')
    A(f'v_lshrrev_b32 v{vG}, 4, v{vL}')
    A(f'v_and_b32 v{vN}, 15, v{vL}')
    A(f'v_lshlrev_b32 v{vWA0}, 4, v{vL}')
    A(f'v_lshrrev_b32 v{vT}, 4, v{vL}')
    A(f'v_bfe_u32 v{vT+1}, v{vL}, 2, 2')
    A(f'v_lshl_add_u32 v{vT}, v{vT}, 3, v{vT+1}')
    A(f'v_mul_u32_u24 v{vT}, 1152, v{vT}')
    A(f'v_lshrrev_b32 v{vT+1}, 5, v{vL}')
    A(f'v_lshlrev_b32 v{vT+1}, 1, v{vT+1}')
    A(f'v_and_b32 v{vT+2}, 3, v{vL}')
    A(f'v_xor_b32 v{vT+2}, v{vT+1}, v{vT+2}')
    A(f'v_lshl_add_u32 v{vWD}, v{vT+2}, 4, v{vT}')
    A(f's_and_b32 s{sT0}, s2, 7')
    A(f's_lshr_b32 s{sT1}, s2, 3')
    A(f's_lshr_b32 s{sPR}, s{sT0}, 2')
    A(f's_bfe_u32 s{sPC}, s{sT0}, 0x10001')
    A(f's_and_b32 s{sT0}, s{sT0}, 1')
    A(f's_lshl_b32 s{sT0}, s{sT0}, 2')
    A(f's_lshr_b32 s{sTR}, s{sT1}, 3')
    A(f's_add_u32 s{sTR}, s{sTR}, s{sT0}')
    A(f's_and_b32 s{sTC}, s{sT1}, 7')
    A(f's_mul_i32 s{sTR}, s{sTR}, 14')
    A(f's_mul_i32 s{sTC}, s{sTC}, 14')
    A(f's_mul_i32 s{sALR}, s{sPR}, 13')
    A(f's_add_i32 s{sALR}, s{sALR}, -6')
    A(f's_mul_i32 s{sALC}, s{sPC}, 13')
    A(f's_add_i32 s{sALC}, s{sALC}, -6')
    A(f's_cmp_ge_u32 s{sW}, 4')
    A(f's_cselect_b32 s{sSTRIP}, -4, 3')
    A(f's_add_i32 s{sSTRIP}, s{sSTRIP}, s{sW}')
    A(f's_lshl_b32 s{sSTRIP}, s{sSTRIP}, 1')
    A(f'v_lshrrev_b32 v{vT}, 5, v{vL}')
    A(f's_add_u32 s{sT3}, s{sTR}, s{sSTRIP}')
    A(f'v_add_u32 v{vT}, s{sT3}, v{vT}')
    A(f'v_lshl_add_u32 v{vT+1}, v{vT}, 1, s{sALR}')
    A(f'v_add_u32 v{vT+3}, 112, v{vT}')
    A(f'v_med3_i32 v{vT}, v{vT+1}, v{vT}, v{vT+3}')
    A(f'v_mul_u32_u24 v{vT}, 224, v{vT}')
    A(f'v_bfe_u32 v{vT+7}, v{vL}, 2, 3')
    A(f'v_min_u32 v{vT+7}, 6, v{vT+7}')
    A(f'v_add_u32 v{vT+7}, s{sTC}, v{vT+7}')
    for G in range(2):
        d = vXA + G
        if G: A(f'v_add_u32 v{vT+7}, 7, v{vT+7}')
        A(f'v_lshl_add_u32 v{vT+1}, v{vT+7}, 1, s{sALC}')
        A(f'v_add_u32 v{vT+3}, 112, v{vT+7}')
        A(f'v_med3_i32 v{d}, v{vT+1}, v{vT+7}, v{vT+3}')
        A(f'v_add_u32 v{d}, v{d}, v{vT}')
        A(f'v_mul_u32_u24 v{d}, 384, v{d}')
        A(f'v_lshl_add_u32 v{d}, v{vT+2}, 4, v{d}')
    A('s_waitcnt lgkmcnt(0)')
    srd(S_W, 6, 7, 192*576*2)
    srd(S_X, 4, 5, X_BYTES)
    def wdma(lds0, go):
        A(f's_and_b32 s{sT0}, s{sW}, 3')
        A(f's_mul_i32 s{sT2}, s{sT0}, 18432')
        A(f's_mul_i32 s{sT0}, s{sT0}, 3')
        for i in range(3):
            A(f's_add_u32 s{sT1}, s{sT0}, {i}')
            A(f's_lshr_b32 s{sT3}, s{sT1}, 1')
            A(f's_mul_i32 s{sT3}, s{sT3}, {32*1152}')
            A(f's_and_b32 s{sT1}, s{sT1}, 1')
            A(f's_mul_i32 s{sT1}, s{sT1}, 4608')
            A(f's_add_u32 s{sT1}, s{sT1}, s{sT3}')
            for k in range(6):
                A(f's_add_u32 m0, s{sT2}, {lds0 + (6*i + k)*1024 - go - 64*k}')
                A(f'buffer_load_dwordx4 v{vWD}, s[{S_W}:{S_W+3}], s{sT1} offen offset:{go + 64*k} lds')
    A(f's_cmp_eq_u32 s{sW}, 0')
    A(f's_cselect_b32 s{sVT}, s2, 999')
    A(f's_cmp_ge_u32 s{sW}, 4')
    A('s_cbranch_scc1 M_now')
    if OPT.get('warm', '1') == '1':
        A(f's_cmp_lg_u32 s{sW}, 1')
        A('s_cbranch_scc1 M_nowarm')
        A(f's_lshr_b32 s{sT0}, s2, 3')
        A(f's_mul_i32 s{sT0}, s{sT0}, 6912')
        A(f's_add_u32 s{sT1}, s{sT0}, 4096')
        for i in range(7):
            A(f'buffer_load_dwordx4 v[{MACC+4*i}:{MACC+4*i+3}], v{vWA0}, s[{S_W}:{S_W+3}], s{sT0 + i//4} offen offset:{1024*(i%4)}')
        A.label('M_nowarm')
    wdma(MB, 384)
    VA, VB, VD = XQ, XQ + 24, MACC + 32
    A(f's_cmp_ge_u32 s{sVT}, 144')
    A('s_cbranch_scc1 M_now')
    srd(S_WO, 8, 9, 192*192*2)
    A(f's_mul_hi_u32 s{sT0}, s2, 0x15555556')
    A(f's_mul_i32 s{sT1}, s{sT0}, 12')
    A(f's_sub_u32 s{sT1}, s2, s{sT1}')
    A(f'v_lshrrev_b32 v{vT}, 2, v{vL}')
    A(f'v_mul_u32_u24 v{vT}, 1152, v{vT}')
    A(f'v_and_b32 v{vT+1}, 48, v{vWD}')
    A(f'v_add_u32 v{vT}, v{vT}, v{vT+1}')
    A(f's_mul_i32 s{sT2}, s{sT0}, {16*1152}')
    for k in range(6):
        A(f's_mov_b32 m0, {GAP + 1024*k - 768 - 64*k}')
        A(f'buffer_load_dwordx4 v{vT}, s[{S_W}:{S_W+3}], s{sT2} offen offset:{768 + 64*k} lds')
    A(f'v_lshrrev_b32 v{vT+1}, 1, v{vL}')
    A(f'v_mul_u32_u24 v{vT+1}, 384, v{vT+1}')
    A(f'v_and_b32 v{vT+2}, 1, v{vL}')
    A(f'v_lshl_add_u32 v{vT+1}, v{vT+2}, 4, v{vT+1}')
    A(f's_lshl_b32 s{sT2}, s{sT1}, 5')
    for k in range(6):
        A(f's_mov_b32 m0, {GAP + 6144 + 1024*k}')
        A(f'buffer_load_dwordx4 v{vT+1}, s[{S_WO}:{S_WO+3}], s{sT2} offen lds')
        A(f's_add_u32 s{sT2}, s{sT2}, {32*384}')
    A(f's_lshr_b32 s{sT2}, s{sT1}, 2')
    A(f's_mul_i32 s{sVO}, s{sT2}, 24576')
    A(f's_and_b32 s{sT1}, s{sT1}, 3')
    A(f's_lshl_b32 s{sT1}, s{sT1}, 6')
    A(f's_add_u32 s{sVO}, s{sVO}, s{sT1}')
    A(f's_lshr_b32 s{sT1}, s{sT0}, 1')
    A(f's_lshl_b32 s{sT1}, s{sT1}, 11')
    A(f's_add_u32 s{sVO}, s{sVO}, s{sT1}')
    A(f's_and_b32 s{sT0}, s{sT0}, 1')
    A(f's_lshl_b32 s{sT0}, s{sT0}, 3')
    A(f's_add_u32 s{sVO}, s{sVO}, s{sT0}')
    A.label('M_now'); A.reset()
    stamp()
    srd(S_WS, 14, 15, WS_BYTES)
    srd(S_OUT, 10, 11, X_BYTES)
    A(f's_mul_i32 s{sT0}, s{sPR}, 6')
    A(f's_add_i32 s{sKR0}, s{sTR}, s{sT0}')
    A(f's_add_i32 s{sKR0}, s{sKR0}, -6')
    A(f's_cmp_eq_i32 s{sKR0}, -6')
    A(f's_cselect_b32 s{sLOR}, 6, 0')
    A(f's_cmp_eq_i32 s{sKR0}, 98')
    A(f's_cselect_b32 s{sHIR}, 7, 13')
    A(f's_cselect_b32 s{sSHR}, 2, 0')
    A(f's_sub_i32 s{sKR0}, s{sKR0}, s{sSHR}')
    A(f's_mul_i32 s{sT0}, s{sPC}, 6')
    A(f's_add_i32 s{sT1}, s{sTC}, s{sT0}')
    A(f's_add_i32 s{sT1}, s{sT1}, -6')
    A(f's_cmp_eq_i32 s{sT1}, -6')
    A(f's_cselect_b32 s{sLOC}, 6, 0')
    A(f's_cmp_eq_i32 s{sT1}, 98')
    A(f's_cselect_b32 s{sHIC}, 7, 13')
    A(f's_lshl_b32 s{sT1}, s{sT1}, 1')
    A(f's_add_i32 s{sT1}, s{sT1}, s{sPC}')
    A(f's_mul_i32 s{sKC0B}, s{sT1}, 384')
    A(f'v_lshrrev_b32 v{vT}, 3, v{vN}')
    A(f'v_lshlrev_b32 v{vT}, 1, v{vT}')
    A(f'v_xor_b32 v{vT}, v{vT}, v{vG}')
    A(f'v_lshl_add_u32 v{vT}, v{vN}, 2, v{vT}')
    A(f'v_lshlrev_b32 v{vT}, 4, v{vT}')
    A(f's_lshl_b32 s{sT0}, s{sW}, 11')
    A(f's_add_u32 s{sT0}, s{sT0}, {GAP - 2048}')
    A(f'v_add_u32 v{vSW}, s{sT0}, v{vWA0}')
    A(f'v_add_u32 v0, s{sT0}, v{vT}')
    A(f's_mul_i32 s{sT2}, s{sW}, 18432')
    A(f's_add_u32 s{sT2}, s{sT2}, {MB}')
    A(f'v_add_u32 v{MPK}, s{sT2}, v{vT}')
    A(f'v_mov_b32 v{MWA+3}, v{vT}')
    A(f'v_add_u32 v{MWA+4}, 36864, v{vT}')
    A(f's_mul_i32 s{sT0}, s{sW}, 3')
    for i in range(3):
        A(f's_add_u32 s{sT2}, s{sT0}, {i}')
        A(f's_lshr_b32 s{sT3}, s{sT2}, 1')
        A(f's_mul_i32 s{sT3}, s{sT3}, 12')
        A(f's_and_b32 s{sT2}, s{sT2}, 1')
        A(f's_add_u32 s{sT3}, s{sT3}, s{sT2}')
        A(f's_lshl_b32 s{sT3}, s{sT3}, 10')
        A(f's_add_u32 s{sT3}, s{sT3}, {MB}')
        A(f'v_add_u32 v{MWA+i}, s{sT3}, v{vWA0}')
    A(f's_max_i32 s{sBASE}, s{sSTRIP}, s{sLOR}')
    A(f's_min_i32 s{sBASE}, s{sBASE}, s{sHIR}')
    A(f's_and_b32 s{sBASE}, s{sBASE}, -2')
    A(f'v_lshrrev_b32 v{vT}, 3, v{vN}')
    A(f'v_add_u32 v{vT}, s{sSTRIP}, v{vT}')
    A(f'v_max_i32 v{vT}, s{sLOR}, v{vT}')
    A(f'v_min_i32 v{vT}, s{sHIR}, v{vT}')
    A(f'v_subrev_u32 v{vT}, s{sBASE}, v{vT}')
    A(f's_add_u32 s{sBASE}, s{sBASE}, s{sSHR}')
    A(f's_mov_b32 s{sNEG}, {NEGINF}')
    A(f's_mov_b32 s{sSC}, {SCALE}')
    A(f'v_and_b32 v{vT+1}, 1, v{vG}')
    A(f'v_sub_u32 v{vT+2}, v{vT+1}, v{vT}')
    A(f'v_ashrrev_i32 v{vR0}, 31, v{vT+2}')
    A(f'v_and_b32 v{vR0}, s{sNEG}, v{vR0}')
    A(f'v_sub_u32 v{vT+2}, v{vT}, v{vT+1}')
    A(f'v_ashrrev_i32 v{vR3}, 31, v{vT+2}')
    A(f'v_and_b32 v{vR3}, s{sNEG}, v{vR3}')
    A(f'v_and_b32 v{vT}, 7, v{vN}')
    A(f'v_min_u32 v{vT}, 6, v{vT}')
    A(f'v_lshrrev_b32 v{vT+1}, 1, v{vG}')
    A(f'v_mov_b32 v{vT+3}, 0x7f')
    for G in range(2):
        A(f'v_add_u32 v{vT+2}, {7*G}, v{vT}')
        A(f'v_max_i32 v{vT+2}, s{sLOC}, v{vT+2}')
        A(f'v_min_i32 v{vT+2}, s{sHIC}, v{vT+2}')
        A(f'v_lshlrev_b32 v{vT+2}, v{vT+2}, v{vT+3}')
        A(f'v_lshrrev_b32 v{vT+2}, v{vT+1}, v{vT+2}')
        A(f'v_not_b32 v{vCB+G}, v{vT+2}')
    def Fv(dst, row):
        A(f'v_and_b32 v{dst}, 1, v{row}')
        A(f'v_lshlrev_b32 v{dst}, 3, v{dst}')
        A(f'v_and_or_b32 v{dst}, v{row}, 6, v{dst}')
    A(f'v_and_b32 v{vT}, 7, v{vN}')
    A(f'v_add_u32 v{vT}, s{sBASE}, v{vT}')
    Fv(vT+1, vT)
    A(f'v_mul_u32_u24 v{vT}, {ROWB}, v{vT}')
    A(f'v_lshrrev_b32 v{vT+2}, 3, v{vN}')
    A(f'v_mul_u32_u24 v{vT+2}, 24, v{vT+2}')
    A(f'v_add_u32 v{vT+2}, v{vT+2}, v{vG}')
    for s in range(4):
        A(f'v_add_u32 v{vT+3}, {4*s}, v{vT+2}')
        A(f'v_xor_b32 v{vT+3}, v{vT+3}, v{vT+1}')
        A(f'v_lshl_add_u32 v{vAS+s}, v{vT+3}, 4, v{vT}')
    A(f'v_and_b32 v{vT}, 1, v{vG}')
    A(f'v_lshlrev_b32 v{vT}, 2, v{vT}')
    A(f'v_lshrrev_b32 v{vT+1}, 2, v{vN}')
    A(f'v_add3_u32 v{vT}, v{vT}, v{vT+1}, s{sBASE}')
    Fv(vT+1, vT)
    A(f'v_mul_u32_u24 v{vT}, {ROWB}, v{vT}')
    A(f'v_and_b32 v{vT+2}, 1, v{vN}')
    A(f'v_lshl_add_u32 v{vT}, v{vT+2}, 3, v{vT}')
    A(f'v_lshrrev_b32 v{vT+2}, 1, v{vG}')
    A(f'v_mul_u32_u24 v{vT+2}, 24, v{vT+2}')
    A(f'v_bfe_u32 v{vT+3}, v{vN}, 1, 1')
    A(f'v_add_u32 v{vT+2}, v{vT+2}, v{vT+3}')
    for ct in range(8):
        A(f'v_add_u32 v{vT+3}, {2*ct}, v{vT+2}')
        A(f'v_xor_b32 v{vT+3}, v{vT+3}, v{vT+1}')
        A(f'v_lshl_add_u32 v{vAP+ct}, v{vT+3}, 4, v{vT}')
    A(f'v_add_u32 v{vWA1}, {SPARE}, v{vWA0}')
    A(f'v_add_u32 v{vWAM}, {MB}, v{vWA0}')
    A(f's_and_b32 s{sT0}, s{sW}, 1')
    A(f's_lshl_b32 s{sT0}, s{sT0}, 3')
    A(f's_and_b32 s{sT1}, s{sW}, 6')
    A(f's_or_b32 s{sT0}, s{sT0}, s{sT1}')
    row_addrs(WF, f's{sT0}')
    A(f's_add_u32 s{sT1}, s{sW}, 8')
    row_soff(sXR, f's{sT1}')
    A(f's_mul_i32 s{sXL}, s{sT1}, {ROWB}')
    stamp()
    def sreg(G, tl): return SACC + 28*G + 4*tl
    def masks():
        out = []
        for tl in range(7):
            a = []
            for G in range(2):
                tau = tl + 3*G
                r = sreg(G, tl)
                a.append([f'v_bfe_i32 v{r+2}, v{vCB+G}, {2*tau}, 1', f'v_and_b32 v{r+1}, s{sNEG}, v{r+2}',
                          f'v_and_b32 v{r+2}, s{sNEG}, v{r+2}', f'v_or_b32 v{r}, v{r+1}, v{vR0}', f'v_or_b32 v{r+3}, v{r+1}, v{vR3}'])
            for x, y in zip(*a): out += [x, y]
        return out
    def oaddr(t0, t1, t2, t3, t4):
        side = [f'v_lshrrev_b32 v{t0}, 1, v{vG}', f'v_and_b32 v{t3}, 1, v{vG}', f'v_add_u32 v{t0}, s{sOA}, v{t0}',
                f'v_lshl_add_u32 v{t4}, v{t3}, 2, s{sTC}',
                f'v_lshl_add_u32 v{t1}, v{t0}, 1, s{sALR}', f'v_add_u32 v{t2}, 112, v{t0}', f'v_lshlrev_b32 v{t3}, 30, v{t3}',
                f'v_med3_i32 v{t0}, v{t1}, v{t0}, v{t2}', f'v_mul_lo_u32 v{t0}, v{t0}, s{sOA+1}',
                f'v_lshl_add_u32 v{t0}, v{vN}, 3, v{t0}']
        for G in range(2):
            for r in range(4):
                d = vOA + 4*G + r
                side += [f'v_add_u32 v{d}, {7*G+r}, v{t4}', f'v_lshl_add_u32 v{t1}, v{d}, 1, s{sALC}',
                         f'v_add_u32 v{t2}, 112, v{d}', f'v_med3_i32 v{d}, v{t1}, v{d}, v{t2}',
                         f'v_mad_u32_u24 v{d}, v{d}, s{sOA+2}, v{t0}']
                if r == 3: side += [f'v_add_u32 v{d}, v{d}, v{t3}']
        return side
    A(f's_add_u32 s{sOA}, s{sTR}, s{sSTRIP}')
    A(f's_mov_b32 s{sOA+1}, 86016')
    A(f's_mov_b32 s{sOA+2}, 384')
    def xload(i):
        s, G = i // 2, i % 2
        return f'buffer_load_dwordx4 v[{XQ+24*G+4*s}:{XQ+24*G+4*s+3}], v{vXA+G}, s[{S_X}:{S_X+3}], 0 offen offset:{64*s}{XNT}'
    def transpose(fill=()):
        fill = list(fill)
        per = -(-len(fill) // 6)
        for s in range(6):
            for t in fill[per*s:per*(s+1)]: A(t)
            for G in range(2):
                r = XQ + 24*G + 4*s
                A(f'ds_write_b128 v{vSW}, v[{r}:{r+3}] offset:{1024*G}')
            for G in range(2):
                r = XQ + 24*G + 4*s
                A(f'ds_read_b128 v[{r}:{r+3}], v0 offset:{1024*G}')
            if len(A.lgkm) > 8: A('s_waitcnt lgkmcnt(4)')
    N1 = int(OPT.get('n1', '0'))
    A(f's_cmp_lt_u32 s{sW}, 4')
    A('s_cbranch_scc1 M_mw')
    wdma(0, 0)
    A('s_waitcnt vmcnt(8)')
    stamp()
    for i in range(N1): A.raw('  ' + xload(i))
    A(f's_waitcnt vmcnt({N1})')
    A('s_barrier')
    stamp()
    for i in range(N1, 12): A.raw('  ' + xload(i))
    for t in oaddr(ACC, ACC+1, ACC+2, ACC+3, ACC+4): A(t)
    A.vm = [A.parse(xload(i)).w for i in range(12)]
    if 'noet' not in OPT: transpose()
    A('s_waitcnt vmcnt(0) lgkmcnt(0)')
    A('s_barrier')
    stamp()
    A('s_branch M_pa')
    A.label('M_mw'); A.reset()
    nstamp[0] -= 3
    A(f's_cmp_lg_u32 s{sW}, 0')
    A('s_cbranch_scc1 M_h0')
    row_addrs(vAP, '8')
    A.label('M_h0')
    for t in oaddr(ACC, ACC+1, ACC+2, ACC+3, ACC+4): A(t)
    A('s_waitcnt vmcnt(0)')
    stamp()
    for i in range(18):
        A(f'ds_read_b128 v[{MBQ+4*i}:{MBQ+4*i+3}], v{MPK} offset:{1024*i}')
        if i == 13: A('s_waitcnt lgkmcnt(8)')
    A('s_waitcnt lgkmcnt(0)')
    A(f's_cmp_ge_u32 s{sVT}, 144')
    A('s_cbranch_scc1 M_v3')
    A(f'v_add_u32 v{MACC+40}, {GAP}, v{MWA+3}')
    A(f'v_lshlrev_b32 v{MACC+41}, 3, v{vN}')
    A(f'v_lshl_add_u32 v{MACC+41}, v{vG}, 8, v{MACC+41}')
    A(f'v_add_u32 v{MACC+41}, {GAP + 6144}, v{MACC+41}')
    for k in range(6):
        A(f'ds_read_b128 v[{VA+4*k}:{VA+4*k+3}], v{MACC+40} offset:{1024*k}')
    A('s_waitcnt lgkmcnt(2)')
    for k in range(6):
        for hh in range(2):
            A(f'ds_read_b64_tr_b16 v[{VB+4*k+2*hh}:{VB+4*k+2*hh+1}], v{MACC+41} offset:{1024*k + 128*hh}')
    A('s_waitcnt lgkmcnt(0)')
    for k in range(6):
        A(mf(VD, VA + 4*k, VB + 4*k, None if k == 0 else VD))
    A(f'v_bfe_u32 v{MACC+40}, v{vN}, 1, 1')
    A(f'v_mul_u32_u24 v{MACC+40}, 12288, v{MACC+40}')
    A(f'v_and_b32 v{MACC+41}, 1, v{vN}')
    A(f'v_lshl_add_u32 v{MACC+40}, v{MACC+41}, 10, v{MACC+40}')
    A(f'v_lshrrev_b32 v{MACC+41}, 2, v{vN}')
    A(f'v_lshl_add_u32 v{MACC+40}, v{MACC+41}, 4, v{MACC+40}')
    A(f'v_lshl_add_u32 v{MACC+40}, v{vG}, 8, v{MACC+40}')
    A(f'v_cvt_pk_bf16_f32 v{VD+4}, v{VD}, v{VD+1}')
    A(f'v_cvt_pk_bf16_f32 v{VD+5}, v{VD+2}, v{VD+3}')
    A(f'buffer_store_dwordx2 v[{VD+4}:{VD+5}], v{MACC+40}, s[{S_WS}:{S_WS+3}], s{sVO} offen sc1')
    A.label('M_v3'); A.reset()
    A('s_barrier')
    stamp()
    seqM = [(sp, k, hp) for sp in range(6) for k in range(6) for hp in range(2)]
    def rdM(i):
        sp, k, hp = seqM[i]
        buf = RING + 4*(i % 8)
        return f'ds_read_b128 v[{buf}:{buf+3}], v{MWA+3+sp//3} offset:{((2*(sp%3)+hp)*6 + k)*1024}'
    DM = 6
    for i in range(DM): A(rdM(i))
    ms, mem, side = [], {}, []
    for i, (sp, k, hp) in enumerate(seqM):
        a = RING + 4*(i % 8)
        ab = MACC + 24*(sp & 1)
        if i + DM < len(seqM): mem[len(ms)] = [rdM(i + DM)]
        for t in range(3):
            d = ab + 8*t + 4*hp
            ms.append(mf(d, a, MBQ + 24*t + 4*k, None if k == 0 else d))
        if i % 12 == 11:
            for t in range(3):
                pk = MPK + 4*(t & 1)
                e0 = len(ms) + 3 + 6*t
                for q in range(4):
                    side.append((e0, f'v_cvt_pk_bf16_f32 v{pk+q}, v{ab+8*t+2*q}, v{ab+8*t+2*q+1}', len(ms) + 35))
                wr = f'ds_write_b128 v{MWA+t}, v[{pk}:{pk+3}] offset:{2048*sp}'
                if sp < 5: mem[e0 + 4] = [wr]
                else: side.append((e0, wr))
    X0, X1 = int(OPT.get('x0', '10')), int(OPT.get('x1', '10'))
    hk = {}
    def mkx(i):
        def h():
            A.skip(f's_cbranch_scc1 M_sx{i}')
            A.raw('  ' + xload(i))
            A.label(f'M_sx{i}')
        return h
    for i in range(12):
        gp = X0 + X1*i
        while gp % 3 != 1 or gp in mem: gp += 1
        hk[gp] = mkx(i)
    A(f's_cmp_eq_u32 s{sW}, 0')
    A('s_setprio 3')
    if 'nomx' in OPT: hk = {}
    if 'nomw' in OPT: mem = {k: v for k, v in mem.items() if 'ds_write' not in v[0]}
    for t in stream(ms, mem, side, hk): A(t)
    A('s_waitcnt lgkmcnt(0)')
    A('s_barrier')
    stamp()
    A('s_cbranch_scc1 M_helper')
    A.vm = [A.parse(xload(i)).w for i in range(12)]
    A('s_setprio 0')
    transpose()
    A('s_waitcnt lgkmcnt(0)')
    A.label('M_pa'); A.reset()
    stamp()
    bgA = masks()
    xrow = []
    for j in range(8):
        xrow.append(f's_add_u32 m0, s{sXL}, {16*PIECE[j]}\n s_nop 0\n buffer_load_dwordx4 v{WF+j}, s[{S_X}:{S_X+3}], s{sXR} offen{KNT} lds')
    def finA(sig, accb):
        out = []
        for G in range(2):
            for q in range(4):
                out.append(f'v_cvt_pk_bf16_f32 v{QP+24*G+4*sig+q}, v{accb+8*G+2*q}, v{accb+8*G+2*q+1}')
        return out
    def locA(f):
        if f < 60: return ('lds', vWAM, f*1024)
        if f < 62: return ('reg', WF + 4*(f-60))
        return ('lds', vWA1, (f-62)*1024)
    def bar():
        A('s_barrier')
        if 'noxrow' not in OPT: bgA[0:0] = xrow
    def bar4():
        A('s_waitcnt vmcnt(0)'); A('s_barrier')
        prio(3, 2)
    xm = {2*48+1: [f'ds_read_b128 v[{WF}:{WF+3}], v{vWAM} offset:{60*1024}'],
          2*49+1: [f'ds_read_b128 v[{WF+4}:{WF+7}], v{vWAM} offset:{61*1024}']}
    pend = gemm_phase(XQ, locA, finA, hooks={2: bar, 4: bar4}, bg=bgA, extra_mem=xm)
    assert not bgA
    stamp()
    cond('M_l1', False, lambda: A.skip('s_barrier'))
    seq = []
    for (a1, a2) in ((0, 3), (1, 4), (2, 5), (7, 6), (8, 9)):
        for s in range(6):
            seq.append((a1, s)); seq.append((a2, s))
    def users(tau):
        u = []
        if tau <= 6: u.append((0, tau))
        if tau >= 3: u.append((1, tau - 3))
        return u
    def rdS(i):
        tau, s = seq[i]
        buf = RING + 4*(i % 8)
        return f'ds_read_b128 v[{buf}:{buf+3}], v{vAS + (s % 4)} offset:{tau*768 + (256 if s >= 4 else 0)}'
    D = 7
    for i in range(D): A(rdS(i))
    for t in pend: A(t)
    ms, mem = [], {}
    for i, (tau, s) in enumerate(seq):
        a = RING + 4*(i % 8)
        for (G, tl) in users(tau):
            r = sreg(G, tl)
            ms.append(mf(r, a, QP + 24*G + 4*s, r))
        if i + D < len(seq): mem[len(ms) - 1] = [rdS(i + D)]
    stream(ms, mem, [])
    stamp()
    prio(1, 0)
    vM = [12, 13]; vX = [14, 15]
    A(f'v_mov_b32 v{PP+14}, 0'); A(f'v_mov_b32 v{PP+15}, 0')
    A(f'v_mov_b32 v{PP+16}, 0'); A(f'v_mov_b32 v{PP+17}, 0')
    for G in range(2):
        b = sreg(G, 0)
        A(f'v_max3_f32 v{vM[G]}, v{b}, v{b+1}, v{b+2}')
        A(f'v_max3_f32 v{vX[G]}, v{b+3}, v{b+4}, v{b+5}')
    for k in range(6, 26, 4):
        for G in range(2):
            b = sreg(G, 0)
            A(f'v_max3_f32 v{vM[G]}, v{vM[G]}, v{b+k}, v{b+k+1}')
            A(f'v_max3_f32 v{vX[G]}, v{vX[G]}, v{b+k+2}, v{b+k+3}')
    for G in range(2):
        b = sreg(G, 0)
        A(f'v_max3_f32 v{vM[G]}, v{vM[G]}, v{b+26}, v{b+27}')
    for G in range(2):
        A(f'v_max_f32 v{vM[G]}, v{vM[G]}, v{vX[G]}')
    for sw in ('v_permlane32_swap_b32', 'v_permlane16_swap_b32'):
        for G in range(2): A(f'v_mov_b32 v{vX[G]}, v{vM[G]}')
        for G in range(2): A(f'{sw} v{vM[G]}, v{vX[G]}')
        for G in range(2): A(f'v_max_f32 v{vM[G]}, v{vM[G]}, v{vX[G]}')
    for G in range(2): A(f'v_mul_f32 v{vM[G]}, s{sSC}, v{vM[G]}')
    def preg(G, tl): return PP + 16*G + 2*(tl + G)
    seqP = [(sig, u, h) for sig in range(6) for u in range(5) for h in range(2)]
    def rdP(i):
        sig, u, h = seqP[i]
        ct = 2*sig + h
        buf = RING + 4*(i % 8)
        return [f'ds_read_b64_tr_b16 v[{buf+2*hh}:{buf+2*hh+1}], v{vAP + (ct % 8)} offset:{(4*u+2*hh)*384 + (256 if ct >= 8 else 0)}' for hh in range(2)]
    DP = 6
    def b4L(): A.skip('s_barrier')
    B3AT, B4AT = int(OPT.get('b3', '-1')), int(OPT.get('b4', '5'))
    if B3AT < 0: cond('M_e2', True, lambda: A.skip('s_barrier'))
    for tl in range(7):
        for G in range(2):
            r = sreg(G, tl)
            for k in range(4): A(f'v_fma_f32 v{r+k}, v{r+k}, s{sSC}, -v{vM[G]}')
            for k in range(4): A(f'v_exp_f32 v{r+k}, v{r+k}')
        for G in range(2):
            r = sreg(G, tl)
            p = preg(G, tl)
            A(f'v_cvt_pk_bf16_f32 v{p}, v{r}, v{r+1}')
            A(f'v_cvt_pk_bf16_f32 v{p+1}, v{r+2}, v{r+3}')
        if tl % 2 == 0: A(f's_mov_b32 s{sT0}, {(10 + 2*tl)*1024}')
        for G in range(2):
            r = sreg(G, tl)
            A(f'buffer_load_dwordx4 v[{r}:{r+3}], v{vWA0}, s[{S_WS}:{S_WS+3}], s{sT0} offen offset:{1024*(2*(tl%2)+G)} sc1')
        if tl == 5:
            for i in range(DP):
                for t in rdP(i): A(t)
        if tl == B3AT: cond('M_e2', True, lambda: A.skip('s_barrier'))
        if tl == B4AT: cond('M_l2', False, b4L)
    for q in range(4): A(f'v_mov_b32 v{ONES+q}, 0x3f803f80')
    stamp()
    prio(3, 2)
    ms, first, side, hk = [], [], [], {}
    def b5L():
        cond('M_l3', False, lambda: A.skip('s_barrier'))
    if int(OPT.get('b5', '0')) < 0: b5L()
    sums = [mf(vINV + 4*G, PP + 16*G + 4*u, ONES, None if u == 0 else vINV + 4*G) for u in range(4) for G in range(2)]
    for i, (sig, u, h) in enumerate(seqP):
        a = RING + 4*(i % 8)
        accb = ACC + 16*(sig & 1)
        first.append(len(ms))
        for G in range(2):
            uu = u - G
            if 0 <= uu <= 3:
                d = accb + 8*G + 4*h
                ms.append(mf(d, a, PP + 16*G + 4*uu, None if uu == 0 else d))
        if i % 10 in (1, 9) and 1 <= sig <= 4: ms.append(sums.pop(0))
        if i % 10 == 9:
            e = len(ms) - 1
            side += [(e + 4, t, e + 16) for t in finA(sig, accb)]
            if sig == int(OPT.get('b5', '0')): hk[e] = b5L
    assert not sums
    mem = {}
    k = 0
    nrd = 2*(len(seqP) - DP)
    ngap = first[-1] - 5
    for j in range(DP, len(seqP)):
        for t in rdP(j):
            gp = (k * ngap) // nrd
            if j >= 8: gp = max(gp, first[j - 7] - 1)
            assert gp < first[j] - 3, (j, gp, first[j])
            mem.setdefault(gp, []).append(t); k += 1
    pend = stream(ms, mem, side, hk)
    A('s_waitcnt vmcnt(0)')
    stamp()
    def b4E():
        A.skip('s_barrier')
        A.skip(f's_mul_i32 s{sT0}, s{sW}, 9216')
        A.skip(f's_sub_u32 s{sT0}, s{sT0}, {4*9216 - 12288}')
        A.skip(f's_add_u32 s{sT4}, s{sT0}, {24*1024}')
        for blk in range(3):
            A.skip(f's_mov_b32 m0, s{sT0}')
            A.skip(f's_add_u32 s{sT0}, s{sT0}, 3072')
            for i in range(3):
                A.raw(f'  buffer_load_dwordx4 v{vWA0}, s[{S_WS}:{S_WS+3}], s{sT4} offen offset:{1024*i} sc1 lds')
            A.skip(f's_add_u32 s{sT4}, s{sT4}, 3072')
    cond('M_e3', True, b4E)
    def finE(sig, accb):
        out = []
        for G in range(2):
            for r in range(4):
                for h in range(2):
                    out.append(f'v_mul_f32 v{accb+8*G+4*h+r}, v{accb+8*G+4*h+r}, v{vINV+4*G+r}')
                o = OST + 8*G + 2*r
                out.append(f'v_cvt_pk_bf16_f32 v{o+(sig&1)}, v{accb+8*G+r}, v{accb+8*G+4+r}')
                if sig & 1:
                    out.append(f'buffer_store_dwordx2 v[{o}:{o+1}], v{vOA+4*G+r}, s[{S_OUT}:{S_OUT+3}], 0 offen offset:{128*(sig>>1)}{ONT}')
        return out
    def locE(f):
        if f < 10: return ('lds', vWA1, f*1024)
        if f < 24: return ('reg', sreg((f-10) % 2, (f-10) // 2))
        return ('lds', vWA0, (f-24)*1024)
    def b5E():
        def body():
            A.raw('  s_waitcnt vmcnt(0)'); A.skip('s_barrier')
        cond('M_e4', True, body)
        stamp()
    for t in pend: A(t)
    bgE = [f'v_rcp_f32 v{vINV+q}, v{vINV+q}' for q in range(8)]
    pend = gemm_phase(QP, locE, finE, swap=True, bg=bgE, D=int(OPT.get('de', '4')), ghooks={2*(24 - int(OPT.get('de', '4'))) - 1: b5E})
    for t in pend: A(t)
    if STAMP:
        stamp()
        A('s_waitcnt vmcnt(0)')
        stamp(1)
        write_stamps()
    if 'pad' in OPT:
        A('s_waitcnt vmcnt(0)')
        A.label('PADL')
        A.raw('  s_memrealtime s[98:99]')
        A.raw('  s_waitcnt lgkmcnt(0)')
        A('s_sub_u32 s98, s98, s96')
        A(f's_cmp_lt_u32 s98, {OPT["pad"]}')
        A('s_cbranch_scc1 PADL')
    A('s_endpgm')

    A.label('M_helper'); A.reset()
    nstamp[0] = 6
    def rows(lst):
        for i in lst:
            row_soff(sT1, str(i))
            b = vAP if i & 1 else WF
            for j in range(8):
                a = b + j
                if i & 6:
                    a = 64 + j
                    A(f'v_xor_b32 v{a}, {16*(i & 6)}, v{b+j}')
                A(f's_mov_b32 m0, {i*ROWB + 16*PIECE[j]}')
                A(f'buffer_load_dwordx4 v{a}, s[{S_X}:{S_X+3}], s{sT1} offen{KNT} lds')
            if len(A.vm) >= 56: A('s_waitcnt vmcnt(40)')
    srd(S_DBG, 12, 13, 256)
    A('v_mov_b32 v80, 1')
    A('v_mov_b32 v81, 0')
    A(f's_cmp_ge_u32 s{sVT}, 144')
    A('s_cbranch_scc1 H_1')
    A('s_mov_b64 exec, 1')
    A('s_waitcnt vmcnt(0)')
    A.raw(f'  buffer_atomic_add v80, v81, s[{S_DBG}:{S_DBG+3}], 0 offen sc0 sc1')
    A('s_mov_b64 exec, -1')
    A.label('H_1')
    rows(range(9) if 'norows' not in OPT else range(7)[:0]); A('s_waitcnt vmcnt(40)' if 'norows' not in OPT else 's_waitcnt vmcnt(0)')
    A(f'v_readfirstlane_b32 s{sT1}, v80')
    A(f's_cmp_lg_u32 s{sT1}, 143')
    A('s_cbranch_scc1 H_notlast')
    A('s_mov_b64 exec, 1')
    A(f'buffer_store_dword v80, v81, s[{S_DBG}:{S_DBG+3}], 0 offen offset:128 sc1')
    A('s_mov_b64 exec, -1')
    A.label('H_notlast')
    stamp()
    A('s_barrier')
    A('s_waitcnt vmcnt(0)')
    stamp()
    A('s_barrier')
    rows([16, 17, 18, 19])
    A('s_waitcnt vmcnt(0)')
    stamp()
    poll('H_pollV', 128)
    stamp()
    A('s_barrier')
    def wfr(src0, n, lds0):
        for i in range(n):
            if i % 4 == 0:
                A(f's_mov_b32 m0, {lds0 + i*1024}')
                A(f's_mov_b32 s{sT4}, {(src0 + i)*1024}')
            A(f'buffer_load_dwordx4 v{vWA0}, s[{S_WS}:{S_WS+3}], s{sT4} offen offset:{1024*(i%4)} sc1 lds')
    wfr(0, 10, SPARE)
    A('s_waitcnt vmcnt(0)')
    stamp()
    A('s_barrier')
    wfr(24, 12, 0)
    A('s_waitcnt vmcnt(0)')
    stamp()
    A('s_barrier')
    if STAMP:
        stamp(1)
        write_stamps()
    A.label('M_done')
    A('s_endpgm')
    A.label('CODE_END')

gen_main()
A.raw('.section .rodata,"a"')
A.raw('.p2align 6')
A.raw(f'.amdhsa_kernel {NAME}')
A.raw('  .amdhsa_next_free_vgpr 256')
A.raw('  .amdhsa_next_free_sgpr 102')
A.raw('  .amdhsa_accum_offset 256')
A.raw('  .amdhsa_group_segment_fixed_size 0')
A.raw('  .amdhsa_kernarg_size 48')
A.raw('  .amdhsa_user_sgpr_count 2')
A.raw('  .amdhsa_user_sgpr_kernarg_segment_ptr 1')
A.raw('  .amdhsa_system_sgpr_workgroup_id_x 1')
A.raw('.end_amdhsa_kernel')
open(OUT, 'w').write(A.text())
print('instr', A.n_inst, 'nops', A.nops, 'maxv', A.maxv)
```

```python
import sys, struct
sys.path.insert(0, 'gen')
from asmlib import Asm

OUT = sys.argv[1] if len(sys.argv) > 1 else 'standalone__neighborhood_nat__vision.s'
OPT = dict(a.split('=') if '=' in a else (a, '1') for a in sys.argv[2:])
STAMP = 'stamp' in OPT
XNT = ' nt' if OPT.get('xnt', '0') == '1' else ''
KNT = ' nt' if OPT.get('knt', '0') == '1' else ''
ONT = {'0': '', '1': ' nt', '2': ' sc1', '3': ' sc0 sc1', '4': ' sc0 sc1 nt'}[OPT.get('ont', '2')]
NAME = 'standalone__neighborhood_nat__vision_kernel'

X_BYTES = 19267584
WS_BYTES = 268435456
ROWB = 7680
MB = 90112
SPARE = 153600
GAP = 73728
def f32bits(x): return struct.unpack('<I', struct.pack('<f', x))[0]
SCALE = f32bits(192 ** -0.5 * 1.4426950408889634)
NEGINF = 0xff800000
PIECE = [0, 64, 128, 192, 256, 320, 384, 416]

A = Asm()
hdr = open('standalone__neighborhood_nat__vision.s.ref').read().split('\n')
for ln in hdr:
    if ln.startswith('; @launch'): break
    A.raw(ln)
A.raw('; @launch grid=(256,1,1) block=(512,1,1) lds=163840')
A.raw('.amdgcn_target "amdgcn-amd-amdhsa--gfx950"')
A.raw('.text')

def srd(d, lo, hi, nbytes):
    A(f's_mov_b32 s{d}, s{lo}'); A(f's_and_b32 s{d+1}, s{hi}, 0xffff')
    A(f's_mov_b32 s{d+2}, {nbytes}'); A(f's_mov_b32 s{d+3}, 0x00020000')
def mf(d, a, b, c):
    cs = '0' if c is None else f'v[{c}:{c+3}]'
    return f'v_mfma_f32_16x16x32_bf16 v[{d}:{d+3}], v[{a}:{a+3}], v[{b}:{b+3}], {cs}'

S_X, S_OUT, S_WS, S_W, S_WO, S_DBG = 16, 20, 24, 28, 32, 36
sW, sPR, sPC, sTR, sTC = 40, 41, 42, 43, 44
sKR0, sKC0B = 45, 46
sLOR, sHIR, sSHR, sLOC, sHIC = 47, 48, 49, 50, 51
sBASE, sSTRIP, sNEG = 52, 53, 54
sT0, sT1, sT2, sT3, sT4, sT5 = 55, 56, 57, 58, 59, 60
sALR, sALC, sSC = 61, 62, 63
sST = 64
sXR, sXL = 100, 101
sOA = 32
sVT, sVO = 94, 95
vL, vG, vN = 1, 2, 3
vT = 4
vR0, vR3, vCB = 12, 13, 14
XQ = 16
PP = 16
vOA = 4
vINV = 56
SACC = 64
OST = 16
W1 = 64
ONES = 48
QP = 120
ACC = 168
RING = 200
WF = 232
vAS = 240
vAP = 244
vWA0, vWA1, vWAM = 252, 253, 254
vSW, vSR = 255, 199
vWD, vXA = RING, 197
MBQ = 64
MACC = 136
MPK = 184
MWA = 192

nstamp = [0]
def stamp(real=None):
    if not STAMP: return
    i = nstamp[0]; nstamp[0] += 1
    assert i < 14
    A.raw(f'  s_mem{"real" if "rt" in OPT else ""}time s[{sST+2*i}:{sST+1+2*i}]')
    if real is not None:
        A.raw(f'  s_memrealtime s[{96+2*real}:{97+2*real}]')
def write_stamps():
    n = nstamp[0]
    A('s_waitcnt lgkmcnt(0)')
    A(f'v_mov_b32 v{RING}, 0')
    if 'dbg' in OPT:
        lbl = f'WS_skip{n}'
        A(f's_cmp_lg_u32 s2, {OPT["dbg"].split(",")[0]}')
        A(f's_cbranch_scc1 {lbl}')
        A(f's_cmp_lg_u32 s{sW}, {OPT["dbg"].split(",")[1]}')
        A(f's_cbranch_scc1 {lbl}')
        for i in range(1, n):
            A(f's_sub_u32 s{sT0}, s{sST+2*i}, s{sST}')
            A(f'v_writelane_b32 v{RING}, s{sT0}, {i}')
        A(f's_sub_u32 s{sT0}, s98, s96')
        A(f'v_writelane_b32 v{RING}, s{sT0}, 15')
        srd(S_DBG, 12, 13, 256)
        A(f'v_lshlrev_b32 v{RING+1}, 2, v{vL}')
        A('s_mov_b64 exec, 0xfffe')
        A(f'buffer_store_dword v{RING}, v{RING+1}, s[{S_DBG}:{S_DBG+3}], 0 offen')
        A.label(lbl)
        return
    for i in range(n):
        A(f'v_writelane_b32 v{RING}, s{sST+2*i}, {i}')
    A(f'v_writelane_b32 v{RING}, s96, 14')
    A(f'v_writelane_b32 v{RING}, s98, 15')
    A(f's_lshl_b32 s{sT0}, s2, 3')
    A(f's_add_u32 s{sT0}, s{sT0}, s{sW}')
    A(f's_lshl_b32 s{sT0}, s{sT0}, 6')
    A(f's_add_u32 s{sT0}, s{sT0}, 0x100000')
    A(f'v_lshlrev_b32 v{RING+1}, 2, v{vL}')
    A('s_mov_b64 exec, 0xffff')
    A(f'buffer_store_dword v{RING}, v{RING+1}, s[{S_WS}:{S_WS+3}], s{sT0} offen')

def row_addrs(b, sF):
    for j in (0, 1, 2, 7):
        A(f'v_add_u32 v{vT}, {PIECE[j]}, v{vL}')
        A(f'v_xor_b32 v{vT}, {sF}, v{vT}')
        A(f'v_mul_u32_u24 v{vT+1}, 2731, v{vT}')
        A(f'v_lshrrev_b32 v{vT+1}, 16, v{vT+1}')
        A(f'v_mul_u32_u24 v{vT+1}, 384, v{vT+1}')
        A(f'v_lshl_add_u32 v{vT}, v{vT}, 4, v{vT+1}')
        A(f'v_add_u32 v{b+j}, s{sKC0B}, v{vT}')
        if j < 3:
            A(f'v_add_u32 v{b+j+3}, {8*768}, v{b+j}')
            if j == 0: A(f'v_add_u32 v{b+6}, {16*768}, v{b}')
            A(f'v_max_i32 v{b+j}, 0, v{b+j}')
def row_soff(dst, srow):
    A(f's_add_i32 s{dst}, s{sKR0}, {srow}')
    A(f's_lshl_b32 s{dst}, s{dst}, 1')
    A(f's_add_i32 s{dst}, s{dst}, s{sPR}')
    A(f's_max_i32 s{dst}, s{dst}, 0')
    A(f's_min_i32 s{dst}, s{dst}, 223')
    A(f's_mul_i32 s{dst}, s{dst}, 86016')

def stream(ms, mem, side, hooks=None, cap=2, bg=None, flush=()):
    side = [x if len(x) == 3 else (x[0], x[1], 10**9) for x in side]
    bg = bg if bg is not None else []
    def slots(lo, hi):
        return sum(max(0, cap - len(mem.get(k, []))) for k in range(lo, hi + 1))
    for i, m in enumerate(ms):
        assert not (side and side[0][2] < i), ('deadline missed', side[0], i)
        A(m)
        if i + 1 < len(ms) and not (hooks and i in hooks): A.prewait(ms[i+1])
        n = 0
        for t in mem.get(i, []):
            A(t); n += 1
        c = cap
        if side and side[0][2] < len(ms):
            dl = side[0][2]
            if sum(1 for x in side if x[2] == dl) > slots(i, dl): c = cap + 1
        while side and n < c and side[0][0] <= i:
            A(side.pop(0)[1]); n += 1
        while bg and n < cap:
            A(bg.pop(0)); n += 1
        if i in flush:
            while side and side[0][0] <= i + 4: A(side.pop(0)[1])
        if hooks and i in hooks: hooks[i]()
    return [x[1] for x in side]

def gemm_phase(B, loc, finish, swap=False, hooks=None, D=6, gate=None, bg=None, extra_mem=None, ghooks=None, flush=()):
    def rd(f):
        l = loc(f)
        if l[0] == 'lds':
            buf = RING + 4*(f % 8)
            return [f'ds_read_b128 v[{buf}:{buf+3}], v{l[1]} offset:{l[2]}']
        return []
    ms, mem, side, hk = [], dict(extra_mem or {}), [], dict(ghooks or {})
    for f in range(D):
        for t in rd(f): A(t)
    for f in range(72):
        sig, s, h = f // 12, (f % 12) // 2, f % 2
        l = loc(f)
        a = RING + 4*(f % 8) if l[0] == 'lds' else l[1]
        accb = ACC + 16*(sig & 1)
        for G in range(2):
            d = accb + 8*G + 4*h
            b = B + 24*G + 4*s
            ms.append(mf(d, b, a, None if s == 0 else d) if swap else mf(d, a, b, None if s == 0 else d))
        fn = f + D
        if fn < 72 and not (gate is not None and f < gate <= fn):
            mem[2*f] = rd(fn)
        if f % 12 == 11:
            side += [(2*f + 1 + 3, t, 2*f + 1 + 24) for t in finish(sig, accb)]
            if hooks and sig in hooks:
                def mk(sig=sig, f=f):
                    def h():
                        hooks[sig]()
                        if gate is not None and f + 1 == gate:
                            for k in range(gate, gate + D):
                                for t in rd(k): A(t)
                    return h
                hk[2*f + 1] = mk()
    return stream(ms, mem, side, hk, bg=bg, flush=flush)

def poll(label, off):
    A(f'v_mov_b32 v{vT+2}, 0')
    A(f's_mov_b32 s{sT4}, 0')
    A('s_mov_b64 exec, 1')
    A.label(label)
    A(f'buffer_load_dword v{vT+3}, v{vT+2}, s[{S_DBG}:{S_DBG+3}], 0 offen offset:{off} sc1')
    A('s_waitcnt vmcnt(0)')
    A(f'v_cmp_eq_u32 vcc, 0, v{vT+3}')
    A(f's_add_u32 s{sT4}, s{sT4}, 1')
    A(f's_cmp_gt_u32 s{sT4}, 200000')
    A(f's_cbranch_scc1 {label}_x')
    A('s_cmp_lg_u64 vcc, 0')
    A(f's_cbranch_scc0 {label}_x')
    A('s_sleep 2')
    A(f's_branch {label}')
    A.label(label + '_x')
    A('s_mov_b64 exec, -1')

def cond(lbl, isE, body):
    A(f's_cmp_lt_u32 s{sW}, 4' if isE else f's_cmp_ge_u32 s{sW}, 4')
    A(f's_cbranch_scc1 {lbl}')
    body()
    A.label(lbl)

nprio = [0]
def prio(e, l):
    nprio[0] += 1
    A(f's_setprio {l}')
    if e != l: cond(f'M_pr{nprio[0]}', True, lambda: A.skip(f's_setprio {e}'))

npad = [0]
def padat(name):
    if OPT.get('padpos') != name: return
    npad[0] += 1
    A.label(f'PADM{npad[0]}')
    A.raw('  s_memrealtime s[98:99]')
    A.raw('  s_waitcnt lgkmcnt(0)')
    A.raw('  s_sub_u32 s98, s98, s96')
    A.raw(f'  s_cmp_lt_u32 s98, {OPT["padt"]}')
    A.raw(f'  s_cbranch_scc1 PADM{npad[0]}')

def gen_main():
    A.raw(f'.globl {NAME}'); A.raw('.p2align 8'); A.raw(f'.type {NAME},@function')
    A.raw(f'{NAME}:'); A.reset()
    A('s_cmp_ge_u32 s2, 256')
    A('s_cbranch_scc1 M_done')
    stamp(0)
    if 'pad' in OPT or 'padpos' in OPT: A.raw('  s_memrealtime s[96:97]')
    A('s_load_dwordx8 s[4:11], s[0:1], 0')
    A('s_load_dwordx4 s[12:15], s[0:1], 32')
    A(f'v_lshrrev_b32 v{vT}, 6, v0')
    A(f'v_and_b32 v{vL}, 63, v0')
    A(f'v_readfirstlane_b32 s{sW}, v{vT}')
    A(f'v_lshrrev_b32 v{vG}, 4, v{vL}')
    A(f'v_and_b32 v{vN}, 15, v{vL}')
    A(f'v_lshlrev_b32 v{vWA0}, 4, v{vL}')
    A(f'v_lshrrev_b32 v{vT}, 4, v{vL}')
    A(f'v_bfe_u32 v{vT+1}, v{vL}, 2, 2')
    A(f'v_lshl_add_u32 v{vT}, v{vT}, 3, v{vT+1}')
    A(f'v_mul_u32_u24 v{vT}, 1152, v{vT}')
    A(f'v_lshrrev_b32 v{vT+1}, 5, v{vL}')
    A(f'v_lshlrev_b32 v{vT+1}, 1, v{vT+1}')
    A(f'v_and_b32 v{vT+2}, 3, v{vL}')
    A(f'v_xor_b32 v{vT+2}, v{vT+1}, v{vT+2}')
    A(f'v_lshl_add_u32 v{vWD}, v{vT+2}, 4, v{vT}')
    A(f's_and_b32 s{sT0}, s2, 7')
    A(f's_lshr_b32 s{sT1}, s2, 3')
    A(f's_lshr_b32 s{sPR}, s{sT0}, 2')
    A(f's_bfe_u32 s{sPC}, s{sT0}, 0x10001')
    A(f's_and_b32 s{sT0}, s{sT0}, 1')
    A(f's_lshl_b32 s{sT0}, s{sT0}, 2')
    A(f's_lshr_b32 s{sTR}, s{sT1}, 3')
    A(f's_add_u32 s{sTR}, s{sTR}, s{sT0}')
    A(f's_and_b32 s{sTC}, s{sT1}, 7')
    A(f's_mul_i32 s{sTR}, s{sTR}, 14')
    A(f's_mul_i32 s{sTC}, s{sTC}, 14')
    A(f's_mul_i32 s{sALR}, s{sPR}, 13')
    A(f's_add_i32 s{sALR}, s{sALR}, -6')
    A(f's_mul_i32 s{sALC}, s{sPC}, 13')
    A(f's_add_i32 s{sALC}, s{sALC}, -6')
    A(f's_cmp_ge_u32 s{sW}, 4')
    A(f's_cselect_b32 s{sSTRIP}, -4, 3')
    A(f's_add_i32 s{sSTRIP}, s{sSTRIP}, s{sW}')
    A(f's_lshl_b32 s{sSTRIP}, s{sSTRIP}, 1')
    A(f'v_lshrrev_b32 v{vT}, 5, v{vL}')
    A(f's_add_u32 s{sT3}, s{sTR}, s{sSTRIP}')
    A(f'v_add_u32 v{vT}, s{sT3}, v{vT}')
    A(f'v_lshl_add_u32 v{vT+1}, v{vT}, 1, s{sALR}')
    A(f'v_add_u32 v{vT+3}, 112, v{vT}')
    A(f'v_med3_i32 v{vT}, v{vT+1}, v{vT}, v{vT+3}')
    A(f'v_mul_u32_u24 v{vT}, 224, v{vT}')
    A(f'v_bfe_u32 v{vT+7}, v{vL}, 2, 3')
    A(f'v_min_u32 v{vT+7}, 6, v{vT+7}')
    A(f'v_add_u32 v{vT+7}, s{sTC}, v{vT+7}')
    for G in range(2):
        d = vXA + G
        if G: A(f'v_add_u32 v{vT+7}, 7, v{vT+7}')
        A(f'v_lshl_add_u32 v{vT+1}, v{vT+7}, 1, s{sALC}')
        A(f'v_add_u32 v{vT+3}, 112, v{vT+7}')
        A(f'v_med3_i32 v{d}, v{vT+1}, v{vT+7}, v{vT+3}')
        A(f'v_add_u32 v{d}, v{d}, v{vT}')
        A(f'v_mul_u32_u24 v{d}, 384, v{d}')
        A(f'v_lshl_add_u32 v{d}, v{vT+2}, 4, v{d}')
    A('s_waitcnt lgkmcnt(0)')
    padat('K')
    srd(S_W, 6, 7, 192*576*2)
    srd(S_X, 4, 5, X_BYTES)
    def wdma(lds0, go):
        A(f's_and_b32 s{sT0}, s{sW}, 3')
        A(f's_mul_i32 s{sT2}, s{sT0}, 18432')
        A(f's_mul_i32 s{sT0}, s{sT0}, 3')
        for i in range(3):
            A(f's_add_u32 s{sT1}, s{sT0}, {i}')
            A(f's_lshr_b32 s{sT3}, s{sT1}, 1')
            A(f's_mul_i32 s{sT3}, s{sT3}, {32*1152}')
            A(f's_and_b32 s{sT1}, s{sT1}, 1')
            A(f's_mul_i32 s{sT1}, s{sT1}, 4608')
            A(f's_add_u32 s{sT1}, s{sT1}, s{sT3}')
            for k in range(6):
                A(f's_add_u32 m0, s{sT2}, {lds0 + (6*i + k)*1024 - go - 64*k}')
                A(f'buffer_load_dwordx4 v{vWD}, s[{S_W}:{S_W+3}], s{sT1} offen offset:{go + 64*k} lds')
    A(f's_cmp_eq_u32 s{sW}, 0')
    A(f's_cselect_b32 s{sVT}, s2, 999')
    A(f's_cmp_ge_u32 s{sW}, 4')
    A('s_cbranch_scc1 M_now')
    if OPT.get('warm', '1') == '1':
        A(f's_cmp_lg_u32 s{sW}, 1')
        A('s_cbranch_scc1 M_nowarm')
        A(f's_lshr_b32 s{sT0}, s2, 3')
        A(f's_mul_i32 s{sT0}, s{sT0}, 6912')
        A(f's_add_u32 s{sT1}, s{sT0}, 4096')
        for i in range(7):
            A(f'buffer_load_dwordx4 v[{MACC+4*i}:{MACC+4*i+3}], v{vWA0}, s[{S_W}:{S_W+3}], s{sT0 + i//4} offen offset:{1024*(i%4)}')
        A.label('M_nowarm')
    wdma(MB, 384)
    VA, VB, VD = XQ, XQ + 24, MACC + 32
    A(f's_cmp_ge_u32 s{sVT}, 144')
    A('s_cbranch_scc1 M_now')
    srd(S_WO, 8, 9, 192*192*2)
    A(f's_mul_hi_u32 s{sT0}, s2, 0x15555556')
    A(f's_mul_i32 s{sT1}, s{sT0}, 12')
    A(f's_sub_u32 s{sT1}, s2, s{sT1}')
    A(f'v_lshrrev_b32 v{vT}, 2, v{vL}')
    A(f'v_mul_u32_u24 v{vT}, 1152, v{vT}')
    A(f'v_and_b32 v{vT+1}, 48, v{vWD}')
    A(f'v_add_u32 v{vT}, v{vT}, v{vT+1}')
    A(f's_mul_i32 s{sT2}, s{sT0}, {16*1152}')
    for k in range(6):
        A(f's_mov_b32 m0, {GAP + 1024*k - 768 - 64*k}')
        A(f'buffer_load_dwordx4 v{vT}, s[{S_W}:{S_W+3}], s{sT2} offen offset:{768 + 64*k} lds')
    A(f'v_lshrrev_b32 v{vT+1}, 1, v{vL}')
    A(f'v_mul_u32_u24 v{vT+1}, 384, v{vT+1}')
    A(f'v_and_b32 v{vT+2}, 1, v{vL}')
    A(f'v_lshl_add_u32 v{vT+1}, v{vT+2}, 4, v{vT+1}')
    A(f's_lshl_b32 s{sT2}, s{sT1}, 5')
    for k in range(6):
        A(f's_mov_b32 m0, {GAP + 6144 + 1024*k}')
        A(f'buffer_load_dwordx4 v{vT+1}, s[{S_WO}:{S_WO+3}], s{sT2} offen lds')
        A(f's_add_u32 s{sT2}, s{sT2}, {32*384}')
    A(f's_lshr_b32 s{sT2}, s{sT1}, 2')
    A(f's_mul_i32 s{sVO}, s{sT2}, 24576')
    A(f's_and_b32 s{sT1}, s{sT1}, 3')
    A(f's_lshl_b32 s{sT1}, s{sT1}, 6')
    A(f's_add_u32 s{sVO}, s{sVO}, s{sT1}')
    A(f's_lshr_b32 s{sT1}, s{sT0}, 1')
    A(f's_lshl_b32 s{sT1}, s{sT1}, 11')
    A(f's_add_u32 s{sVO}, s{sVO}, s{sT1}')
    A(f's_and_b32 s{sT0}, s{sT0}, 1')
    A(f's_lshl_b32 s{sT0}, s{sT0}, 3')
    A(f's_add_u32 s{sVO}, s{sVO}, s{sT0}')
    A.label('M_now'); A.reset()
    stamp()
    srd(S_WS, 14, 15, WS_BYTES)
    srd(S_OUT, 10, 11, X_BYTES)
    A(f's_mul_i32 s{sT0}, s{sPR}, 6')
    A(f's_add_i32 s{sKR0}, s{sTR}, s{sT0}')
    A(f's_add_i32 s{sKR0}, s{sKR0}, -6')
    A(f's_cmp_eq_i32 s{sKR0}, -6')
    A(f's_cselect_b32 s{sLOR}, 6, 0')
    A(f's_cmp_eq_i32 s{sKR0}, 98')
    A(f's_cselect_b32 s{sHIR}, 7, 13')
    A(f's_cselect_b32 s{sSHR}, 2, 0')
    A(f's_sub_i32 s{sKR0}, s{sKR0}, s{sSHR}')
    A(f's_mul_i32 s{sT0}, s{sPC}, 6')
    A(f's_add_i32 s{sT1}, s{sTC}, s{sT0}')
    A(f's_add_i32 s{sT1}, s{sT1}, -6')
    A(f's_cmp_eq_i32 s{sT1}, -6')
    A(f's_cselect_b32 s{sLOC}, 6, 0')
    A(f's_cmp_eq_i32 s{sT1}, 98')
    A(f's_cselect_b32 s{sHIC}, 7, 13')
    A(f's_lshl_b32 s{sT1}, s{sT1}, 1')
    A(f's_add_i32 s{sT1}, s{sT1}, s{sPC}')
    A(f's_mul_i32 s{sKC0B}, s{sT1}, 384')
    A(f'v_lshrrev_b32 v{vT}, 3, v{vN}')
    A(f'v_lshlrev_b32 v{vT}, 1, v{vT}')
    A(f'v_xor_b32 v{vT}, v{vT}, v{vG}')
    A(f'v_lshl_add_u32 v{vT}, v{vN}, 2, v{vT}')
    A(f'v_lshlrev_b32 v{vT}, 4, v{vT}')
    A(f's_lshl_b32 s{sT0}, s{sW}, 11')
    A(f's_add_u32 s{sT0}, s{sT0}, {GAP - 2048}')
    A(f'v_add_u32 v{vSW}, s{sT0}, v{vWA0}')
    A(f'v_add_u32 v0, s{sT0}, v{vT}')
    A(f's_mul_i32 s{sT2}, s{sW}, 18432')
    A(f's_add_u32 s{sT2}, s{sT2}, {MB}')
    A(f'v_add_u32 v{MPK}, s{sT2}, v{vT}')
    A(f'v_mov_b32 v{MWA+3}, v{vT}')
    A(f'v_add_u32 v{MWA+4}, 36864, v{vT}')
    A(f's_mul_i32 s{sT0}, s{sW}, 3')
    for i in range(3):
        A(f's_add_u32 s{sT2}, s{sT0}, {i}')
        A(f's_lshr_b32 s{sT3}, s{sT2}, 1')
        A(f's_mul_i32 s{sT3}, s{sT3}, 12')
        A(f's_and_b32 s{sT2}, s{sT2}, 1')
        A(f's_add_u32 s{sT3}, s{sT3}, s{sT2}')
        A(f's_lshl_b32 s{sT3}, s{sT3}, 10')
        A(f's_add_u32 s{sT3}, s{sT3}, {MB}')
        A(f'v_add_u32 v{MWA+i}, s{sT3}, v{vWA0}')
    A(f's_max_i32 s{sBASE}, s{sSTRIP}, s{sLOR}')
    A(f's_min_i32 s{sBASE}, s{sBASE}, s{sHIR}')
    A(f's_and_b32 s{sBASE}, s{sBASE}, -2')
    A(f'v_lshrrev_b32 v{vT}, 3, v{vN}')
    A(f'v_add_u32 v{vT}, s{sSTRIP}, v{vT}')
    A(f'v_max_i32 v{vT}, s{sLOR}, v{vT}')
    A(f'v_min_i32 v{vT}, s{sHIR}, v{vT}')
    A(f'v_subrev_u32 v{vT}, s{sBASE}, v{vT}')
    A(f's_add_u32 s{sBASE}, s{sBASE}, s{sSHR}')
    A(f's_mov_b32 s{sNEG}, {NEGINF}')
    A(f's_mov_b32 s{sSC}, {SCALE}')
    A(f'v_and_b32 v{vT+1}, 1, v{vG}')
    A(f'v_sub_u32 v{vT+2}, v{vT+1}, v{vT}')
    A(f'v_ashrrev_i32 v{vR0}, 31, v{vT+2}')
    A(f'v_and_b32 v{vR0}, s{sNEG}, v{vR0}')
    A(f'v_sub_u32 v{vT+2}, v{vT}, v{vT+1}')
    A(f'v_ashrrev_i32 v{vR3}, 31, v{vT+2}')
    A(f'v_and_b32 v{vR3}, s{sNEG}, v{vR3}')
    A(f'v_and_b32 v{vT}, 7, v{vN}')
    A(f'v_min_u32 v{vT}, 6, v{vT}')
    A(f'v_lshrrev_b32 v{vT+1}, 1, v{vG}')
    A(f'v_mov_b32 v{vT+3}, 0x7f')
    for G in range(2):
        A(f'v_add_u32 v{vT+2}, {7*G}, v{vT}')
        A(f'v_max_i32 v{vT+2}, s{sLOC}, v{vT+2}')
        A(f'v_min_i32 v{vT+2}, s{sHIC}, v{vT+2}')
        A(f'v_lshlrev_b32 v{vT+2}, v{vT+2}, v{vT+3}')
        A(f'v_lshrrev_b32 v{vT+2}, v{vT+1}, v{vT+2}')
        A(f'v_not_b32 v{vCB+G}, v{vT+2}')
    def Fv(dst, row):
        A(f'v_and_b32 v{dst}, 1, v{row}')
        A(f'v_lshlrev_b32 v{dst}, 3, v{dst}')
        A(f'v_and_or_b32 v{dst}, v{row}, 6, v{dst}')
    A(f'v_and_b32 v{vT}, 7, v{vN}')
    A(f'v_add_u32 v{vT}, s{sBASE}, v{vT}')
    Fv(vT+1, vT)
    A(f'v_mul_u32_u24 v{vT}, {ROWB}, v{vT}')
    A(f'v_lshrrev_b32 v{vT+2}, 3, v{vN}')
    A(f'v_mul_u32_u24 v{vT+2}, 24, v{vT+2}')
    A(f'v_add_u32 v{vT+2}, v{vT+2}, v{vG}')
    for s in range(4):
        A(f'v_add_u32 v{vT+3}, {4*s}, v{vT+2}')
        A(f'v_xor_b32 v{vT+3}, v{vT+3}, v{vT+1}')
        A(f'v_lshl_add_u32 v{vAS+s}, v{vT+3}, 4, v{vT}')
    A(f'v_and_b32 v{vT}, 1, v{vG}')
    A(f'v_lshlrev_b32 v{vT}, 2, v{vT}')
    A(f'v_lshrrev_b32 v{vT+1}, 2, v{vN}')
    A(f'v_add3_u32 v{vT}, v{vT}, v{vT+1}, s{sBASE}')
    Fv(vT+1, vT)
    A(f'v_mul_u32_u24 v{vT}, {ROWB}, v{vT}')
    A(f'v_and_b32 v{vT+2}, 1, v{vN}')
    A(f'v_lshl_add_u32 v{vT}, v{vT+2}, 3, v{vT}')
    A(f'v_lshrrev_b32 v{vT+2}, 1, v{vG}')
    A(f'v_mul_u32_u24 v{vT+2}, 24, v{vT+2}')
    A(f'v_bfe_u32 v{vT+3}, v{vN}, 1, 1')
    A(f'v_add_u32 v{vT+2}, v{vT+2}, v{vT+3}')
    for ct in range(8):
        A(f'v_add_u32 v{vT+3}, {2*ct}, v{vT+2}')
        A(f'v_xor_b32 v{vT+3}, v{vT+3}, v{vT+1}')
        A(f'v_lshl_add_u32 v{vAP+ct}, v{vT+3}, 4, v{vT}')
    A(f'v_add_u32 v{vWA1}, {SPARE}, v{vWA0}')
    A(f'v_add_u32 v{vWAM}, {MB}, v{vWA0}')
    A(f's_and_b32 s{sT0}, s{sW}, 1')
    A(f's_lshl_b32 s{sT0}, s{sT0}, 3')
    A(f's_and_b32 s{sT1}, s{sW}, 6')
    A(f's_or_b32 s{sT0}, s{sT0}, s{sT1}')
    row_addrs(WF, f's{sT0}')
    A(f's_add_u32 s{sT1}, s{sW}, 8')
    row_soff(sXR, f's{sT1}')
    A(f's_mul_i32 s{sXL}, s{sT1}, {ROWB}')
    stamp()
    def sreg(G, tl): return SACC + 28*G + 4*tl
    def masks():
        out = []
        for tl in range(7):
            a = []
            for G in range(2):
                tau = tl + 3*G
                r = sreg(G, tl)
                a.append([f'v_bfe_i32 v{r+2}, v{vCB+G}, {2*tau}, 1', f'v_and_b32 v{r+1}, s{sNEG}, v{r+2}',
                          f'v_and_b32 v{r+2}, s{sNEG}, v{r+2}', f'v_or_b32 v{r}, v{r+1}, v{vR0}', f'v_or_b32 v{r+3}, v{r+1}, v{vR3}'])
            for x, y in zip(*a): out += [x, y]
        return out
    def oaddr(t0, t1, t2, t3, t4):
        side = [f'v_lshrrev_b32 v{t0}, 1, v{vG}', f'v_and_b32 v{t3}, 1, v{vG}', f'v_add_u32 v{t0}, s{sOA}, v{t0}',
                f'v_lshl_add_u32 v{t4}, v{t3}, 2, s{sTC}',
                f'v_lshl_add_u32 v{t1}, v{t0}, 1, s{sALR}', f'v_add_u32 v{t2}, 112, v{t0}', f'v_lshlrev_b32 v{t3}, 30, v{t3}',
                f'v_med3_i32 v{t0}, v{t1}, v{t0}, v{t2}', f'v_mul_lo_u32 v{t0}, v{t0}, s{sOA+1}',
                f'v_lshl_add_u32 v{t0}, v{vN}, 3, v{t0}']
        for G in range(2):
            for r in range(4):
                d = vOA + 4*G + r
                side += [f'v_add_u32 v{d}, {7*G+r}, v{t4}', f'v_lshl_add_u32 v{t1}, v{d}, 1, s{sALC}',
                         f'v_add_u32 v{t2}, 112, v{d}', f'v_med3_i32 v{d}, v{t1}, v{d}, v{t2}',
                         f'v_mad_u32_u24 v{d}, v{d}, s{sOA+2}, v{t0}']
                if r == 3: side += [f'v_add_u32 v{d}, v{d}, v{t3}']
        return side
    A(f's_add_u32 s{sOA}, s{sTR}, s{sSTRIP}')
    A(f's_mov_b32 s{sOA+1}, 86016')
    A(f's_mov_b32 s{sOA+2}, 384')
    def xload(i):
        s, G = i // 2, i % 2
        return f'buffer_load_dwordx4 v[{XQ+24*G+4*s}:{XQ+24*G+4*s+3}], v{vXA+G}, s[{S_X}:{S_X+3}], 0 offen offset:{64*s}{XNT}'
    def transpose(fill=()):
        fill = list(fill)
        per = -(-len(fill) // 6)
        for s in range(6):
            for t in fill[per*s:per*(s+1)]: A(t)
            for G in range(2):
                r = XQ + 24*G + 4*s
                A(f'ds_write_b128 v{vSW}, v[{r}:{r+3}] offset:{1024*G}')
            for G in range(2):
                r = XQ + 24*G + 4*s
                A(f'ds_read_b128 v[{r}:{r+3}], v0 offset:{1024*G}')
            if len(A.lgkm) > 8: A('s_waitcnt lgkmcnt(4)')
    N1 = int(OPT.get('n1', '0'))
    A(f's_cmp_lt_u32 s{sW}, 4')
    A('s_cbranch_scc1 M_mw')
    wdma(0, 0)
    A('s_waitcnt vmcnt(8)')
    stamp()
    for i in range(N1): A.raw('  ' + xload(i))
    A(f's_waitcnt vmcnt({N1})')
    A('s_barrier')
    stamp()
    for i in range(N1, 12): A.raw('  ' + xload(i))
    for t in oaddr(ACC, ACC+1, ACC+2, ACC+3, ACC+4): A(t)
    A.vm = [A.parse(xload(i)).w for i in range(12)]
    if 'noet' not in OPT: transpose()
    A('s_waitcnt vmcnt(0) lgkmcnt(0)')
    A('s_barrier')
    stamp()
    A('s_branch M_pa')
    A.label('M_mw'); A.reset()
    nstamp[0] -= 3
    A(f's_cmp_lg_u32 s{sW}, 0')
    A('s_cbranch_scc1 M_h0')
    row_addrs(vAP, '8')
    A.label('M_h0')
    for t in oaddr(ACC, ACC+1, ACC+2, ACC+3, ACC+4): A(t)
    A('s_waitcnt vmcnt(0)')
    stamp()
    for i in range(18):
        A(f'ds_read_b128 v[{MBQ+4*i}:{MBQ+4*i+3}], v{MPK} offset:{1024*i}')
        if i == 13: A('s_waitcnt lgkmcnt(8)')
    A('s_waitcnt lgkmcnt(0)')
    A(f's_cmp_ge_u32 s{sVT}, 144')
    A('s_cbranch_scc1 M_v3')
    A(f'v_add_u32 v{MACC+40}, {GAP}, v{MWA+3}')
    A(f'v_lshlrev_b32 v{MACC+41}, 3, v{vN}')
    A(f'v_lshl_add_u32 v{MACC+41}, v{vG}, 8, v{MACC+41}')
    A(f'v_add_u32 v{MACC+41}, {GAP + 6144}, v{MACC+41}')
    for k in range(6):
        A(f'ds_read_b128 v[{VA+4*k}:{VA+4*k+3}], v{MACC+40} offset:{1024*k}')
    A('s_waitcnt lgkmcnt(2)')
    for k in range(6):
        for hh in range(2):
            A(f'ds_read_b64_tr_b16 v[{VB+4*k+2*hh}:{VB+4*k+2*hh+1}], v{MACC+41} offset:{1024*k + 128*hh}')
    A('s_waitcnt lgkmcnt(0)')
    for k in range(6):
        A(mf(VD, VA + 4*k, VB + 4*k, None if k == 0 else VD))
    A(f'v_bfe_u32 v{MACC+40}, v{vN}, 1, 1')
    A(f'v_mul_u32_u24 v{MACC+40}, 12288, v{MACC+40}')
    A(f'v_and_b32 v{MACC+41}, 1, v{vN}')
    A(f'v_lshl_add_u32 v{MACC+40}, v{MACC+41}, 10, v{MACC+40}')
    A(f'v_lshrrev_b32 v{MACC+41}, 2, v{vN}')
    A(f'v_lshl_add_u32 v{MACC+40}, v{MACC+41}, 4, v{MACC+40}')
    A(f'v_lshl_add_u32 v{MACC+40}, v{vG}, 8, v{MACC+40}')
    A(f'v_cvt_pk_bf16_f32 v{VD+4}, v{VD}, v{VD+1}')
    A(f'v_cvt_pk_bf16_f32 v{VD+5}, v{VD+2}, v{VD+3}')
    A(f'buffer_store_dwordx2 v[{VD+4}:{VD+5}], v{MACC+40}, s[{S_WS}:{S_WS+3}], s{sVO} offen sc1')
    A.label('M_v3'); A.reset()
    A('s_barrier')
    stamp()
    padat('M')
    seqM = [(sp, k, hp) for sp in range(6) for k in range(6) for hp in range(2)]
    def rdM(i):
        sp, k, hp = seqM[i]
        buf = RING + 4*(i % 8)
        return f'ds_read_b128 v[{buf}:{buf+3}], v{MWA+3+sp//3} offset:{((2*(sp%3)+hp)*6 + k)*1024}'
    DM = 6
    for i in range(DM): A(rdM(i))
    ms, mem, side = [], {}, []
    for i, (sp, k, hp) in enumerate(seqM):
        a = RING + 4*(i % 8)
        ab = MACC + 24*(sp & 1)
        if i + DM < len(seqM): mem[len(ms)] = [rdM(i + DM)]
        for t in range(3):
            d = ab + 8*t + 4*hp
            ms.append(mf(d, a, MBQ + 24*t + 4*k, None if k == 0 else d))
        if i % 12 == 11:
            for t in range(3):
                pk = MPK + 4*(t & 1)
                e0 = len(ms) + 3 + 6*t
                for q in range(4):
                    side.append((e0, f'v_cvt_pk_bf16_f32 v{pk+q}, v{ab+8*t+2*q}, v{ab+8*t+2*q+1}', len(ms) + 35))
                wr = f'ds_write_b128 v{MWA+t}, v[{pk}:{pk+3}] offset:{2048*sp}'
                if sp < 5: mem[e0 + 4] = [wr]
                else: side.append((e0, wr))
    X0, X1 = int(OPT.get('x0', '10')), int(OPT.get('x1', '10'))
    hk = {}
    def mkx(i):
        def h():
            A.skip(f's_cbranch_scc1 M_sx{i}')
            A.raw('  ' + xload(i))
            A.label(f'M_sx{i}')
        return h
    for i in range(12):
        gp = X0 + X1*i
        while gp % 3 != 1 or gp in mem: gp += 1
        hk[gp] = mkx(i)
    A(f's_cmp_eq_u32 s{sW}, 0')
    A('s_setprio 3')
    if 'nomx' in OPT: hk = {}
    if 'nomw' in OPT: mem = {k: v for k, v in mem.items() if 'ds_write' not in v[0]}
    for t in stream(ms, mem, side, hk): A(t)
    A('s_waitcnt lgkmcnt(0)')
    A('s_barrier')
    stamp()
    A('s_cbranch_scc1 M_helper')
    A.vm = [A.parse(xload(i)).w for i in range(12)]
    A('s_setprio 0')
    transpose()
    A('s_waitcnt lgkmcnt(0)')
    A.label('M_pa'); A.reset()
    padat('A')
    stamp()
    bgA = masks()
    xrow = []
    for j in range(8):
        xrow.append(f's_add_u32 m0, s{sXL}, {16*PIECE[j]}\n s_nop 0\n buffer_load_dwordx4 v{WF+j}, s[{S_X}:{S_X+3}], s{sXR} offen{KNT} lds')
    def finA(sig, accb):
        out = []
        for G in range(2):
            for q in range(4):
                out.append(f'v_cvt_pk_bf16_f32 v{QP+24*G+4*sig+q}, v{accb+8*G+2*q}, v{accb+8*G+2*q+1}')
        return out
    def locA(f):
        if f < 60: return ('lds', vWAM, f*1024)
        if f < 62: return ('reg', WF + 4*(f-60))
        return ('lds', vWA1, (f-62)*1024)
    def bar():
        A('s_barrier')
        if 'noxrow' not in OPT: bgA[0:0] = xrow
    def bar4():
        A('s_waitcnt vmcnt(0)'); A('s_barrier')
        prio(3, 2)
    xm = {2*48+1: [f'ds_read_b128 v[{WF}:{WF+3}], v{vWAM} offset:{60*1024}'],
          2*49+1: [f'ds_read_b128 v[{WF+4}:{WF+7}], v{vWAM} offset:{61*1024}']}
    pend = gemm_phase(XQ, locA, finA, hooks={2: bar, 4: bar4}, bg=bgA, extra_mem=xm)
    assert not bgA
    stamp()
    padat('S')
    cond('M_l1', False, lambda: A.skip('s_barrier'))
    seq = []
    for (a1, a2) in ((0, 3), (1, 4), (2, 5), (7, 6), (8, 9)):
        for s in range(6):
            seq.append((a1, s)); seq.append((a2, s))
    def users(tau):
        u = []
        if tau <= 6: u.append((0, tau))
        if tau >= 3: u.append((1, tau - 3))
        return u
    def rdS(i):
        tau, s = seq[i]
        buf = RING + 4*(i % 8)
        return f'ds_read_b128 v[{buf}:{buf+3}], v{vAS + (s % 4)} offset:{tau*768 + (256 if s >= 4 else 0)}'
    D = 7
    for i in range(D): A(rdS(i))
    for t in pend: A(t)
    ms, mem = [], {}
    for i, (tau, s) in enumerate(seq):
        a = RING + 4*(i % 8)
        for (G, tl) in users(tau):
            r = sreg(G, tl)
            ms.append(mf(r, a, QP + 24*G + 4*s, r))
        if i + D < len(seq): mem[len(ms) - 1] = [rdS(i + D)]
    stream(ms, mem, [])
    stamp()
    prio(1, 0)
    vM = [12, 13]; vX = [14, 15]
    A(f'v_mov_b32 v{PP+14}, 0'); A(f'v_mov_b32 v{PP+15}, 0')
    A(f'v_mov_b32 v{PP+16}, 0'); A(f'v_mov_b32 v{PP+17}, 0')
    for G in range(2):
        b = sreg(G, 0)
        A(f'v_max3_f32 v{vM[G]}, v{b}, v{b+1}, v{b+2}')
        A(f'v_max3_f32 v{vX[G]}, v{b+3}, v{b+4}, v{b+5}')
    for k in range(6, 26, 4):
        for G in range(2):
            b = sreg(G, 0)
            A(f'v_max3_f32 v{vM[G]}, v{vM[G]}, v{b+k}, v{b+k+1}')
            A(f'v_max3_f32 v{vX[G]}, v{vX[G]}, v{b+k+2}, v{b+k+3}')
    for G in range(2):
        b = sreg(G, 0)
        A(f'v_max3_f32 v{vM[G]}, v{vM[G]}, v{b+26}, v{b+27}')
    for G in range(2):
        A(f'v_max_f32 v{vM[G]}, v{vM[G]}, v{vX[G]}')
    for sw in ('v_permlane32_swap_b32', 'v_permlane16_swap_b32'):
        for G in range(2): A(f'v_mov_b32 v{vX[G]}, v{vM[G]}')
        for G in range(2): A(f'{sw} v{vM[G]}, v{vX[G]}')
        for G in range(2): A(f'v_max_f32 v{vM[G]}, v{vM[G]}, v{vX[G]}')
    for G in range(2): A(f'v_mul_f32 v{vM[G]}, s{sSC}, v{vM[G]}')
    def preg(G, tl): return PP + 16*G + 2*(tl + G)
    seqP = [(sig, u, h) for sig in range(6) for u in range(5) for h in range(2)]
    def rdP(i):
        sig, u, h = seqP[i]
        ct = 2*sig + h
        buf = RING + 4*(i % 8)
        return [f'ds_read_b64_tr_b16 v[{buf+2*hh}:{buf+2*hh+1}], v{vAP + (ct % 8)} offset:{(4*u+2*hh)*384 + (256 if ct >= 8 else 0)}' for hh in range(2)]
    DP = 6
    def b4L(): A.skip('s_barrier')
    B3AT, B4AT = int(OPT.get('b3', '-1')), int(OPT.get('b4', '5'))
    if B3AT < 0: cond('M_e2', True, lambda: A.skip('s_barrier'))
    for tl in range(7):
        for G in range(2):
            r = sreg(G, tl)
            for k in range(4): A(f'v_fma_f32 v{r+k}, v{r+k}, s{sSC}, -v{vM[G]}')
            for k in range(4): A(f'v_exp_f32 v{r+k}, v{r+k}')
        for G in range(2):
            r = sreg(G, tl)
            p = preg(G, tl)
            A(f'v_cvt_pk_bf16_f32 v{p}, v{r}, v{r+1}')
            A(f'v_cvt_pk_bf16_f32 v{p+1}, v{r+2}, v{r+3}')
        if tl % 2 == 0: A(f's_mov_b32 s{sT0}, {(10 + 2*tl)*1024}')
        for G in range(2):
            r = sreg(G, tl)
            A(f'buffer_load_dwordx4 v[{r}:{r+3}], v{vWA0}, s[{S_WS}:{S_WS+3}], s{sT0} offen offset:{1024*(2*(tl%2)+G)} sc1')
        if tl == 5:
            for i in range(DP):
                for t in rdP(i): A(t)
        if tl == B3AT: cond('M_e2', True, lambda: A.skip('s_barrier'))
        if tl == B4AT: cond('M_l2', False, b4L)
    for q in range(4): A(f'v_mov_b32 v{ONES+q}, 0x3f803f80')
    stamp()
    prio(3, 2)
    padat('P')
    ms, first, side, hk = [], [], [], {}
    def b5L():
        cond('M_l3', False, lambda: A.skip('s_barrier'))
    if int(OPT.get('b5', '0')) < 0: b5L()
    sums = [mf(vINV + 4*G, PP + 16*G + 4*u, ONES, None if u == 0 else vINV + 4*G) for u in range(4) for G in range(2)]
    for i, (sig, u, h) in enumerate(seqP):
        a = RING + 4*(i % 8)
        accb = ACC + 16*(sig & 1)
        first.append(len(ms))
        for G in range(2):
            uu = u - G
            if 0 <= uu <= 3:
                d = accb + 8*G + 4*h
                ms.append(mf(d, a, PP + 16*G + 4*uu, None if uu == 0 else d))
        if i % 10 in (1, 9) and 1 <= sig <= 4: ms.append(sums.pop(0))
        if i % 10 == 9:
            e = len(ms) - 1
            side += [(e + 4, t, e + 16) for t in finA(sig, accb)]
            if sig == int(OPT.get('b5', '0')): hk[e] = b5L
    assert not sums
    mem = {}
    k = 0
    nrd = 2*(len(seqP) - DP)
    ngap = first[-1] - 5
    for j in range(DP, len(seqP)):
        for t in rdP(j):
            gp = (k * ngap) // nrd
            if j >= 8: gp = max(gp, first[j - 7] - 1)
            assert gp < first[j] - 3, (j, gp, first[j])
            mem.setdefault(gp, []).append(t); k += 1
    pend = stream(ms, mem, side, hk)
    A('s_waitcnt vmcnt(0)')
    stamp()
    def b4E():
        A.skip('s_barrier')
        A.skip(f's_mul_i32 s{sT0}, s{sW}, 9216')
        A.skip(f's_sub_u32 s{sT0}, s{sT0}, {4*9216 - 12288}')
        A.skip(f's_add_u32 s{sT4}, s{sT0}, {24*1024}')
        for blk in range(3):
            A.skip(f's_mov_b32 m0, s{sT0}')
            A.skip(f's_add_u32 s{sT0}, s{sT0}, 3072')
            for i in range(3):
                A.raw(f'  buffer_load_dwordx4 v{vWA0}, s[{S_WS}:{S_WS+3}], s{sT4} offen offset:{1024*i} sc1 lds')
            A.skip(f's_add_u32 s{sT4}, s{sT4}, 3072')
    cond('M_e3', True, b4E)
    def finE(sig, accb):
        out = []
        for G in range(2):
            for r in range(4):
                for h in range(2):
                    out.append(f'v_mul_f32 v{accb+8*G+4*h+r}, v{accb+8*G+4*h+r}, v{vINV+4*G+r}')
                o = OST + 8*G + 2*r
                out.append(f'v_cvt_pk_bf16_f32 v{o+(sig&1)}, v{accb+8*G+r}, v{accb+8*G+4+r}')
                if sig & 1:
                    out.append(f'buffer_store_dwordx2 v[{o}:{o+1}], v{vOA+4*G+r}, s[{S_OUT}:{S_OUT+3}], 0 offen offset:{128*(sig>>1)}{ONT}')
        return out
    def locE(f):
        if f < 10: return ('lds', vWA1, f*1024)
        if f < 24: return ('reg', sreg((f-10) % 2, (f-10) // 2))
        return ('lds', vWA0, (f-24)*1024)
    def b5E():
        def body():
            A.raw('  s_waitcnt vmcnt(0)'); A.skip('s_barrier')
        cond('M_e4', True, body)
        padat('O')
        stamp()
    for t in pend: A(t)
    bgE = [f'v_rcp_f32 v{vINV+q}, v{vINV+q}' for q in range(8)]
    pend = gemm_phase(QP, locE, finE, swap=True, bg=bgE, D=int(OPT.get('de', '4')), ghooks={2*(24 - int(OPT.get('de', '4'))) - 1: b5E})
    padat('Z')
    for t in pend: A(t)
    if STAMP:
        stamp()
        A('s_waitcnt vmcnt(0)')
        stamp(1)
        write_stamps()
    if 'pad' in OPT:
        A('s_waitcnt vmcnt(0)')
        A.label('PADL')
        A.raw('  s_memrealtime s[98:99]')
        A.raw('  s_waitcnt lgkmcnt(0)')
        A('s_sub_u32 s98, s98, s96')
        A(f's_cmp_lt_u32 s98, {OPT["pad"]}')
        A('s_cbranch_scc1 PADL')
    A('s_endpgm')

    A.label('M_helper'); A.reset()
    nstamp[0] = 6
    def rows(lst):
        for i in lst:
            row_soff(sT1, str(i))
            b = vAP if i & 1 else WF
            for j in range(8):
                a = b + j
                if i & 6:
                    a = 64 + j
                    A(f'v_xor_b32 v{a}, {16*(i & 6)}, v{b+j}')
                A(f's_mov_b32 m0, {i*ROWB + 16*PIECE[j]}')
                A(f'buffer_load_dwordx4 v{a}, s[{S_X}:{S_X+3}], s{sT1} offen{KNT} lds')
            if len(A.vm) >= 56: A('s_waitcnt vmcnt(40)')
    srd(S_DBG, 12, 13, 256)
    A('v_mov_b32 v80, 1')
    A('v_mov_b32 v81, 0')
    A(f's_cmp_ge_u32 s{sVT}, 144')
    A('s_cbranch_scc1 H_1')
    A('s_mov_b64 exec, 1')
    A('s_waitcnt vmcnt(0)')
    A.raw(f'  buffer_atomic_add v80, v81, s[{S_DBG}:{S_DBG+3}], 0 offen sc0 sc1')
    A('s_mov_b64 exec, -1')
    A.label('H_1')
    rows(range(9) if 'norows' not in OPT else range(7)[:0]); A('s_waitcnt vmcnt(40)' if 'norows' not in OPT else 's_waitcnt vmcnt(0)')
    A(f'v_readfirstlane_b32 s{sT1}, v80')
    A(f's_cmp_lg_u32 s{sT1}, 143')
    A('s_cbranch_scc1 H_notlast')
    A('s_mov_b64 exec, 1')
    A(f'buffer_store_dword v80, v81, s[{S_DBG}:{S_DBG+3}], 0 offen offset:128 sc1')
    A('s_mov_b64 exec, -1')
    A.label('H_notlast')
    stamp()
    A('s_barrier')
    A('s_waitcnt vmcnt(0)')
    stamp()
    A('s_barrier')
    rows([16, 17, 18, 19])
    A('s_waitcnt vmcnt(0)')
    stamp()
    poll('H_pollV', 128)
    stamp()
    A('s_barrier')
    def wfr(src0, n, lds0):
        for i in range(n):
            if i % 4 == 0:
                A(f's_mov_b32 m0, {lds0 + i*1024}')
                A(f's_mov_b32 s{sT4}, {(src0 + i)*1024}')
            A(f'buffer_load_dwordx4 v{vWA0}, s[{S_WS}:{S_WS+3}], s{sT4} offen offset:{1024*(i%4)} sc1 lds')
    wfr(0, 10, SPARE)
    A('s_waitcnt vmcnt(0)')
    stamp()
    A('s_barrier')
    wfr(24, 12, 0)
    A('s_waitcnt vmcnt(0)')
    stamp()
    A('s_barrier')
    if STAMP:
        stamp(1)
        write_stamps()
    A.label('M_done')
    A('s_endpgm')
    A.label('CODE_END')

gen_main()
A.raw('.section .rodata,"a"')
A.raw('.p2align 6')
A.raw(f'.amdhsa_kernel {NAME}')
A.raw('  .amdhsa_next_free_vgpr 256')
A.raw('  .amdhsa_next_free_sgpr 102')
A.raw('  .amdhsa_accum_offset 256')
A.raw('  .amdhsa_group_segment_fixed_size 0')
A.raw('  .amdhsa_kernarg_size 48')
A.raw('  .amdhsa_user_sgpr_count 2')
A.raw('  .amdhsa_user_sgpr_kernarg_segment_ptr 1')
A.raw('  .amdhsa_system_sgpr_workgroup_id_x 1')
A.raw('.end_amdhsa_kernel')
open(OUT, 'w').write(A.text())
print('instr', A.n_inst, 'nops', A.nops, 'maxv', A.maxv)
```

```python
import sys, struct
sys.path.insert(0, 'gen')
from asmlib import Asm

OUT = sys.argv[1] if len(sys.argv) > 1 else 'standalone__neighborhood_nat__vision.s'
OPT = dict(a.split('=') if '=' in a else (a, '1') for a in sys.argv[2:])
STAMP = 'stamp' in OPT
XNT = ' nt' if OPT.get('xnt', '0') == '1' else ''
KNT = ' nt' if OPT.get('knt', '0') == '1' else ''
ONT = {'0': '', '1': ' nt', '2': ' sc1', '3': ' sc0 sc1', '4': ' sc0 sc1 nt'}[OPT.get('ont', '2')]
NAME = 'standalone__neighborhood_nat__vision_kernel'

X_BYTES = 19267584
WS_BYTES = 268435456
ROWB = 7680
MB = 90112
SPARE = 153600
GAP = 73728
def f32bits(x): return struct.unpack('<I', struct.pack('<f', x))[0]
SCALE = f32bits(192 ** -0.5 * 1.4426950408889634)
NEGINF = 0xff800000
PIECE = [0, 64, 128, 192, 256, 320, 384, 416]

A = Asm()
hdr = open('standalone__neighborhood_nat__vision.s.ref').read().split('\n')
for ln in hdr:
    if ln.startswith('; @launch'): break
    A.raw(ln)
A.raw('; @launch grid=(256,1,1) block=(512,1,1) lds=163840')
A.raw('.amdgcn_target "amdgcn-amd-amdhsa--gfx950"')
A.raw('.text')

def srd(d, lo, hi, nbytes):
    A(f's_mov_b32 s{d}, s{lo}'); A(f's_and_b32 s{d+1}, s{hi}, 0xffff')
    A(f's_mov_b32 s{d+2}, {nbytes}'); A(f's_mov_b32 s{d+3}, 0x00020000')
def mf(d, a, b, c):
    cs = '0' if c is None else f'v[{c}:{c+3}]'
    return f'v_mfma_f32_16x16x32_bf16 v[{d}:{d+3}], v[{a}:{a+3}], v[{b}:{b+3}], {cs}'

S_X, S_OUT, S_WS, S_W, S_WO, S_DBG = 16, 20, 24, 28, 32, 36
sW, sPR, sPC, sTR, sTC = 40, 41, 42, 43, 44
sKR0, sKC0B = 45, 46
sLOR, sHIR, sSHR, sLOC, sHIC = 47, 48, 49, 50, 51
sBASE, sSTRIP, sNEG = 52, 53, 54
sT0, sT1, sT2, sT3, sT4, sT5 = 55, 56, 57, 58, 59, 60
sALR, sALC, sSC = 61, 62, 63
sST = 64
sXR, sXL = 100, 101
sOA = 4
sB0, sF = 92, 93
sM1, sM2 = 0, 10
sVT, sVO = 94, 95
vL, vG, vN = 1, 2, 3
vT = 4
vR0, vR3, vCB = 12, 13, 14
XQ = 16
PP = 16
vOA = 4
vINV = 56
SACC = 64
OST = 16
W1 = 64
ONES = 48
QP = 120
ACC = 168
RING = 200
WF = 232
vAS = 240
vAP = 244
vWA0, vWA1, vWAM = 252, 253, 254
vSW, vSR = 255, 199
vWD = RING
MBQ = 64
MACC = 136
MPK = 184
MWA = 192

nstamp = [0]
def stamp(real=None):
    if not STAMP: return
    i = nstamp[0]; nstamp[0] += 1
    assert i < 14
    A.raw(f'  s_mem{"real" if "rt" in OPT else ""}time s[{sST+2*i}:{sST+1+2*i}]')
    if real is not None:
        A.raw(f'  s_memrealtime s[{96+2*real}:{97+2*real}]')
def write_stamps():
    n = nstamp[0]
    A('s_waitcnt lgkmcnt(0)')
    A(f'v_mov_b32 v{RING}, 0')
    if 'dbg' in OPT:
        lbl = f'WS_skip{n}'
        A(f's_cmp_lg_u32 s2, {OPT["dbg"].split(",")[0]}')
        A(f's_cbranch_scc1 {lbl}')
        A(f's_cmp_lg_u32 s{sW}, {OPT["dbg"].split(",")[1]}')
        A(f's_cbranch_scc1 {lbl}')
        for i in range(1, n):
            A(f's_sub_u32 s{sT0}, s{sST+2*i}, s{sST}')
            A(f'v_writelane_b32 v{RING}, s{sT0}, {i}')
        A(f's_sub_u32 s{sT0}, s98, s96')
        A(f'v_writelane_b32 v{RING}, s{sT0}, 15')
        srd(S_DBG, 12, 13, 256)
        A(f'v_lshlrev_b32 v{RING+1}, 2, v{vL}')
        A('s_mov_b64 exec, 0xfffe')
        A(f'buffer_store_dword v{RING}, v{RING+1}, s[{S_DBG}:{S_DBG+3}], 0 offen')
        A.label(lbl)
        return
    for i in range(n):
        A(f'v_writelane_b32 v{RING}, s{sST+2*i}, {i}')
    A(f'v_writelane_b32 v{RING}, s96, 14')
    A(f'v_writelane_b32 v{RING}, s98, 15')
    A(f's_lshl_b32 s{sT0}, s2, 3')
    A(f's_add_u32 s{sT0}, s{sT0}, s{sW}')
    A(f's_lshl_b32 s{sT0}, s{sT0}, 6')
    A(f's_add_u32 s{sT0}, s{sT0}, 0x100000')
    A(f'v_lshlrev_b32 v{RING+1}, 2, v{vL}')
    A('s_mov_b64 exec, 0xffff')
    A(f'buffer_store_dword v{RING}, v{RING+1}, s[{S_WS}:{S_WS+3}], s{sT0} offen')

def row_addrs(b, sF, A=A):
    for j in (0, 1, 2, 7):
        A(f'v_add_u32 v{vT}, {PIECE[j]}, v{vL}')
        A(f'v_xor_b32 v{vT}, {sF}, v{vT}')
        A(f'v_mul_u32_u24 v{vT+1}, 2731, v{vT}')
        A(f'v_lshrrev_b32 v{vT+1}, 16, v{vT+1}')
        A(f'v_mul_u32_u24 v{vT+1}, 384, v{vT+1}')
        A(f'v_lshl_add_u32 v{vT}, v{vT}, 4, v{vT+1}')
        A(f'v_add_u32 v{b+j}, s{sKC0B}, v{vT}')
        if j < 3:
            A(f'v_add_u32 v{b+j+3}, {8*768}, v{b+j}')
            if j == 0: A(f'v_add_u32 v{b+6}, {16*768}, v{b}')
            A(f'v_max_i32 v{b+j}, 0, v{b+j}')
def row_soff(dst, srow):
    A(f's_add_i32 s{dst}, s{sKR0}, {srow}')
    A(f's_lshl_b32 s{dst}, s{dst}, 1')
    A(f's_add_i32 s{dst}, s{dst}, s{sPR}')
    A(f's_max_i32 s{dst}, s{dst}, 0')
    A(f's_min_i32 s{dst}, s{dst}, 223')
    A(f's_mul_i32 s{dst}, s{dst}, 86016')

def stream(ms, mem, side, hooks=None, cap=2, bg=None, flush=()):
    side = [x if len(x) == 3 else (x[0], x[1], 10**9) for x in side]
    bg = bg if bg is not None else []
    def slots(lo, hi):
        return sum(max(0, cap - len(mem.get(k, []))) for k in range(lo, hi + 1))
    for i, m in enumerate(ms):
        assert not (side and side[0][2] < i), ('deadline missed', side[0], i)
        A(m)
        if i + 1 < len(ms) and not (hooks and i in hooks): A.prewait(ms[i+1])
        n = 0
        for t in mem.get(i, []):
            A(t); n += 1
        c = cap
        if side and side[0][2] < len(ms):
            dl = side[0][2]
            if sum(1 for x in side if x[2] == dl) > slots(i, dl): c = cap + 1
        while side and n < c and side[0][0] <= i:
            A(side.pop(0)[1]); n += 1
        while bg and n < cap:
            A(bg.pop(0)); n += 1
        if i in flush:
            while side and side[0][0] <= i + 4: A(side.pop(0)[1])
        if hooks and i in hooks: hooks[i]()
    return [x[1] for x in side]

def gemm_phase(B, loc, finish, swap=False, hooks=None, D=6, gate=None, bg=None, extra_mem=None, ghooks=None, flush=()):
    def rd(f):
        l = loc(f)
        if l[0] == 'lds':
            buf = RING + 4*(f % 8)
            return [f'ds_read_b128 v[{buf}:{buf+3}], v{l[1]} offset:{l[2]}']
        return []
    ms, mem, side, hk = [], dict(extra_mem or {}), [], dict(ghooks or {})
    for f in range(D):
        for t in rd(f): A(t)
    for f in range(72):
        sig, s, h = f // 12, (f % 12) // 2, f % 2
        l = loc(f)
        a = RING + 4*(f % 8) if l[0] == 'lds' else l[1]
        accb = ACC + 16*(sig & 1)
        for G in range(2):
            d = accb + 8*G + 4*h
            b = B + 24*G + 4*s
            ms.append(mf(d, b, a, None if s == 0 else d) if swap else mf(d, a, b, None if s == 0 else d))
        fn = f + D
        if fn < 72 and not (gate is not None and f < gate <= fn):
            mem[2*f] = rd(fn)
        if f % 12 == 11:
            side += [(2*f + 1 + 3, t, 2*f + 1 + 24) for t in finish(sig, accb)]
            if hooks and sig in hooks:
                def mk(sig=sig, f=f):
                    def h():
                        hooks[sig]()
                        if gate is not None and f + 1 == gate:
                            for k in range(gate, gate + D):
                                for t in rd(k): A(t)
                    return h
                hk[2*f + 1] = mk()
    return stream(ms, mem, side, hk, bg=bg, flush=flush)

def poll(label, off):
    A(f'v_mov_b32 v{vT+2}, 0')
    A(f's_mov_b32 s{sT4}, 0')
    A('s_mov_b64 exec, 1')
    A.label(label)
    A(f'buffer_load_dword v{vT+3}, v{vT+2}, s[{S_DBG}:{S_DBG+3}], 0 offen offset:{off} sc1')
    A('s_waitcnt vmcnt(0)')
    A(f'v_cmp_eq_u32 vcc, 0, v{vT+3}')
    A(f's_add_u32 s{sT4}, s{sT4}, 1')
    A(f's_cmp_gt_u32 s{sT4}, 200000')
    A(f's_cbranch_scc1 {label}_x')
    A('s_cmp_lg_u64 vcc, 0')
    A(f's_cbranch_scc0 {label}_x')
    A('s_sleep 2')
    A(f's_branch {label}')
    A.label(label + '_x')
    A('s_mov_b64 exec, -1')

def cond(lbl, isE, body):
    A(f's_cmp_lt_u32 s{sW}, 4' if isE else f's_cmp_ge_u32 s{sW}, 4')
    A(f's_cbranch_scc1 {lbl}')
    body()
    A.label(lbl)

nprio = [0]
def prio(e, l):
    nprio[0] += 1
    A(f's_setprio {l}')
    if e != l: cond(f'M_pr{nprio[0]}', True, lambda: A.skip(f's_setprio {e}'))

npad = [0]
def padat(name):
    if OPT.get('padpos') != name: return
    npad[0] += 1
    A.label(f'PADM{npad[0]}')
    A.raw('  s_memrealtime s[98:99]')
    A.raw('  s_waitcnt lgkmcnt(0)')
    A.raw('  s_sub_u32 s98, s98, s96')
    A.raw(f'  s_cmp_lt_u32 s98, {OPT["padt"]}')
    A.raw(f'  s_cbranch_scc1 PADM{npad[0]}')

def gen_main():
    A.raw(f'.globl {NAME}'); A.raw('.p2align 8'); A.raw(f'.type {NAME},@function')
    A.raw(f'{NAME}:'); A.reset()
    A('s_cmp_ge_u32 s2, 256')
    A('s_cbranch_scc1 M_done')
    stamp(0)
    if 'pad' in OPT or 'padpos' in OPT: A.raw('  s_memrealtime s[96:97]')
    A('s_load_dwordx8 s[4:11], s[0:1], 0')
    A('s_load_dwordx4 s[12:15], s[0:1], 32')
    A(f'v_lshrrev_b32 v{vT}, 6, v0')
    A(f'v_and_b32 v{vL}, 63, v0')
    A(f'v_readfirstlane_b32 s{sW}, v{vT}')
    A(f'v_lshrrev_b32 v{vG}, 4, v{vL}')
    A(f'v_and_b32 v{vN}, 15, v{vL}')
    A(f'v_lshlrev_b32 v{vWA0}, 4, v{vL}')
    if OPT.get('cpf', '1') != '0':
        A('s_getpc_b64 s[16:17]')
        A('s_and_b32 s16, s16, -256')
        A('s_and_b32 s17, s17, 0xffff')
        A('s_mov_b32 s18, CODE_END-' + NAME)
        A('s_mov_b32 s19, 0x00020000')
        A(f's_lshr_b32 s{sT0}, s2, 3')
        A(f's_lshl_b32 s{sT0}, s{sT0}, 10')
        A(f's_cmp_lg_u32 s{sW}, 3')
        A('s_cbranch_scc1 M_nocpf')
        A.raw(f'  buffer_load_dwordx4 v[{MACC}:{MACC+3}], v{vWA0}, s[16:19], s{sT0} offen')
        A.label('M_nocpf')
    A(f'v_bfe_u32 v{vT+1}, v{vL}, 2, 2')
    A(f'v_lshrrev_b32 v{vT+2}, 5, v{vL}')
    A(f'v_lshlrev_b32 v{vT+3}, 1, v{vT+2}')
    A(f'v_and_b32 v{vT+4}, 3, v{vL}')
    A(f'v_xor_b32 v{vT+3}, v{vT+3}, v{vT+4}')
    A(f'v_lshlrev_b32 v{vT+3}, 4, v{vT+3}')
    A(f's_movk_i32 s{sT5}, 1152')
    A(f'v_lshl_add_u32 v{vT}, v{vG}, 3, v{vT+1}')
    A(f'v_mad_u32_u24 v{vWD}, v{vT}, s{sT5}, v{vT+3}')
    A(f'v_lshl_add_u32 v{vT}, v{vG}, 5, v{vT+1}')
    A(f'v_mad_u32_u24 v{vWD+1}, v{vT}, s{sT5}, v{vT+3}')
    A(f'v_mul_u32_u24 v{vT+2}, {48*1152}, v{vT+2}')
    A(f'v_sub_u32 v{vWD+2}, v{vWD+1}, v{vT+2}')
    A(f'v_lshrrev_b32 v{vT}, 2, v{vL}')
    A(f'v_mad_u32_u24 v{vWD+3}, v{vT}, s{sT5}, v{vT+3}')
    A(f'v_lshrrev_b32 v{vT}, 3, v{vN}')
    A(f'v_lshlrev_b32 v{vT}, 1, v{vT}')
    A(f'v_xor_b32 v{vT}, v{vT}, v{vG}')
    A(f'v_lshl_add_u32 v{vT}, v{vN}, 2, v{vT}')
    A(f'v_lshlrev_b32 v{MWA+3}, 4, v{vT}')
    A(f's_and_b32 s{sT0}, s2, 7')
    A(f's_lshr_b32 s{sT1}, s2, 3')
    A(f's_lshr_b32 s{sPR}, s{sT0}, 2')
    A(f's_bfe_u32 s{sPC}, s{sT0}, 0x10001')
    A(f's_and_b32 s{sT0}, s{sT0}, 1')
    A(f's_lshl_b32 s{sT0}, s{sT0}, 2')
    A(f's_lshr_b32 s{sTR}, s{sT1}, 3')
    A(f's_add_u32 s{sTR}, s{sTR}, s{sT0}')
    A(f's_and_b32 s{sTC}, s{sT1}, 7')
    A(f's_mul_i32 s{sTR}, s{sTR}, 14')
    A(f's_mul_i32 s{sTC}, s{sTC}, 14')
    def scalar_setup():
        srd(S_X, 4, 5, X_BYTES)
        srd(S_WS, 14, 15, WS_BYTES)
        srd(S_OUT, 10, 11, X_BYTES)
        srd(S_DBG, 12, 13, 256)
        A(f's_mul_i32 s{sALR}, s{sPR}, 13')
        A(f's_add_i32 s{sALR}, s{sALR}, -6')
        A(f's_mul_i32 s{sALC}, s{sPC}, 13')
        A(f's_add_i32 s{sALC}, s{sALC}, -6')
        A(f's_cmp_ge_u32 s{sW}, 4')
        A(f's_cselect_b32 s{sSTRIP}, -4, 3')
        A(f's_add_i32 s{sSTRIP}, s{sSTRIP}, s{sW}')
        A(f's_lshl_b32 s{sSTRIP}, s{sSTRIP}, 1')
        A(f's_mul_i32 s{sT0}, s{sPR}, 6')
        A(f's_add_i32 s{sKR0}, s{sTR}, s{sT0}')
        A(f's_add_i32 s{sKR0}, s{sKR0}, -6')
        A(f's_cmp_eq_i32 s{sKR0}, -6')
        A(f's_cselect_b32 s{sLOR}, 6, 0')
        A(f's_cmp_eq_i32 s{sKR0}, 98')
        A(f's_cselect_b32 s{sHIR}, 7, 13')
        A(f's_cselect_b32 s{sSHR}, 2, 0')
        A(f's_sub_i32 s{sKR0}, s{sKR0}, s{sSHR}')
        A(f's_mul_i32 s{sT0}, s{sPC}, 6')
        A(f's_add_i32 s{sT1}, s{sTC}, s{sT0}')
        A(f's_add_i32 s{sT1}, s{sT1}, -6')
        A(f's_cmp_eq_i32 s{sT1}, -6')
        A(f's_cselect_b32 s{sLOC}, 6, 0')
        A(f's_cmp_eq_i32 s{sT1}, 98')
        A(f's_cselect_b32 s{sHIC}, 7, 13')
        A(f's_lshl_b32 s{sT1}, s{sT1}, 1')
        A(f's_add_i32 s{sT1}, s{sT1}, s{sPC}')
        A(f's_mul_i32 s{sKC0B}, s{sT1}, 384')
        A(f's_max_i32 s{sB0}, s{sSTRIP}, s{sLOR}')
        A(f's_min_i32 s{sB0}, s{sB0}, s{sHIR}')
        A(f's_and_b32 s{sB0}, s{sB0}, -2')
        A(f's_add_u32 s{sBASE}, s{sB0}, s{sSHR}')
        A(f's_mov_b32 s{sNEG}, {NEGINF}')
        A(f's_mov_b32 s{sSC}, {SCALE}')
        A(f's_and_b32 s{sF}, s{sW}, 1')
        A(f's_lshl_b32 s{sF}, s{sF}, 3')
        A(f's_and_b32 s{sT1}, s{sW}, 6')
        A(f's_or_b32 s{sF}, s{sF}, s{sT1}')
        A(f's_add_u32 s{sT1}, s{sW}, 8')
        row_soff(sXR, f's{sT1}')
        A(f's_mul_i32 s{sXL}, s{sT1}, {ROWB}')
        A(f's_add_u32 s{sOA}, s{sTR}, s{sSTRIP}')
        A(f's_mov_b32 s{sOA+1}, 86016')
        A(f's_movk_i32 s{sOA+2}, 384')
        A(f's_cmp_eq_u32 s{sW}, 4')
        A(f's_cselect_b32 s{sVT}, s2, 999')
        A(f's_mov_b32 s{sM1}, 0x55555555'); A(f's_mov_b32 s{sM1+1}, 0x55555555')
        A(f's_mov_b32 s{sM2}, 0x33333333'); A(f's_mov_b32 s{sM2+1}, 0x33333333')
        A('s_mov_b32 vcc_lo, 0'); A('s_mov_b32 vcc_hi, -1')

    def sreg(G, tl): return SACC + 28*G + 4*tl
    TM = [197, 198, 199, 255, 0]
    def pixaddr(dst, sel, lane):
        t0, t1, t2, t3, t4 = TM
        o = [f'v_lshrrev_b32 v{t0}, 1, v{sel}', f'v_and_b32 v{t3}, 1, v{sel}', f'v_add_u32 v{t0}, s{sOA}, v{t0}',
             f'v_lshl_add_u32 v{t4}, v{t3}, 2, s{sTC}',
             f'v_lshl_add_u32 v{t1}, v{t0}, 1, s{sALR}', f'v_add_u32 v{t2}, 112, v{t0}', f'v_lshlrev_b32 v{t3}, 30, v{t3}',
             f'v_med3_i32 v{t0}, v{t1}, v{t0}, v{t2}', f'v_mul_lo_u32 v{t0}, v{t0}, s{sOA+1}'] + lane(t0)
        for G in range(2):
            for r in range(4):
                d = dst(G, r)
                o += [f'v_add_u32 v{d}, {7*G+r}, v{t4}', f'v_lshl_add_u32 v{t1}, v{d}, 1, s{sALC}',
                      f'v_add_u32 v{t2}, 112, v{d}', f'v_med3_i32 v{d}, v{t1}, v{d}, v{t2}',
                      f'v_mad_u32_u24 v{d}, v{d}, s{sOA+2}, v{t0}']
                if r == 3: o += [f'v_add_u32 v{d}, v{d}, v{t3}']
        return o
    def oaddr(): return pixaddr(lambda G, r: vOA + 4*G + r, vG, lambda t: [f'v_lshl_add_u32 v{t}, v{vN}, 3, v{t}'])
    CQ = [XQ + 16, XQ + 20, XQ + 40, XQ + 44]
    XD = [XQ + 4*i for i in range(4)] + [XQ + 24 + 4*i for i in range(4)] + CQ
    def xaddr():
        o = [f'v_bfe_u32 v{vT}, v{vL}, 2, 2', f'v_and_b32 v{vT+1}, 3, v{vL}', f'v_lshrrev_b32 v{vT+2}, 5, v{vL}',
             f'v_lshl_add_u32 v{vT+1}, v{vG}, 2, v{vT+1}', f'v_lshlrev_b32 v{vT+2}, 7, v{vT+2}', f'v_sub_u32 v{vT+2}, 256, v{vT+2}']
        o += pixaddr(lambda G, r: XQ + 24*G + 4*r, vT, lambda t: [f'v_lshl_add_u32 v{t}, v{vT+1}, 4, v{t}'])
        for i in range(4):
            o += [f'v_cndmask_b32 v{CQ[i]}, v{XQ+4*i}, v{XQ+24+4*i}, vcc']
        for i in range(4):
            o += [f'v_add_u32 v{CQ[i]}, v{CQ[i]}, v{vT+2}']
        return o
    def xload(i):
        r = XD[i]
        return f'buffer_load_dwordx4 v[{r}:{r+3}], v{r}, s[{S_X}:{S_X+3}], 0 offen{XNT}'
    def transpose():
        T = [ACC + 4*i for i in range(4)]
        for st in range(3):
            R = XD[4*st:4*st+4]
            def sel(dst, keep, other, perm):
                for d in range(4):
                    A(f'v_cndmask_b32_dpp v{dst+d}, v{other+d}, v{keep+d}, vcc quad_perm:{perm} row_mask:0xf bank_mask:0xf')
            A(f's_mov_b64 vcc, s[{sM1}:{sM1+1}]')
            sel(T[0], R[0], R[1], '[1,0,3,2]'); sel(T[2], R[2], R[3], '[1,0,3,2]')
            A('s_not_b64 vcc, vcc')
            sel(T[1], R[1], R[0], '[1,0,3,2]'); sel(T[3], R[3], R[2], '[1,0,3,2]')
            A(f's_mov_b64 vcc, s[{sM2}:{sM2+1}]')
            sel(R[0], T[0], T[2], '[2,3,0,1]'); sel(R[1], T[1], T[3], '[2,3,0,1]')
            A('s_not_b64 vcc, vcc')
            sel(R[2], T[2], T[0], '[2,3,0,1]'); sel(R[3], T[3], T[1], '[2,3,0,1]')
        for p in range(2):
            for d in range(4):
                A(f'v_permlane32_swap_b32 v{CQ[p]+d}, v{CQ[p+2]+d}')
    def setup():
        B = Asm()
        def Fv(dst, row):
            B(f'v_and_b32 v{dst}, 1, v{row}')
            B(f'v_lshlrev_b32 v{dst}, 3, v{dst}')
            B(f'v_and_or_b32 v{dst}, v{row}, 6, v{dst}')
        B(f'v_lshrrev_b32 v{vT}, 3, v{vN}')
        B(f'v_add_u32 v{vT}, s{sSTRIP}, v{vT}')
        B(f'v_max_i32 v{vT}, s{sLOR}, v{vT}')
        B(f'v_min_i32 v{vT}, s{sHIR}, v{vT}')
        B(f'v_subrev_u32 v{vT}, s{sB0}, v{vT}')
        B(f'v_and_b32 v{vT+1}, 1, v{vG}')
        B(f'v_sub_u32 v{vT+2}, v{vT+1}, v{vT}')
        B(f'v_ashrrev_i32 v{vR0}, 31, v{vT+2}')
        B(f'v_and_b32 v{vR0}, s{sNEG}, v{vR0}')
        B(f'v_sub_u32 v{vT+2}, v{vT}, v{vT+1}')
        B(f'v_ashrrev_i32 v{vR3}, 31, v{vT+2}')
        B(f'v_and_b32 v{vR3}, s{sNEG}, v{vR3}')
        B(f'v_and_b32 v{vT}, 7, v{vN}')
        B(f'v_lshrrev_b32 v{vT+1}, 1, v{vG}')
        B(f'v_subrev_u32 v{vT+3}, 7, v{vT}')
        B(f'v_ashrrev_i32 v{vT+3}, 31, v{vT+3}')
        B(f'v_and_b32 v{vT+3}, 0x7f, v{vT+3}')
        for G in range(2):
            B(f'v_add_u32 v{vT+2}, {7*G}, v{vT}')
            B(f'v_max_i32 v{vT+2}, s{sLOC}, v{vT+2}')
            B(f'v_min_i32 v{vT+2}, s{sHIC}, v{vT+2}')
            B(f'v_lshlrev_b32 v{vT+2}, v{vT+2}, v{vT+3}')
            B(f'v_lshrrev_b32 v{vT+2}, v{vT+1}, v{vT+2}')
            B(f'v_not_b32 v{vCB+G}, v{vT+2}')
        B(f'v_add_u32 v{vT}, s{sBASE}, v{vT}')
        Fv(vT+1, vT)
        B(f'v_mul_u32_u24 v{vT}, {ROWB}, v{vT}')
        B(f'v_lshrrev_b32 v{vT+2}, 3, v{vN}')
        B(f'v_mul_u32_u24 v{vT+2}, 24, v{vT+2}')
        B(f'v_add_u32 v{vT+2}, v{vT+2}, v{vG}')
        for s in range(4):
            B(f'v_add_u32 v{vT+3}, {4*s}, v{vT+2}')
            B(f'v_xor_b32 v{vT+3}, v{vT+3}, v{vT+1}')
            B(f'v_lshl_add_u32 v{vAS+s}, v{vT+3}, 4, v{vT}')
        B(f'v_and_b32 v{vT}, 1, v{vG}')
        B(f'v_lshlrev_b32 v{vT}, 2, v{vT}')
        B(f'v_lshrrev_b32 v{vT+1}, 2, v{vN}')
        B(f'v_add3_u32 v{vT}, v{vT}, v{vT+1}, s{sBASE}')
        Fv(vT+1, vT)
        B(f'v_mul_u32_u24 v{vT}, {ROWB}, v{vT}')
        B(f'v_and_b32 v{vT+2}, 1, v{vN}')
        B(f'v_lshl_add_u32 v{vT}, v{vT+2}, 3, v{vT}')
        B(f'v_lshrrev_b32 v{vT+2}, 1, v{vG}')
        B(f'v_mul_u32_u24 v{vT+2}, 24, v{vT+2}')
        B(f'v_bfe_u32 v{vT+3}, v{vN}, 1, 1')
        B(f'v_add_u32 v{vT+2}, v{vT+2}, v{vT+3}')
        for ct in range(8):
            B(f'v_add_u32 v{vT+3}, {2*ct}, v{vT+2}')
            B(f'v_xor_b32 v{vT+3}, v{vT+3}, v{vT+1}')
            B(f'v_lshl_add_u32 v{vAP+ct}, v{vT+3}, 4, v{vT}')
        B(f'v_add_u32 v{vWA1}, {SPARE}, v{vWA0}')
        B(f'v_add_u32 v{vWAM}, {MB}, v{vWA0}')
        row_addrs(WF, f's{sF}', B)
        return [l.strip() for l in B.lines]
    def masks():
        out = []
        for tl in range(7):
            a = []
            for G in range(2):
                tau = tl + 3*G
                r = sreg(G, tl)
                a.append([f'v_bfe_i32 v{r+2}, v{vCB+G}, {2*tau}, 1', f'v_and_b32 v{r+1}, s{sNEG}, v{r+2}',
                          f'v_and_b32 v{r+2}, s{sNEG}, v{r+2}', f'v_or_b32 v{r}, v{r+1}, v{vR0}', f'v_or_b32 v{r+3}, v{r+1}, v{vR3}'])
            for x, y in zip(*a): out += [x, y]
        return out

    N1 = int(OPT.get('n1', '6'))
    A(f's_cmp_lt_u32 s{sW}, 4')
    A('s_waitcnt lgkmcnt(0)')
    A(f's_mov_b32 s{S_W}, s6'); A(f's_mov_b32 s{S_W+1}, s7')
    A(f's_mov_b32 s{S_W+2}, {192*576*2}'); A(f's_mov_b32 s{S_W+3}, 0x00020000')
    A('s_cbranch_scc1 M_mw')
    scalar_setup()
    srd(S_WO, 8, 9, 192*192*2)
    for t in xaddr() + setup() + oaddr(): A(t)
    stamp()
    A(f's_and_b32 s{sT0}, s{sW}, 3')
    A(f's_mul_i32 s{sT2}, s{sT0}, 6144')
    A(f's_mul_i32 s{sT1}, s{sT0}, 4608')
    for i in range(3):
        for k in range(6):
            A(f's_add_u32 m0, s{sT2}, {(24*i + k)*1024 - 64*k}')
            A(f'buffer_load_dwordx4 v{vWD + 1 + i//2}, s[{S_W}:{S_W+3}], s{sT1} offen offset:{64*k} lds')
        if i < 2: A(f's_add_u32 s{sT1}, s{sT1}, {(16 if i == 0 else 112)*1152}')
    stamp()
    A('s_waitcnt vmcnt(12)')
    stamp()
    A('s_barrier')
    stamp()
    for i in range(N1): A.raw('  ' + xload(i))
    A(f's_waitcnt vmcnt({N1})')
    A('s_barrier')
    VA, VB, VD = MBQ, MBQ + 24, MBQ + 48
    A(f's_cmp_ge_u32 s{sVT}, 144')
    A('s_cbranch_scc1 M_v1')
    A(f's_mul_hi_u32 s{sT0}, s2, 0x15555556')
    A(f's_mul_i32 s{sT1}, s{sT0}, 12')
    A(f's_sub_u32 s{sT1}, s2, s{sT1}')
    A(f's_mul_i32 s{sT2}, s{sT0}, {16*1152}')
    for k in range(6):
        A(f's_mov_b32 m0, {GAP + 1024*k - 768 - 64*k}')
        A(f'buffer_load_dwordx4 v{vWD+3}, s[{S_W}:{S_W+3}], s{sT2} offen offset:{768 + 64*k} lds')
    A(f'v_lshrrev_b32 v{VD}, 1, v{vL}')
    A(f'v_mul_u32_u24 v{VD}, 384, v{VD}')
    A(f'v_and_b32 v{VD+1}, 1, v{vL}')
    A(f'v_lshl_add_u32 v{VD}, v{VD+1}, 4, v{VD}')
    A(f's_lshl_b32 s{sT2}, s{sT1}, 5')
    for k in range(6):
        A(f's_mov_b32 m0, {GAP + 6144 + 1024*k}')
        A(f'buffer_load_dwordx4 v{VD}, s[{S_WO}:{S_WO+3}], s{sT2} offen lds')
        A(f's_add_u32 s{sT2}, s{sT2}, {32*384}')
    A(f's_lshr_b32 s{sT2}, s{sT1}, 2')
    A(f's_mul_i32 s{sVO}, s{sT2}, 24576')
    A(f's_and_b32 s{sT1}, s{sT1}, 3')
    A(f's_lshl_b32 s{sT1}, s{sT1}, 6')
    A(f's_add_u32 s{sVO}, s{sVO}, s{sT1}')
    A(f's_lshr_b32 s{sT1}, s{sT0}, 1')
    A(f's_lshl_b32 s{sT1}, s{sT1}, 11')
    A(f's_add_u32 s{sVO}, s{sVO}, s{sT1}')
    A(f's_and_b32 s{sT0}, s{sT0}, 1')
    A(f's_lshl_b32 s{sT0}, s{sT0}, 3')
    A(f's_add_u32 s{sVO}, s{sVO}, s{sT0}')
    A.label('M_v1'); A.reset()
    for i in range(N1, 12): A.raw('  ' + xload(i))
    t0, t1 = VD + 6, VD + 7
    A(f'v_add_u32 v{t0}, {GAP}, v{MWA+3}')
    A(f's_cmp_ge_u32 s{sVT}, 144')
    A('s_cbranch_scc1 M_v2')
    A(f'v_lshlrev_b32 v{t1}, 3, v{vN}')
    A(f'v_lshl_add_u32 v{t1}, v{vG}, 8, v{t1}')
    A(f'v_add_u32 v{t1}, {GAP + 6144}, v{t1}')
    A(f's_waitcnt vmcnt({12 - N1})')
    for k in range(6):
        A(f'ds_read_b128 v[{VA+4*k}:{VA+4*k+3}], v{t0} offset:{1024*k}')
    A('s_waitcnt lgkmcnt(2)')
    for k in range(6):
        for hh in range(2):
            A(f'ds_read_b64_tr_b16 v[{VB+4*k+2*hh}:{VB+4*k+2*hh+1}], v{t1} offset:{1024*k + 128*hh}')
    A('s_waitcnt lgkmcnt(0)')
    for k in range(6):
        A(mf(VD, VA + 4*k, VB + 4*k, None if k == 0 else VD))
    A(f'v_bfe_u32 v{t0}, v{vN}, 1, 1')
    A(f'v_mul_u32_u24 v{t0}, 12288, v{t0}')
    A(f'v_and_b32 v{t1}, 1, v{vN}')
    A(f'v_lshl_add_u32 v{t0}, v{t1}, 10, v{t0}')
    A(f'v_lshrrev_b32 v{t1}, 2, v{vN}')
    A(f'v_lshl_add_u32 v{t0}, v{t1}, 4, v{t0}')
    A(f'v_lshl_add_u32 v{t0}, v{vG}, 8, v{t0}')
    A(f'v_cvt_pk_bf16_f32 v{VD+4}, v{VD}, v{VD+1}')
    A(f'v_cvt_pk_bf16_f32 v{VD+5}, v{VD+2}, v{VD+3}')
    A.label('M_v2'); A.reset()
    A.vm = [A.parse(xload(i)).w for i in range(12)]
    transpose()
    A(f's_cmp_ge_u32 s{sVT}, 144')
    A('s_cbranch_scc1 M_v3')
    A(f'buffer_store_dwordx2 v[{VD+4}:{VD+5}], v{t0}, s[{S_WS}:{S_WS+3}], s{sVO} offen sc1')
    A.label('M_v3'); A.reset()
    A('s_barrier')
    stamp()
    A('s_setprio 1')
    A('s_branch M_pa')
    A.label('M_mw'); A.reset()
    nstamp[0] -= 5
    A(f's_lshr_b32 s{sT0}, s2, 3')
    A(f's_cmp_lg_u32 s{sW}, 1')
    A('s_cbranch_scc1 M_nowarm1')
    A(f's_mul_i32 s{sT0}, s{sT0}, 6912')
    A(f's_add_u32 s{sT1}, s{sT0}, 4096')
    for i in range(7):
        A(f'buffer_load_dwordx4 v[{MACC+4*i}:{MACC+4*i+3}], v{vWA0}, s[{S_W}:{S_W+3}], s{sT0 + i//4} offen offset:{1024*(i%4)}')
    A.label('M_nowarm1')
    A(f's_cmp_lg_u32 s{sW}, 2')
    A('s_cbranch_scc1 M_nowarm2')
    srd(S_WO, 8, 9, 192*192*2)
    A(f's_mul_i32 s{sT0}, s{sT0}, 2304')
    for i in range(3):
        A(f'buffer_load_dwordx4 v[{MACC+4*i}:{MACC+4*i+3}], v{vWA0}, s[{S_WO}:{S_WO+3}], s{sT0} offen offset:{1024*i}')
    A.label('M_nowarm2'); A.reset()
    A(f's_mul_i32 s{sT2}, s{sW}, 18432')
    A(f's_mul_i32 s{sT0}, s{sW}, 3')
    for i in range(3):
        A(f's_add_u32 s{sT1}, s{sT0}, {i}')
        A(f's_lshr_b32 s{sT3}, s{sT1}, 1')
        A(f's_and_b32 s{sT1}, s{sT1}, 1')
        A(f's_mul_i32 s{sT4}, s{sT3}, 12')
        A(f's_add_u32 s{sT4}, s{sT4}, s{sT1}')
        A(f's_lshl_b32 s{sT4}, s{sT4}, 10')
        A(f's_add_u32 s{sT4}, s{sT4}, {MB}')
        A(f'v_add_u32 v{MWA+i}, s{sT4}, v{vWA0}')
        A(f's_mul_i32 s{sT3}, s{sT3}, {32*1152}')
        A(f's_mul_i32 s{sT1}, s{sT1}, 4608')
        A(f's_add_u32 s{sT1}, s{sT1}, s{sT3}')
        for k in range(6):
            A(f's_add_u32 m0, s{sT2}, {MB + (6*i + k)*1024 - 384 - 64*k}')
            A(f'buffer_load_dwordx4 v{vWD}, s[{S_W}:{S_W+3}], s{sT1} offen offset:{384 + 64*k} lds')
    stamp()
    A(f's_add_u32 s{sT2}, s{sT2}, {MB}')
    A(f'v_add_u32 v{MPK}, s{sT2}, v{MWA+3}')
    A(f'v_add_u32 v{MWA+4}, 36864, v{MWA+3}')
    scalar_setup()
    for t in xaddr(): A(t)
    stamp()
    for i in range(18):
        if i % 6 == 0: A(f's_waitcnt vmcnt({12 - i})')
        A(f'ds_read_b128 v[{MBQ+4*i}:{MBQ+4*i+3}], v{MPK} offset:{1024*i}')
        if i == 13: A('s_waitcnt lgkmcnt(8)')
    bgM = setup() + oaddr()
    for _ in range(int(OPT.get('pre', '60'))): A(bgM.pop(0))
    A('s_waitcnt lgkmcnt(0)')
    stamp()
    A('s_barrier')
    stamp()
    padat('M')
    seqM = [(sp, k, hp) for sp in range(6) for k in range(6) for hp in range(2)]
    def rdM(i):
        sp, k, hp = seqM[i]
        buf = RING + 4*(i % 8)
        return f'ds_read_b128 v[{buf}:{buf+3}], v{MWA+3+sp//3} offset:{((2*(sp%3)+hp)*6 + k)*1024}'
    DM = 6
    for i in range(DM): A(rdM(i))
    ms, mem, side = [], {}, []
    for i, (sp, k, hp) in enumerate(seqM):
        a = RING + 4*(i % 8)
        ab = MACC + 24*(sp & 1)
        if i + DM < len(seqM): mem[len(ms)] = [rdM(i + DM)]
        for t in range(3):
            d = ab + 8*t + 4*hp
            ms.append(mf(d, a, MBQ + 24*t + 4*k, None if k == 0 else d))
        if i % 12 == 11:
            for t in range(3):
                pk = MPK + 4*(t & 1)
                e0 = len(ms) + 3 + 6*t
                for q in range(4):
                    side.append((e0, f'v_cvt_pk_bf16_f32 v{pk+q}, v{ab+8*t+2*q}, v{ab+8*t+2*q+1}', len(ms) + 35))
                wr = f'ds_write_b128 v{MWA+t}, v[{pk}:{pk+3}] offset:{2048*sp}'
                if sp < 5: mem[e0 + 4] = [wr, 's_nop 0']
                else: side.append((e0, wr))
    for k in mem:
        if len(mem[k]) == 2: mem[k] = [mem[k][0], '']
    X0, X1 = int(OPT.get('x0', '70')), int(OPT.get('x1', '10'))
    BB2 = int(OPT.get('bb2', '50'))
    assert BB2 < 3*(24 - DM)
    hk = {BB2: lambda: A('s_barrier')}
    def mkx(i):
        def h():
            A.skip(f's_cbranch_scc1 M_sx{i}')
            A.raw('  ' + xload(i))
            A.label(f'M_sx{i}')
        return h
    for i in range(12):
        gp = X0 + X1*i
        while gp % 3 != 1 or gp in mem: gp += 1
        hk[gp] = mkx(i); mem[gp] = ['', '']
    A(f's_cmp_eq_u32 s{sW}, 0')
    A('s_setprio 3')
    rest = stream(ms, mem, side, hk, bg=bgM)
    for t in rest: A(t)
    A('s_waitcnt lgkmcnt(0)')
    A('s_barrier')
    stamp()
    for t in bgM: A(t)
    print('bgM left', len(bgM))
    A('s_cbranch_scc1 M_helper')
    A('s_setprio 0')
    A.vm = [A.parse(xload(i)).w for i in range(12)]
    transpose()
    A.label('M_pa'); A.reset()
    padat('A')
    stamp()
    bgA = []
    xrow = []
    for j in range(8):
        xrow.append(f's_add_u32 m0, s{sXL}, {16*PIECE[j]}\n s_nop 0\n buffer_load_dwordx4 v{WF+j}, s[{S_X}:{S_X+3}], s{sXR} offen{KNT} lds')
    def finA(sig, accb):
        out = []
        for G in range(2):
            for q in range(4):
                out.append(f'v_cvt_pk_bf16_f32 v{QP+24*G+4*sig+q}, v{accb+8*G+2*q}, v{accb+8*G+2*q+1}')
        return out
    def locA(f):
        if f < 60: return ('lds', vWAM, f*1024)
        if f < 62: return ('reg', WF + 4*(f-60))
        return ('lds', vWA1, (f-62)*1024)
    def vsig1():
        A(f's_cmp_ge_u32 s{sVT}, 144')
        A('s_cbranch_scc1 M_v4')
        A.skip('v_mov_b32 v255, 1'); A.skip('v_mov_b32 v0, 0')
        A.skip('s_mov_b64 exec, 1')
        A.raw('  s_waitcnt vmcnt(0)')
        A.raw(f'  buffer_atomic_add v255, v0, s[{S_DBG}:{S_DBG+3}], 0 offen sc0 sc1')
        A.skip('s_mov_b64 exec, -1')
        A.label('M_v4')
    def bar():
        A(f's_cmp_ge_u32 s{sVT}, 144')
        A('s_cbranch_scc1 M_v5')
        A.raw('  s_waitcnt vmcnt(0)')
        A.skip(f'v_readfirstlane_b32 s{sT1}, v255')
        A.skip('s_nop 1')
        A.skip(f's_cmp_lg_u32 s{sT1}, 143')
        A.skip('s_cbranch_scc1 M_v5')
        A.skip('s_mov_b64 exec, 1')
        A.raw(f'  buffer_store_dword v255, v0, s[{S_DBG}:{S_DBG+3}], 0 offen offset:128 sc1')
        A.skip('s_mov_b64 exec, -1')
        A.label('M_v5')
        A('s_barrier')
        if 'noxrow' not in OPT: bgA[0:0] = xrow
    def bar4():
        A('s_waitcnt vmcnt(0)'); A('s_barrier')
        prio(3, 2)
    xm = {2*48+1: [f'ds_read_b128 v[{WF}:{WF+3}], v{vWAM} offset:{60*1024}'],
          2*49+1: [f'ds_read_b128 v[{WF+4}:{WF+7}], v{vWAM} offset:{61*1024}']}
    pend = gemm_phase(XQ, locA, finA, hooks={0: vsig1, 2: bar, 4: bar4}, bg=bgA, extra_mem=xm, ghooks={int(OPT.get('mk', '44')): lambda: bgA.extend(masks())})
    assert not bgA
    stamp()
    padat('S')
    cond('M_l1', False, lambda: A.skip('s_barrier'))
    seq = []
    for (a1, a2) in ((0, 3), (1, 4), (2, 5), (7, 6), (8, 9)):
        for s in range(6):
            seq.append((a1, s)); seq.append((a2, s))
    def users(tau):
        u = []
        if tau <= 6: u.append((0, tau))
        if tau >= 3: u.append((1, tau - 3))
        return u
    def rdS(i):
        tau, s = seq[i]
        buf = RING + 4*(i % 8)
        return f'ds_read_b128 v[{buf}:{buf+3}], v{vAS + (s % 4)} offset:{tau*768 + (256 if s >= 4 else 0)}'
    D = 7
    for i in range(D): A(rdS(i))
    for t in pend: A(t)
    ms, mem = [], {}
    for i, (tau, s) in enumerate(seq):
        a = RING + 4*(i % 8)
        for (G, tl) in users(tau):
            r = sreg(G, tl)
            ms.append(mf(r, a, QP + 24*G + 4*s, r))
        if i + D < len(seq): mem[len(ms) - 1] = [rdS(i + D)]
    stream(ms, mem, [])
    stamp()
    prio(1, 0)
    vM = [12, 13]; vX = [14, 15]
    A(f'v_mov_b32 v{PP+14}, 0'); A(f'v_mov_b32 v{PP+15}, 0')
    A(f'v_mov_b32 v{PP+16}, 0'); A(f'v_mov_b32 v{PP+17}, 0')
    for G in range(2):
        b = sreg(G, 0)
        A(f'v_max3_f32 v{vM[G]}, v{b}, v{b+1}, v{b+2}')
        A(f'v_max3_f32 v{vX[G]}, v{b+3}, v{b+4}, v{b+5}')
    for k in range(6, 26, 4):
        for G in range(2):
            b = sreg(G, 0)
            A(f'v_max3_f32 v{vM[G]}, v{vM[G]}, v{b+k}, v{b+k+1}')
            A(f'v_max3_f32 v{vX[G]}, v{vX[G]}, v{b+k+2}, v{b+k+3}')
    for G in range(2):
        b = sreg(G, 0)
        A(f'v_max3_f32 v{vM[G]}, v{vM[G]}, v{b+26}, v{b+27}')
    A(f's_mov_b32 s{sT1}, 0xff7fffff')
    for G in range(2):
        A(f'v_max3_f32 v{vM[G]}, v{vM[G]}, v{vX[G]}, s{sT1}')
    for sw in ('v_permlane32_swap_b32', 'v_permlane16_swap_b32'):
        for G in range(2): A(f'v_mov_b32 v{vX[G]}, v{vM[G]}')
        for G in range(2): A(f'{sw} v{vM[G]}, v{vX[G]}')
        for G in range(2): A(f'v_max_f32 v{vM[G]}, v{vM[G]}, v{vX[G]}')
    for G in range(2): A(f'v_mul_f32 v{vM[G]}, s{sSC}, v{vM[G]}')
    def preg(G, tl): return PP + 16*G + 2*(tl + G)
    seqP = [(sig, u, h) for sig in range(6) for u in range(5) for h in range(2)]
    def rdP(i):
        sig, u, h = seqP[i]
        ct = 2*sig + h
        buf = RING + 4*(i % 8)
        return [f'ds_read_b64_tr_b16 v[{buf+2*hh}:{buf+2*hh+1}], v{vAP + (ct % 8)} offset:{(4*u+2*hh)*384 + (256 if ct >= 8 else 0)}' for hh in range(2)]
    DP = 6
    def b4L(): A.skip('s_barrier')
    B3AT, B4AT = int(OPT.get('b3', '-1')), int(OPT.get('b4', '5'))
    if B3AT < 0: cond('M_e2', True, lambda: A.skip('s_barrier'))
    for tl in range(7):
        for G in range(2):
            r = sreg(G, tl)
            for k in range(4): A(f'v_fma_f32 v{r+k}, v{r+k}, s{sSC}, -v{vM[G]}')
            for k in range(4): A(f'v_exp_f32 v{r+k}, v{r+k}')
        for G in range(2):
            r = sreg(G, tl)
            p = preg(G, tl)
            A(f'v_cvt_pk_bf16_f32 v{p}, v{r}, v{r+1}')
            A(f'v_cvt_pk_bf16_f32 v{p+1}, v{r+2}, v{r+3}')
        if tl % 2 == 0: A(f's_mov_b32 s{sT0}, {(10 + 2*tl)*1024}')
        for G in range(2):
            r = sreg(G, tl)
            A(f'buffer_load_dwordx4 v[{r}:{r+3}], v{vWA0}, s[{S_WS}:{S_WS+3}], s{sT0} offen offset:{1024*(2*(tl%2)+G)} sc1')
        if tl == 5:
            for i in range(DP):
                for t in rdP(i): A(t)
        if tl == B3AT: cond('M_e2', True, lambda: A.skip('s_barrier'))
        if tl == B4AT: cond('M_l2', False, b4L)
    for q in range(4): A(f'v_mov_b32 v{ONES+q}, 0x3f803f80')
    stamp()
    prio(3, 2)
    padat('P')
    ms, first, side, hk = [], [], [], {}
    def b5L():
        cond('M_l3', False, lambda: A.skip('s_barrier'))
    if int(OPT.get('b5', '0')) < 0: b5L()
    sums = [mf(vINV + 4*G, PP + 16*G + 4*u, ONES, None if u == 0 else vINV + 4*G) for u in range(4) for G in range(2)]
    for i, (sig, u, h) in enumerate(seqP):
        a = RING + 4*(i % 8)
        accb = ACC + 16*(sig & 1)
        first.append(len(ms))
        for G in range(2):
            uu = u - G
            if 0 <= uu <= 3:
                d = accb + 8*G + 4*h
                ms.append(mf(d, a, PP + 16*G + 4*uu, None if uu == 0 else d))
        if i % 10 in (1, 9) and 1 <= sig <= 4: ms.append(sums.pop(0))
        if i % 10 == 9:
            e = len(ms) - 1
            side += [(e + 4, t, e + 16) for t in finA(sig, accb)]
            if sig == int(OPT.get('b5', '0')): hk[e] = b5L
    assert not sums
    mem = {}
    k = 0
    nrd = 2*(len(seqP) - DP)
    ngap = first[-1] - 5
    for j in range(DP, len(seqP)):
        for t in rdP(j):
            gp = (k * ngap) // nrd
            if j >= 8: gp = max(gp, first[j - 7] - 1)
            assert gp < first[j] - 3, (j, gp, first[j])
            mem.setdefault(gp, []).append(t); k += 1
    pend = stream(ms, mem, side, hk)
    A('s_waitcnt vmcnt(0)')
    stamp()
    def b4E():
        A.skip('s_barrier')
        A.skip(f's_mul_i32 s{sT0}, s{sW}, 9216')
        A.skip(f's_sub_u32 s{sT0}, s{sT0}, {4*9216 - 12288}')
        A.skip(f's_add_u32 s{sT4}, s{sT0}, {24*1024}')
        for blk in range(3):
            A.skip(f's_mov_b32 m0, s{sT0}')
            A.skip(f's_add_u32 s{sT0}, s{sT0}, 3072')
            for i in range(3):
                A.raw(f'  buffer_load_dwordx4 v{vWA0}, s[{S_WS}:{S_WS+3}], s{sT4} offen offset:{1024*i} sc1 lds')
            A.skip(f's_add_u32 s{sT4}, s{sT4}, 3072')
    cond('M_e3', True, b4E)
    def finE(sig, accb):
        out = []
        for G in range(2):
            for r in range(4):
                for h in range(2):
                    out.append(f'v_mul_f32 v{accb+8*G+4*h+r}, v{accb+8*G+4*h+r}, v{vINV+4*G+r}')
                o = OST + 8*G + 2*r
                out.append(f'v_cvt_pk_bf16_f32 v{o+(sig&1)}, v{accb+8*G+r}, v{accb+8*G+4+r}')
                if sig & 1:
                    out.append(f'buffer_store_dwordx2 v[{o}:{o+1}], v{vOA+4*G+r}, s[{S_OUT}:{S_OUT+3}], 0 offen offset:{128*(sig>>1)}{ONT}')
        return out
    def locE(f):
        if f < 10: return ('lds', vWA1, f*1024)
        if f < 24: return ('reg', sreg((f-10) % 2, (f-10) // 2))
        return ('lds', vWA0, (f-24)*1024)
    def b5E():
        def body():
            A.raw('  s_waitcnt vmcnt(0)'); A.skip('s_barrier')
        cond('M_e4', True, body)
        padat('O')
        stamp()
    for t in pend: A(t)
    bgE = [f'v_rcp_f32 v{vINV+q}, v{vINV+q}' for q in range(8)]
    pend = gemm_phase(QP, locE, finE, swap=True, bg=bgE, D=int(OPT.get('de', '4')), ghooks={2*(24 - int(OPT.get('de', '4'))) - 1: b5E})
    padat('Z')
    for t in pend: A(t)
    if STAMP:
        stamp()
        A('s_waitcnt vmcnt(0)')
        stamp(1)
        write_stamps()
    if 'pad' in OPT:
        A('s_waitcnt vmcnt(0)')
        A.label('PADL')
        A.raw('  s_memrealtime s[98:99]')
        A.raw('  s_waitcnt lgkmcnt(0)')
        A('s_sub_u32 s98, s98, s96')
        A(f's_cmp_lt_u32 s98, {OPT["pad"]}')
        A('s_cbranch_scc1 PADL')
    A('s_endpgm')

    A.label('M_helper'); A.reset()
    nstamp[0] = 6
    def rows(lst):
        for i in lst:
            row_soff(sT1, str(i))
            b = vAP if i & 1 else WF
            for j in range(8):
                a = b + j
                if i & 6:
                    a = 64 + j
                    A(f'v_xor_b32 v{a}, {16*(i & 6)}, v{b+j}')
                A(f's_mov_b32 m0, {i*ROWB + 16*PIECE[j]}')
                A(f'buffer_load_dwordx4 v{a}, s[{S_X}:{S_X+3}], s{sT1} offen{KNT} lds')
            if len(A.vm) >= 56: A('s_waitcnt vmcnt(40)')
    rows([0, 2, 4, 6, 8])
    row_addrs(vAP, '8')
    rows([1, 3, 5, 7])
    stamp()
    A('s_barrier')
    A('s_waitcnt vmcnt(0)')
    stamp()
    A('s_barrier')
    rows([16, 17, 18, 19])
    A('s_waitcnt vmcnt(0)')
    stamp()
    poll('H_pollV', 128)
    stamp()
    A('s_barrier')
    def wfr(src0, n, lds0):
        for i in range(n):
            if i % 4 == 0:
                A(f's_mov_b32 m0, {lds0 + i*1024}')
                A(f's_mov_b32 s{sT4}, {(src0 + i)*1024}')
            A(f'buffer_load_dwordx4 v{vWA0}, s[{S_WS}:{S_WS+3}], s{sT4} offen offset:{1024*(i%4)} sc1 lds')
    wfr(0, 10, SPARE)
    A('s_waitcnt vmcnt(0)')
    stamp()
    A('s_barrier')
    wfr(24, 12, 0)
    A('s_waitcnt vmcnt(0)')
    stamp()
    A('s_barrier')
    if STAMP:
        stamp(1)
        write_stamps()
    A.label('M_done')
    A('s_endpgm')
    A.label('CODE_END')

gen_main()
A.raw('.section .rodata,"a"')
A.raw('.p2align 6')
A.raw(f'.amdhsa_kernel {NAME}')
A.raw('  .amdhsa_next_free_vgpr 256')
A.raw('  .amdhsa_next_free_sgpr 102')
A.raw('  .amdhsa_accum_offset 256')
A.raw('  .amdhsa_group_segment_fixed_size 0')
A.raw('  .amdhsa_kernarg_size 48')
A.raw('  .amdhsa_user_sgpr_count 2')
A.raw('  .amdhsa_user_sgpr_kernarg_segment_ptr 1')
A.raw('  .amdhsa_system_sgpr_workgroup_id_x 1')
A.raw('.end_amdhsa_kernel')
open(OUT, 'w').write(A.text())
print('instr', A.n_inst, 'nops', A.nops, 'maxv', A.maxv)
```

```python
import sys, struct
sys.path.insert(0, 'gen')
from asmlib import Asm

OUT = sys.argv[1] if len(sys.argv) > 1 else 'standalone__neighborhood_nat__vision.s'
OPT = dict(a.split('=') if '=' in a else (a, '1') for a in sys.argv[2:])
STAMP = 'stamp' in OPT
XNT = ' nt' if OPT.get('xnt', '0') == '1' else ''
KNT = ' nt' if OPT.get('knt', '0') == '1' else ''
ONT = {'0': '', '1': ' nt', '2': ' sc1', '3': ' sc0 sc1', '4': ' sc0 sc1 nt'}[OPT.get('ont', '2')]
NAME = 'standalone__neighborhood_nat__vision_kernel'

X_BYTES = 19267584
WS_BYTES = 268435456
ROWB = 7680
MB = 90112
SPARE = 153600
GAP = 73728
def f32bits(x): return struct.unpack('<I', struct.pack('<f', x))[0]
SCALE = f32bits(192 ** -0.5 * 1.4426950408889634)
NEGINF = 0xff800000
PIECE = [0, 64, 128, 192, 256, 320, 384, 416]

A = Asm()
hdr = open('standalone__neighborhood_nat__vision.s.ref').read().split('\n')
for ln in hdr:
    if ln.startswith('; @launch'): break
    A.raw(ln)
A.raw('; @launch grid=(256,1,1) block=(512,1,1) lds=163840')
A.raw('.amdgcn_target "amdgcn-amd-amdhsa--gfx950"')
A.raw('.text')

def srd(d, lo, hi, nbytes):
    A(f's_mov_b32 s{d}, s{lo}'); A(f's_and_b32 s{d+1}, s{hi}, 0xffff')
    A(f's_mov_b32 s{d+2}, {nbytes}'); A(f's_mov_b32 s{d+3}, 0x00020000')
def mf(d, a, b, c):
    cs = '0' if c is None else f'v[{c}:{c+3}]'
    return f'v_mfma_f32_16x16x32_bf16 v[{d}:{d+3}], v[{a}:{a+3}], v[{b}:{b+3}], {cs}'

S_X, S_OUT, S_WS, S_W, S_WO, S_DBG = 16, 20, 24, 28, 32, 36
sW, sPR, sPC, sTR, sTC = 40, 41, 42, 43, 44
sKR0, sKC0B = 45, 46
sLOR, sHIR, sSHR, sLOC, sHIC = 47, 48, 49, 50, 51
sBASE, sSTRIP, sNEG = 52, 53, 54
sT0, sT1, sT2, sT3, sT4, sT5 = 55, 56, 57, 58, 59, 60
sALR, sALC, sSC = 61, 62, 63
sST = 64
sXR, sXL = 100, 101
sOA = 4
sB0, sF = 92, 93
sM1, sM2 = 0, 10
sVT, sVO = 94, 95
vL, vG, vN = 1, 2, 3
vT = 4
vR0, vR3, vCB = 12, 13, 14
XQ = 16
PP = 16
vOA = 4
vINV = 56
SACC = 64
OST = 16
W1 = 64
ONES = 48
QP = 120
ACC = 168
RING = 200
WF = 232
vAS = 240
vAP = 244
vWA0, vWA1, vWAM = 252, 253, 254
vSW, vSR = 255, 199
vWD = RING
MBQ = 64
MACC = 136
MPK = 184
MWA = 192

nstamp = [0]
def stamp(real=None):
    if not STAMP: return
    i = nstamp[0]; nstamp[0] += 1
    assert i < 14
    A.raw(f'  s_mem{"real" if "rt" in OPT else ""}time s[{sST+2*i}:{sST+1+2*i}]')
    if real is not None:
        A.raw(f'  s_memrealtime s[{96+2*real}:{97+2*real}]')
def write_stamps():
    n = nstamp[0]
    A('s_waitcnt lgkmcnt(0)')
    A(f'v_mov_b32 v{RING}, 0')
    if 'dbg' in OPT:
        lbl = f'WS_skip{n}'
        A(f's_cmp_lg_u32 s2, {OPT["dbg"].split(",")[0]}')
        A(f's_cbranch_scc1 {lbl}')
        A(f's_cmp_lg_u32 s{sW}, {OPT["dbg"].split(",")[1]}')
        A(f's_cbranch_scc1 {lbl}')
        for i in range(1, n):
            A(f's_sub_u32 s{sT0}, s{sST+2*i}, s{sST}')
            A(f'v_writelane_b32 v{RING}, s{sT0}, {i}')
        A(f's_sub_u32 s{sT0}, s98, s96')
        A(f'v_writelane_b32 v{RING}, s{sT0}, 15')
        srd(S_DBG, 12, 13, 256)
        A(f'v_lshlrev_b32 v{RING+1}, 2, v{vL}')
        A('s_mov_b64 exec, 0xfffe')
        A(f'buffer_store_dword v{RING}, v{RING+1}, s[{S_DBG}:{S_DBG+3}], 0 offen')
        A.label(lbl)
        return
    for i in range(n):
        A(f'v_writelane_b32 v{RING}, s{sST+2*i}, {i}')
    A(f'v_writelane_b32 v{RING}, s96, 14')
    A(f'v_writelane_b32 v{RING}, s98, 15')
    A(f's_lshl_b32 s{sT0}, s2, 3')
    A(f's_add_u32 s{sT0}, s{sT0}, s{sW}')
    A(f's_lshl_b32 s{sT0}, s{sT0}, 6')
    A(f's_add_u32 s{sT0}, s{sT0}, 0x100000')
    A(f'v_lshlrev_b32 v{RING+1}, 2, v{vL}')
    A('s_mov_b64 exec, 0xffff')
    A(f'buffer_store_dword v{RING}, v{RING+1}, s[{S_WS}:{S_WS+3}], s{sT0} offen')

def row_addrs(b, sF, A=A):
    for j in (0, 1, 2, 7):
        A(f'v_add_u32 v{vT}, {PIECE[j]}, v{vL}')
        A(f'v_xor_b32 v{vT}, {sF}, v{vT}')
        A(f'v_mul_u32_u24 v{vT+1}, 2731, v{vT}')
        A(f'v_lshrrev_b32 v{vT+1}, 16, v{vT+1}')
        A(f'v_mul_u32_u24 v{vT+1}, 384, v{vT+1}')
        A(f'v_lshl_add_u32 v{vT}, v{vT}, 4, v{vT+1}')
        A(f'v_add_u32 v{b+j}, s{sKC0B}, v{vT}')
        if j < 3:
            A(f'v_add_u32 v{b+j+3}, {8*768}, v{b+j}')
            if j == 0: A(f'v_add_u32 v{b+6}, {16*768}, v{b}')
            A(f'v_max_i32 v{b+j}, 0, v{b+j}')
def row_soff(dst, srow):
    A(f's_add_i32 s{dst}, s{sKR0}, {srow}')
    A(f's_lshl_b32 s{dst}, s{dst}, 1')
    A(f's_add_i32 s{dst}, s{dst}, s{sPR}')
    A(f's_max_i32 s{dst}, s{dst}, 0')
    A(f's_min_i32 s{dst}, s{dst}, 223')
    A(f's_mul_i32 s{dst}, s{dst}, 86016')

def stream(ms, mem, side, hooks=None, cap=2, bg=None, flush=()):
    side = [x if len(x) == 3 else (x[0], x[1], 10**9) for x in side]
    bg = bg if bg is not None else []
    def slots(lo, hi):
        return sum(max(0, cap - len(mem.get(k, []))) for k in range(lo, hi + 1))
    for i, m in enumerate(ms):
        assert not (side and side[0][2] < i), ('deadline missed', side[0], i)
        A(m)
        if i + 1 < len(ms) and not (hooks and i in hooks): A.prewait(ms[i+1])
        n = 0
        for t in mem.get(i, []):
            A(t); n += 1
        c = cap
        if side and side[0][2] < len(ms):
            dl = side[0][2]
            if sum(1 for x in side if x[2] == dl) > slots(i, dl): c = cap + 1
        while side and n < c and side[0][0] <= i:
            A(side.pop(0)[1]); n += 1
        while bg and n < cap:
            A(bg.pop(0)); n += 1
        if i in flush:
            while side and side[0][0] <= i + 4: A(side.pop(0)[1])
        if hooks and i in hooks: hooks[i]()
    return [x[1] for x in side]

def gemm_phase(B, loc, finish, swap=False, hooks=None, D=6, gate=None, bg=None, extra_mem=None, ghooks=None, flush=()):
    def rd(f):
        l = loc(f)
        if l[0] == 'lds':
            buf = RING + 4*(f % 8)
            return [f'ds_read_b128 v[{buf}:{buf+3}], v{l[1]} offset:{l[2]}']
        return []
    ms, mem, side, hk = [], dict(extra_mem or {}), [], dict(ghooks or {})
    for f in range(D):
        for t in rd(f): A(t)
    for f in range(72):
        sig, s, h = f // 12, (f % 12) // 2, f % 2
        l = loc(f)
        a = RING + 4*(f % 8) if l[0] == 'lds' else l[1]
        accb = ACC + 16*(sig & 1)
        for G in range(2):
            d = accb + 8*G + 4*h
            b = B + 24*G + 4*s
            ms.append(mf(d, b, a, None if s == 0 else d) if swap else mf(d, a, b, None if s == 0 else d))
        fn = f + D
        if fn < 72 and not (gate is not None and f < gate <= fn):
            mem[2*f] = rd(fn)
        if f % 12 == 11:
            side += [(2*f + 1 + 3, t, 2*f + 1 + 24) for t in finish(sig, accb)]
            if hooks and sig in hooks:
                def mk(sig=sig, f=f):
                    def h():
                        hooks[sig]()
                        if gate is not None and f + 1 == gate:
                            for k in range(gate, gate + D):
                                for t in rd(k): A(t)
                    return h
                hk[2*f + 1] = mk()
    return stream(ms, mem, side, hk, bg=bg, flush=flush)

def poll(label, off):
    A(f'v_mov_b32 v{vT+2}, 0')
    A(f's_mov_b32 s{sT4}, 0')
    A('s_mov_b64 exec, 1')
    A.label(label)
    A(f'buffer_load_dword v{vT+3}, v{vT+2}, s[{S_DBG}:{S_DBG+3}], 0 offen offset:{off} sc1')
    A('s_waitcnt vmcnt(0)')
    A(f'v_cmp_eq_u32 vcc, 0, v{vT+3}')
    A(f's_add_u32 s{sT4}, s{sT4}, 1')
    A(f's_cmp_gt_u32 s{sT4}, 200000')
    A(f's_cbranch_scc1 {label}_x')
    A('s_cmp_lg_u64 vcc, 0')
    A(f's_cbranch_scc0 {label}_x')
    A('s_sleep 2')
    A(f's_branch {label}')
    A.label(label + '_x')
    A('s_mov_b64 exec, -1')

def cond(lbl, isE, body):
    A(f's_cmp_lt_u32 s{sW}, 4' if isE else f's_cmp_ge_u32 s{sW}, 4')
    A(f's_cbranch_scc1 {lbl}')
    body()
    A.label(lbl)

nprio = [0]
def prio(e, l):
    nprio[0] += 1
    A(f's_setprio {l}')
    if e != l: cond(f'M_pr{nprio[0]}', True, lambda: A.skip(f's_setprio {e}'))

npad = [0]
def padat(name):
    if OPT.get('padpos') != name: return
    npad[0] += 1
    A.label(f'PADM{npad[0]}')
    A.raw('  s_memrealtime s[98:99]')
    A.raw('  s_waitcnt lgkmcnt(0)')
    A.raw('  s_sub_u32 s98, s98, s96')
    A.raw(f'  s_cmp_lt_u32 s98, {OPT["padt"]}')
    A.raw(f'  s_cbranch_scc1 PADM{npad[0]}')

def gen_main():
    A.raw(f'.globl {NAME}'); A.raw('.p2align 8'); A.raw(f'.type {NAME},@function')
    A.raw(f'{NAME}:'); A.reset()
    A('s_cmp_ge_u32 s2, 256')
    A('s_cbranch_scc1 M_done')
    stamp(0)
    if 'pad' in OPT or 'padpos' in OPT: A.raw('  s_memrealtime s[96:97]')
    A('s_load_dwordx8 s[4:11], s[0:1], 0')
    A('s_load_dwordx4 s[12:15], s[0:1], 32')
    A(f'v_lshrrev_b32 v{vT}, 6, v0')
    A(f'v_and_b32 v{vL}, 63, v0')
    A(f'v_readfirstlane_b32 s{sW}, v{vT}')
    A(f'v_lshrrev_b32 v{vG}, 4, v{vL}')
    A(f'v_and_b32 v{vN}, 15, v{vL}')
    A(f'v_lshlrev_b32 v{vWA0}, 4, v{vL}')
    if OPT.get('cpf', '1') != '0':
        A('s_getpc_b64 s[16:17]')
        A('s_and_b32 s16, s16, -256')
        A('s_and_b32 s17, s17, 0xffff')
        A('s_mov_b32 s18, CODE_END-' + NAME)
        A('s_mov_b32 s19, 0x00020000')
        A(f's_lshr_b32 s{sT0}, s2, 3')
        A(f's_lshl_b32 s{sT0}, s{sT0}, 10')
        A(f's_cmp_lg_u32 s{sW}, 3')
        A('s_cbranch_scc1 M_nocpf')
        A.raw(f'  buffer_load_dwordx4 v[{MACC}:{MACC+3}], v{vWA0}, s[16:19], s{sT0} offen')
        A.label('M_nocpf')
    A(f'v_bfe_u32 v{vT+1}, v{vL}, 2, 2')
    A(f'v_lshrrev_b32 v{vT+2}, 5, v{vL}')
    A(f'v_lshlrev_b32 v{vT+3}, 1, v{vT+2}')
    A(f'v_and_b32 v{vT+4}, 3, v{vL}')
    A(f'v_xor_b32 v{vT+3}, v{vT+3}, v{vT+4}')
    A(f'v_lshlrev_b32 v{vT+3}, 4, v{vT+3}')
    A(f's_movk_i32 s{sT5}, 1152')
    A(f'v_lshl_add_u32 v{vT}, v{vG}, 3, v{vT+1}')
    A(f'v_mad_u32_u24 v{vWD}, v{vT}, s{sT5}, v{vT+3}')
    A(f'v_lshl_add_u32 v{vT}, v{vG}, 5, v{vT+1}')
    A(f'v_mad_u32_u24 v{vWD+1}, v{vT}, s{sT5}, v{vT+3}')
    A(f'v_mul_u32_u24 v{vT+2}, {48*1152}, v{vT+2}')
    A(f'v_sub_u32 v{vWD+2}, v{vWD+1}, v{vT+2}')
    A(f'v_lshrrev_b32 v{vT}, 2, v{vL}')
    A(f'v_mad_u32_u24 v{vWD+3}, v{vT}, s{sT5}, v{vT+3}')
    A(f'v_lshrrev_b32 v{vT}, 3, v{vN}')
    A(f'v_lshlrev_b32 v{vT}, 1, v{vT}')
    A(f'v_xor_b32 v{vT}, v{vT}, v{vG}')
    A(f'v_lshl_add_u32 v{vT}, v{vN}, 2, v{vT}')
    A(f'v_lshlrev_b32 v{MWA+3}, 4, v{vT}')
    A(f's_and_b32 s{sT0}, s2, 7')
    A(f's_lshr_b32 s{sT1}, s2, 3')
    MAP = OPT.get('map', '0')
    if MAP == '0':
        A(f's_lshr_b32 s{sPR}, s{sT0}, 2')
        A(f's_bfe_u32 s{sPC}, s{sT0}, 0x10001')
        A(f's_and_b32 s{sT0}, s{sT0}, 1')
        A(f's_lshl_b32 s{sT0}, s{sT0}, 2')
        A(f's_lshr_b32 s{sTR}, s{sT1}, 3')
        A(f's_add_u32 s{sTR}, s{sTR}, s{sT0}')
        A(f's_and_b32 s{sTC}, s{sT1}, 7')
    elif MAP == '1':
        A(f's_mov_b32 s{sTR}, s{sT0}')
        A(f's_and_b32 s{sPR}, s{sT1}, 1')
        A(f's_bfe_u32 s{sPC}, s{sT1}, 0x10001')
        A(f's_lshr_b32 s{sTC}, s{sT1}, 2')
    elif MAP == '2':
        A(f's_lshr_b32 s{sPR}, s{sT0}, 2')
        A(f's_and_b32 s{sT0}, s{sT0}, 3')
        A(f's_lshl_b32 s{sT0}, s{sT0}, 1')
        A(f's_lshr_b32 s{sTR}, s{sT1}, 4')
        A(f's_add_u32 s{sTR}, s{sTR}, s{sT0}')
        A(f's_and_b32 s{sPC}, s{sT1}, 1')
        A(f's_bfe_u32 s{sTC}, s{sT1}, 0x30001')
    else:
        A(f's_and_b32 s{sPR}, s{sT1}, 1')
        A(f's_bfe_u32 s{sPC}, s{sT1}, 0x10001')
        A(f's_and_b32 s{sTR}, s{sT0}, 6')
        A(f's_lshr_b32 s{sT2}, s{sT1}, 4')
        A(f's_add_u32 s{sTR}, s{sTR}, s{sT2}')
        A(f's_and_b32 s{sT0}, s{sT0}, 1')
        A(f's_lshl_b32 s{sT0}, s{sT0}, 2')
        A(f's_bfe_u32 s{sTC}, s{sT1}, 0x20002')
        A(f's_add_u32 s{sTC}, s{sTC}, s{sT0}')
    A(f's_mul_i32 s{sTR}, s{sTR}, 14')
    A(f's_mul_i32 s{sTC}, s{sTC}, 14')
    def scalar_setup():
        srd(S_X, 4, 5, X_BYTES)
        srd(S_WS, 14, 15, WS_BYTES)
        srd(S_OUT, 10, 11, X_BYTES)
        srd(S_DBG, 12, 13, 256)
        A(f's_mul_i32 s{sALR}, s{sPR}, 13')
        A(f's_add_i32 s{sALR}, s{sALR}, -6')
        A(f's_mul_i32 s{sALC}, s{sPC}, 13')
        A(f's_add_i32 s{sALC}, s{sALC}, -6')
        A(f's_cmp_ge_u32 s{sW}, 4')
        A(f's_cselect_b32 s{sSTRIP}, -4, 3')
        A(f's_add_i32 s{sSTRIP}, s{sSTRIP}, s{sW}')
        A(f's_lshl_b32 s{sSTRIP}, s{sSTRIP}, 1')
        A(f's_mul_i32 s{sT0}, s{sPR}, 6')
        A(f's_add_i32 s{sKR0}, s{sTR}, s{sT0}')
        A(f's_add_i32 s{sKR0}, s{sKR0}, -6')
        A(f's_cmp_eq_i32 s{sKR0}, -6')
        A(f's_cselect_b32 s{sLOR}, 6, 0')
        A(f's_cmp_eq_i32 s{sKR0}, 98')
        A(f's_cselect_b32 s{sHIR}, 7, 13')
        A(f's_cselect_b32 s{sSHR}, 2, 0')
        A(f's_sub_i32 s{sKR0}, s{sKR0}, s{sSHR}')
        A(f's_mul_i32 s{sT0}, s{sPC}, 6')
        A(f's_add_i32 s{sT1}, s{sTC}, s{sT0}')
        A(f's_add_i32 s{sT1}, s{sT1}, -6')
        A(f's_cmp_eq_i32 s{sT1}, -6')
        A(f's_cselect_b32 s{sLOC}, 6, 0')
        A(f's_cmp_eq_i32 s{sT1}, 98')
        A(f's_cselect_b32 s{sHIC}, 7, 13')
        A(f's_lshl_b32 s{sT1}, s{sT1}, 1')
        A(f's_add_i32 s{sT1}, s{sT1}, s{sPC}')
        A(f's_mul_i32 s{sKC0B}, s{sT1}, 384')
        A(f's_max_i32 s{sB0}, s{sSTRIP}, s{sLOR}')
        A(f's_min_i32 s{sB0}, s{sB0}, s{sHIR}')
        A(f's_and_b32 s{sB0}, s{sB0}, -2')
        A(f's_add_u32 s{sBASE}, s{sB0}, s{sSHR}')
        A(f's_mov_b32 s{sNEG}, {NEGINF}')
        A(f's_mov_b32 s{sSC}, {SCALE}')
        A(f's_and_b32 s{sF}, s{sW}, 1')
        A(f's_lshl_b32 s{sF}, s{sF}, 3')
        A(f's_and_b32 s{sT1}, s{sW}, 6')
        A(f's_or_b32 s{sF}, s{sF}, s{sT1}')
        A(f's_add_u32 s{sT1}, s{sW}, 8')
        row_soff(sXR, f's{sT1}')
        A(f's_mul_i32 s{sXL}, s{sT1}, {ROWB}')
        A(f's_add_u32 s{sOA}, s{sTR}, s{sSTRIP}')
        A(f's_mov_b32 s{sOA+1}, 86016')
        A(f's_movk_i32 s{sOA+2}, 384')
        A(f's_cmp_eq_u32 s{sW}, 4')
        A(f's_cselect_b32 s{sVT}, s2, 999')
        A(f's_mov_b32 s{sM1}, 0x55555555'); A(f's_mov_b32 s{sM1+1}, 0x55555555')
        A(f's_mov_b32 s{sM2}, 0x33333333'); A(f's_mov_b32 s{sM2+1}, 0x33333333')
        A('s_mov_b32 vcc_lo, 0'); A('s_mov_b32 vcc_hi, -1')

    def sreg(G, tl): return SACC + 28*G + 4*tl
    TM = [197, 198, 199, 255, 0]
    def pixaddr(dst, sel, lane):
        t0, t1, t2, t3, t4 = TM
        o = [f'v_lshrrev_b32 v{t0}, 1, v{sel}', f'v_and_b32 v{t3}, 1, v{sel}', f'v_add_u32 v{t0}, s{sOA}, v{t0}',
             f'v_lshl_add_u32 v{t4}, v{t3}, 2, s{sTC}',
             f'v_lshl_add_u32 v{t1}, v{t0}, 1, s{sALR}', f'v_add_u32 v{t2}, 112, v{t0}', f'v_lshlrev_b32 v{t3}, 30, v{t3}',
             f'v_med3_i32 v{t0}, v{t1}, v{t0}, v{t2}', f'v_mul_lo_u32 v{t0}, v{t0}, s{sOA+1}'] + lane(t0)
        for G in range(2):
            for r in range(4):
                d = dst(G, r)
                o += [f'v_add_u32 v{d}, {7*G+r}, v{t4}', f'v_lshl_add_u32 v{t1}, v{d}, 1, s{sALC}',
                      f'v_add_u32 v{t2}, 112, v{d}', f'v_med3_i32 v{d}, v{t1}, v{d}, v{t2}',
                      f'v_mad_u32_u24 v{d}, v{d}, s{sOA+2}, v{t0}']
                if r == 3: o += [f'v_add_u32 v{d}, v{d}, v{t3}']
        return o
    def oaddr(): return pixaddr(lambda G, r: vOA + 4*G + r, vG, lambda t: [f'v_lshl_add_u32 v{t}, v{vN}, 3, v{t}'])
    CQ = [XQ + 16, XQ + 20, XQ + 40, XQ + 44]
    XD = [XQ + 4*i for i in range(4)] + [XQ + 24 + 4*i for i in range(4)] + CQ
    def xaddr():
        o = [f'v_bfe_u32 v{vT}, v{vL}, 2, 2', f'v_and_b32 v{vT+1}, 3, v{vL}', f'v_lshrrev_b32 v{vT+2}, 5, v{vL}',
             f'v_lshl_add_u32 v{vT+1}, v{vG}, 2, v{vT+1}', f'v_lshlrev_b32 v{vT+2}, 7, v{vT+2}', f'v_sub_u32 v{vT+2}, 256, v{vT+2}']
        o += pixaddr(lambda G, r: XQ + 24*G + 4*r, vT, lambda t: [f'v_lshl_add_u32 v{t}, v{vT+1}, 4, v{t}'])
        for i in range(4):
            o += [f'v_cndmask_b32 v{CQ[i]}, v{XQ+4*i}, v{XQ+24+4*i}, vcc']
        for i in range(4):
            o += [f'v_add_u32 v{CQ[i]}, v{CQ[i]}, v{vT+2}']
        return o
    def xload(i):
        r = XD[i]
        return f'buffer_load_dwordx4 v[{r}:{r+3}], v{r}, s[{S_X}:{S_X+3}], 0 offen{XNT}'
    def transpose():
        T = [ACC + 4*i for i in range(4)]
        for st in range(3):
            R = XD[4*st:4*st+4]
            def sel(dst, keep, other, perm):
                for d in range(4):
                    A(f'v_cndmask_b32_dpp v{dst+d}, v{other+d}, v{keep+d}, vcc quad_perm:{perm} row_mask:0xf bank_mask:0xf')
            A(f's_mov_b64 vcc, s[{sM1}:{sM1+1}]')
            sel(T[0], R[0], R[1], '[1,0,3,2]'); sel(T[2], R[2], R[3], '[1,0,3,2]')
            A('s_not_b64 vcc, vcc')
            sel(T[1], R[1], R[0], '[1,0,3,2]'); sel(T[3], R[3], R[2], '[1,0,3,2]')
            A(f's_mov_b64 vcc, s[{sM2}:{sM2+1}]')
            sel(R[0], T[0], T[2], '[2,3,0,1]'); sel(R[1], T[1], T[3], '[2,3,0,1]')
            A('s_not_b64 vcc, vcc')
            sel(R[2], T[2], T[0], '[2,3,0,1]'); sel(R[3], T[3], T[1], '[2,3,0,1]')
        for p in range(2):
            for d in range(4):
                A(f'v_permlane32_swap_b32 v{CQ[p]+d}, v{CQ[p+2]+d}')
    def setup():
        B = Asm()
        def Fv(dst, row):
            B(f'v_and_b32 v{dst}, 1, v{row}')
            B(f'v_lshlrev_b32 v{dst}, 3, v{dst}')
            B(f'v_and_or_b32 v{dst}, v{row}, 6, v{dst}')
        B(f'v_lshrrev_b32 v{vT}, 3, v{vN}')
        B(f'v_add_u32 v{vT}, s{sSTRIP}, v{vT}')
        B(f'v_max_i32 v{vT}, s{sLOR}, v{vT}')
        B(f'v_min_i32 v{vT}, s{sHIR}, v{vT}')
        B(f'v_subrev_u32 v{vT}, s{sB0}, v{vT}')
        B(f'v_and_b32 v{vT+1}, 1, v{vG}')
        B(f'v_sub_u32 v{vT+2}, v{vT+1}, v{vT}')
        B(f'v_ashrrev_i32 v{vR0}, 31, v{vT+2}')
        B(f'v_and_b32 v{vR0}, s{sNEG}, v{vR0}')
        B(f'v_sub_u32 v{vT+2}, v{vT}, v{vT+1}')
        B(f'v_ashrrev_i32 v{vR3}, 31, v{vT+2}')
        B(f'v_and_b32 v{vR3}, s{sNEG}, v{vR3}')
        B(f'v_and_b32 v{vT}, 7, v{vN}')
        B(f'v_lshrrev_b32 v{vT+1}, 1, v{vG}')
        B(f'v_subrev_u32 v{vT+3}, 7, v{vT}')
        B(f'v_ashrrev_i32 v{vT+3}, 31, v{vT+3}')
        B(f'v_and_b32 v{vT+3}, 0x7f, v{vT+3}')
        for G in range(2):
            B(f'v_add_u32 v{vT+2}, {7*G}, v{vT}')
            B(f'v_max_i32 v{vT+2}, s{sLOC}, v{vT+2}')
            B(f'v_min_i32 v{vT+2}, s{sHIC}, v{vT+2}')
            B(f'v_lshlrev_b32 v{vT+2}, v{vT+2}, v{vT+3}')
            B(f'v_lshrrev_b32 v{vT+2}, v{vT+1}, v{vT+2}')
            B(f'v_not_b32 v{vCB+G}, v{vT+2}')
        B(f'v_add_u32 v{vT}, s{sBASE}, v{vT}')
        Fv(vT+1, vT)
        B(f'v_mul_u32_u24 v{vT}, {ROWB}, v{vT}')
        B(f'v_lshrrev_b32 v{vT+2}, 3, v{vN}')
        B(f'v_mul_u32_u24 v{vT+2}, 24, v{vT+2}')
        B(f'v_add_u32 v{vT+2}, v{vT+2}, v{vG}')
        for s in range(4):
            B(f'v_add_u32 v{vT+3}, {4*s}, v{vT+2}')
            B(f'v_xor_b32 v{vT+3}, v{vT+3}, v{vT+1}')
            B(f'v_lshl_add_u32 v{vAS+s}, v{vT+3}, 4, v{vT}')
        B(f'v_and_b32 v{vT}, 1, v{vG}')
        B(f'v_lshlrev_b32 v{vT}, 2, v{vT}')
        B(f'v_lshrrev_b32 v{vT+1}, 2, v{vN}')
        B(f'v_add3_u32 v{vT}, v{vT}, v{vT+1}, s{sBASE}')
        Fv(vT+1, vT)
        B(f'v_mul_u32_u24 v{vT}, {ROWB}, v{vT}')
        B(f'v_and_b32 v{vT+2}, 1, v{vN}')
        B(f'v_lshl_add_u32 v{vT}, v{vT+2}, 3, v{vT}')
        B(f'v_lshrrev_b32 v{vT+2}, 1, v{vG}')
        B(f'v_mul_u32_u24 v{vT+2}, 24, v{vT+2}')
        B(f'v_bfe_u32 v{vT+3}, v{vN}, 1, 1')
        B(f'v_add_u32 v{vT+2}, v{vT+2}, v{vT+3}')
        for ct in range(8):
            B(f'v_add_u32 v{vT+3}, {2*ct}, v{vT+2}')
            B(f'v_xor_b32 v{vT+3}, v{vT+3}, v{vT+1}')
            B(f'v_lshl_add_u32 v{vAP+ct}, v{vT+3}, 4, v{vT}')
        B(f'v_add_u32 v{vWA1}, {SPARE}, v{vWA0}')
        B(f'v_add_u32 v{vWAM}, {MB}, v{vWA0}')
        row_addrs(WF, f's{sF}', B)
        return [l.strip() for l in B.lines]
    def masks():
        out = []
        for tl in range(7):
            a = []
            for G in range(2):
                tau = tl + 3*G
                r = sreg(G, tl)
                a.append([f'v_bfe_i32 v{r+2}, v{vCB+G}, {2*tau}, 1', f'v_and_b32 v{r+1}, s{sNEG}, v{r+2}',
                          f'v_and_b32 v{r+2}, s{sNEG}, v{r+2}', f'v_or_b32 v{r}, v{r+1}, v{vR0}', f'v_or_b32 v{r+3}, v{r+1}, v{vR3}'])
            for x, y in zip(*a): out += [x, y]
        return out

    N1 = int(OPT.get('n1', '6'))
    A(f's_cmp_lt_u32 s{sW}, 4')
    A('s_waitcnt lgkmcnt(0)')
    A(f's_mov_b32 s{S_W}, s6'); A(f's_mov_b32 s{S_W+1}, s7')
    A(f's_mov_b32 s{S_W+2}, {192*576*2}'); A(f's_mov_b32 s{S_W+3}, 0x00020000')
    A('s_cbranch_scc1 M_mw')
    scalar_setup()
    srd(S_WO, 8, 9, 192*192*2)
    for t in xaddr() + setup() + oaddr(): A(t)
    stamp()
    A(f's_and_b32 s{sT0}, s{sW}, 3')
    A(f's_mul_i32 s{sT2}, s{sT0}, 6144')
    A(f's_mul_i32 s{sT1}, s{sT0}, 4608')
    Q1 = int(OPT.get('q1', '12'))
    for i in range(3):
        for k in range(6):
            if 6*i + k == Q1:
                A(f's_waitcnt vmcnt({Q1 - 6})')
                A('s_barrier')
            A(f's_add_u32 m0, s{sT2}, {(24*i + k)*1024 - 64*k}')
            A(f'buffer_load_dwordx4 v{vWD + 1 + i//2}, s[{S_W}:{S_W+3}], s{sT1} offen offset:{64*k} lds')
        if i < 2: A(f's_add_u32 s{sT1}, s{sT1}, {(16 if i == 0 else 112)*1152}')
    A('s_waitcnt vmcnt(4)')
    for i in range(N1): A.raw('  ' + xload(i))
    A(f's_waitcnt vmcnt({N1})')
    stamp()
    A('s_barrier')
    for i in range(N1, 12): A.raw('  ' + xload(i))
    stamp()
    A.vm = [A.parse(xload(i)).w for i in range(12)]
    transpose()
    VA, VB, VD = MBQ, MBQ + 24, MBQ + 48
    A(f's_cmp_ge_u32 s{sVT}, 144')
    A('s_cbranch_scc1 M_v1')
    A(f's_mul_hi_u32 s{sT0}, s2, 0x15555556')
    A(f's_mul_i32 s{sT1}, s{sT0}, 12')
    A(f's_sub_u32 s{sT1}, s2, s{sT1}')
    A(f's_mul_i32 s{sT2}, s{sT0}, {16*1152}')
    for k in range(6):
        A(f's_mov_b32 m0, {GAP + 1024*k - 768 - 64*k}')
        A(f'buffer_load_dwordx4 v{vWD+3}, s[{S_W}:{S_W+3}], s{sT2} offen offset:{768 + 64*k} lds')
    A(f'v_lshrrev_b32 v{VD}, 1, v{vL}')
    A(f'v_mul_u32_u24 v{VD}, 384, v{VD}')
    A(f'v_and_b32 v{VD+1}, 1, v{vL}')
    A(f'v_lshl_add_u32 v{VD}, v{VD+1}, 4, v{VD}')
    A(f's_lshl_b32 s{sT2}, s{sT1}, 5')
    for k in range(6):
        A(f's_mov_b32 m0, {GAP + 6144 + 1024*k}')
        A(f'buffer_load_dwordx4 v{VD}, s[{S_WO}:{S_WO+3}], s{sT2} offen lds')
        A(f's_add_u32 s{sT2}, s{sT2}, {32*384}')
    A(f's_lshr_b32 s{sT2}, s{sT1}, 2')
    A(f's_mul_i32 s{sVO}, s{sT2}, 24576')
    A(f's_and_b32 s{sT1}, s{sT1}, 3')
    A(f's_lshl_b32 s{sT1}, s{sT1}, 6')
    A(f's_add_u32 s{sVO}, s{sVO}, s{sT1}')
    A(f's_lshr_b32 s{sT1}, s{sT0}, 1')
    A(f's_lshl_b32 s{sT1}, s{sT1}, 11')
    A(f's_add_u32 s{sVO}, s{sVO}, s{sT1}')
    A(f's_and_b32 s{sT0}, s{sT0}, 1')
    A(f's_lshl_b32 s{sT0}, s{sT0}, 3')
    A(f's_add_u32 s{sVO}, s{sVO}, s{sT0}')
    A(f'v_add_u32 v{VD+6}, {GAP}, v{MWA+3}')
    A.label('M_v1'); A.reset()
    stamp()
    A('s_barrier')
    stamp()
    A('s_setprio 1')
    A('s_branch M_pa')
    A.label('M_mw'); A.reset()
    nstamp[0] -= 5
    A(f's_lshr_b32 s{sT0}, s2, 3')
    A(f's_cmp_lg_u32 s{sW}, 1')
    A('s_cbranch_scc1 M_nowarm1')
    A(f's_mul_i32 s{sT0}, s{sT0}, 6912')
    A(f's_add_u32 s{sT1}, s{sT0}, 4096')
    for i in range(7):
        A(f'buffer_load_dwordx4 v[{MACC+4*i}:{MACC+4*i+3}], v{vWA0}, s[{S_W}:{S_W+3}], s{sT0 + i//4} offen offset:{1024*(i%4)}')
    A.label('M_nowarm1')
    A(f's_cmp_lg_u32 s{sW}, 2')
    A('s_cbranch_scc1 M_nowarm2')
    srd(S_WO, 8, 9, 192*192*2)
    A(f's_mul_i32 s{sT0}, s{sT0}, 2304')
    for i in range(3):
        A(f'buffer_load_dwordx4 v[{MACC+4*i}:{MACC+4*i+3}], v{vWA0}, s[{S_WO}:{S_WO+3}], s{sT0} offen offset:{1024*i}')
    A.label('M_nowarm2'); A.reset()
    A(f's_mul_i32 s{sT2}, s{sW}, 18432')
    A(f's_mul_i32 s{sT0}, s{sW}, 3')
    for i in range(3):
        A(f's_add_u32 s{sT1}, s{sT0}, {i}')
        A(f's_lshr_b32 s{sT3}, s{sT1}, 1')
        A(f's_and_b32 s{sT1}, s{sT1}, 1')
        A(f's_mul_i32 s{sT4}, s{sT3}, 12')
        A(f's_add_u32 s{sT4}, s{sT4}, s{sT1}')
        A(f's_lshl_b32 s{sT4}, s{sT4}, 10')
        A(f's_add_u32 s{sT4}, s{sT4}, {MB}')
        A(f'v_add_u32 v{MWA+i}, s{sT4}, v{vWA0}')
        A(f's_mul_i32 s{sT3}, s{sT3}, {32*1152}')
        A(f's_mul_i32 s{sT1}, s{sT1}, 4608')
        A(f's_add_u32 s{sT1}, s{sT1}, s{sT3}')
        for k in range(6):
            A(f's_add_u32 m0, s{sT2}, {MB + (6*i + k)*1024 - 384 - 64*k}')
            A(f'buffer_load_dwordx4 v{vWD}, s[{S_W}:{S_W+3}], s{sT1} offen offset:{384 + 64*k} lds')
    stamp()
    A(f's_add_u32 s{sT2}, s{sT2}, {MB}')
    A(f'v_add_u32 v{MPK}, s{sT2}, v{MWA+3}')
    A(f'v_add_u32 v{MWA+4}, 36864, v{MWA+3}')
    scalar_setup()
    for t in xaddr(): A(t)
    stamp()
    for i in range(18):
        if i % 6 == 0: A(f's_waitcnt vmcnt({12 - i})')
        A(f'ds_read_b128 v[{MBQ+4*i}:{MBQ+4*i+3}], v{MPK} offset:{1024*i}')
        if i == 13: A('s_waitcnt lgkmcnt(8)')
    bgM = setup() + oaddr()
    for _ in range(int(OPT.get('pre', '30'))): A(bgM.pop(0))
    A('s_waitcnt lgkmcnt(0)')
    stamp()
    A('s_barrier')
    stamp()
    padat('M')
    seqM = [(sp, k, hp) for sp in range(6) for k in range(6) for hp in range(2)]
    def rdM(i):
        sp, k, hp = seqM[i]
        buf = RING + 4*(i % 8)
        return f'ds_read_b128 v[{buf}:{buf+3}], v{MWA+3+sp//3} offset:{((2*(sp%3)+hp)*6 + k)*1024}'
    DM = 6
    for i in range(DM): A(rdM(i))
    ms, mem, side = [], {}, []
    for i, (sp, k, hp) in enumerate(seqM):
        a = RING + 4*(i % 8)
        ab = MACC + 24*(sp & 1)
        if i + DM < len(seqM): mem[len(ms)] = [rdM(i + DM)]
        for t in range(3):
            d = ab + 8*t + 4*hp
            ms.append(mf(d, a, MBQ + 24*t + 4*k, None if k == 0 else d))
        if i % 12 == 11:
            for t in range(3):
                pk = MPK + 4*(t & 1)
                e0 = len(ms) + 3 + 6*t
                for q in range(4):
                    side.append((e0, f'v_cvt_pk_bf16_f32 v{pk+q}, v{ab+8*t+2*q}, v{ab+8*t+2*q+1}', len(ms) + 35))
                wr = f'ds_write_b128 v{MWA+t}, v[{pk}:{pk+3}] offset:{2048*sp}'
                if sp < 5: mem[e0 + 4] = [wr, 's_nop 0']
                else: side.append((e0, wr))
    for k in mem:
        if len(mem[k]) == 2: mem[k] = [mem[k][0], '']
    X0, X1 = int(OPT.get('x0', '70')), int(OPT.get('x1', '10'))
    BB2 = int(OPT.get('bb2', '50'))
    assert BB2 < 3*(24 - DM)
    hk = {BB2: lambda: A('s_barrier')}
    def mkx(i):
        def h():
            A.skip(f's_cbranch_scc1 M_sx{i}')
            A.raw('  ' + xload(i))
            A.label(f'M_sx{i}')
        return h
    for i in range(12):
        gp = X0 + X1*i
        while gp % 3 != 1 or gp in mem: gp += 1
        hk[gp] = mkx(i); mem[gp] = ['', '']
    A(f's_cmp_eq_u32 s{sW}, 0')
    A('s_setprio 3')
    rest = stream(ms, mem, side, hk, bg=bgM)
    for t in rest: A(t)
    A('s_waitcnt lgkmcnt(0)')
    A('s_barrier')
    stamp()
    for t in bgM: A(t)
    print('bgM left', len(bgM))
    A('s_cbranch_scc1 M_helper')
    A('s_setprio 0')
    A.vm = [A.parse(xload(i)).w for i in range(12)]
    transpose()
    A.label('M_pa'); A.reset()
    padat('A')
    stamp()
    bgA = []
    xrow = []
    for j in range(8):
        xrow.append(f's_add_u32 m0, s{sXL}, {16*PIECE[j]}\n s_nop 0\n buffer_load_dwordx4 v{WF+j}, s[{S_X}:{S_X+3}], s{sXR} offen{KNT} lds')
    def finA(sig, accb):
        out = []
        for G in range(2):
            for q in range(4):
                out.append(f'v_cvt_pk_bf16_f32 v{QP+24*G+4*sig+q}, v{accb+8*G+2*q}, v{accb+8*G+2*q+1}')
        return out
    def locA(f):
        if f < 60: return ('lds', vWAM, f*1024)
        if f < 62: return ('reg', WF + 4*(f-60))
        return ('lds', vWA1, (f-62)*1024)
    def vcomp():
        save = (list(A.lgkm), list(A.vm), list(A.hist))
        t0, t1 = VD + 6, VD + 7
        A(f's_cmp_ge_u32 s{sVT}, 144')
        A('s_cbranch_scc1 M_v2')
        A(f'v_lshlrev_b32 v{t1}, 3, v{vN}')
        A(f'v_lshl_add_u32 v{t1}, v{vG}, 8, v{t1}')
        A(f'v_add_u32 v{t1}, {GAP + 6144}, v{t1}')
        A('s_waitcnt vmcnt(0)')
        for k in range(6):
            A(f'ds_read_b128 v[{VA+4*k}:{VA+4*k+3}], v{t0} offset:{1024*k}')
        A('s_waitcnt lgkmcnt(2)')
        for k in range(6):
            for hh in range(2):
                A(f'ds_read_b64_tr_b16 v[{VB+4*k+2*hh}:{VB+4*k+2*hh+1}], v{t1} offset:{1024*k + 128*hh}')
        A('s_waitcnt lgkmcnt(0)')
        for k in range(6):
            A(mf(VD, VA + 4*k, VB + 4*k, None if k == 0 else VD))
        A(f'v_bfe_u32 v{t0}, v{vN}, 1, 1')
        A(f'v_mul_u32_u24 v{t0}, 12288, v{t0}')
        A(f'v_and_b32 v{t1}, 1, v{vN}')
        A(f'v_lshl_add_u32 v{t0}, v{t1}, 10, v{t0}')
        A(f'v_lshrrev_b32 v{t1}, 2, v{vN}')
        A(f'v_lshl_add_u32 v{t0}, v{t1}, 4, v{t0}')
        A(f'v_lshl_add_u32 v{t0}, v{vG}, 8, v{t0}')
        A(f'v_cvt_pk_bf16_f32 v{VD+4}, v{VD}, v{VD+1}')
        A(f'v_cvt_pk_bf16_f32 v{VD+5}, v{VD+2}, v{VD+3}')
        A(f'buffer_store_dwordx2 v[{VD+4}:{VD+5}], v{t0}, s[{S_WS}:{S_WS+3}], s{sVO} offen sc1')
        A.label('M_v2')
        A.lgkm, A.vm, A.hist = save
    def vsig1():
        A(f's_cmp_ge_u32 s{sVT}, 144')
        A('s_cbranch_scc1 M_v4')
        A.skip('v_mov_b32 v255, 1'); A.skip('v_mov_b32 v0, 0')
        A.skip('s_mov_b64 exec, 1')
        A.raw('  s_waitcnt vmcnt(0)')
        A.raw(f'  buffer_atomic_add v255, v0, s[{S_DBG}:{S_DBG+3}], 0 offen sc0 sc1')
        A.skip('s_mov_b64 exec, -1')
        A.label('M_v4')
    def bar():
        A(f's_cmp_ge_u32 s{sVT}, 144')
        A('s_cbranch_scc1 M_v5')
        A.raw('  s_waitcnt vmcnt(0)')
        A.skip(f'v_readfirstlane_b32 s{sT1}, v255')
        A.skip('s_nop 1')
        A.skip(f's_cmp_lg_u32 s{sT1}, 143')
        A.skip('s_cbranch_scc1 M_v5')
        A.skip('s_mov_b64 exec, 1')
        A.raw(f'  buffer_store_dword v255, v0, s[{S_DBG}:{S_DBG+3}], 0 offen offset:128 sc1')
        A.skip('s_mov_b64 exec, -1')
        A.label('M_v5')
        A('s_barrier')
        if 'noxrow' not in OPT: bgA[0:0] = xrow
    def bar4():
        A('s_waitcnt vmcnt(0)'); A('s_barrier')
        prio(3, 2)
    xm = {2*48+1: [f'ds_read_b128 v[{WF}:{WF+3}], v{vWAM} offset:{60*1024}'],
          2*49+1: [f'ds_read_b128 v[{WF+4}:{WF+7}], v{vWAM} offset:{61*1024}']}
    pend = gemm_phase(XQ, locA, finA, hooks={0: vcomp, 1: vsig1, 2: bar, 4: bar4}, bg=bgA, extra_mem=xm, ghooks={int(OPT.get('mk', '44')): lambda: bgA.extend(masks())})
    assert not bgA
    stamp()
    padat('S')
    cond('M_l1', False, lambda: A.skip('s_barrier'))
    seq = []
    for (a1, a2) in ((0, 3), (1, 4), (2, 5), (7, 6), (8, 9)):
        for s in range(6):
            seq.append((a1, s)); seq.append((a2, s))
    def users(tau):
        u = []
        if tau <= 6: u.append((0, tau))
        if tau >= 3: u.append((1, tau - 3))
        return u
    def rdS(i):
        tau, s = seq[i]
        buf = RING + 4*(i % 8)
        return f'ds_read_b128 v[{buf}:{buf+3}], v{vAS + (s % 4)} offset:{tau*768 + (256 if s >= 4 else 0)}'
    D = 7
    for i in range(D): A(rdS(i))
    for t in pend: A(t)
    vM = [12, 13]; vX = [14, 15]
    A(f's_mov_b32 s{sT1}, 0xff7fffff')
    ms, mem, side = [], {}, []
    started = [False, False]; ndone = [0, 0]
    def xl(G):
        o = []
        for sw in ('v_permlane32_swap_b32', 'v_permlane16_swap_b32'):
            o += [f'v_mov_b32 v{vX[G]}, v{vM[G]}', f'{sw} v{vM[G]}, v{vX[G]}', f'v_max_f32 v{vM[G]}, v{vM[G]}, v{vX[G]}']
        return o + [f'v_mul_f32 v{vM[G]}, s{sSC}, v{vM[G]}']
    for i, (tau, s) in enumerate(seq):
        a = RING + 4*(i % 8)
        for (G, tl) in users(tau):
            r = sreg(G, tl)
            ms.append(mf(r, a, QP + 24*G + 4*s, r))
            if s == 5:
                e = len(ms) + 3
                side.append((e, f'v_max3_f32 v{vM[G]}, v{r}, v{r+1}, ' + (f'v{vM[G]}' if started[G] else f's{sT1}')))
                side.append((e, f'v_max3_f32 v{vM[G]}, v{r+2}, v{r+3}, v{vM[G]}'))
                started[G] = True; ndone[G] += 1
        if i % 12 == 11:
            for G in range(2):
                if ndone[G] == 7:
                    side += [(len(ms) + 3 + 2*k, t) for k, t in enumerate(xl(G))]; ndone[G] = 8
        if i + D < len(seq): mem[len(ms) - 1] = [rdS(i + D)]
    bgS = [f'v_mov_b32 v{PP+q}, 0' for q in (14, 15, 16, 17)] + [f'v_mov_b32 v{ONES+q}, 0x3f803f80' for q in range(4)]
    rest = stream(ms, mem, side, bg=bgS)
    assert not bgS
    stamp()
    prio(1, 0)
    for t in rest: A(t)
    def preg(G, tl): return PP + 16*G + 2*(tl + G)
    seqP = [(sig, u, h) for sig in range(6) for u in range(5) for h in range(2)]
    def rdP(i):
        sig, u, h = seqP[i]
        ct = 2*sig + h
        buf = RING + 4*(i % 8)
        return [f'ds_read_b64_tr_b16 v[{buf+2*hh}:{buf+2*hh+1}], v{vAP + (ct % 8)} offset:{(4*u+2*hh)*384 + (256 if ct >= 8 else 0)}' for hh in range(2)]
    DP = 6
    def b4L(): A.skip('s_barrier')
    B3AT, B4AT = int(OPT.get('b3', '1')), int(OPT.get('b4', '6'))
    if B3AT < 0: cond('M_e2', True, lambda: A.skip('s_barrier'))
    for tl in range(7):
        for G in range(2):
            r = sreg(G, tl)
            for k in range(4): A(f'v_fma_f32 v{r+k}, v{r+k}, s{sSC}, -v{vM[G]}')
            for k in range(4): A(f'v_exp_f32 v{r+k}, v{r+k}')
        for G in range(2):
            r = sreg(G, tl)
            p = preg(G, tl)
            A(f'v_cvt_pk_bf16_f32 v{p}, v{r}, v{r+1}')
            A(f'v_cvt_pk_bf16_f32 v{p+1}, v{r+2}, v{r+3}')
        if tl == B3AT: cond('M_e2', True, lambda: A.skip('s_barrier'))
        if tl >= B3AT:
            for t2 in range(0 if tl == max(B3AT, 0) else tl, tl + 1):
                if t2 % 2 == 0: A(f's_mov_b32 s{sT0}, {(10 + 2*t2)*1024}')
                for G in range(2):
                    r = sreg(G, t2)
                    A(f'buffer_load_dwordx4 v[{r}:{r+3}], v{vWA0}, s[{S_WS}:{S_WS+3}], s{sT0} offen offset:{1024*(2*(t2%2)+G)} sc1')
        if tl == 5:
            for i in range(DP):
                for t in rdP(i): A(t)
        if tl == B4AT: cond('M_l2', False, b4L)
    stamp()
    prio(3, 2)
    padat('P')
    ms, first, side, hk = [], [], [], {}
    def b5L():
        cond('M_l3', False, lambda: A.skip('s_barrier'))
    if int(OPT.get('b5', '1')) < 0: b5L()
    sums = [mf(vINV + 4*G, PP + 16*G + 4*u, ONES, None if u == 0 else vINV + 4*G) for u in range(4) for G in range(2)]
    for i, (sig, u, h) in enumerate(seqP):
        a = RING + 4*(i % 8)
        accb = ACC + 16*(sig & 1)
        first.append(len(ms))
        for G in range(2):
            uu = u - G
            if 0 <= uu <= 3:
                d = accb + 8*G + 4*h
                ms.append(mf(d, a, PP + 16*G + 4*uu, None if uu == 0 else d))
        if i % 10 in (1, 9) and 1 <= sig <= 4: ms.append(sums.pop(0))
        if i % 10 == 9:
            e = len(ms) - 1
            side += [(e + 4, t, e + 16) for t in finA(sig, accb)]
            if sig == int(OPT.get('b5', '1')): hk[e] = b5L
    assert not sums
    mem = {}
    k = 0
    nrd = 2*(len(seqP) - DP)
    ngap = first[-1] - 5
    for j in range(DP, len(seqP)):
        for t in rdP(j):
            gp = (k * ngap) // nrd
            if j >= 8: gp = max(gp, first[j - 7] - 1)
            assert gp < first[j] - 3, (j, gp, first[j])
            mem.setdefault(gp, []).append(t); k += 1
    pend = stream(ms, mem, side, hk)
    A('s_waitcnt vmcnt(0)')
    stamp()
    def b4E():
        A.skip('s_barrier')
        A.skip(f's_mul_i32 s{sT0}, s{sW}, 9216')
        A.skip(f's_sub_u32 s{sT0}, s{sT0}, {4*9216 - 12288}')
        A.skip(f's_add_u32 s{sT4}, s{sT0}, {24*1024}')
        for blk in range(3):
            A.skip(f's_mov_b32 m0, s{sT0}')
            A.skip(f's_add_u32 s{sT0}, s{sT0}, 3072')
            for i in range(3):
                A.raw(f'  buffer_load_dwordx4 v{vWA0}, s[{S_WS}:{S_WS+3}], s{sT4} offen offset:{1024*i} sc1 lds')
            A.skip(f's_add_u32 s{sT4}, s{sT4}, 3072')
    cond('M_e3', True, b4E)
    def finE(sig, accb):
        out = []
        for G in range(2):
            for r in range(4):
                for h in range(2):
                    out.append(f'v_mul_f32 v{accb+8*G+4*h+r}, v{accb+8*G+4*h+r}, v{vINV+4*G+r}')
                o = OST + 8*G + 2*r
                out.append(f'v_cvt_pk_bf16_f32 v{o+(sig&1)}, v{accb+8*G+r}, v{accb+8*G+4+r}')
                if sig & 1:
                    out.append(f'buffer_store_dwordx2 v[{o}:{o+1}], v{vOA+4*G+r}, s[{S_OUT}:{S_OUT+3}], 0 offen offset:{128*(sig>>1)}{ONT}')
        return out
    def locE(f):
        if f < 10: return ('lds', vWA1, f*1024)
        if f < 24: return ('reg', sreg((f-10) % 2, (f-10) // 2))
        return ('lds', vWA0, (f-24)*1024)
    def b5E():
        def body():
            A.raw('  s_waitcnt vmcnt(0)'); A.skip('s_barrier')
        cond('M_e4', True, body)
        padat('O')
        stamp()
    for t in pend: A(t)
    bgE = [f'v_rcp_f32 v{vINV+q}, v{vINV+q}' for q in range(8)]
    hE = {}
    if OPT.get('pe') == '1': hE = {3: lambda: prio(1, 0)}
    if OPT.get('pe') == '2': hE = {2: lambda: prio(1, 2), 4: lambda: prio(1, 0)}
    if OPT.get('pe') == '3': hE = {4: lambda: prio(1, 2)}
    pend = gemm_phase(QP, locE, finE, swap=True, bg=bgE, hooks=hE, D=int(OPT.get('de', '4')), ghooks={2*(24 - int(OPT.get('de', '4'))) - 1: b5E})
    padat('Z')
    for t in pend: A(t)
    if STAMP:
        stamp()
        A('s_waitcnt vmcnt(0)')
        stamp(1)
        write_stamps()
    if 'pad' in OPT:
        A('s_waitcnt vmcnt(0)')
        A.label('PADL')
        A.raw('  s_memrealtime s[98:99]')
        A.raw('  s_waitcnt lgkmcnt(0)')
        A('s_sub_u32 s98, s98, s96')
        A(f's_cmp_lt_u32 s98, {OPT["pad"]}')
        A('s_cbranch_scc1 PADL')
    A('s_endpgm')

    A.label('M_helper'); A.reset()
    nstamp[0] = 6
    def rows(lst):
        for i in lst:
            row_soff(sT1, str(i))
            b = vAP if i & 1 else WF
            for j in range(8):
                a = b + j
                if i & 6:
                    a = 64 + j
                    A(f'v_xor_b32 v{a}, {16*(i & 6)}, v{b+j}')
                A(f's_mov_b32 m0, {i*ROWB + 16*PIECE[j]}')
                A(f'buffer_load_dwordx4 v{a}, s[{S_X}:{S_X+3}], s{sT1} offen{KNT} lds')
            if len(A.vm) >= 56: A('s_waitcnt vmcnt(40)')
    rows([0, 2, 4, 6, 8])
    row_addrs(vAP, '8')
    rows([1, 3, 5, 7])
    stamp()
    A('s_barrier')
    A('s_waitcnt vmcnt(0)')
    stamp()
    A('s_barrier')
    rows([16, 17, 18, 19])
    A('s_waitcnt vmcnt(0)')
    stamp()
    poll('H_pollV', 128)
    A(f's_lshr_b32 s{sT0}, s2, 3')
    A(f's_mul_i32 s{sT0}, s{sT0}, 2304')
    for i in range(3):
        A(f'buffer_load_dwordx4 v[{80+4*i}:{83+4*i}], v{vWA0}, s[{S_WS}:{S_WS+3}], s{sT0} offen offset:{1024*i} sc1')
    stamp()
    A('s_barrier')
    def wfr(src0, n, lds0):
        for i in range(n):
            if i % 4 == 0:
                A(f's_mov_b32 m0, {lds0 + i*1024}')
                A(f's_mov_b32 s{sT4}, {(src0 + i)*1024}')
            A(f'buffer_load_dwordx4 v{vWA0}, s[{S_WS}:{S_WS+3}], s{sT4} offen offset:{1024*(i%4)} sc1 lds')
    wfr(0, 10, SPARE)
    A('s_waitcnt vmcnt(0)')
    stamp()
    A('s_barrier')
    wfr(24, 12, 0)
    A('s_waitcnt vmcnt(0)')
    stamp()
    A('s_barrier')
    if STAMP:
        stamp(1)
        write_stamps()
    A.label('M_done')
    A('s_endpgm')
    A.label('CODE_END')

gen_main()
A.raw('.section .rodata,"a"')
A.raw('.p2align 6')
A.raw(f'.amdhsa_kernel {NAME}')
A.raw('  .amdhsa_next_free_vgpr 256')
A.raw('  .amdhsa_next_free_sgpr 102')
A.raw('  .amdhsa_accum_offset 256')
A.raw('  .amdhsa_group_segment_fixed_size 0')
A.raw('  .amdhsa_kernarg_size 48')
A.raw('  .amdhsa_user_sgpr_count 2')
A.raw('  .amdhsa_user_sgpr_kernarg_segment_ptr 1')
A.raw('  .amdhsa_system_sgpr_workgroup_id_x 1')
A.raw('.end_amdhsa_kernel')
open(OUT, 'w').write(A.text())
print('instr', A.n_inst, 'nops', A.nops, 'maxv', A.maxv)
```

```python
import sys, struct
sys.path.insert(0, 'gen')
from asmlib import Asm

OUT = sys.argv[1] if len(sys.argv) > 1 else 'standalone__neighborhood_nat__vision.s'
OPT = dict(a.split('=') if '=' in a else (a, '1') for a in sys.argv[2:])
STAMP = 'stamp' in OPT
XNT = ' nt' if OPT.get('xnt', '0') == '1' else ''
KNT = ' nt' if OPT.get('knt', '0') == '1' else ''
ONT = [{'0': '', '1': ' nt', '2': ' sc1', '3': ' sc0 sc1', '4': ' sc0 sc1 nt'}[c] for c in (OPT.get('ont', '2') * 3)[:3]]
NAME = 'standalone__neighborhood_nat__vision_kernel'

X_BYTES = 19267584
WS_BYTES = 268435456
ROWB = 7680
MB = 90112
SPARE = 153600
GAP = 73728
def f32bits(x): return struct.unpack('<I', struct.pack('<f', x))[0]
SCALE = f32bits(192 ** -0.5 * 1.4426950408889634)
NEGINF = 0xff800000
PIECE = [0, 64, 128, 192, 256, 320, 384, 416]

A = Asm()
hdr = open('standalone__neighborhood_nat__vision.s.ref').read().split('\n')
for ln in hdr:
    if ln.startswith('; @launch'): break
    A.raw(ln)
A.raw('; @launch grid=(256,1,1) block=(512,1,1) lds=163840')
A.raw('.amdgcn_target "amdgcn-amd-amdhsa--gfx950"')
A.raw('.text')

def srd(d, lo, hi, nbytes):
    A(f's_mov_b32 s{d}, s{lo}'); A(f's_and_b32 s{d+1}, s{hi}, 0xffff')
    A(f's_mov_b32 s{d+2}, {nbytes}'); A(f's_mov_b32 s{d+3}, 0x00020000')
def mf(d, a, b, c):
    cs = '0' if c is None else f'v[{c}:{c+3}]'
    return f'v_mfma_f32_16x16x32_bf16 v[{d}:{d+3}], v[{a}:{a+3}], v[{b}:{b+3}], {cs}'

S_X, S_OUT, S_WS, S_W, S_WO, S_DBG = 16, 20, 24, 28, 32, 36
sW, sPR, sPC, sTR, sTC = 40, 41, 42, 43, 44
sKR0, sKC0B = 45, 46
sLOR, sHIR, sSHR, sLOC, sHIC = 47, 48, 49, 50, 51
sBASE, sSTRIP, sNEG = 52, 53, 54
sT0, sT1, sT2, sT3, sT4, sT5 = 55, 56, 57, 58, 59, 60
sALR, sALC, sSC = 61, 62, 63
sST = 64
sXR, sXL = 100, 101
sOA = 4
sB0, sF = 92, 93
sM1, sM2 = 0, 10
sVT, sVO = 94, 95
vL, vG, vN = 1, 2, 3
vT = 4
vR0, vR3, vCB = 12, 13, 14
XQ = 16
PP = 16
vOA = 4
vINV = 56
SACC = 64
OST = 16
W1 = 64
ONES = 48
QP = 120
ACC = 168
RING = 200
WF = 232
vAS = 240
vAP = 244
vWA0, vWA1, vWAM = 252, 253, 254
vSW, vSR = 255, 199
vWD = RING
MBQ = 64
MACC = 136
MPK = 184
MWA = 192

nstamp = [0]
def stamp(real=None):
    if not STAMP: return
    i = nstamp[0]; nstamp[0] += 1
    assert i < 14
    A.raw(f'  s_mem{"real" if "rt" in OPT else ""}time s[{sST+2*i}:{sST+1+2*i}]')
    if real is not None:
        A.raw(f'  s_memrealtime s[{96+2*real}:{97+2*real}]')
def write_stamps():
    n = nstamp[0]
    A('s_waitcnt lgkmcnt(0)')
    A(f'v_mov_b32 v{RING}, 0')
    if 'dbg' in OPT:
        lbl = f'WS_skip{n}'
        A(f's_cmp_lg_u32 s2, {OPT["dbg"].split(",")[0]}')
        A(f's_cbranch_scc1 {lbl}')
        A(f's_cmp_lg_u32 s{sW}, {OPT["dbg"].split(",")[1]}')
        A(f's_cbranch_scc1 {lbl}')
        for i in range(1, n):
            A(f's_sub_u32 s{sT0}, s{sST+2*i}, s{sST}')
            A(f'v_writelane_b32 v{RING}, s{sT0}, {i}')
        A(f's_sub_u32 s{sT0}, s98, s96')
        A(f'v_writelane_b32 v{RING}, s{sT0}, 15')
        srd(S_DBG, 12, 13, 256)
        A(f'v_lshlrev_b32 v{RING+1}, 2, v{vL}')
        A('s_mov_b64 exec, 0xfffe')
        A(f'buffer_store_dword v{RING}, v{RING+1}, s[{S_DBG}:{S_DBG+3}], 0 offen')
        A.label(lbl)
        return
    for i in range(n):
        A(f'v_writelane_b32 v{RING}, s{sST+2*i}, {i}')
    A(f'v_writelane_b32 v{RING}, s96, 14')
    A(f'v_writelane_b32 v{RING}, s98, 15')
    A(f's_lshl_b32 s{sT0}, s2, 3')
    A(f's_add_u32 s{sT0}, s{sT0}, s{sW}')
    A(f's_lshl_b32 s{sT0}, s{sT0}, 6')
    A(f's_add_u32 s{sT0}, s{sT0}, 0x100000')
    A(f'v_lshlrev_b32 v{RING+1}, 2, v{vL}')
    A('s_mov_b64 exec, 0xffff')
    A(f'buffer_store_dword v{RING}, v{RING+1}, s[{S_WS}:{S_WS+3}], s{sT0} offen')

def row_addrs(b, sF, A=A):
    for j in (0, 1, 2, 7):
        A(f'v_add_u32 v{vT}, {PIECE[j]}, v{vL}')
        A(f'v_xor_b32 v{vT}, {sF}, v{vT}')
        A(f'v_mul_u32_u24 v{vT+1}, 2731, v{vT}')
        A(f'v_lshrrev_b32 v{vT+1}, 16, v{vT+1}')
        A(f'v_mul_u32_u24 v{vT+1}, 384, v{vT+1}')
        A(f'v_lshl_add_u32 v{vT}, v{vT}, 4, v{vT+1}')
        A(f'v_add_u32 v{b+j}, s{sKC0B}, v{vT}')
        if j < 3:
            A(f'v_add_u32 v{b+j+3}, {8*768}, v{b+j}')
            if j == 0: A(f'v_add_u32 v{b+6}, {16*768}, v{b}')
            A(f'v_max_i32 v{b+j}, 0, v{b+j}')
def row_soff(dst, srow):
    A(f's_add_i32 s{dst}, s{sKR0}, {srow}')
    A(f's_lshl_b32 s{dst}, s{dst}, 1')
    A(f's_add_i32 s{dst}, s{dst}, s{sPR}')
    A(f's_max_i32 s{dst}, s{dst}, 0')
    A(f's_min_i32 s{dst}, s{dst}, 223')
    A(f's_mul_i32 s{dst}, s{dst}, 86016')

def stream(ms, mem, side, hooks=None, cap=2, bg=None, flush=()):
    side = [x if len(x) == 3 else (x[0], x[1], 10**9) for x in side]
    bg = bg if bg is not None else []
    def slots(lo, hi):
        return sum(max(0, cap - len(mem.get(k, []))) for k in range(lo, hi + 1))
    for i, m in enumerate(ms):
        assert not (side and side[0][2] < i), ('deadline missed', side[0], i)
        A(m)
        if i + 1 < len(ms) and not (hooks and i in hooks): A.prewait(ms[i+1])
        n = 0
        for t in mem.get(i, []):
            A(t); n += 1
        c = cap
        if side and side[0][2] < len(ms):
            dl = side[0][2]
            if sum(1 for x in side if x[2] == dl) > slots(i, dl): c = cap + 1
        while side and n < c and side[0][0] <= i:
            A(side.pop(0)[1]); n += 1
        while bg and n < cap:
            A(bg.pop(0)); n += 1
        if i in flush:
            while side and side[0][0] <= i + 4: A(side.pop(0)[1])
        if hooks and i in hooks: hooks[i]()
    return [x[1] for x in side]

def gemm_phase(B, loc, finish, swap=False, hooks=None, D=6, gate=None, bg=None, extra_mem=None, ghooks=None, flush=()):
    def rd(f):
        l = loc(f)
        if l[0] == 'lds':
            buf = RING + 4*(f % 8)
            return [f'ds_read_b128 v[{buf}:{buf+3}], v{l[1]} offset:{l[2]}']
        return []
    ms, mem, side, hk = [], dict(extra_mem or {}), [], dict(ghooks or {})
    for f in range(D):
        for t in rd(f): A(t)
    for f in range(72):
        sig, s, h = f // 12, (f % 12) // 2, f % 2
        l = loc(f)
        a = RING + 4*(f % 8) if l[0] == 'lds' else l[1]
        accb = ACC + 16*(sig & 1)
        for G in range(2):
            d = accb + 8*G + 4*h
            b = B + 24*G + 4*s
            ms.append(mf(d, b, a, None if s == 0 else d) if swap else mf(d, a, b, None if s == 0 else d))
        fn = f + D
        if fn < 72 and not (gate is not None and f < gate <= fn):
            mem[2*f] = rd(fn)
        if f % 12 == 11:
            side += [(2*f + 1 + 3, t, 2*f + 1 + 24) for t in finish(sig, accb)]
            if hooks and sig in hooks:
                def mk(sig=sig, f=f):
                    def h():
                        hooks[sig]()
                        if gate is not None and f + 1 == gate:
                            for k in range(gate, gate + D):
                                for t in rd(k): A(t)
                    return h
                hk[2*f + 1] = mk()
    return stream(ms, mem, side, hk, bg=bg, flush=flush)

def poll(label, off):
    A(f'v_mov_b32 v{vT+2}, 0')
    A(f's_mov_b32 s{sT4}, 0')
    A('s_mov_b64 exec, 1')
    A.label(label)
    A(f'buffer_load_dword v{vT+3}, v{vT+2}, s[{S_DBG}:{S_DBG+3}], 0 offen offset:{off} sc1')
    A('s_waitcnt vmcnt(0)')
    A(f'v_cmp_eq_u32 vcc, 0, v{vT+3}')
    A(f's_add_u32 s{sT4}, s{sT4}, 1')
    A(f's_cmp_gt_u32 s{sT4}, 200000')
    A(f's_cbranch_scc1 {label}_x')
    A('s_cmp_lg_u64 vcc, 0')
    A(f's_cbranch_scc0 {label}_x')
    A('s_sleep 2')
    A(f's_branch {label}')
    A.label(label + '_x')
    A('s_mov_b64 exec, -1')

def cond(lbl, isE, body):
    A(f's_cmp_lt_u32 s{sW}, 4' if isE else f's_cmp_ge_u32 s{sW}, 4')
    A(f's_cbranch_scc1 {lbl}')
    body()
    A.label(lbl)

nprio = [0]
def prio(e, l):
    nprio[0] += 1
    A(f's_setprio {l}')
    if e != l: cond(f'M_pr{nprio[0]}', True, lambda: A.skip(f's_setprio {e}'))

npad = [0]
def padat(name):
    if OPT.get('padpos') != name: return
    npad[0] += 1
    A.label(f'PADM{npad[0]}')
    A.raw('  s_memrealtime s[98:99]')
    A.raw('  s_waitcnt lgkmcnt(0)')
    A.raw('  s_sub_u32 s98, s98, s96')
    A.raw(f'  s_cmp_lt_u32 s98, {OPT["padt"]}')
    A.raw(f'  s_cbranch_scc1 PADM{npad[0]}')

def gen_main():
    A.raw(f'.globl {NAME}'); A.raw('.p2align 8'); A.raw(f'.type {NAME},@function')
    A.raw(f'{NAME}:'); A.reset()
    A('s_cmp_ge_u32 s2, 256')
    A('s_cbranch_scc1 M_done')
    stamp(0)
    if 'pad' in OPT or 'padpos' in OPT: A.raw('  s_memrealtime s[96:97]')
    A('s_load_dwordx8 s[4:11], s[0:1], 0')
    A('s_load_dwordx4 s[12:15], s[0:1], 32')
    A(f'v_lshrrev_b32 v{vT}, 6, v0')
    A(f'v_and_b32 v{vL}, 63, v0')
    A(f'v_readfirstlane_b32 s{sW}, v{vT}')
    A(f'v_lshrrev_b32 v{vG}, 4, v{vL}')
    A(f'v_and_b32 v{vN}, 15, v{vL}')
    A(f'v_lshlrev_b32 v{vWA0}, 4, v{vL}')
    if OPT.get('cpf', '1') != '0':
        A('s_getpc_b64 s[16:17]')
        A('s_and_b32 s16, s16, -256')
        A('s_and_b32 s17, s17, 0xffff')
        A('s_mov_b32 s18, CODE_END-' + NAME)
        A('s_mov_b32 s19, 0x00020000')
        A(f's_lshr_b32 s{sT0}, s2, 3')
        A(f's_lshl_b32 s{sT0}, s{sT0}, 10')
        A(f's_cmp_lg_u32 s{sW}, 3')
        A('s_cbranch_scc1 M_nocpf')
        A.raw(f'  buffer_load_dwordx4 v[{MACC}:{MACC+3}], v{vWA0}, s[16:19], s{sT0} offen')
        A.label('M_nocpf')
    A(f'v_bfe_u32 v{vT+1}, v{vL}, 2, 2')
    A(f'v_lshrrev_b32 v{vT+2}, 5, v{vL}')
    A(f'v_lshlrev_b32 v{vT+3}, 1, v{vT+2}')
    A(f'v_and_b32 v{vT+4}, 3, v{vL}')
    A(f'v_xor_b32 v{vT+3}, v{vT+3}, v{vT+4}')
    A(f'v_lshlrev_b32 v{vT+3}, 4, v{vT+3}')
    A(f's_movk_i32 s{sT5}, 1152')
    A(f'v_lshl_add_u32 v{vT}, v{vG}, 3, v{vT+1}')
    A(f'v_mad_u32_u24 v{vWD}, v{vT}, s{sT5}, v{vT+3}')
    A(f'v_lshl_add_u32 v{vT}, v{vG}, 5, v{vT+1}')
    A(f'v_mad_u32_u24 v{vWD+1}, v{vT}, s{sT5}, v{vT+3}')
    A(f'v_mul_u32_u24 v{vT+2}, {48*1152}, v{vT+2}')
    A(f'v_sub_u32 v{vWD+2}, v{vWD+1}, v{vT+2}')
    A(f'v_lshrrev_b32 v{vT}, 2, v{vL}')
    A(f'v_mad_u32_u24 v{vWD+3}, v{vT}, s{sT5}, v{vT+3}')
    A(f'v_lshrrev_b32 v{vT}, 3, v{vN}')
    A(f'v_lshlrev_b32 v{vT}, 1, v{vT}')
    A(f'v_xor_b32 v{vT}, v{vT}, v{vG}')
    A(f'v_lshl_add_u32 v{vT}, v{vN}, 2, v{vT}')
    A(f'v_lshlrev_b32 v{MWA+3}, 4, v{vT}')
    A(f's_and_b32 s{sT0}, s2, 7')
    A(f's_lshr_b32 s{sT1}, s2, 3')
    MAP = OPT.get('map', '0')
    if MAP == '0':
        A(f's_lshr_b32 s{sPR}, s{sT0}, 2')
        A(f's_bfe_u32 s{sPC}, s{sT0}, 0x10001')
        A(f's_and_b32 s{sT0}, s{sT0}, 1')
        A(f's_lshl_b32 s{sT0}, s{sT0}, 2')
        A(f's_lshr_b32 s{sTR}, s{sT1}, 3')
        A(f's_add_u32 s{sTR}, s{sTR}, s{sT0}')
        A(f's_and_b32 s{sTC}, s{sT1}, 7')
    elif MAP == '1':
        A(f's_mov_b32 s{sTR}, s{sT0}')
        A(f's_and_b32 s{sPR}, s{sT1}, 1')
        A(f's_bfe_u32 s{sPC}, s{sT1}, 0x10001')
        A(f's_lshr_b32 s{sTC}, s{sT1}, 2')
    elif MAP == '2':
        A(f's_lshr_b32 s{sPR}, s{sT0}, 2')
        A(f's_and_b32 s{sT0}, s{sT0}, 3')
        A(f's_lshl_b32 s{sT0}, s{sT0}, 1')
        A(f's_lshr_b32 s{sTR}, s{sT1}, 4')
        A(f's_add_u32 s{sTR}, s{sTR}, s{sT0}')
        A(f's_and_b32 s{sPC}, s{sT1}, 1')
        A(f's_bfe_u32 s{sTC}, s{sT1}, 0x30001')
    else:
        A(f's_and_b32 s{sPR}, s{sT1}, 1')
        A(f's_bfe_u32 s{sPC}, s{sT1}, 0x10001')
        A(f's_and_b32 s{sTR}, s{sT0}, 6')
        A(f's_lshr_b32 s{sT2}, s{sT1}, 4')
        A(f's_add_u32 s{sTR}, s{sTR}, s{sT2}')
        A(f's_and_b32 s{sT0}, s{sT0}, 1')
        A(f's_lshl_b32 s{sT0}, s{sT0}, 2')
        A(f's_bfe_u32 s{sTC}, s{sT1}, 0x20002')
        A(f's_add_u32 s{sTC}, s{sTC}, s{sT0}')
    A(f's_mul_i32 s{sTR}, s{sTR}, 14')
    A(f's_mul_i32 s{sTC}, s{sTC}, 14')
    def scalar_setup():
        srd(S_X, 4, 5, X_BYTES)
        srd(S_WS, 14, 15, WS_BYTES)
        srd(S_OUT, 10, 11, X_BYTES)
        srd(S_DBG, 12, 13, 256)
        A(f's_mul_i32 s{sALR}, s{sPR}, 13')
        A(f's_add_i32 s{sALR}, s{sALR}, -6')
        A(f's_mul_i32 s{sALC}, s{sPC}, 13')
        A(f's_add_i32 s{sALC}, s{sALC}, -6')
        A(f's_cmp_ge_u32 s{sW}, 4')
        A(f's_cselect_b32 s{sSTRIP}, -4, 3')
        A(f's_add_i32 s{sSTRIP}, s{sSTRIP}, s{sW}')
        A(f's_lshl_b32 s{sSTRIP}, s{sSTRIP}, 1')
        A(f's_mul_i32 s{sT0}, s{sPR}, 6')
        A(f's_add_i32 s{sKR0}, s{sTR}, s{sT0}')
        A(f's_add_i32 s{sKR0}, s{sKR0}, -6')
        A(f's_cmp_eq_i32 s{sKR0}, -6')
        A(f's_cselect_b32 s{sLOR}, 6, 0')
        A(f's_cmp_eq_i32 s{sKR0}, 98')
        A(f's_cselect_b32 s{sHIR}, 7, 13')
        A(f's_cselect_b32 s{sSHR}, 2, 0')
        A(f's_sub_i32 s{sKR0}, s{sKR0}, s{sSHR}')
        A(f's_mul_i32 s{sT0}, s{sPC}, 6')
        A(f's_add_i32 s{sT1}, s{sTC}, s{sT0}')
        A(f's_add_i32 s{sT1}, s{sT1}, -6')
        A(f's_cmp_eq_i32 s{sT1}, -6')
        A(f's_cselect_b32 s{sLOC}, 6, 0')
        A(f's_cmp_eq_i32 s{sT1}, 98')
        A(f's_cselect_b32 s{sHIC}, 7, 13')
        A(f's_lshl_b32 s{sT1}, s{sT1}, 1')
        A(f's_add_i32 s{sT1}, s{sT1}, s{sPC}')
        A(f's_mul_i32 s{sKC0B}, s{sT1}, 384')
        A(f's_max_i32 s{sB0}, s{sSTRIP}, s{sLOR}')
        A(f's_min_i32 s{sB0}, s{sB0}, s{sHIR}')
        A(f's_and_b32 s{sB0}, s{sB0}, -2')
        A(f's_add_u32 s{sBASE}, s{sB0}, s{sSHR}')
        A(f's_mov_b32 s{sNEG}, {NEGINF}')
        A(f's_mov_b32 s{sSC}, {SCALE}')
        A(f's_and_b32 s{sF}, s{sW}, 1')
        A(f's_lshl_b32 s{sF}, s{sF}, 3')
        A(f's_and_b32 s{sT1}, s{sW}, 6')
        A(f's_or_b32 s{sF}, s{sF}, s{sT1}')
        A(f's_add_u32 s{sT1}, s{sW}, 8')
        row_soff(sXR, f's{sT1}')
        A(f's_mul_i32 s{sXL}, s{sT1}, {ROWB}')
        A(f's_add_u32 s{sOA}, s{sTR}, s{sSTRIP}')
        A(f's_mov_b32 s{sOA+1}, 86016')
        A(f's_movk_i32 s{sOA+2}, 384')
        A(f's_cmp_eq_u32 s{sW}, 4')
        A(f's_cselect_b32 s{sVT}, s2, 999')
        A(f's_mov_b32 s{sM1}, 0x55555555'); A(f's_mov_b32 s{sM1+1}, 0x55555555')
        A(f's_mov_b32 s{sM2}, 0x33333333'); A(f's_mov_b32 s{sM2+1}, 0x33333333')
        A('s_mov_b32 vcc_lo, 0'); A('s_mov_b32 vcc_hi, -1')

    def sreg(G, tl): return SACC + 28*G + 4*tl
    TM = [197, 198, 199, 255, 0]
    def pixaddr(dst, sel, lane):
        t0, t1, t2, t3, t4 = TM
        o = [f'v_lshrrev_b32 v{t0}, 1, v{sel}', f'v_and_b32 v{t3}, 1, v{sel}', f'v_add_u32 v{t0}, s{sOA}, v{t0}',
             f'v_lshl_add_u32 v{t4}, v{t3}, 2, s{sTC}',
             f'v_lshl_add_u32 v{t1}, v{t0}, 1, s{sALR}', f'v_add_u32 v{t2}, 112, v{t0}', f'v_lshlrev_b32 v{t3}, 30, v{t3}',
             f'v_med3_i32 v{t0}, v{t1}, v{t0}, v{t2}', f'v_mul_lo_u32 v{t0}, v{t0}, s{sOA+1}'] + lane(t0)
        for G in range(2):
            for r in range(4):
                d = dst(G, r)
                o += [f'v_add_u32 v{d}, {7*G+r}, v{t4}', f'v_lshl_add_u32 v{t1}, v{d}, 1, s{sALC}',
                      f'v_add_u32 v{t2}, 112, v{d}', f'v_med3_i32 v{d}, v{t1}, v{d}, v{t2}',
                      f'v_mad_u32_u24 v{d}, v{d}, s{sOA+2}, v{t0}']
                if r == 3: o += [f'v_add_u32 v{d}, v{d}, v{t3}']
        return o
    def oaddr(): return pixaddr(lambda G, r: vOA + 4*G + r, vG, lambda t: [f'v_lshl_add_u32 v{t}, v{vN}, 3, v{t}'])
    CQ = [XQ + 16, XQ + 20, XQ + 40, XQ + 44]
    XD = [XQ + 4*i for i in range(4)] + [XQ + 24 + 4*i for i in range(4)] + CQ
    def xaddr():
        o = [f'v_bfe_u32 v{vT}, v{vL}, 2, 2', f'v_and_b32 v{vT+1}, 3, v{vL}', f'v_lshrrev_b32 v{vT+2}, 5, v{vL}',
             f'v_lshl_add_u32 v{vT+1}, v{vG}, 2, v{vT+1}', f'v_lshlrev_b32 v{vT+2}, 7, v{vT+2}', f'v_sub_u32 v{vT+2}, 256, v{vT+2}']
        o += pixaddr(lambda G, r: XQ + 24*G + 4*r, vT, lambda t: [f'v_lshl_add_u32 v{t}, v{vT+1}, 4, v{t}'])
        for i in range(4):
            o += [f'v_cndmask_b32 v{CQ[i]}, v{XQ+4*i}, v{XQ+24+4*i}, vcc']
        for i in range(4):
            o += [f'v_add_u32 v{CQ[i]}, v{CQ[i]}, v{vT+2}']
        return o
    def xload(i):
        r = XD[i]
        return f'buffer_load_dwordx4 v[{r}:{r+3}], v{r}, s[{S_X}:{S_X+3}], 0 offen{XNT}'
    def transpose():
        T = [ACC + 4*i for i in range(4)]
        for st in range(3):
            R = XD[4*st:4*st+4]
            def sel(dst, keep, other, perm):
                for d in range(4):
                    A(f'v_cndmask_b32_dpp v{dst+d}, v{other+d}, v{keep+d}, vcc quad_perm:{perm} row_mask:0xf bank_mask:0xf')
            A(f's_mov_b64 vcc, s[{sM1}:{sM1+1}]')
            sel(T[0], R[0], R[1], '[1,0,3,2]'); sel(T[2], R[2], R[3], '[1,0,3,2]')
            A('s_not_b64 vcc, vcc')
            sel(T[1], R[1], R[0], '[1,0,3,2]'); sel(T[3], R[3], R[2], '[1,0,3,2]')
            A(f's_mov_b64 vcc, s[{sM2}:{sM2+1}]')
            sel(R[0], T[0], T[2], '[2,3,0,1]'); sel(R[1], T[1], T[3], '[2,3,0,1]')
            A('s_not_b64 vcc, vcc')
            sel(R[2], T[2], T[0], '[2,3,0,1]'); sel(R[3], T[3], T[1], '[2,3,0,1]')
        for p in range(2):
            for d in range(4):
                A(f'v_permlane32_swap_b32 v{CQ[p]+d}, v{CQ[p+2]+d}')
    def setup():
        B = Asm()
        def Fv(dst, row):
            B(f'v_and_b32 v{dst}, 1, v{row}')
            B(f'v_lshlrev_b32 v{dst}, 3, v{dst}')
            B(f'v_and_or_b32 v{dst}, v{row}, 6, v{dst}')
        B(f'v_lshrrev_b32 v{vT}, 3, v{vN}')
        B(f'v_add_u32 v{vT}, s{sSTRIP}, v{vT}')
        B(f'v_max_i32 v{vT}, s{sLOR}, v{vT}')
        B(f'v_min_i32 v{vT}, s{sHIR}, v{vT}')
        B(f'v_subrev_u32 v{vT}, s{sB0}, v{vT}')
        B(f'v_and_b32 v{vT+1}, 1, v{vG}')
        B(f'v_sub_u32 v{vT+2}, v{vT+1}, v{vT}')
        B(f'v_ashrrev_i32 v{vR0}, 31, v{vT+2}')
        B(f'v_and_b32 v{vR0}, s{sNEG}, v{vR0}')
        B(f'v_sub_u32 v{vT+2}, v{vT}, v{vT+1}')
        B(f'v_ashrrev_i32 v{vR3}, 31, v{vT+2}')
        B(f'v_and_b32 v{vR3}, s{sNEG}, v{vR3}')
        B(f'v_and_b32 v{vT}, 7, v{vN}')
        B(f'v_lshrrev_b32 v{vT+1}, 1, v{vG}')
        B(f'v_subrev_u32 v{vT+3}, 7, v{vT}')
        B(f'v_ashrrev_i32 v{vT+3}, 31, v{vT+3}')
        B(f'v_and_b32 v{vT+3}, 0x7f, v{vT+3}')
        for G in range(2):
            B(f'v_add_u32 v{vT+2}, {7*G}, v{vT}')
            B(f'v_max_i32 v{vT+2}, s{sLOC}, v{vT+2}')
            B(f'v_min_i32 v{vT+2}, s{sHIC}, v{vT+2}')
            B(f'v_lshlrev_b32 v{vT+2}, v{vT+2}, v{vT+3}')
            B(f'v_lshrrev_b32 v{vT+2}, v{vT+1}, v{vT+2}')
            B(f'v_not_b32 v{vCB+G}, v{vT+2}')
        B(f'v_add_u32 v{vT}, s{sBASE}, v{vT}')
        Fv(vT+1, vT)
        B(f'v_mul_u32_u24 v{vT}, {ROWB}, v{vT}')
        B(f'v_lshrrev_b32 v{vT+2}, 3, v{vN}')
        B(f'v_mul_u32_u24 v{vT+2}, 24, v{vT+2}')
        B(f'v_add_u32 v{vT+2}, v{vT+2}, v{vG}')
        for s in range(4):
            B(f'v_add_u32 v{vT+3}, {4*s}, v{vT+2}')
            B(f'v_xor_b32 v{vT+3}, v{vT+3}, v{vT+1}')
            B(f'v_lshl_add_u32 v{vAS+s}, v{vT+3}, 4, v{vT}')
        B(f'v_and_b32 v{vT}, 1, v{vG}')
        B(f'v_lshlrev_b32 v{vT}, 2, v{vT}')
        B(f'v_lshrrev_b32 v{vT+1}, 2, v{vN}')
        B(f'v_add3_u32 v{vT}, v{vT}, v{vT+1}, s{sBASE}')
        Fv(vT+1, vT)
        B(f'v_mul_u32_u24 v{vT}, {ROWB}, v{vT}')
        B(f'v_and_b32 v{vT+2}, 1, v{vN}')
        B(f'v_lshl_add_u32 v{vT}, v{vT+2}, 3, v{vT}')
        B(f'v_lshrrev_b32 v{vT+2}, 1, v{vG}')
        B(f'v_mul_u32_u24 v{vT+2}, 24, v{vT+2}')
        B(f'v_bfe_u32 v{vT+3}, v{vN}, 1, 1')
        B(f'v_add_u32 v{vT+2}, v{vT+2}, v{vT+3}')
        for ct in range(8):
            B(f'v_add_u32 v{vT+3}, {2*ct}, v{vT+2}')
            B(f'v_xor_b32 v{vT+3}, v{vT+3}, v{vT+1}')
            B(f'v_lshl_add_u32 v{vAP+ct}, v{vT+3}, 4, v{vT}')
        B(f'v_add_u32 v{vWA1}, {SPARE}, v{vWA0}')
        B(f'v_add_u32 v{vWAM}, {MB}, v{vWA0}')
        row_addrs(WF, f's{sF}', B)
        return [l.strip() for l in B.lines]
    def masks():
        out = []
        for tl in range(7):
            a = []
            for G in range(2):
                tau = tl + 3*G
                r = sreg(G, tl)
                a.append([f'v_bfe_i32 v{r+2}, v{vCB+G}, {2*tau}, 1', f'v_and_b32 v{r+1}, s{sNEG}, v{r+2}',
                          f'v_and_b32 v{r+2}, s{sNEG}, v{r+2}', f'v_or_b32 v{r}, v{r+1}, v{vR0}', f'v_or_b32 v{r+3}, v{r+1}, v{vR3}'])
            for x, y in zip(*a): out += [x, y]
        return out

    N1 = int(OPT.get('n1', '6'))
    A(f's_cmp_lt_u32 s{sW}, 4')
    A('s_waitcnt lgkmcnt(0)')
    A(f's_mov_b32 s{S_W}, s6'); A(f's_mov_b32 s{S_W+1}, s7')
    A(f's_mov_b32 s{S_W+2}, {192*576*2}'); A(f's_mov_b32 s{S_W+3}, 0x00020000')
    A('s_cbranch_scc1 M_mw')
    scalar_setup()
    srd(S_WO, 8, 9, 192*192*2)
    for t in xaddr() + setup() + oaddr(): A(t)
    stamp()
    A(f's_and_b32 s{sT0}, s{sW}, 3')
    A(f's_mul_i32 s{sT2}, s{sT0}, 6144')
    A(f's_mul_i32 s{sT1}, s{sT0}, 4608')
    Q1 = int(OPT.get('q1', '12'))
    for i in range(3):
        for k in range(6):
            if 6*i + k == Q1:
                A(f's_waitcnt vmcnt({Q1 - 6})')
                A('s_barrier')
            A(f's_add_u32 m0, s{sT2}, {(24*i + k)*1024 - 64*k}')
            A(f'buffer_load_dwordx4 v{vWD + 1 + i//2}, s[{S_W}:{S_W+3}], s{sT1} offen offset:{64*k} lds')
        if i < 2: A(f's_add_u32 s{sT1}, s{sT1}, {(16 if i == 0 else 112)*1152}')
    A('s_waitcnt vmcnt(4)')
    for i in range(N1): A.raw('  ' + xload(i))
    A(f's_waitcnt vmcnt({N1})')
    stamp()
    A('s_barrier')
    for i in range(N1, 12): A.raw('  ' + xload(i))
    stamp()
    A.vm = [A.parse(xload(i)).w for i in range(12)]
    transpose()
    VA, VB, VD = MBQ, MBQ + 24, MBQ + 48
    A(f's_cmp_ge_u32 s{sVT}, 144')
    A('s_cbranch_scc1 M_v1')
    A(f's_mul_hi_u32 s{sT0}, s2, 0x15555556')
    A(f's_mul_i32 s{sT1}, s{sT0}, 12')
    A(f's_sub_u32 s{sT1}, s2, s{sT1}')
    A(f's_mul_i32 s{sT2}, s{sT0}, {16*1152}')
    for k in range(6):
        A(f's_mov_b32 m0, {GAP + 1024*k - 768 - 64*k}')
        A(f'buffer_load_dwordx4 v{vWD+3}, s[{S_W}:{S_W+3}], s{sT2} offen offset:{768 + 64*k} lds')
    A(f'v_lshrrev_b32 v{VD}, 1, v{vL}')
    A(f'v_mul_u32_u24 v{VD}, 384, v{VD}')
    A(f'v_and_b32 v{VD+1}, 1, v{vL}')
    A(f'v_lshl_add_u32 v{VD}, v{VD+1}, 4, v{VD}')
    A(f's_lshl_b32 s{sT2}, s{sT1}, 5')
    for k in range(6):
        A(f's_mov_b32 m0, {GAP + 6144 + 1024*k}')
        A(f'buffer_load_dwordx4 v{VD}, s[{S_WO}:{S_WO+3}], s{sT2} offen lds')
        A(f's_add_u32 s{sT2}, s{sT2}, {32*384}')
    A(f's_lshr_b32 s{sT2}, s{sT1}, 2')
    A(f's_mul_i32 s{sVO}, s{sT2}, 24576')
    A(f's_and_b32 s{sT1}, s{sT1}, 3')
    A(f's_lshl_b32 s{sT1}, s{sT1}, 6')
    A(f's_add_u32 s{sVO}, s{sVO}, s{sT1}')
    A(f's_lshr_b32 s{sT1}, s{sT0}, 1')
    A(f's_lshl_b32 s{sT1}, s{sT1}, 11')
    A(f's_add_u32 s{sVO}, s{sVO}, s{sT1}')
    A(f's_and_b32 s{sT0}, s{sT0}, 1')
    A(f's_lshl_b32 s{sT0}, s{sT0}, 3')
    A(f's_add_u32 s{sVO}, s{sVO}, s{sT0}')
    A(f'v_add_u32 v{VD+6}, {GAP}, v{MWA+3}')
    A.label('M_v1'); A.reset()
    stamp()
    A('s_barrier')
    stamp()
    A('s_setprio 1')
    A('s_branch M_pa')
    A.label('M_mw'); A.reset()
    nstamp[0] -= 5
    A(f's_lshr_b32 s{sT0}, s2, 3')
    A(f's_cmp_lg_u32 s{sW}, 1')
    A('s_cbranch_scc1 M_nowarm1')
    A(f's_mul_i32 s{sT0}, s{sT0}, 6912')
    A(f's_add_u32 s{sT1}, s{sT0}, 4096')
    for i in range(7):
        A(f'buffer_load_dwordx4 v[{MACC+4*i}:{MACC+4*i+3}], v{vWA0}, s[{S_W}:{S_W+3}], s{sT0 + i//4} offen offset:{1024*(i%4)}')
    A.label('M_nowarm1')
    A(f's_cmp_lg_u32 s{sW}, 2')
    A('s_cbranch_scc1 M_nowarm2')
    srd(S_WO, 8, 9, 192*192*2)
    A(f's_mul_i32 s{sT0}, s{sT0}, 2304')
    for i in range(3):
        A(f'buffer_load_dwordx4 v[{MACC+4*i}:{MACC+4*i+3}], v{vWA0}, s[{S_WO}:{S_WO+3}], s{sT0} offen offset:{1024*i}')
    A.label('M_nowarm2'); A.reset()
    A(f's_mul_i32 s{sT2}, s{sW}, 18432')
    A(f's_mul_i32 s{sT0}, s{sW}, 3')
    for i in range(3):
        A(f's_add_u32 s{sT1}, s{sT0}, {i}')
        A(f's_lshr_b32 s{sT3}, s{sT1}, 1')
        A(f's_and_b32 s{sT1}, s{sT1}, 1')
        A(f's_mul_i32 s{sT4}, s{sT3}, 12')
        A(f's_add_u32 s{sT4}, s{sT4}, s{sT1}')
        A(f's_lshl_b32 s{sT4}, s{sT4}, 10')
        A(f's_add_u32 s{sT4}, s{sT4}, {MB}')
        A(f'v_add_u32 v{MWA+i}, s{sT4}, v{vWA0}')
        A(f's_mul_i32 s{sT3}, s{sT3}, {32*1152}')
        A(f's_mul_i32 s{sT1}, s{sT1}, 4608')
        A(f's_add_u32 s{sT1}, s{sT1}, s{sT3}')
        for k in range(6):
            A(f's_add_u32 m0, s{sT2}, {MB + (6*i + k)*1024 - 384 - 64*k}')
            A(f'buffer_load_dwordx4 v{vWD}, s[{S_W}:{S_W+3}], s{sT1} offen offset:{384 + 64*k} lds')
    stamp()
    A(f's_add_u32 s{sT2}, s{sT2}, {MB}')
    A(f'v_add_u32 v{MPK}, s{sT2}, v{MWA+3}')
    A(f'v_add_u32 v{MWA+4}, 36864, v{MWA+3}')
    scalar_setup()
    for t in xaddr(): A(t)
    stamp()
    for i in range(18):
        if i % 6 == 0: A(f's_waitcnt vmcnt({12 - i})')
        A(f'ds_read_b128 v[{MBQ+4*i}:{MBQ+4*i+3}], v{MPK} offset:{1024*i}')
        if i == 13: A('s_waitcnt lgkmcnt(8)')
    bgM = setup() + oaddr()
    for _ in range(int(OPT.get('pre', '30'))): A(bgM.pop(0))
    A('s_waitcnt lgkmcnt(0)')
    stamp()
    A('s_barrier')
    stamp()
    padat('M')
    seqM = [(sp, k, hp) for sp in range(6) for k in range(6) for hp in range(2)]
    def rdM(i):
        sp, k, hp = seqM[i]
        buf = RING + 4*(i % 8)
        return f'ds_read_b128 v[{buf}:{buf+3}], v{MWA+3+sp//3} offset:{((2*(sp%3)+hp)*6 + k)*1024}'
    DM = 6
    for i in range(DM): A(rdM(i))
    ms, mem, side = [], {}, []
    for i, (sp, k, hp) in enumerate(seqM):
        a = RING + 4*(i % 8)
        ab = MACC + 24*(sp & 1)
        if i + DM < len(seqM): mem[len(ms)] = [rdM(i + DM)]
        for t in range(3):
            d = ab + 8*t + 4*hp
            ms.append(mf(d, a, MBQ + 24*t + 4*k, None if k == 0 else d))
        if i % 12 == 11:
            for t in range(3):
                pk = MPK + 4*(t & 1)
                e0 = len(ms) + 3 + 6*t
                for q in range(4):
                    side.append((e0, f'v_cvt_pk_bf16_f32 v{pk+q}, v{ab+8*t+2*q}, v{ab+8*t+2*q+1}', len(ms) + 35))
                wr = f'ds_write_b128 v{MWA+t}, v[{pk}:{pk+3}] offset:{2048*sp}'
                if sp < 5: mem[e0 + 4] = [wr, 's_nop 0']
                else: side.append((e0, wr))
    for k in mem:
        if len(mem[k]) == 2: mem[k] = [mem[k][0], '']
    X0, X1 = int(OPT.get('x0', '70')), int(OPT.get('x1', '10'))
    BB2 = int(OPT.get('bb2', '50'))
    assert BB2 < 3*(24 - DM)
    hk = {BB2: lambda: A('s_barrier')}
    def mkx(i):
        def h():
            A.skip(f's_cbranch_scc1 M_sx{i}')
            A.raw('  ' + xload(i))
            A.label(f'M_sx{i}')
        return h
    for i in range(12):
        gp = X0 + X1*i
        while gp % 3 != 1 or gp in mem: gp += 1
        hk[gp] = mkx(i); mem[gp] = ['', '']
    A(f's_cmp_eq_u32 s{sW}, 0')
    A('s_setprio 3')
    rest = stream(ms, mem, side, hk, bg=bgM)
    for t in rest: A(t)
    A('s_waitcnt lgkmcnt(0)')
    A('s_barrier')
    stamp()
    for t in bgM: A(t)
    print('bgM left', len(bgM))
    A('s_cbranch_scc1 M_helper')
    A('s_setprio 0')
    A.vm = [A.parse(xload(i)).w for i in range(12)]
    transpose()
    A.label('M_pa'); A.reset()
    padat('A')
    stamp()
    bgA = []
    xrow = []
    for j in range(8):
        xrow.append(f's_add_u32 m0, s{sXL}, {16*PIECE[j]}\n s_nop 0\n buffer_load_dwordx4 v{WF+j}, s[{S_X}:{S_X+3}], s{sXR} offen{KNT} lds')
    def finA(sig, accb):
        out = []
        for G in range(2):
            for q in range(4):
                out.append(f'v_cvt_pk_bf16_f32 v{QP+24*G+4*sig+q}, v{accb+8*G+2*q}, v{accb+8*G+2*q+1}')
        return out
    def locA(f):
        if f < 60: return ('lds', vWAM, f*1024)
        if f < 62: return ('reg', WF + 4*(f-60))
        return ('lds', vWA1, (f-62)*1024)
    def vcomp():
        save = (list(A.lgkm), list(A.vm), list(A.hist))
        t0, t1 = VD + 6, VD + 7
        A(f's_cmp_ge_u32 s{sVT}, 144')
        A('s_cbranch_scc1 M_v2')
        A(f'v_lshlrev_b32 v{t1}, 3, v{vN}')
        A(f'v_lshl_add_u32 v{t1}, v{vG}, 8, v{t1}')
        A(f'v_add_u32 v{t1}, {GAP + 6144}, v{t1}')
        A('s_waitcnt vmcnt(0)')
        for k in range(6):
            A(f'ds_read_b128 v[{VA+4*k}:{VA+4*k+3}], v{t0} offset:{1024*k}')
        A('s_waitcnt lgkmcnt(2)')
        for k in range(6):
            for hh in range(2):
                A(f'ds_read_b64_tr_b16 v[{VB+4*k+2*hh}:{VB+4*k+2*hh+1}], v{t1} offset:{1024*k + 128*hh}')
        A('s_waitcnt lgkmcnt(0)')
        for k in range(6):
            A(mf(VD, VA + 4*k, VB + 4*k, None if k == 0 else VD))
        A(f'v_bfe_u32 v{t0}, v{vN}, 1, 1')
        A(f'v_mul_u32_u24 v{t0}, 12288, v{t0}')
        A(f'v_and_b32 v{t1}, 1, v{vN}')
        A(f'v_lshl_add_u32 v{t0}, v{t1}, 10, v{t0}')
        A(f'v_lshrrev_b32 v{t1}, 2, v{vN}')
        A(f'v_lshl_add_u32 v{t0}, v{t1}, 4, v{t0}')
        A(f'v_lshl_add_u32 v{t0}, v{vG}, 8, v{t0}')
        A(f'v_cvt_pk_bf16_f32 v{VD+4}, v{VD}, v{VD+1}')
        A(f'v_cvt_pk_bf16_f32 v{VD+5}, v{VD+2}, v{VD+3}')
        A(f'buffer_store_dwordx2 v[{VD+4}:{VD+5}], v{t0}, s[{S_WS}:{S_WS+3}], s{sVO} offen sc1')
        A.label('M_v2')
        A.lgkm, A.vm, A.hist = save
    def vsig1():
        A(f's_cmp_ge_u32 s{sVT}, 144')
        A('s_cbranch_scc1 M_v4')
        A.skip('v_mov_b32 v255, 1'); A.skip('v_mov_b32 v0, 0')
        A.skip('s_mov_b64 exec, 1')
        A.raw('  s_waitcnt vmcnt(0)')
        A.raw(f'  buffer_atomic_add v255, v0, s[{S_DBG}:{S_DBG+3}], 0 offen sc0 sc1')
        A.skip('s_mov_b64 exec, -1')
        A.label('M_v4')
    def vsig2():
        A(f's_cmp_ge_u32 s{sVT}, 144')
        A('s_cbranch_scc1 M_v5')
        A.raw('  s_waitcnt vmcnt(0)')
        A.skip(f'v_readfirstlane_b32 s{sT1}, v255')
        A.skip('s_nop 1')
        A.skip(f's_cmp_lg_u32 s{sT1}, 143')
        A.skip('s_cbranch_scc1 M_v5')
        A.skip('s_mov_b64 exec, 1')
        A.raw(f'  buffer_store_dword v255, v0, s[{S_DBG}:{S_DBG+3}], 0 offen offset:128 sc1')
        A.skip('s_mov_b64 exec, -1')
        A.label('M_v5')
    def bar():
        vsig2()
        A('s_barrier')
        bgA[0:0] = xrow
    def bar4():
        A('s_waitcnt vmcnt(0)'); A('s_barrier')
        prio(3, 2)
    hA = {0: vcomp, 1: vsig1, 2: bar, 4: bar4}
    if OPT.get('sh', '0') == '1':
        def bx():
            A.skip('s_barrier')
            for t in xrow:
                for l in t.split('\n'): A.raw('  ' + l.strip())
        def by(p):
            def f():
                A.raw('  s_waitcnt vmcnt(0)'); A.skip('s_barrier'); A.skip(f's_setprio {p}')
            return f
        def h3():
            vsig2(); cond('M_bxE', True, bx)
        hA = {0: vcomp, 1: vsig1, 2: lambda: cond('M_bxL', False, bx), 3: h3,
              4: lambda: cond('M_byL', False, by(2)), 5: lambda: cond('M_byE', True, by(3))}
    xm = {2*48+1: [f'ds_read_b128 v[{WF}:{WF+3}], v{vWAM} offset:{60*1024}'],
          2*49+1: [f'ds_read_b128 v[{WF+4}:{WF+7}], v{vWAM} offset:{61*1024}']}
    pend = gemm_phase(XQ, locA, finA, hooks=hA, bg=bgA, extra_mem=xm, ghooks={int(OPT.get('mk', '44')): lambda: bgA.extend(masks())})
    assert not bgA
    stamp()
    padat('S')
    cond('M_l1', False, lambda: A.skip('s_barrier'))
    seq = []
    for (a1, a2) in ((0, 3), (1, 4), (2, 5), (7, 6), (8, 9)):
        for s in range(6):
            seq.append((a1, s)); seq.append((a2, s))
    def users(tau):
        u = []
        if tau <= 6: u.append((0, tau))
        if tau >= 3: u.append((1, tau - 3))
        return u
    def rdS(i):
        tau, s = seq[i]
        buf = RING + 4*(i % 8)
        return f'ds_read_b128 v[{buf}:{buf+3}], v{vAS + (s % 4)} offset:{tau*768 + (256 if s >= 4 else 0)}'
    D = 7
    for i in range(D): A(rdS(i))
    for t in pend: A(t)
    vM = [12, 13]; vX = [14, 15]
    A(f's_mov_b32 s{sT1}, 0xff7fffff')
    ms, mem, side = [], {}, []
    started = [False, False]; ndone = [0, 0]
    def xl(G):
        o = []
        for sw in ('v_permlane32_swap_b32', 'v_permlane16_swap_b32'):
            o += [f'v_mov_b32 v{vX[G]}, v{vM[G]}', f'{sw} v{vM[G]}, v{vX[G]}', f'v_max_f32 v{vM[G]}, v{vM[G]}, v{vX[G]}']
        return o + [f'v_mul_f32 v{vM[G]}, s{sSC}, v{vM[G]}']
    for i, (tau, s) in enumerate(seq):
        a = RING + 4*(i % 8)
        for (G, tl) in users(tau):
            r = sreg(G, tl)
            ms.append(mf(r, a, QP + 24*G + 4*s, r))
            if s == 5:
                e = len(ms) + 3
                side.append((e, f'v_max3_f32 v{vM[G]}, v{r}, v{r+1}, ' + (f'v{vM[G]}' if started[G] else f's{sT1}')))
                side.append((e, f'v_max3_f32 v{vM[G]}, v{r+2}, v{r+3}, v{vM[G]}'))
                started[G] = True; ndone[G] += 1
        if i % 12 == 11:
            for G in range(2):
                if ndone[G] == 7:
                    side += [(len(ms) + 3 + 2*k, t) for k, t in enumerate(xl(G))]; ndone[G] = 8
        if i + D < len(seq): mem[len(ms) - 1] = [rdS(i + D)]
    bgS = [f'v_mov_b32 v{PP+q}, 0' for q in (14, 15, 16, 17)] + [f'v_mov_b32 v{ONES+q}, 0x3f803f80' for q in range(4)]
    rest = stream(ms, mem, side, bg=bgS)
    assert not bgS
    stamp()
    prio(1, 0)
    for t in rest: A(t)
    def preg(G, tl): return PP + 16*G + 2*(tl + G)
    seqP = [(sig, u, h) for sig in range(6) for u in range(5) for h in range(2)]
    def rdP(i):
        sig, u, h = seqP[i]
        ct = 2*sig + h
        buf = RING + 4*(i % 8)
        return [f'ds_read_b64_tr_b16 v[{buf+2*hh}:{buf+2*hh+1}], v{vAP + (ct % 8)} offset:{(4*u+2*hh)*384 + (256 if ct >= 8 else 0)}' for hh in range(2)]
    DP = 6
    def b4L(): A.skip('s_barrier')
    B3AT, B4AT = int(OPT.get('b3', '1')), int(OPT.get('b4', '6'))
    if B3AT < 0: cond('M_e2', True, lambda: A.skip('s_barrier'))
    for tl in range(7):
        for G in range(2):
            r = sreg(G, tl)
            for k in range(4): A(f'v_fma_f32 v{r+k}, v{r+k}, s{sSC}, -v{vM[G]}')
            for k in range(4): A(f'v_exp_f32 v{r+k}, v{r+k}')
        for G in range(2):
            r = sreg(G, tl)
            p = preg(G, tl)
            A(f'v_cvt_pk_bf16_f32 v{p}, v{r}, v{r+1}')
            A(f'v_cvt_pk_bf16_f32 v{p+1}, v{r+2}, v{r+3}')
        if tl == B3AT: cond('M_e2', True, lambda: A.skip('s_barrier'))
        if tl >= B3AT:
            for t2 in range(0 if tl == max(B3AT, 0) else tl, tl + 1):
                if t2 % 2 == 0: A(f's_mov_b32 s{sT0}, {(10 + 2*t2)*1024}')
                for G in range(2):
                    r = sreg(G, t2)
                    A(f'buffer_load_dwordx4 v[{r}:{r+3}], v{vWA0}, s[{S_WS}:{S_WS+3}], s{sT0} offen offset:{1024*(2*(t2%2)+G)} sc1')
        if tl == 5:
            for i in range(DP):
                for t in rdP(i): A(t)
        if tl == B4AT: cond('M_l2', False, b4L)
    stamp()
    prio(3, 2)
    padat('P')
    ms, first, side, hk = [], [], [], {}
    def b5L():
        cond('M_l3', False, lambda: A.skip('s_barrier'))
    if int(OPT.get('b5', '1')) < 0: b5L()
    sums = [mf(vINV + 4*G, PP + 16*G + 4*u, ONES, None if u == 0 else vINV + 4*G) for u in range(4) for G in range(2)]
    for i, (sig, u, h) in enumerate(seqP):
        a = RING + 4*(i % 8)
        accb = ACC + 16*(sig & 1)
        first.append(len(ms))
        for G in range(2):
            uu = u - G
            if 0 <= uu <= 3:
                d = accb + 8*G + 4*h
                ms.append(mf(d, a, PP + 16*G + 4*uu, None if uu == 0 else d))
        if i % 10 in (1, 9) and 1 <= sig <= 4: ms.append(sums.pop(0))
        if i % 10 == 9:
            e = len(ms) - 1
            side += [(e + 4, t, e + 16) for t in finA(sig, accb)]
            if sig == int(OPT.get('b5', '1')): hk[e] = b5L
    assert not sums
    mem = {}
    k = 0
    nrd = 2*(len(seqP) - DP)
    ngap = first[-1] - 5
    for j in range(DP, len(seqP)):
        for t in rdP(j):
            gp = (k * ngap) // nrd
            if j >= 8: gp = max(gp, first[j - 7] - 1)
            assert gp < first[j] - 3, (j, gp, first[j])
            mem.setdefault(gp, []).append(t); k += 1
    pend = stream(ms, mem, side, hk)
    A('s_waitcnt vmcnt(0)')
    stamp()
    def b4E():
        A.skip('s_barrier')
        A.skip(f's_mul_i32 s{sT0}, s{sW}, 9216')
        A.skip(f's_sub_u32 s{sT0}, s{sT0}, {4*9216 - 12288}')
        A.skip(f's_add_u32 s{sT4}, s{sT0}, {24*1024}')
        for blk in range(3):
            A.skip(f's_mov_b32 m0, s{sT0}')
            A.skip(f's_add_u32 s{sT0}, s{sT0}, 3072')
            for i in range(3):
                A.raw(f'  buffer_load_dwordx4 v{vWA0}, s[{S_WS}:{S_WS+3}], s{sT4} offen offset:{1024*i} sc1 lds')
            A.skip(f's_add_u32 s{sT4}, s{sT4}, 3072')
    cond('M_e3', True, b4E)
    def finE(sig, accb):
        out = []
        for G in range(2):
            for r in range(4):
                for h in range(2):
                    out.append(f'v_mul_f32 v{accb+8*G+4*h+r}, v{accb+8*G+4*h+r}, v{vINV+4*G+r}')
                o = OST + 8*G + 2*r
                out.append(f'v_cvt_pk_bf16_f32 v{o+(sig&1)}, v{accb+8*G+r}, v{accb+8*G+4+r}')
                if sig & 1:
                    out.append(f'buffer_store_dwordx2 v[{o}:{o+1}], v{vOA+4*G+r}, s[{S_OUT}:{S_OUT+3}], 0 offen offset:{128*(sig>>1)}{ONT[sig>>1]}')
        return out
    def locE(f):
        if f < 10: return ('lds', vWA1, f*1024)
        if f < 24: return ('reg', sreg((f-10) % 2, (f-10) // 2))
        return ('lds', vWA0, (f-24)*1024)
    def b5E():
        def body():
            A.raw('  s_waitcnt vmcnt(0)'); A.skip('s_barrier')
        cond('M_e4', True, body)
        padat('O')
        stamp()
    for t in pend: A(t)
    bgE = [f'v_rcp_f32 v{vINV+q}, v{vINV+q}' for q in range(8)]
    hE = {}
    if OPT.get('pe') == '1': hE = {3: lambda: prio(1, 0)}
    if OPT.get('pe') == '2': hE = {2: lambda: prio(1, 2), 4: lambda: prio(1, 0)}
    if OPT.get('pe') == '3': hE = {4: lambda: prio(1, 2)}
    pend = gemm_phase(QP, locE, finE, swap=True, bg=bgE, hooks=hE, D=int(OPT.get('de', '4')), ghooks={2*(24 - int(OPT.get('de', '4'))) - 1: b5E})
    padat('Z')
    for t in pend: A(t)
    if STAMP:
        stamp()
        A('s_waitcnt vmcnt(0)')
        stamp(1)
        write_stamps()
    if 'pad' in OPT:
        A('s_waitcnt vmcnt(0)')
        A.label('PADL')
        A.raw('  s_memrealtime s[98:99]')
        A.raw('  s_waitcnt lgkmcnt(0)')
        A('s_sub_u32 s98, s98, s96')
        A(f's_cmp_lt_u32 s98, {OPT["pad"]}')
        A('s_cbranch_scc1 PADL')
    A('s_endpgm')

    A.label('M_helper'); A.reset()
    nstamp[0] = 6
    def rows(lst):
        for i in lst:
            row_soff(sT1, str(i))
            b = vAP if i & 1 else WF
            for j in range(8):
                a = b + j
                if i & 6:
                    a = 64 + j
                    A(f'v_xor_b32 v{a}, {16*(i & 6)}, v{b+j}')
                A(f's_mov_b32 m0, {i*ROWB + 16*PIECE[j]}')
                A(f'buffer_load_dwordx4 v{a}, s[{S_X}:{S_X+3}], s{sT1} offen{KNT} lds')
            if len(A.vm) >= 56: A('s_waitcnt vmcnt(40)')
    rows([0, 2, 4, 6, 8])
    row_addrs(vAP, '8')
    rows([1, 3, 5, 7])
    stamp()
    A('s_barrier')
    A('s_waitcnt vmcnt(0)')
    stamp()
    A('s_barrier')
    rows([16, 17, 18, 19])
    A('s_waitcnt vmcnt(0)')
    stamp()
    poll('H_pollV', 128)
    A(f's_lshr_b32 s{sT0}, s2, 3')
    A(f's_mul_i32 s{sT0}, s{sT0}, 2304')
    for i in range(3):
        A(f'buffer_load_dwordx4 v[{80+4*i}:{83+4*i}], v{vWA0}, s[{S_WS}:{S_WS+3}], s{sT0} offen offset:{1024*i} sc1')
    stamp()
    A('s_barrier')
    def wfr(src0, n, lds0):
        for i in range(n):
            if i % 4 == 0:
                A(f's_mov_b32 m0, {lds0 + i*1024}')
                A(f's_mov_b32 s{sT4}, {(src0 + i)*1024}')
            A(f'buffer_load_dwordx4 v{vWA0}, s[{S_WS}:{S_WS+3}], s{sT4} offen offset:{1024*(i%4)} sc1 lds')
    wfr(0, 10, SPARE)
    PF = int(OPT.get('pf', '0'))
    if PF:
        A(f'v_lshrrev_b32 v80, 2, v{vL}')
        A('v_min_u32 v80, 13, v80')
        A(f'v_add_u32 v80, s{sTC}, v80')
        A(f'v_lshl_add_u32 v81, v80, 1, s{sALC}')
        A('v_add_u32 v82, 112, v80')
        A('v_med3_i32 v80, v81, v80, v82')
        A('v_mul_u32_u24 v80, 384, v80')
        A(f'v_and_b32 v81, 3, v{vL}')
        A('v_min_u32 v81, 2, v81')
        A('v_lshl_add_u32 v80, v81, 7, v80')
        for r in range(14):
            A(f's_add_u32 s{sT0}, s{sTR}, {r}')
            A(f's_lshl_b32 s{sT1}, s{sT0}, 1')
            A(f's_add_i32 s{sT1}, s{sT1}, s{sALR}')
            A(f's_max_i32 s{sT1}, s{sT1}, s{sT0}')
            A(f's_add_i32 s{sT0}, s{sT0}, 112')
            A(f's_min_i32 s{sT1}, s{sT1}, s{sT0}')
            A(f's_mul_i32 s{sT1}, s{sT1}, 86016')
            for h in range(PF):
                A.raw(f'  buffer_load_dword v{84+h}, v80, s[{S_OUT}:{S_OUT+3}], s{sT1} offen offset:{64*h}')
        A(f's_waitcnt vmcnt({14*PF})')
    else:
        A('s_waitcnt vmcnt(0)')
    stamp()
    A('s_barrier')
    wfr(24, 12, 0)
    A('s_waitcnt vmcnt(0)')
    stamp()
    A('s_barrier')
    if STAMP:
        stamp(1)
        write_stamps()
    A.label('M_done')
    A('s_endpgm')
    A.label('CODE_END')

gen_main()
A.raw('.section .rodata,"a"')
A.raw('.p2align 6')
A.raw(f'.amdhsa_kernel {NAME}')
A.raw('  .amdhsa_next_free_vgpr 256')
A.raw('  .amdhsa_next_free_sgpr 102')
A.raw('  .amdhsa_accum_offset 256')
A.raw('  .amdhsa_group_segment_fixed_size 0')
A.raw('  .amdhsa_kernarg_size 48')
A.raw('  .amdhsa_user_sgpr_count 2')
A.raw('  .amdhsa_user_sgpr_kernarg_segment_ptr 1')
A.raw('  .amdhsa_system_sgpr_workgroup_id_x 1')
A.raw('.end_amdhsa_kernel')
open(OUT, 'w').write(A.text())
print('instr', A.n_inst, 'nops', A.nops, 'maxv', A.maxv)
```

```python
import sys, struct
sys.path.insert(0, 'gen')
from asmlib import Asm

OUT = sys.argv[1] if len(sys.argv) > 1 else 'standalone__neighborhood_nat__vision.s'
OPT = dict(a.split('=') if '=' in a else (a, '1') for a in sys.argv[2:])
STAMP = 'stamp' in OPT
XNT = ' nt' if OPT.get('xnt', '0') == '1' else ''
KNT = ' nt' if OPT.get('knt', '0') == '1' else ''
ONT = [{'0': '', '1': ' nt', '2': ' sc1', '3': ' sc0 sc1', '4': ' sc0 sc1 nt'}[c] for c in (OPT.get('ont', '2') * 3)[:3]]
NAME = 'standalone__neighborhood_nat__vision_kernel'

X_BYTES = 19267584
WS_BYTES = 268435456
ROWB = 7680
MB = 90112
SPARE = 153600
GAP = 73728
def f32bits(x): return struct.unpack('<I', struct.pack('<f', x))[0]
SCALE = f32bits(192 ** -0.5 * 1.4426950408889634)
NEGINF = 0xff800000
PIECE = [0, 64, 128, 192, 256, 320, 384, 416]

A = Asm()
hdr = open('standalone__neighborhood_nat__vision.s.ref').read().split('\n')
for ln in hdr:
    if ln.startswith('; @launch'): break
    A.raw(ln)
A.raw('; @launch grid=(256,1,1) block=(512,1,1) lds=163840')
A.raw('.amdgcn_target "amdgcn-amd-amdhsa--gfx950"')
A.raw('.text')

def srd(d, lo, hi, nbytes):
    A(f's_mov_b32 s{d}, s{lo}'); A(f's_and_b32 s{d+1}, s{hi}, 0xffff')
    A(f's_mov_b32 s{d+2}, {nbytes}'); A(f's_mov_b32 s{d+3}, 0x00020000')
def mf(d, a, b, c):
    cs = '0' if c is None else f'v[{c}:{c+3}]'
    return f'v_mfma_f32_16x16x32_bf16 v[{d}:{d+3}], v[{a}:{a+3}], v[{b}:{b+3}], {cs}'

S_X, S_OUT, S_WS, S_W, S_WO, S_DBG = 16, 20, 24, 28, 32, 36
sW, sPR, sPC, sTR, sTC = 40, 41, 42, 43, 44
sKR0, sKC0B = 45, 46
sLOR, sHIR, sSHR, sLOC, sHIC = 47, 48, 49, 50, 51
sBASE, sSTRIP, sNEG = 52, 53, 54
sT0, sT1, sT2, sT3, sT4, sT5 = 55, 56, 57, 58, 59, 60
sALR, sALC, sSC = 61, 62, 63
sST = 64
sXR, sXL = 100, 101
sOA = 4
sB0, sF = 92, 93
sM1, sM2 = 0, 10
sVT, sVO = 94, 95
vL, vG, vN = 1, 2, 3
vT = 4
vR0, vR3, vCB = 12, 13, 14
XQ = 16
PP = 16
vOA = 4
vINV = 56
SACC = 64
OST = 16
W1 = 64
ONES = 48
QP = 120
ACC = 168
RING = 200
WF = 232
vAS = 240
vAP = 244
vWA0, vWA1, vWAM = 252, 253, 254
vSW, vSR = 255, 199
vWD = RING
MBQ = 64
MACC = 136
MPK = 184
MWA = 192

nstamp = [0]
def stamp(real=None):
    if not STAMP: return
    i = nstamp[0]; nstamp[0] += 1
    assert i < 14
    A.raw(f'  s_mem{"real" if "rt" in OPT else ""}time s[{sST+2*i}:{sST+1+2*i}]')
    if real is not None:
        A.raw(f'  s_memrealtime s[{96+2*real}:{97+2*real}]')
def write_stamps():
    n = nstamp[0]
    A('s_waitcnt lgkmcnt(0)')
    A(f'v_mov_b32 v{RING}, 0')
    if 'dbg' in OPT:
        lbl = f'WS_skip{n}'
        A(f's_cmp_lg_u32 s2, {OPT["dbg"].split(",")[0]}')
        A(f's_cbranch_scc1 {lbl}')
        A(f's_cmp_lg_u32 s{sW}, {OPT["dbg"].split(",")[1]}')
        A(f's_cbranch_scc1 {lbl}')
        for i in range(1, n):
            A(f's_sub_u32 s{sT0}, s{sST+2*i}, s{sST}')
            A(f'v_writelane_b32 v{RING}, s{sT0}, {i}')
        A(f's_sub_u32 s{sT0}, s98, s96')
        A(f'v_writelane_b32 v{RING}, s{sT0}, 15')
        srd(S_DBG, 12, 13, 256)
        A(f'v_lshlrev_b32 v{RING+1}, 2, v{vL}')
        A('s_mov_b64 exec, 0xfffe')
        A(f'buffer_store_dword v{RING}, v{RING+1}, s[{S_DBG}:{S_DBG+3}], 0 offen')
        A.label(lbl)
        return
    for i in range(n):
        A(f'v_writelane_b32 v{RING}, s{sST+2*i}, {i}')
    A(f'v_writelane_b32 v{RING}, s96, 14')
    A(f'v_writelane_b32 v{RING}, s98, 15')
    A(f's_lshl_b32 s{sT0}, s2, 3')
    A(f's_add_u32 s{sT0}, s{sT0}, s{sW}')
    A(f's_lshl_b32 s{sT0}, s{sT0}, 6')
    A(f's_add_u32 s{sT0}, s{sT0}, 0x100000')
    A(f'v_lshlrev_b32 v{RING+1}, 2, v{vL}')
    A('s_mov_b64 exec, 0xffff')
    A(f'buffer_store_dword v{RING}, v{RING+1}, s[{S_WS}:{S_WS+3}], s{sT0} offen')

def row_addrs(b, sF, A=A):
    for j in (0, 1, 2, 7):
        A(f'v_add_u32 v{vT}, {PIECE[j]}, v{vL}')
        A(f'v_xor_b32 v{vT}, {sF}, v{vT}')
        A(f'v_mul_u32_u24 v{vT+1}, 2731, v{vT}')
        A(f'v_lshrrev_b32 v{vT+1}, 16, v{vT+1}')
        A(f'v_mul_u32_u24 v{vT+1}, 384, v{vT+1}')
        A(f'v_lshl_add_u32 v{vT}, v{vT}, 4, v{vT+1}')
        A(f'v_add_u32 v{b+j}, s{sKC0B}, v{vT}')
        if j < 3:
            A(f'v_add_u32 v{b+j+3}, {8*768}, v{b+j}')
            if j == 0: A(f'v_add_u32 v{b+6}, {16*768}, v{b}')
            A(f'v_max_i32 v{b+j}, 0, v{b+j}')
def row_soff(dst, srow):
    A(f's_add_i32 s{dst}, s{sKR0}, {srow}')
    A(f's_lshl_b32 s{dst}, s{dst}, 1')
    A(f's_add_i32 s{dst}, s{dst}, s{sPR}')
    A(f's_max_i32 s{dst}, s{dst}, 0')
    A(f's_min_i32 s{dst}, s{dst}, 223')
    A(f's_mul_i32 s{dst}, s{dst}, 86016')

def stream(ms, mem, side, hooks=None, cap=2, bg=None, flush=()):
    side = [x if len(x) == 3 else (x[0], x[1], 10**9) for x in side]
    bg = bg if bg is not None else []
    def slots(lo, hi):
        return sum(max(0, cap - len(mem.get(k, []))) for k in range(lo, hi + 1))
    for i, m in enumerate(ms):
        assert not (side and side[0][2] < i), ('deadline missed', side[0], i)
        A(m)
        if i + 1 < len(ms) and not (hooks and i in hooks): A.prewait(ms[i+1])
        n = 0
        for t in mem.get(i, []):
            A(t); n += 1
        c = cap
        if side and side[0][2] < len(ms):
            dl = side[0][2]
            if sum(1 for x in side if x[2] == dl) > slots(i, dl): c = cap + 1
        while side and n < c and side[0][0] <= i:
            A(side.pop(0)[1]); n += 1
        while bg and n < cap:
            A(bg.pop(0)); n += 1
        if i in flush:
            while side and side[0][0] <= i + 4: A(side.pop(0)[1])
        if hooks and i in hooks: hooks[i]()
    return [x[1] for x in side]

def gemm_phase(B, loc, finish, swap=False, hooks=None, D=6, gate=None, bg=None, extra_mem=None, ghooks=None, flush=()):
    def rd(f):
        l = loc(f)
        if l[0] == 'lds':
            buf = RING + 4*(f % 8)
            return [f'ds_read_b128 v[{buf}:{buf+3}], v{l[1]} offset:{l[2]}']
        return []
    ms, mem, side, hk = [], dict(extra_mem or {}), [], dict(ghooks or {})
    for f in range(D):
        for t in rd(f): A(t)
    for f in range(72):
        sig, s, h = f // 12, (f % 12) // 2, f % 2
        l = loc(f)
        a = RING + 4*(f % 8) if l[0] == 'lds' else l[1]
        accb = ACC + 16*(sig & 1)
        for G in range(2):
            d = accb + 8*G + 4*h
            b = B + 24*G + 4*s
            ms.append(mf(d, b, a, None if s == 0 else d) if swap else mf(d, a, b, None if s == 0 else d))
        fn = f + D
        if fn < 72 and not (gate is not None and f < gate <= fn):
            mem[2*f] = rd(fn)
        if f % 12 == 11:
            side += [(2*f + 1 + 3, t, 2*f + 1 + 24) for t in finish(sig, accb)]
            if hooks and sig in hooks:
                def mk(sig=sig, f=f):
                    def h():
                        hooks[sig]()
                        if gate is not None and f + 1 == gate:
                            for k in range(gate, gate + D):
                                for t in rd(k): A(t)
                    return h
                hk[2*f + 1] = mk()
    return stream(ms, mem, side, hk, bg=bg, flush=flush)

def poll(label, off):
    A(f'v_mov_b32 v{vT+2}, 0')
    A(f's_mov_b32 s{sT4}, 0')
    A('s_mov_b64 exec, 1')
    A.label(label)
    A(f'buffer_load_dword v{vT+3}, v{vT+2}, s[{S_DBG}:{S_DBG+3}], 0 offen offset:{off} sc1')
    A('s_waitcnt vmcnt(0)')
    A(f'v_cmp_eq_u32 vcc, 0, v{vT+3}')
    A(f's_add_u32 s{sT4}, s{sT4}, 1')
    A(f's_cmp_gt_u32 s{sT4}, 200000')
    A(f's_cbranch_scc1 {label}_x')
    A('s_cmp_lg_u64 vcc, 0')
    A(f's_cbranch_scc0 {label}_x')
    A('s_sleep 2')
    A(f's_branch {label}')
    A.label(label + '_x')
    A('s_mov_b64 exec, -1')

def cond(lbl, isE, body):
    A(f's_cmp_lt_u32 s{sW}, 4' if isE else f's_cmp_ge_u32 s{sW}, 4')
    A(f's_cbranch_scc1 {lbl}')
    body()
    A.label(lbl)

nprio = [0]
def prio(e, l):
    nprio[0] += 1
    A(f's_setprio {l}')
    if e != l: cond(f'M_pr{nprio[0]}', True, lambda: A.skip(f's_setprio {e}'))

npad = [0]
def padat(name):
    if OPT.get('padpos') != name: return
    npad[0] += 1
    A.label(f'PADM{npad[0]}')
    A.raw('  s_memrealtime s[98:99]')
    A.raw('  s_waitcnt lgkmcnt(0)')
    A.raw('  s_sub_u32 s98, s98, s96')
    A.raw(f'  s_cmp_lt_u32 s98, {OPT["padt"]}')
    A.raw(f'  s_cbranch_scc1 PADM{npad[0]}')

def gen_main():
    A.raw(f'.globl {NAME}'); A.raw('.p2align 8'); A.raw(f'.type {NAME},@function')
    A.raw(f'{NAME}:'); A.reset()
    A('s_cmp_ge_u32 s2, 256')
    A('s_cbranch_scc1 M_done')
    stamp(0)
    if 'pad' in OPT or 'padpos' in OPT: A.raw('  s_memrealtime s[96:97]')
    A('s_load_dwordx8 s[4:11], s[0:1], 0')
    A('s_load_dwordx4 s[12:15], s[0:1], 32')
    A(f'v_lshrrev_b32 v{vT}, 6, v0')
    A(f'v_and_b32 v{vL}, 63, v0')
    A(f'v_readfirstlane_b32 s{sW}, v{vT}')
    A(f'v_lshrrev_b32 v{vG}, 4, v{vL}')
    A(f'v_and_b32 v{vN}, 15, v{vL}')
    A(f'v_lshlrev_b32 v{vWA0}, 4, v{vL}')
    if OPT.get('cpf', '1') != '0':
        A('s_getpc_b64 s[16:17]')
        A('s_and_b32 s16, s16, -256')
        A('s_and_b32 s17, s17, 0xffff')
        A('s_mov_b32 s18, CODE_END-' + NAME)
        A('s_mov_b32 s19, 0x00020000')
        A(f's_lshr_b32 s{sT0}, s2, 3')
        A(f's_lshl_b32 s{sT0}, s{sT0}, 10')
        A(f's_cmp_lg_u32 s{sW}, 3')
        A('s_cbranch_scc1 M_nocpf')
        A.raw(f'  buffer_load_dwordx4 v[{MACC}:{MACC+3}], v{vWA0}, s[16:19], s{sT0} offen')
        A.label('M_nocpf')
    A(f'v_bfe_u32 v{vT+1}, v{vL}, 2, 2')
    A(f'v_lshrrev_b32 v{vT+2}, 5, v{vL}')
    A(f'v_lshlrev_b32 v{vT+3}, 1, v{vT+2}')
    A(f'v_and_b32 v{vT+4}, 3, v{vL}')
    A(f'v_xor_b32 v{vT+3}, v{vT+3}, v{vT+4}')
    A(f'v_lshlrev_b32 v{vT+3}, 4, v{vT+3}')
    A(f's_movk_i32 s{sT5}, 1152')
    A(f'v_lshl_add_u32 v{vT}, v{vG}, 3, v{vT+1}')
    A(f'v_mad_u32_u24 v{vWD}, v{vT}, s{sT5}, v{vT+3}')
    A(f'v_lshl_add_u32 v{vT}, v{vG}, 5, v{vT+1}')
    A(f'v_mad_u32_u24 v{vWD+1}, v{vT}, s{sT5}, v{vT+3}')
    A(f'v_mul_u32_u24 v{vT+2}, {48*1152}, v{vT+2}')
    A(f'v_sub_u32 v{vWD+2}, v{vWD+1}, v{vT+2}')
    A(f'v_lshrrev_b32 v{vT}, 2, v{vL}')
    A(f'v_mad_u32_u24 v{vWD+3}, v{vT}, s{sT5}, v{vT+3}')
    A(f'v_lshrrev_b32 v{vT}, 3, v{vN}')
    A(f'v_lshlrev_b32 v{vT}, 1, v{vT}')
    A(f'v_xor_b32 v{vT}, v{vT}, v{vG}')
    A(f'v_lshl_add_u32 v{vT}, v{vN}, 2, v{vT}')
    A(f'v_lshlrev_b32 v{MWA+3}, 4, v{vT}')
    A(f's_and_b32 s{sT0}, s2, 7')
    A(f's_lshr_b32 s{sT1}, s2, 3')
    MAP = OPT.get('map', '0')
    if MAP == '0':
        A(f's_lshr_b32 s{sPR}, s{sT0}, 2')
        A(f's_bfe_u32 s{sPC}, s{sT0}, 0x10001')
        A(f's_and_b32 s{sT0}, s{sT0}, 1')
        A(f's_lshl_b32 s{sT0}, s{sT0}, 2')
        A(f's_lshr_b32 s{sTR}, s{sT1}, 3')
        A(f's_add_u32 s{sTR}, s{sTR}, s{sT0}')
        A(f's_and_b32 s{sTC}, s{sT1}, 7')
    elif MAP == '1':
        A(f's_mov_b32 s{sTR}, s{sT0}')
        A(f's_and_b32 s{sPR}, s{sT1}, 1')
        A(f's_bfe_u32 s{sPC}, s{sT1}, 0x10001')
        A(f's_lshr_b32 s{sTC}, s{sT1}, 2')
    elif MAP == '2':
        A(f's_lshr_b32 s{sPR}, s{sT0}, 2')
        A(f's_and_b32 s{sT0}, s{sT0}, 3')
        A(f's_lshl_b32 s{sT0}, s{sT0}, 1')
        A(f's_lshr_b32 s{sTR}, s{sT1}, 4')
        A(f's_add_u32 s{sTR}, s{sTR}, s{sT0}')
        A(f's_and_b32 s{sPC}, s{sT1}, 1')
        A(f's_bfe_u32 s{sTC}, s{sT1}, 0x30001')
    else:
        A(f's_and_b32 s{sPR}, s{sT1}, 1')
        A(f's_bfe_u32 s{sPC}, s{sT1}, 0x10001')
        A(f's_and_b32 s{sTR}, s{sT0}, 6')
        A(f's_lshr_b32 s{sT2}, s{sT1}, 4')
        A(f's_add_u32 s{sTR}, s{sTR}, s{sT2}')
        A(f's_and_b32 s{sT0}, s{sT0}, 1')
        A(f's_lshl_b32 s{sT0}, s{sT0}, 2')
        A(f's_bfe_u32 s{sTC}, s{sT1}, 0x20002')
        A(f's_add_u32 s{sTC}, s{sTC}, s{sT0}')
    A(f's_mul_i32 s{sTR}, s{sTR}, 14')
    A(f's_mul_i32 s{sTC}, s{sTC}, 14')
    def scalar_setup():
        srd(S_X, 4, 5, X_BYTES)
        srd(S_WS, 14, 15, WS_BYTES)
        srd(S_OUT, 10, 11, X_BYTES)
        srd(S_DBG, 12, 13, 256)
        A(f's_mul_i32 s{sALR}, s{sPR}, 13')
        A(f's_add_i32 s{sALR}, s{sALR}, -6')
        A(f's_mul_i32 s{sALC}, s{sPC}, 13')
        A(f's_add_i32 s{sALC}, s{sALC}, -6')
        A(f's_cmp_ge_u32 s{sW}, 4')
        A(f's_cselect_b32 s{sSTRIP}, -4, 3')
        A(f's_add_i32 s{sSTRIP}, s{sSTRIP}, s{sW}')
        A(f's_lshl_b32 s{sSTRIP}, s{sSTRIP}, 1')
        A(f's_mul_i32 s{sT0}, s{sPR}, 6')
        A(f's_add_i32 s{sKR0}, s{sTR}, s{sT0}')
        A(f's_add_i32 s{sKR0}, s{sKR0}, -6')
        A(f's_cmp_eq_i32 s{sKR0}, -6')
        A(f's_cselect_b32 s{sLOR}, 6, 0')
        A(f's_cmp_eq_i32 s{sKR0}, 98')
        A(f's_cselect_b32 s{sHIR}, 7, 13')
        A(f's_cselect_b32 s{sSHR}, 2, 0')
        A(f's_sub_i32 s{sKR0}, s{sKR0}, s{sSHR}')
        A(f's_mul_i32 s{sT0}, s{sPC}, 6')
        A(f's_add_i32 s{sT1}, s{sTC}, s{sT0}')
        A(f's_add_i32 s{sT1}, s{sT1}, -6')
        A(f's_cmp_eq_i32 s{sT1}, -6')
        A(f's_cselect_b32 s{sLOC}, 6, 0')
        A(f's_cmp_eq_i32 s{sT1}, 98')
        A(f's_cselect_b32 s{sHIC}, 7, 13')
        A(f's_lshl_b32 s{sT1}, s{sT1}, 1')
        A(f's_add_i32 s{sT1}, s{sT1}, s{sPC}')
        A(f's_mul_i32 s{sKC0B}, s{sT1}, 384')
        A(f's_max_i32 s{sB0}, s{sSTRIP}, s{sLOR}')
        A(f's_min_i32 s{sB0}, s{sB0}, s{sHIR}')
        A(f's_and_b32 s{sB0}, s{sB0}, -2')
        A(f's_add_u32 s{sBASE}, s{sB0}, s{sSHR}')
        A(f's_mov_b32 s{sNEG}, {NEGINF}')
        A(f's_mov_b32 s{sSC}, {SCALE}')
        A(f's_and_b32 s{sF}, s{sW}, 1')
        A(f's_lshl_b32 s{sF}, s{sF}, 3')
        A(f's_and_b32 s{sT1}, s{sW}, 6')
        A(f's_or_b32 s{sF}, s{sF}, s{sT1}')
        A(f's_add_u32 s{sT1}, s{sW}, 8')
        row_soff(sXR, f's{sT1}')
        A(f's_mul_i32 s{sXL}, s{sT1}, {ROWB}')
        A(f's_add_u32 s{sOA}, s{sTR}, s{sSTRIP}')
        A(f's_mov_b32 s{sOA+1}, 86016')
        A(f's_movk_i32 s{sOA+2}, 384')
        A(f's_cmp_eq_u32 s{sW}, 4')
        A(f's_cselect_b32 s{sVT}, s2, 999')
        A(f's_mov_b32 s{sM1}, 0x55555555'); A(f's_mov_b32 s{sM1+1}, 0x55555555')
        A(f's_mov_b32 s{sM2}, 0x33333333'); A(f's_mov_b32 s{sM2+1}, 0x33333333')
        A('s_mov_b32 vcc_lo, 0'); A('s_mov_b32 vcc_hi, -1')

    def sreg(G, tl): return SACC + 28*G + 4*tl
    TM = [197, 198, 199, 255, 0]
    def pixaddr(dst, sel, lane):
        t0, t1, t2, t3, t4 = TM
        o = [f'v_lshrrev_b32 v{t0}, 1, v{sel}', f'v_and_b32 v{t3}, 1, v{sel}', f'v_add_u32 v{t0}, s{sOA}, v{t0}',
             f'v_lshl_add_u32 v{t4}, v{t3}, 2, s{sTC}',
             f'v_lshl_add_u32 v{t1}, v{t0}, 1, s{sALR}', f'v_add_u32 v{t2}, 112, v{t0}', f'v_lshlrev_b32 v{t3}, 30, v{t3}',
             f'v_med3_i32 v{t0}, v{t1}, v{t0}, v{t2}', f'v_mul_lo_u32 v{t0}, v{t0}, s{sOA+1}'] + lane(t0)
        for G in range(2):
            for r in range(4):
                d = dst(G, r)
                o += [f'v_add_u32 v{d}, {7*G+r}, v{t4}', f'v_lshl_add_u32 v{t1}, v{d}, 1, s{sALC}',
                      f'v_add_u32 v{t2}, 112, v{d}', f'v_med3_i32 v{d}, v{t1}, v{d}, v{t2}',
                      f'v_mad_u32_u24 v{d}, v{d}, s{sOA+2}, v{t0}']
                if r == 3: o += [f'v_add_u32 v{d}, v{d}, v{t3}']
        return o
    def oaddr(): return pixaddr(lambda G, r: vOA + 4*G + r, vG, lambda t: [f'v_lshl_add_u32 v{t}, v{vN}, 3, v{t}'])
    CQ = [XQ + 16, XQ + 20, XQ + 40, XQ + 44]
    XD = [XQ + 4*i for i in range(4)] + [XQ + 24 + 4*i for i in range(4)] + CQ
    def xaddr():
        o = [f'v_bfe_u32 v{vT}, v{vL}, 2, 2', f'v_and_b32 v{vT+1}, 3, v{vL}', f'v_lshrrev_b32 v{vT+2}, 5, v{vL}',
             f'v_lshl_add_u32 v{vT+1}, v{vG}, 2, v{vT+1}', f'v_lshlrev_b32 v{vT+2}, 7, v{vT+2}', f'v_sub_u32 v{vT+2}, 256, v{vT+2}']
        o += pixaddr(lambda G, r: XQ + 24*G + 4*r, vT, lambda t: [f'v_lshl_add_u32 v{t}, v{vT+1}, 4, v{t}'])
        for i in range(4):
            o += [f'v_cndmask_b32 v{CQ[i]}, v{XQ+4*i}, v{XQ+24+4*i}, vcc']
        for i in range(4):
            o += [f'v_add_u32 v{CQ[i]}, v{CQ[i]}, v{vT+2}']
        return o
    def xload(i):
        r = XD[i]
        return f'buffer_load_dwordx4 v[{r}:{r+3}], v{r}, s[{S_X}:{S_X+3}], 0 offen{XNT}'
    def transpose():
        T = [ACC + 4*i for i in range(4)]
        for st in range(3):
            R = XD[4*st:4*st+4]
            def sel(dst, keep, other, perm):
                for d in range(4):
                    A(f'v_cndmask_b32_dpp v{dst+d}, v{other+d}, v{keep+d}, vcc quad_perm:{perm} row_mask:0xf bank_mask:0xf')
            A(f's_mov_b64 vcc, s[{sM1}:{sM1+1}]')
            sel(T[0], R[0], R[1], '[1,0,3,2]'); sel(T[2], R[2], R[3], '[1,0,3,2]')
            A('s_not_b64 vcc, vcc')
            sel(T[1], R[1], R[0], '[1,0,3,2]'); sel(T[3], R[3], R[2], '[1,0,3,2]')
            A(f's_mov_b64 vcc, s[{sM2}:{sM2+1}]')
            sel(R[0], T[0], T[2], '[2,3,0,1]'); sel(R[1], T[1], T[3], '[2,3,0,1]')
            A('s_not_b64 vcc, vcc')
            sel(R[2], T[2], T[0], '[2,3,0,1]'); sel(R[3], T[3], T[1], '[2,3,0,1]')
        for p in range(2):
            for d in range(4):
                A(f'v_permlane32_swap_b32 v{CQ[p]+d}, v{CQ[p+2]+d}')
    def setup():
        B = Asm()
        def Fv(dst, row):
            B(f'v_and_b32 v{dst}, 1, v{row}')
            B(f'v_lshlrev_b32 v{dst}, 3, v{dst}')
            B(f'v_and_or_b32 v{dst}, v{row}, 6, v{dst}')
        B(f'v_lshrrev_b32 v{vT}, 3, v{vN}')
        B(f'v_add_u32 v{vT}, s{sSTRIP}, v{vT}')
        B(f'v_max_i32 v{vT}, s{sLOR}, v{vT}')
        B(f'v_min_i32 v{vT}, s{sHIR}, v{vT}')
        B(f'v_subrev_u32 v{vT}, s{sB0}, v{vT}')
        B(f'v_and_b32 v{vT+1}, 1, v{vG}')
        B(f'v_sub_u32 v{vT+2}, v{vT+1}, v{vT}')
        B(f'v_ashrrev_i32 v{vR0}, 31, v{vT+2}')
        B(f'v_and_b32 v{vR0}, s{sNEG}, v{vR0}')
        B(f'v_sub_u32 v{vT+2}, v{vT}, v{vT+1}')
        B(f'v_ashrrev_i32 v{vR3}, 31, v{vT+2}')
        B(f'v_and_b32 v{vR3}, s{sNEG}, v{vR3}')
        B(f'v_and_b32 v{vT}, 7, v{vN}')
        B(f'v_lshrrev_b32 v{vT+1}, 1, v{vG}')
        B(f'v_subrev_u32 v{vT+3}, 7, v{vT}')
        B(f'v_ashrrev_i32 v{vT+3}, 31, v{vT+3}')
        B(f'v_and_b32 v{vT+3}, 0x7f, v{vT+3}')
        for G in range(2):
            B(f'v_add_u32 v{vT+2}, {7*G}, v{vT}')
            B(f'v_max_i32 v{vT+2}, s{sLOC}, v{vT+2}')
            B(f'v_min_i32 v{vT+2}, s{sHIC}, v{vT+2}')
            B(f'v_lshlrev_b32 v{vT+2}, v{vT+2}, v{vT+3}')
            B(f'v_lshrrev_b32 v{vT+2}, v{vT+1}, v{vT+2}')
            B(f'v_not_b32 v{vCB+G}, v{vT+2}')
        B(f'v_add_u32 v{vT}, s{sBASE}, v{vT}')
        Fv(vT+1, vT)
        B(f'v_mul_u32_u24 v{vT}, {ROWB}, v{vT}')
        B(f'v_lshrrev_b32 v{vT+2}, 3, v{vN}')
        B(f'v_mul_u32_u24 v{vT+2}, 24, v{vT+2}')
        B(f'v_add_u32 v{vT+2}, v{vT+2}, v{vG}')
        for s in range(4):
            B(f'v_add_u32 v{vT+3}, {4*s}, v{vT+2}')
            B(f'v_xor_b32 v{vT+3}, v{vT+3}, v{vT+1}')
            B(f'v_lshl_add_u32 v{vAS+s}, v{vT+3}, 4, v{vT}')
        B(f'v_and_b32 v{vT}, 1, v{vG}')
        B(f'v_lshlrev_b32 v{vT}, 2, v{vT}')
        B(f'v_lshrrev_b32 v{vT+1}, 2, v{vN}')
        B(f'v_add3_u32 v{vT}, v{vT}, v{vT+1}, s{sBASE}')
        Fv(vT+1, vT)
        B(f'v_mul_u32_u24 v{vT}, {ROWB}, v{vT}')
        B(f'v_and_b32 v{vT+2}, 1, v{vN}')
        B(f'v_lshl_add_u32 v{vT}, v{vT+2}, 3, v{vT}')
        B(f'v_lshrrev_b32 v{vT+2}, 1, v{vG}')
        B(f'v_mul_u32_u24 v{vT+2}, 24, v{vT+2}')
        B(f'v_bfe_u32 v{vT+3}, v{vN}, 1, 1')
        B(f'v_add_u32 v{vT+2}, v{vT+2}, v{vT+3}')
        for ct in range(8):
            B(f'v_add_u32 v{vT+3}, {2*ct}, v{vT+2}')
            B(f'v_xor_b32 v{vT+3}, v{vT+3}, v{vT+1}')
            B(f'v_lshl_add_u32 v{vAP+ct}, v{vT+3}, 4, v{vT}')
        B(f'v_add_u32 v{vWA1}, {SPARE}, v{vWA0}')
        B(f'v_add_u32 v{vWAM}, {MB}, v{vWA0}')
        row_addrs(WF, f's{sF}', B)
        return [l.strip() for l in B.lines]
    def masks():
        out = []
        for tl in range(7):
            a = []
            for G in range(2):
                tau = tl + 3*G
                r = sreg(G, tl)
                a.append([f'v_bfe_i32 v{r+2}, v{vCB+G}, {2*tau}, 1', f'v_and_b32 v{r+1}, s{sNEG}, v{r+2}',
                          f'v_and_b32 v{r+2}, s{sNEG}, v{r+2}', f'v_or_b32 v{r}, v{r+1}, v{vR0}', f'v_or_b32 v{r+3}, v{r+1}, v{vR3}'])
            for x, y in zip(*a): out += [x, y]
        return out

    N1 = int(OPT.get('n1', '12'))
    A(f's_cmp_lt_u32 s{sW}, 4')
    A('s_waitcnt lgkmcnt(0)')
    A(f's_mov_b32 s{S_W}, s6'); A(f's_mov_b32 s{S_W+1}, s7')
    A(f's_mov_b32 s{S_W+2}, {192*576*2}'); A(f's_mov_b32 s{S_W+3}, 0x00020000')
    A('s_cbranch_scc1 M_mw')
    if OPT.get('tlb', '0') == '1':
        A(f's_and_b32 s{sT0}, s{sW}, 1')
        A(f's_cmp_eq_u32 s{sT0}, 0')
        A('s_cselect_b32 s84, s4, s10'); A('s_cselect_b32 s85, s5, s11')
        A(f's_lshl_b32 s{sT0}, s{sTR}, 1')
        A(f's_bfe_u32 s{sT1}, s{sW}, 0x10001')
        A(f's_mul_i32 s{sT1}, s{sT1}, 20')
        A(f's_add_i32 s{sT0}, s{sT0}, s{sT1}')
        A(f's_add_i32 s{sT0}, s{sT0}, -12')
        A(f's_max_i32 s{sT0}, s{sT0}, 0')
        A(f's_min_i32 s{sT0}, s{sT0}, 200')
        A(f's_mul_i32 s{sT0}, s{sT0}, 86016')
        A(f's_add_u32 s84, s84, s{sT0}'); A('s_addc_u32 s85, s85, 0')
        for i in range(4):
            A.raw(f'  s_load_dword s86, s[84:85], {i*3*86016}')
        A(f's_add_u32 s84, s84, {12*86016}'); A('s_addc_u32 s85, s85, 0')
        for i in range(4):
            A.raw(f'  s_load_dword s86, s[84:85], {i*3*86016}')
        A.raw('  s_load_dword s86, s[14:15], 0')
        A.raw('  s_load_dword s86, s[12:13], 0')
    scalar_setup()
    srd(S_WO, 8, 9, 192*192*2)
    for t in xaddr() + setup() + oaddr(): A(t)
    stamp()
    A(f's_and_b32 s{sT0}, s{sW}, 3')
    A(f's_mul_i32 s{sT2}, s{sT0}, 6144')
    A(f's_mul_i32 s{sT1}, s{sT0}, 4608')
    Q1 = int(OPT.get('q1', '12'))
    for i in range(3):
        for k in range(6):
            if 6*i + k == Q1:
                A(f's_waitcnt vmcnt({Q1 - 6})')
                A('s_barrier')
            A(f's_add_u32 m0, s{sT2}, {(24*i + k)*1024 - 64*k}')
            A(f'buffer_load_dwordx4 v{vWD + 1 + i//2}, s[{S_W}:{S_W+3}], s{sT1} offen offset:{64*k} lds')
        if i < 2: A(f's_add_u32 s{sT1}, s{sT1}, {(16 if i == 0 else 112)*1152}')
    A('s_waitcnt vmcnt(4)')
    for i in range(N1): A.raw('  ' + xload(i))
    A(f's_waitcnt vmcnt({N1})')
    stamp()
    A('s_barrier')
    for i in range(N1, 12): A.raw('  ' + xload(i))
    stamp()
    A.vm = [A.parse(xload(i)).w for i in range(12)]
    transpose()
    VA, VB, VD = MBQ, MBQ + 24, MBQ + 48
    A(f's_cmp_ge_u32 s{sVT}, 144')
    A('s_cbranch_scc1 M_v1')
    A(f's_mul_hi_u32 s{sT0}, s2, 0x15555556')
    A(f's_mul_i32 s{sT1}, s{sT0}, 12')
    A(f's_sub_u32 s{sT1}, s2, s{sT1}')
    A(f's_mul_i32 s{sT2}, s{sT0}, {16*1152}')
    for k in range(6):
        A(f's_mov_b32 m0, {GAP + 1024*k - 768 - 64*k}')
        A(f'buffer_load_dwordx4 v{vWD+3}, s[{S_W}:{S_W+3}], s{sT2} offen offset:{768 + 64*k} lds')
    A(f'v_lshrrev_b32 v{VD}, 1, v{vL}')
    A(f'v_mul_u32_u24 v{VD}, 384, v{VD}')
    A(f'v_and_b32 v{VD+1}, 1, v{vL}')
    A(f'v_lshl_add_u32 v{VD}, v{VD+1}, 4, v{VD}')
    A(f's_lshl_b32 s{sT2}, s{sT1}, 5')
    for k in range(6):
        A(f's_mov_b32 m0, {GAP + 6144 + 1024*k}')
        A(f'buffer_load_dwordx4 v{VD}, s[{S_WO}:{S_WO+3}], s{sT2} offen lds')
        A(f's_add_u32 s{sT2}, s{sT2}, {32*384}')
    A(f's_lshr_b32 s{sT2}, s{sT1}, 2')
    A(f's_mul_i32 s{sVO}, s{sT2}, 24576')
    A(f's_and_b32 s{sT1}, s{sT1}, 3')
    A(f's_lshl_b32 s{sT1}, s{sT1}, 6')
    A(f's_add_u32 s{sVO}, s{sVO}, s{sT1}')
    A(f's_lshr_b32 s{sT1}, s{sT0}, 1')
    A(f's_lshl_b32 s{sT1}, s{sT1}, 11')
    A(f's_add_u32 s{sVO}, s{sVO}, s{sT1}')
    A(f's_and_b32 s{sT0}, s{sT0}, 1')
    A(f's_lshl_b32 s{sT0}, s{sT0}, 3')
    A(f's_add_u32 s{sVO}, s{sVO}, s{sT0}')
    A(f'v_add_u32 v{VD+6}, {GAP}, v{MWA+3}')
    A.label('M_v1'); A.reset()
    stamp()
    A('s_barrier')
    stamp()
    A('s_setprio 1')
    A('s_branch M_pa')
    A.label('M_mw'); A.reset()
    nstamp[0] -= 5
    A(f's_lshr_b32 s{sT0}, s2, 3')
    A(f's_cmp_lg_u32 s{sW}, 1')
    A('s_cbranch_scc1 M_nowarm1')
    A(f's_mul_i32 s{sT0}, s{sT0}, 6912')
    A(f's_add_u32 s{sT1}, s{sT0}, 4096')
    for i in range(7):
        A(f'buffer_load_dwordx4 v[{MACC+4*i}:{MACC+4*i+3}], v{vWA0}, s[{S_W}:{S_W+3}], s{sT0 + i//4} offen offset:{1024*(i%4)}')
    A.label('M_nowarm1')
    A(f's_cmp_lg_u32 s{sW}, 2')
    A('s_cbranch_scc1 M_nowarm2')
    srd(S_WO, 8, 9, 192*192*2)
    A(f's_mul_i32 s{sT0}, s{sT0}, 2304')
    for i in range(3):
        A(f'buffer_load_dwordx4 v[{MACC+4*i}:{MACC+4*i+3}], v{vWA0}, s[{S_WO}:{S_WO+3}], s{sT0} offen offset:{1024*i}')
    A.label('M_nowarm2'); A.reset()
    A(f's_mul_i32 s{sT2}, s{sW}, 18432')
    A(f's_mul_i32 s{sT0}, s{sW}, 3')
    for i in range(3):
        A(f's_add_u32 s{sT1}, s{sT0}, {i}')
        A(f's_lshr_b32 s{sT3}, s{sT1}, 1')
        A(f's_and_b32 s{sT1}, s{sT1}, 1')
        A(f's_mul_i32 s{sT4}, s{sT3}, 12')
        A(f's_add_u32 s{sT4}, s{sT4}, s{sT1}')
        A(f's_lshl_b32 s{sT4}, s{sT4}, 10')
        A(f's_add_u32 s{sT4}, s{sT4}, {MB}')
        A(f'v_add_u32 v{MWA+i}, s{sT4}, v{vWA0}')
        A(f's_mul_i32 s{sT3}, s{sT3}, {32*1152}')
        A(f's_mul_i32 s{sT1}, s{sT1}, 4608')
        A(f's_add_u32 s{sT1}, s{sT1}, s{sT3}')
        for k in range(6):
            A(f's_add_u32 m0, s{sT2}, {MB + (6*i + k)*1024 - 384 - 64*k}')
            A(f'buffer_load_dwordx4 v{vWD}, s[{S_W}:{S_W+3}], s{sT1} offen offset:{384 + 64*k} lds')
    stamp()
    A(f's_add_u32 s{sT2}, s{sT2}, {MB}')
    A(f'v_add_u32 v{MPK}, s{sT2}, v{MWA+3}')
    A(f'v_add_u32 v{MWA+4}, 36864, v{MWA+3}')
    scalar_setup()
    for t in xaddr(): A(t)
    stamp()
    for i in range(18):
        if i % 6 == 0: A(f's_waitcnt vmcnt({12 - i})')
        A(f'ds_read_b128 v[{MBQ+4*i}:{MBQ+4*i+3}], v{MPK} offset:{1024*i}')
        if i == 13: A('s_waitcnt lgkmcnt(8)')
    bgM = setup() + oaddr()
    for _ in range(int(OPT.get('pre', '30'))): A(bgM.pop(0))
    A('s_waitcnt lgkmcnt(0)')
    stamp()
    A('s_barrier')
    stamp()
    padat('M')
    seqM = [(sp, k, hp) for sp in range(6) for k in range(6) for hp in range(2)]
    def rdM(i):
        sp, k, hp = seqM[i]
        buf = RING + 4*(i % 8)
        return f'ds_read_b128 v[{buf}:{buf+3}], v{MWA+3+sp//3} offset:{((2*(sp%3)+hp)*6 + k)*1024}'
    DM = 6
    for i in range(DM): A(rdM(i))
    ms, mem, side = [], {}, []
    for i, (sp, k, hp) in enumerate(seqM):
        a = RING + 4*(i % 8)
        ab = MACC + 24*(sp & 1)
        if i + DM < len(seqM): mem[len(ms)] = [rdM(i + DM)]
        for t in range(3):
            d = ab + 8*t + 4*hp
            ms.append(mf(d, a, MBQ + 24*t + 4*k, None if k == 0 else d))
        if i % 12 == 11:
            for t in range(3):
                pk = MPK + 4*(t & 1)
                e0 = len(ms) + 3 + 6*t
                for q in range(4):
                    side.append((e0, f'v_cvt_pk_bf16_f32 v{pk+q}, v{ab+8*t+2*q}, v{ab+8*t+2*q+1}', len(ms) + 35))
                wr = f'ds_write_b128 v{MWA+t}, v[{pk}:{pk+3}] offset:{2048*sp}'
                if sp < 5: mem[e0 + 4] = [wr, 's_nop 0']
                else: side.append((e0, wr))
    for k in mem:
        if len(mem[k]) == 2: mem[k] = [mem[k][0], '']
    X0, X1 = int(OPT.get('x0', '52')), int(OPT.get('x1', '3'))
    BB2 = int(OPT.get('bb2', '40'))
    assert BB2 < 3*(24 - DM)
    hk = {BB2: lambda: A('s_barrier')}
    def mkx(i):
        def h():
            A.skip(f's_cbranch_scc1 M_sx{i}')
            A.raw('  ' + xload(i))
            A.label(f'M_sx{i}')
        return h
    for i in range(12):
        gp = X0 + X1*i
        while gp % 3 != 1 or gp in mem or gp in hk: gp += 1
        hk[gp] = mkx(i); mem[gp] = ['', '']
    A(f's_cmp_eq_u32 s{sW}, 0')
    A('s_setprio 3')
    rest = stream(ms, mem, side, hk, bg=bgM)
    for t in rest: A(t)
    A('s_waitcnt lgkmcnt(0)')
    A('s_barrier')
    stamp()
    for t in bgM: A(t)
    print('bgM left', len(bgM))
    A('s_cbranch_scc1 M_helper')
    A('s_setprio 0')
    A.vm = [A.parse(xload(i)).w for i in range(12)]
    transpose()
    A.label('M_pa'); A.reset()
    padat('A')
    stamp()
    bgA = []
    xrow = []
    for j in range(8):
        xrow.append(f's_add_u32 m0, s{sXL}, {16*PIECE[j]}\n s_nop 0\n buffer_load_dwordx4 v{WF+j}, s[{S_X}:{S_X+3}], s{sXR} offen{KNT} lds')
    def finA(sig, accb):
        out = []
        for G in range(2):
            for q in range(4):
                out.append(f'v_cvt_pk_bf16_f32 v{QP+24*G+4*sig+q}, v{accb+8*G+2*q}, v{accb+8*G+2*q+1}')
        return out
    def locA(f):
        if f < 60: return ('lds', vWAM, f*1024)
        if f < 62: return ('reg', WF + 4*(f-60))
        return ('lds', vWA1, (f-62)*1024)
    def vcomp():
        save = (list(A.lgkm), list(A.vm), list(A.hist))
        t0, t1 = VD + 6, VD + 7
        A(f's_cmp_ge_u32 s{sVT}, 144')
        A('s_cbranch_scc1 M_v2')
        A(f'v_lshlrev_b32 v{t1}, 3, v{vN}')
        A(f'v_lshl_add_u32 v{t1}, v{vG}, 8, v{t1}')
        A(f'v_add_u32 v{t1}, {GAP + 6144}, v{t1}')
        A('s_waitcnt vmcnt(0)')
        for k in range(6):
            A(f'ds_read_b128 v[{VA+4*k}:{VA+4*k+3}], v{t0} offset:{1024*k}')
        A('s_waitcnt lgkmcnt(2)')
        for k in range(6):
            for hh in range(2):
                A(f'ds_read_b64_tr_b16 v[{VB+4*k+2*hh}:{VB+4*k+2*hh+1}], v{t1} offset:{1024*k + 128*hh}')
        A('s_waitcnt lgkmcnt(0)')
        for k in range(6):
            A(mf(VD, VA + 4*k, VB + 4*k, None if k == 0 else VD))
        A(f'v_bfe_u32 v{t0}, v{vN}, 1, 1')
        A(f'v_mul_u32_u24 v{t0}, 12288, v{t0}')
        A(f'v_and_b32 v{t1}, 1, v{vN}')
        A(f'v_lshl_add_u32 v{t0}, v{t1}, 10, v{t0}')
        A(f'v_lshrrev_b32 v{t1}, 2, v{vN}')
        A(f'v_lshl_add_u32 v{t0}, v{t1}, 4, v{t0}')
        A(f'v_lshl_add_u32 v{t0}, v{vG}, 8, v{t0}')
        A(f'v_cvt_pk_bf16_f32 v{VD+4}, v{VD}, v{VD+1}')
        A(f'v_cvt_pk_bf16_f32 v{VD+5}, v{VD+2}, v{VD+3}')
        A(f'buffer_store_dwordx2 v[{VD+4}:{VD+5}], v{t0}, s[{S_WS}:{S_WS+3}], s{sVO} offen sc1')
        A.label('M_v2')
        A.lgkm, A.vm, A.hist = save
    def vsig1():
        A(f's_cmp_ge_u32 s{sVT}, 144')
        A('s_cbranch_scc1 M_v4')
        A.skip('v_mov_b32 v255, 1'); A.skip('v_mov_b32 v0, 0')
        A.skip('s_mov_b64 exec, 1')
        A.raw('  s_waitcnt vmcnt(0)')
        A.raw(f'  buffer_atomic_add v255, v0, s[{S_DBG}:{S_DBG+3}], 0 offen sc0 sc1')
        A.skip('s_mov_b64 exec, -1')
        A.label('M_v4')
    def vsig2():
        A(f's_cmp_ge_u32 s{sVT}, 144')
        A('s_cbranch_scc1 M_v5')
        A.raw('  s_waitcnt vmcnt(0)')
        A.skip(f'v_readfirstlane_b32 s{sT1}, v255')
        A.skip('s_nop 1')
        A.skip(f's_cmp_lg_u32 s{sT1}, 143')
        A.skip('s_cbranch_scc1 M_v5')
        A.skip('s_mov_b64 exec, 1')
        A.raw(f'  buffer_store_dword v255, v0, s[{S_DBG}:{S_DBG+3}], 0 offen offset:128 sc1')
        A.skip('s_mov_b64 exec, -1')
        A.label('M_v5')
    def bar():
        vsig2()
        A('s_barrier')
        bgA[0:0] = xrow
    def bar4():
        A('s_waitcnt vmcnt(0)'); A('s_barrier')
        prio(3, 2)
    hA = {0: vcomp, 1: vsig1, 2: bar, 4: bar4}
    if OPT.get('sh', '0') == '1':
        def bx():
            A.skip('s_barrier')
            for t in xrow:
                for l in t.split('\n'): A.raw('  ' + l.strip())
        def by(p):
            def f():
                A.raw('  s_waitcnt vmcnt(0)'); A.skip('s_barrier'); A.skip(f's_setprio {p}')
            return f
        def h3():
            vsig2(); cond('M_bxE', True, bx)
        hA = {0: vcomp, 1: vsig1, 2: lambda: cond('M_bxL', False, bx), 3: h3,
              4: lambda: cond('M_byL', False, by(2)), 5: lambda: cond('M_byE', True, by(3))}
    xm = {2*48+1: [f'ds_read_b128 v[{WF}:{WF+3}], v{vWAM} offset:{60*1024}'],
          2*49+1: [f'ds_read_b128 v[{WF+4}:{WF+7}], v{vWAM} offset:{61*1024}']}
    pend = gemm_phase(XQ, locA, finA, hooks=hA, bg=bgA, extra_mem=xm, ghooks={int(OPT.get('mk', '44')): lambda: bgA.extend(masks())})
    assert not bgA
    stamp()
    padat('S')
    cond('M_l1', False, lambda: A.skip('s_barrier'))
    seq = []
    for (a1, a2) in ((0, 3), (1, 4), (2, 5), (7, 6), (8, 9)):
        for s in range(6):
            seq.append((a1, s)); seq.append((a2, s))
    def users(tau):
        u = []
        if tau <= 6: u.append((0, tau))
        if tau >= 3: u.append((1, tau - 3))
        return u
    def rdS(i):
        tau, s = seq[i]
        buf = RING + 4*(i % 8)
        return f'ds_read_b128 v[{buf}:{buf+3}], v{vAS + (s % 4)} offset:{tau*768 + (256 if s >= 4 else 0)}'
    D = 7
    for i in range(D): A(rdS(i))
    for t in pend: A(t)
    vM = [12, 13]; vX = [14, 15]
    A(f's_mov_b32 s{sT1}, 0xff7fffff')
    ms, mem, side = [], {}, []
    started = [False, False]; ndone = [0, 0]
    def xl(G):
        o = []
        for sw in ('v_permlane32_swap_b32', 'v_permlane16_swap_b32'):
            o += [f'v_mov_b32 v{vX[G]}, v{vM[G]}', f'{sw} v{vM[G]}, v{vX[G]}', f'v_max_f32 v{vM[G]}, v{vM[G]}, v{vX[G]}']
        return o + [f'v_mul_f32 v{vM[G]}, s{sSC}, v{vM[G]}']
    for i, (tau, s) in enumerate(seq):
        a = RING + 4*(i % 8)
        for (G, tl) in users(tau):
            r = sreg(G, tl)
            ms.append(mf(r, a, QP + 24*G + 4*s, r))
            if s == 5:
                e = len(ms) + 3
                side.append((e, f'v_max3_f32 v{vM[G]}, v{r}, v{r+1}, ' + (f'v{vM[G]}' if started[G] else f's{sT1}')))
                side.append((e, f'v_max3_f32 v{vM[G]}, v{r+2}, v{r+3}, v{vM[G]}'))
                started[G] = True; ndone[G] += 1
        if i % 12 == 11:
            for G in range(2):
                if ndone[G] == 7:
                    side += [(len(ms) + 3 + 2*k, t) for k, t in enumerate(xl(G))]; ndone[G] = 8
        if i + D < len(seq): mem[len(ms) - 1] = [rdS(i + D)]
    bgS = [f'v_mov_b32 v{PP+q}, 0' for q in (14, 15, 16, 17)] + [f'v_mov_b32 v{ONES+q}, 0x3f803f80' for q in range(4)]
    rest = stream(ms, mem, side, bg=bgS)
    assert not bgS
    stamp()
    prio(1, 0)
    for t in rest: A(t)
    def preg(G, tl): return PP + 16*G + 2*(tl + G)
    seqP = [(sig, u, h) for sig in range(6) for u in range(5) for h in range(2)]
    def rdP(i):
        sig, u, h = seqP[i]
        ct = 2*sig + h
        buf = RING + 4*(i % 8)
        return [f'ds_read_b64_tr_b16 v[{buf+2*hh}:{buf+2*hh+1}], v{vAP + (ct % 8)} offset:{(4*u+2*hh)*384 + (256 if ct >= 8 else 0)}' for hh in range(2)]
    DP = 6
    def b4L(): A.skip('s_barrier')
    B3AT, B4AT = int(OPT.get('b3', '1')), int(OPT.get('b4', '6'))
    if B3AT < 0: cond('M_e2', True, lambda: A.skip('s_barrier'))
    for tl in range(7):
        for G in range(2):
            r = sreg(G, tl)
            for k in range(4): A(f'v_fma_f32 v{r+k}, v{r+k}, s{sSC}, -v{vM[G]}')
            for k in range(4): A(f'v_exp_f32 v{r+k}, v{r+k}')
        for G in range(2):
            r = sreg(G, tl)
            p = preg(G, tl)
            A(f'v_cvt_pk_bf16_f32 v{p}, v{r}, v{r+1}')
            A(f'v_cvt_pk_bf16_f32 v{p+1}, v{r+2}, v{r+3}')
        if tl == B3AT: cond('M_e2', True, lambda: A.skip('s_barrier'))
        if tl >= B3AT:
            for t2 in range(0 if tl == max(B3AT, 0) else tl, tl + 1):
                if t2 % 2 == 0: A(f's_mov_b32 s{sT0}, {(10 + 2*t2)*1024}')
                for G in range(2):
                    r = sreg(G, t2)
                    A(f'buffer_load_dwordx4 v[{r}:{r+3}], v{vWA0}, s[{S_WS}:{S_WS+3}], s{sT0} offen offset:{1024*(2*(t2%2)+G)} sc1')
        if tl == 5:
            for i in range(DP):
                for t in rdP(i): A(t)
        if tl == B4AT: cond('M_l2', False, b4L)
    stamp()
    prio(3, 2)
    padat('P')
    ms, first, side, hk = [], [], [], {}
    def b5L():
        cond('M_l3', False, lambda: A.skip('s_barrier'))
    if int(OPT.get('b5', '1')) < 0: b5L()
    sums = [mf(vINV + 4*G, PP + 16*G + 4*u, ONES, None if u == 0 else vINV + 4*G) for u in range(4) for G in range(2)]
    for i, (sig, u, h) in enumerate(seqP):
        a = RING + 4*(i % 8)
        accb = ACC + 16*(sig & 1)
        first.append(len(ms))
        for G in range(2):
            uu = u - G
            if 0 <= uu <= 3:
                d = accb + 8*G + 4*h
                ms.append(mf(d, a, PP + 16*G + 4*uu, None if uu == 0 else d))
        if i % 10 in (1, 9) and 1 <= sig <= 4: ms.append(sums.pop(0))
        if i % 10 == 9:
            e = len(ms) - 1
            side += [(e + 4, t, e + 16) for t in finA(sig, accb)]
            if sig == int(OPT.get('b5', '1')): hk[e] = b5L
    assert not sums
    mem = {}
    k = 0
    nrd = 2*(len(seqP) - DP)
    ngap = first[-1] - 5
    for j in range(DP, len(seqP)):
        for t in rdP(j):
            gp = (k * ngap) // nrd
            if j >= 8: gp = max(gp, first[j - 7] - 1)
            assert gp < first[j] - 3, (j, gp, first[j])
            mem.setdefault(gp, []).append(t); k += 1
    pend = stream(ms, mem, side, hk)
    A('s_waitcnt vmcnt(0)')
    stamp()
    def b4E():
        A.skip('s_barrier')
        A.skip(f's_mul_i32 s{sT0}, s{sW}, 9216')
        A.skip(f's_sub_u32 s{sT0}, s{sT0}, {4*9216 - 12288}')
        A.skip(f's_add_u32 s{sT4}, s{sT0}, {24*1024}')
        for blk in range(3):
            A.skip(f's_mov_b32 m0, s{sT0}')
            A.skip(f's_add_u32 s{sT0}, s{sT0}, 3072')
            for i in range(3):
                A.raw(f'  buffer_load_dwordx4 v{vWA0}, s[{S_WS}:{S_WS+3}], s{sT4} offen offset:{1024*i} sc1 lds')
            A.skip(f's_add_u32 s{sT4}, s{sT4}, 3072')
    cond('M_e3', True, b4E)
    def finE(sig, accb):
        out = []
        for G in range(2):
            for r in range(4):
                for h in range(2):
                    out.append(f'v_mul_f32 v{accb+8*G+4*h+r}, v{accb+8*G+4*h+r}, v{vINV+4*G+r}')
                o = OST + 8*G + 2*r
                out.append(f'v_cvt_pk_bf16_f32 v{o+(sig&1)}, v{accb+8*G+r}, v{accb+8*G+4+r}')
                if sig & 1:
                    out.append(f'buffer_store_dwordx2 v[{o}:{o+1}], v{vOA+4*G+r}, s[{S_OUT}:{S_OUT+3}], 0 offen offset:{128*(sig>>1)}{ONT[sig>>1]}')
        return out
    def locE(f):
        if f < 10: return ('lds', vWA1, f*1024)
        if f < 24: return ('reg', sreg((f-10) % 2, (f-10) // 2))
        return ('lds', vWA0, (f-24)*1024)
    def b5E():
        def body():
            A.raw('  s_waitcnt vmcnt(0)'); A.skip('s_barrier')
        cond('M_e4', True, body)
        padat('O')
        stamp()
    for t in pend: A(t)
    bgE = [f'v_rcp_f32 v{vINV+q}, v{vINV+q}' for q in range(8)]
    hE = {}
    if OPT.get('pe') == '1': hE = {3: lambda: prio(1, 0)}
    if OPT.get('pe') == '2': hE = {2: lambda: prio(1, 2), 4: lambda: prio(1, 0)}
    if OPT.get('pe') == '3': hE = {4: lambda: prio(1, 2)}
    pend = gemm_phase(QP, locE, finE, swap=True, bg=bgE, hooks=hE, D=int(OPT.get('de', '4')), ghooks={2*(24 - int(OPT.get('de', '4'))) - 1: b5E})
    padat('Z')
    for t in pend: A(t)
    if STAMP:
        stamp()
        A('s_waitcnt vmcnt(0)')
        stamp(1)
        write_stamps()
    if 'pad' in OPT:
        A('s_waitcnt vmcnt(0)')
        A.label('PADL')
        A.raw('  s_memrealtime s[98:99]')
        A.raw('  s_waitcnt lgkmcnt(0)')
        A('s_sub_u32 s98, s98, s96')
        A(f's_cmp_lt_u32 s98, {OPT["pad"]}')
        A('s_cbranch_scc1 PADL')
    A('s_endpgm')

    A.label('M_helper'); A.reset()
    nstamp[0] = 6
    def rows(lst):
        for i in lst:
            row_soff(sT1, str(i))
            b = vAP if i & 1 else WF
            for j in range(8):
                a = b + j
                if i & 6:
                    a = 64 + j
                    A(f'v_xor_b32 v{a}, {16*(i & 6)}, v{b+j}')
                A(f's_mov_b32 m0, {i*ROWB + 16*PIECE[j]}')
                A(f'buffer_load_dwordx4 v{a}, s[{S_X}:{S_X+3}], s{sT1} offen{KNT} lds')
            if len(A.vm) >= 56: A('s_waitcnt vmcnt(40)')
    rows([0, 2, 4, 6, 8])
    row_addrs(vAP, '8')
    rows([1, 3, 5, 7])
    stamp()
    A('s_barrier')
    A('s_waitcnt vmcnt(0)')
    stamp()
    A('s_barrier')
    rows([16, 17, 18, 19])
    A('s_waitcnt vmcnt(0)')
    stamp()
    poll('H_pollV', 128)
    A(f's_lshr_b32 s{sT0}, s2, 3')
    A(f's_mul_i32 s{sT0}, s{sT0}, 2304')
    for i in range(3):
        A(f'buffer_load_dwordx4 v[{80+4*i}:{83+4*i}], v{vWA0}, s[{S_WS}:{S_WS+3}], s{sT0} offen offset:{1024*i} sc1')
    stamp()
    A('s_barrier')
    def wfr(src0, n, lds0):
        for i in range(n):
            if i % 4 == 0:
                A(f's_mov_b32 m0, {lds0 + i*1024}')
                A(f's_mov_b32 s{sT4}, {(src0 + i)*1024}')
            A(f'buffer_load_dwordx4 v{vWA0}, s[{S_WS}:{S_WS+3}], s{sT4} offen offset:{1024*(i%4)} sc1 lds')
    wfr(0, 10, SPARE)
    PF = int(OPT.get('pf', '0'))
    if PF:
        A(f'v_lshrrev_b32 v80, 2, v{vL}')
        A('v_min_u32 v80, 13, v80')
        A(f'v_add_u32 v80, s{sTC}, v80')
        A(f'v_lshl_add_u32 v81, v80, 1, s{sALC}')
        A('v_add_u32 v82, 112, v80')
        A('v_med3_i32 v80, v81, v80, v82')
        A('v_mul_u32_u24 v80, 384, v80')
        A(f'v_and_b32 v81, 3, v{vL}')
        A('v_min_u32 v81, 2, v81')
        A('v_lshl_add_u32 v80, v81, 7, v80')
        for r in range(14):
            A(f's_add_u32 s{sT0}, s{sTR}, {r}')
            A(f's_lshl_b32 s{sT1}, s{sT0}, 1')
            A(f's_add_i32 s{sT1}, s{sT1}, s{sALR}')
            A(f's_max_i32 s{sT1}, s{sT1}, s{sT0}')
            A(f's_add_i32 s{sT0}, s{sT0}, 112')
            A(f's_min_i32 s{sT1}, s{sT1}, s{sT0}')
            A(f's_mul_i32 s{sT1}, s{sT1}, 86016')
            for h in range(PF):
                A.raw(f'  buffer_load_dword v{84+h}, v80, s[{S_OUT}:{S_OUT+3}], s{sT1} offen offset:{64*h}')
        A(f's_waitcnt vmcnt({14*PF})')
    else:
        A('s_waitcnt vmcnt(0)')
    stamp()
    A('s_barrier')
    wfr(24, 12, 0)
    A('s_waitcnt vmcnt(0)')
    stamp()
    A('s_barrier')
    if STAMP:
        stamp(1)
        write_stamps()
    A.label('M_done')
    A('s_endpgm')
    A.label('CODE_END')

gen_main()
A.raw('.section .rodata,"a"')
A.raw('.p2align 6')
A.raw(f'.amdhsa_kernel {NAME}')
A.raw('  .amdhsa_next_free_vgpr 256')
A.raw('  .amdhsa_next_free_sgpr 102')
A.raw('  .amdhsa_accum_offset 256')
A.raw('  .amdhsa_group_segment_fixed_size 0')
A.raw('  .amdhsa_kernarg_size 48')
A.raw('  .amdhsa_user_sgpr_count 2')
A.raw('  .amdhsa_user_sgpr_kernarg_segment_ptr 1')
A.raw('  .amdhsa_system_sgpr_workgroup_id_x 1')
A.raw('.end_amdhsa_kernel')
open(OUT, 'w').write(A.text())
print('instr', A.n_inst, 'nops', A.nops, 'maxv', A.maxv)
```

```python
import sys, struct
sys.path.insert(0, 'gen')
from asmlib import Asm

OUT = sys.argv[1] if len(sys.argv) > 1 else 'standalone__neighborhood_nat__vision.s'
OPT = dict(a.split('=') if '=' in a else (a, '1') for a in sys.argv[2:])
STAMP = 'stamp' in OPT
XNT = ' nt' if OPT.get('xnt', '0') == '1' else ''
KNT = ' nt' if OPT.get('knt', '0') == '1' else ''
ONT = [{'0': '', '1': ' nt', '2': ' sc1', '3': ' sc0 sc1', '4': ' sc0 sc1 nt'}[c] for c in (OPT.get('ont', '2') * 3)[:3]]
NAME = 'standalone__neighborhood_nat__vision_kernel'

X_BYTES = 19267584
WS_BYTES = 268435456
ROWB = 7680
MB = 90112
SPARE = 153600
MOFF = 0x20000
NMP = 36
GAP = 73728
def f32bits(x): return struct.unpack('<I', struct.pack('<f', x))[0]
SCALE = f32bits(192 ** -0.5 * 1.4426950408889634)
NEGINF = 0xff800000
PIECE = [0, 64, 128, 192, 256, 320, 384, 416]

A = Asm()
hdr = open('standalone__neighborhood_nat__vision.s.ref').read().split('\n')
for ln in hdr:
    if ln.startswith('; @launch'): break
    A.raw(ln)
A.raw('; @launch grid=(256,1,1) block=(512,1,1) lds=163840')
A.raw('.amdgcn_target "amdgcn-amd-amdhsa--gfx950"')
A.raw('.text')

def srd(d, lo, hi, nbytes):
    A(f's_mov_b32 s{d}, s{lo}'); A(f's_and_b32 s{d+1}, s{hi}, 0xffff')
    A(f's_mov_b32 s{d+2}, {nbytes}'); A(f's_mov_b32 s{d+3}, 0x00020000')
def mf(d, a, b, c):
    cs = '0' if c is None else f'v[{c}:{c+3}]'
    return f'v_mfma_f32_16x16x32_bf16 v[{d}:{d+3}], v[{a}:{a+3}], v[{b}:{b+3}], {cs}'

S_X, S_OUT, S_WS, S_W, S_WO, S_DBG = 16, 20, 24, 28, 32, 36
sW, sPR, sPC, sTR, sTC = 40, 41, 42, 43, 44
sKR0, sKC0B = 45, 46
sLOR, sHIR, sSHR, sLOC, sHIC = 47, 48, 49, 50, 51
sBASE, sSTRIP, sNEG = 52, 53, 54
sT0, sT1, sT2, sT3, sT4, sT5 = 55, 56, 57, 58, 59, 60
sALR, sALC, sSC = 61, 62, 63
sST = 64
sXR, sXL = 100, 101
sOA = 88
sB0, sF = 92, 93
sM1, sM2 = 0, 10
sVT, sVO = 94, 95
vL, vG, vN = 1, 2, 3
vT = 4
vR0, vR3, vCB = 12, 13, 14
XQ = 16
PP = 16
vOA = 4
vINV = 56
SACC = 64
OST = 16
W1 = 64
ONES = 48
QP = 120
ACC = 168
RING = 200
WF = 232
vAS = 240
vAP = 244
vWA0, vWA1, vWAM = 252, 253, 254
vSW, vSR = 255, 199
vWD = RING
MBQ = 64
MACC = 136
MPK = 184
MWA = 192

nstamp = [0]
def stamp(real=None):
    if not STAMP: return
    i = nstamp[0]; nstamp[0] += 1
    assert i < 14
    A.raw(f'  s_mem{"real" if "rt" in OPT else ""}time s[{sST+2*i}:{sST+1+2*i}]')
    if real is not None:
        A.raw(f'  s_memrealtime s[{96+2*real}:{97+2*real}]')
def write_stamps():
    n = nstamp[0]
    A('s_waitcnt lgkmcnt(0)')
    A(f'v_mov_b32 v{RING}, 0')
    if 'dbg' in OPT:
        lbl = f'WS_skip{n}'
        A(f's_cmp_lg_u32 s2, {OPT["dbg"].split(",")[0]}')
        A(f's_cbranch_scc1 {lbl}')
        A(f's_cmp_lg_u32 s{sW}, {OPT["dbg"].split(",")[1]}')
        A(f's_cbranch_scc1 {lbl}')
        for i in range(1, n):
            A(f's_sub_u32 s{sT0}, s{sST+2*i}, s{sST}')
            A(f'v_writelane_b32 v{RING}, s{sT0}, {i}')
        A(f's_sub_u32 s{sT0}, s98, s96')
        A(f'v_writelane_b32 v{RING}, s{sT0}, 15')
        srd(S_DBG, 12, 13, 256)
        A(f'v_lshlrev_b32 v{RING+1}, 2, v{vL}')
        A('s_mov_b64 exec, 0xfffe')
        A(f'buffer_store_dword v{RING}, v{RING+1}, s[{S_DBG}:{S_DBG+3}], 0 offen')
        A.label(lbl)
        return
    for i in range(n):
        A(f'v_writelane_b32 v{RING}, s{sST+2*i}, {i}')
    A(f'v_writelane_b32 v{RING}, s96, 14')
    A(f'v_writelane_b32 v{RING}, s98, 15')
    A(f's_lshl_b32 s{sT0}, s2, 3')
    A(f's_add_u32 s{sT0}, s{sT0}, s{sW}')
    A(f's_lshl_b32 s{sT0}, s{sT0}, 6')
    A(f's_add_u32 s{sT0}, s{sT0}, 0x100000')
    A(f'v_lshlrev_b32 v{RING+1}, 2, v{vL}')
    A('s_mov_b64 exec, 0xffff')
    A(f'buffer_store_dword v{RING}, v{RING+1}, s[{S_WS}:{S_WS+3}], s{sT0} offen')

def row_addrs(b, sF, A=A):
    for j in (0, 1, 2, 7):
        A(f'v_add_u32 v{vT}, {PIECE[j]}, v{vL}')
        A(f'v_xor_b32 v{vT}, {sF}, v{vT}')
        A(f'v_mul_u32_u24 v{vT+1}, 2731, v{vT}')
        A(f'v_lshrrev_b32 v{vT+1}, 16, v{vT+1}')
        A(f'v_mul_u32_u24 v{vT+1}, 384, v{vT+1}')
        A(f'v_lshl_add_u32 v{vT}, v{vT}, 4, v{vT+1}')
        A(f'v_add_u32 v{b+j}, s{sKC0B}, v{vT}')
        if j < 3:
            A(f'v_add_u32 v{b+j+3}, {8*768}, v{b+j}')
            if j == 0: A(f'v_add_u32 v{b+6}, {16*768}, v{b}')
            A(f'v_max_i32 v{b+j}, 0, v{b+j}')
def row_soff(dst, srow):
    A(f's_add_i32 s{dst}, s{sKR0}, {srow}')
    A(f's_lshl_b32 s{dst}, s{dst}, 1')
    A(f's_add_i32 s{dst}, s{dst}, s{sPR}')
    A(f's_max_i32 s{dst}, s{dst}, 0')
    A(f's_min_i32 s{dst}, s{dst}, 223')
    A(f's_mul_i32 s{dst}, s{dst}, 86016')

def stream(ms, mem, side, hooks=None, cap=2, bg=None, flush=(), paced=None):
    side = [x if len(x) == 3 else (x[0], x[1], 10**9) for x in side]
    bg = bg if bg is not None else []
    paced = list(paced or [])
    nside = len(side)
    def slots(lo, hi):
        return sum(max(0, cap - len(mem.get(k, []))) for k in range(lo, hi + 1))
    for i, m in enumerate(ms):
        assert not (side and side[0][2] < i), ('deadline missed', side[0], i)
        A(m)
        if i + 1 < len(ms) and not (hooks and i in hooks): A.prewait(ms[i+1])
        n = 0
        for t in mem.get(i, []):
            A(t); n += 1
        if paced and not mem.get(i) and paced[0][0] <= i and nside - len(side) >= paced[0][2]:
            assert nside - len(side) <= paced[0][3], ('paced item too late', paced[0])
            A(paced.pop(0)[1]); n += 1
        c = cap
        if side and side[0][2] < len(ms):
            dl = side[0][2]
            if sum(1 for x in side if x[2] == dl) > slots(i, dl): c = cap + 1
        while side and n < c and side[0][0] <= i:
            A(side.pop(0)[1]); n += 1
        while bg and n < cap:
            A(bg.pop(0)); n += 1
        if i in flush:
            while side and side[0][0] <= i + 4: A(side.pop(0)[1])
        if hooks and i in hooks: hooks[i]()
    assert not paced
    return [x[1] for x in side]

def gemm_phase(B, loc, finish, swap=False, hooks=None, D=6, gate=None, bg=None, extra_mem=None, ghooks=None, flush=(), pace=0):
    def rd(f):
        l = loc(f)
        if l[0] == 'lds':
            buf = RING + 4*(f % 8)
            return [f'ds_read_b128 v[{buf}:{buf+3}], v{l[1]} offset:{l[2]}']
        return []
    ms, mem, side, hk, paced = [], dict(extra_mem or {}), [], dict(ghooks or {}), []
    for f in range(D):
        for t in rd(f): A(t)
    for f in range(72):
        sig, s, h = f // 12, (f % 12) // 2, f % 2
        l = loc(f)
        a = RING + 4*(f % 8) if l[0] == 'lds' else l[1]
        accb = ACC + 16*(sig & 1)
        for G in range(2):
            d = accb + 8*G + 4*h
            b = B + 24*G + 4*s
            ms.append(mf(d, b, a, None if s == 0 else d) if swap else mf(d, a, b, None if s == 0 else d))
        fn = f + D
        if fn < 72 and not (gate is not None and f < gate <= fn):
            mem[2*f] = rd(fn)
        if f % 12 == 11:
            k = 0
            for t in finish(sig, accb):
                if pace and t.startswith('buffer_store') and sig < 5:
                    paced.append((2*f + 1 + 6 + pace*k, t, len(side), len(side) + 23)); k += 1
                else:
                    side.append((2*f + 1 + 3, t, 2*f + 1 + 24))
            if hooks and sig in hooks:
                def mk(sig=sig, f=f):
                    def h():
                        hooks[sig]()
                        if gate is not None and f + 1 == gate:
                            for k in range(gate, gate + D):
                                for t in rd(k): A(t)
                    return h
                hk[2*f + 1] = mk()
    return stream(ms, mem, side, hk, bg=bg, flush=flush, paced=paced)

def poll(label, off):
    A(f'v_mov_b32 v{vT+2}, 0')
    A(f's_mov_b32 s{sT4}, 0')
    A('s_mov_b64 exec, 1')
    A.label(label)
    A(f'buffer_load_dword v{vT+3}, v{vT+2}, s[{S_DBG}:{S_DBG+3}], 0 offen offset:{off} sc1')
    A('s_waitcnt vmcnt(0)')
    A(f'v_cmp_eq_u32 vcc, 0, v{vT+3}')
    A(f's_add_u32 s{sT4}, s{sT4}, 1')
    A(f's_cmp_gt_u32 s{sT4}, 200000')
    A(f's_cbranch_scc1 {label}_x')
    A('s_cmp_lg_u64 vcc, 0')
    A(f's_cbranch_scc0 {label}_x')
    A('s_sleep 2')
    A(f's_branch {label}')
    A.label(label + '_x')
    A('s_mov_b64 exec, -1')

def cond(lbl, isE, body):
    A(f's_cmp_lt_u32 s{sW}, 4' if isE else f's_cmp_ge_u32 s{sW}, 4')
    A(f's_cbranch_scc1 {lbl}')
    body()
    A.label(lbl)

nprio = [0]
def prio(e, l):
    nprio[0] += 1
    A(f's_setprio {l}')
    if e != l: cond(f'M_pr{nprio[0]}', True, lambda: A.skip(f's_setprio {e}'))

npad = [0]
def padat(name):
    if OPT.get('padpos') != name: return
    npad[0] += 1
    A.label(f'PADM{npad[0]}')
    A.raw('  s_memrealtime s[98:99]')
    A.raw('  s_waitcnt lgkmcnt(0)')
    A.raw('  s_sub_u32 s98, s98, s96')
    A.raw(f'  s_cmp_lt_u32 s98, {OPT["padt"]}')
    A.raw(f'  s_cbranch_scc1 PADM{npad[0]}')

def gen_main():
    A.raw(f'.globl {NAME}'); A.raw('.p2align 8'); A.raw(f'.type {NAME},@function')
    A.raw(f'{NAME}:'); A.reset()
    A('s_cmp_ge_u32 s2, 256')
    A('s_cbranch_scc1 M_done')
    stamp(0)
    if 'pad' in OPT or 'padpos' in OPT: A.raw('  s_memrealtime s[96:97]')
    A('s_load_dwordx8 s[4:11], s[0:1], 0')
    A('s_load_dwordx4 s[12:15], s[0:1], 32')
    A(f'v_lshrrev_b32 v{vT}, 6, v0')
    A(f'v_and_b32 v{vL}, 63, v0')
    A(f'v_readfirstlane_b32 s{sW}, v{vT}')
    A(f'v_lshrrev_b32 v{vG}, 4, v{vL}')
    A(f'v_and_b32 v{vN}, 15, v{vL}')
    A(f'v_lshlrev_b32 v{vWA0}, 4, v{vL}')
    if OPT.get('cpf', '1') != '0':
        A('s_getpc_b64 s[16:17]')
        A('s_and_b32 s16, s16, -256')
        A('s_and_b32 s17, s17, 0xffff')
        A('s_mov_b32 s18, CODE_END-' + NAME)
        A('s_mov_b32 s19, 0x00020000')
        A(f's_lshr_b32 s{sT0}, s2, 3')
        A(f's_lshl_b32 s{sT0}, s{sT0}, 10')
        A(f's_cmp_lg_u32 s{sW}, 3')
        A('s_cbranch_scc1 M_nocpf')
        A.raw(f'  buffer_load_dwordx4 v[{MACC}:{MACC+3}], v{vWA0}, s[16:19], s{sT0} offen')
        A.label('M_nocpf')
    def decode():
        A(f's_and_b32 s{sT0}, s2, 7')
        A(f's_lshr_b32 s{sT1}, s2, 3')
        MAP = OPT.get('map', '0')
        if MAP == '0':
            A(f's_lshr_b32 s{sPR}, s{sT0}, 2')
            A(f's_bfe_u32 s{sPC}, s{sT0}, 0x10001')
            A(f's_and_b32 s{sT0}, s{sT0}, 1')
            A(f's_lshl_b32 s{sT0}, s{sT0}, 2')
            A(f's_lshr_b32 s{sTR}, s{sT1}, 3')
            A(f's_add_u32 s{sTR}, s{sTR}, s{sT0}')
            A(f's_and_b32 s{sTC}, s{sT1}, 7')
        elif MAP == '1':
            A(f's_mov_b32 s{sTR}, s{sT0}')
            A(f's_and_b32 s{sPR}, s{sT1}, 1')
            A(f's_bfe_u32 s{sPC}, s{sT1}, 0x10001')
            A(f's_lshr_b32 s{sTC}, s{sT1}, 2')
        elif MAP == '2':
            A(f's_lshr_b32 s{sPR}, s{sT0}, 2')
            A(f's_and_b32 s{sT0}, s{sT0}, 3')
            A(f's_lshl_b32 s{sT0}, s{sT0}, 1')
            A(f's_lshr_b32 s{sTR}, s{sT1}, 4')
            A(f's_add_u32 s{sTR}, s{sTR}, s{sT0}')
            A(f's_and_b32 s{sPC}, s{sT1}, 1')
            A(f's_bfe_u32 s{sTC}, s{sT1}, 0x30001')
        else:
            A(f's_and_b32 s{sPR}, s{sT1}, 1')
            A(f's_bfe_u32 s{sPC}, s{sT1}, 0x10001')
            A(f's_and_b32 s{sTR}, s{sT0}, 6')
            A(f's_lshr_b32 s{sT2}, s{sT1}, 4')
            A(f's_add_u32 s{sTR}, s{sTR}, s{sT2}')
            A(f's_and_b32 s{sT0}, s{sT0}, 1')
            A(f's_lshl_b32 s{sT0}, s{sT0}, 2')
            A(f's_bfe_u32 s{sTC}, s{sT1}, 0x20002')
            A(f's_add_u32 s{sTC}, s{sTC}, s{sT0}')
        A(f's_mul_i32 s{sTR}, s{sTR}, 14')
        A(f's_mul_i32 s{sTC}, s{sTC}, 14')
    def srds():
        srd(S_WS, 14, 15, WS_BYTES)
        srd(S_OUT, 10, 11, X_BYTES)
        srd(S_DBG, 12, 13, 256)
    def scalar_setup():
        A(f's_mul_i32 s{sALR}, s{sPR}, 13')
        A(f's_add_i32 s{sALR}, s{sALR}, -6')
        A(f's_mul_i32 s{sALC}, s{sPC}, 13')
        A(f's_add_i32 s{sALC}, s{sALC}, -6')
        A(f's_cmp_ge_u32 s{sW}, 4')
        A(f's_cselect_b32 s{sSTRIP}, -4, 3')
        A(f's_add_i32 s{sSTRIP}, s{sSTRIP}, s{sW}')
        A(f's_lshl_b32 s{sSTRIP}, s{sSTRIP}, 1')
        A(f's_add_u32 s{sOA}, s{sTR}, s{sSTRIP}')
        A(f's_mov_b32 s{sOA+1}, 86016')
        A(f's_movk_i32 s{sOA+2}, 384')
    def scalar_setup2():
        A(f's_mul_i32 s{sT0}, s{sPR}, 6')
        A(f's_add_i32 s{sKR0}, s{sTR}, s{sT0}')
        A(f's_add_i32 s{sKR0}, s{sKR0}, -6')
        A(f's_cmp_eq_i32 s{sKR0}, -6')
        A(f's_cselect_b32 s{sLOR}, 6, 0')
        A(f's_cmp_eq_i32 s{sKR0}, 98')
        A(f's_cselect_b32 s{sHIR}, 7, 13')
        A(f's_cselect_b32 s{sSHR}, 2, 0')
        A(f's_sub_i32 s{sKR0}, s{sKR0}, s{sSHR}')
        A(f's_mul_i32 s{sT0}, s{sPC}, 6')
        A(f's_add_i32 s{sT1}, s{sTC}, s{sT0}')
        A(f's_add_i32 s{sT1}, s{sT1}, -6')
        A(f's_cmp_eq_i32 s{sT1}, -6')
        A(f's_cselect_b32 s{sLOC}, 6, 0')
        A(f's_cmp_eq_i32 s{sT1}, 98')
        A(f's_cselect_b32 s{sHIC}, 7, 13')
        A(f's_lshl_b32 s{sT1}, s{sT1}, 1')
        A(f's_add_i32 s{sT1}, s{sT1}, s{sPC}')
        A(f's_mul_i32 s{sKC0B}, s{sT1}, 384')
        A(f's_max_i32 s{sB0}, s{sSTRIP}, s{sLOR}')
        A(f's_min_i32 s{sB0}, s{sB0}, s{sHIR}')
        A(f's_and_b32 s{sB0}, s{sB0}, -2')
        A(f's_add_u32 s{sBASE}, s{sB0}, s{sSHR}')
        A(f's_mov_b32 s{sNEG}, {NEGINF}')
        A(f's_mov_b32 s{sSC}, {SCALE}')
        A(f's_and_b32 s{sF}, s{sW}, 1')
        A(f's_lshl_b32 s{sF}, s{sF}, 3')
        A(f's_and_b32 s{sT1}, s{sW}, 6')
        A(f's_or_b32 s{sF}, s{sF}, s{sT1}')
        A(f's_add_u32 s{sT1}, s{sW}, 8')
        row_soff(sXR, f's{sT1}')
        A(f's_mul_i32 s{sXL}, s{sT1}, {ROWB}')

    def sreg(G, tl): return SACC + 28*G + 4*tl
    TM = [197, 198, 199, 255, 0]
    def pixaddr(dst, sel, lane):
        t0, t1, t2, t3, t4 = TM
        o = [f'v_lshrrev_b32 v{t0}, 1, v{sel}', f'v_and_b32 v{t3}, 1, v{sel}', f'v_add_u32 v{t0}, s{sOA}, v{t0}',
             f'v_lshl_add_u32 v{t4}, v{t3}, 2, s{sTC}',
             f'v_lshl_add_u32 v{t1}, v{t0}, 1, s{sALR}', f'v_add_u32 v{t2}, 112, v{t0}', f'v_lshlrev_b32 v{t3}, 30, v{t3}',
             f'v_med3_i32 v{t0}, v{t1}, v{t0}, v{t2}', f'v_mul_lo_u32 v{t0}, v{t0}, s{sOA+1}'] + lane(t0)
        for G in range(2):
            for r in range(4):
                d = dst(G, r)
                o += [f'v_add_u32 v{d}, {7*G+r}, v{t4}', f'v_lshl_add_u32 v{t1}, v{d}, 1, s{sALC}',
                      f'v_add_u32 v{t2}, 112, v{d}', f'v_med3_i32 v{d}, v{t1}, v{d}, v{t2}',
                      f'v_mad_u32_u24 v{d}, v{d}, s{sOA+2}, v{t0}']
                if r == 3: o += [f'v_add_u32 v{d}, v{d}, v{t3}']
        return o
    def oaddr(): return pixaddr(lambda G, r: vOA + 4*G + r, vG, lambda t: [f'v_lshl_add_u32 v{t}, v{vN}, 3, v{t}'])
    vXS = ACC
    sXRW, sXB = 84, 86
    def xaddr():
        A(f'v_lshrrev_b32 v{vT}, 3, v{vL}')
        A(f'v_and_b32 v{vT+1}, 7, v{vL}')
        A(f'v_and_b32 v{vT+2}, 6, v{vT}')
        A(f'v_xor_b32 v{vT+1}, v{vT+1}, v{vT+2}')
        A(f'v_add_u32 v{vT+2}, 1, v{vT}')
        A(f'v_lshrrev_b32 v{vT+2}, 3, v{vT+2}')
        A(f'v_lshlrev_b32 v{vT+2}, 26, v{vT+2}')
        A(f'v_or_b32 v{vT+1}, v{vT+1}, v{vT+2}')
        A(f'v_add_u32 v{vT}, s{sTC}, v{vT}')
        for G in range(2):
            if G: A(f'v_add_u32 v{vT}, 7, v{vT}')
            A(f'v_lshl_add_u32 v{vT+2}, v{vT}, 1, s{sALC}')
            A(f'v_add_u32 v{vT+3}, 112, v{vT}')
            A(f'v_med3_i32 v{vT+2}, v{vT+2}, v{vT}, v{vT+3}')
            A(f'v_mul_u32_u24 v{vT+2}, 384, v{vT+2}')
            A(f'v_lshl_add_u32 v{vXS+G}, v{vT+1}, 4, v{vT+2}')
        for rb in range(2):
            A(f's_add_u32 s{sT0}, s{sOA}, {rb}')
            A(f's_lshl_b32 s{sT1}, s{sT0}, 1')
            A(f's_add_i32 s{sT1}, s{sT1}, s{sALR}')
            A(f's_max_i32 s{sT1}, s{sT1}, s{sT0}')
            A(f's_add_i32 s{sT0}, s{sT0}, 112')
            A(f's_min_i32 s{sT1}, s{sT1}, s{sT0}')
            A(f's_mul_i32 s{sXRW+rb}, s{sT1}, 86016')
        A(f's_mul_i32 s{sXB}, s{sW}, 12288')
    def xload(i):
        j, G, rb = i // 4, (i >> 1) & 1, i & 1
        A.skip(f's_add_u32 m0, s{sXB}, {((G*2 + rb)*3 + j)*1024 - 128*j - 12288 + 512}')
        A.skip('s_nop 0')
        A.raw(f'  buffer_load_dwordx4 v{vXS+G}, s[{S_X}:{S_X+3}], s{sXRW+rb} offen offset:{128*j}{XNT} lds')
    def xread():
        A(f'v_and_b32 v{vXS+2}, 6, v{vN}')
        A(f'v_xor_b32 v{vXS+2}, v{vXS+2}, v{vG}')
        A(f'v_and_b32 v{vXS+4}, 7, v{vN}')
        A(f'v_lshlrev_b32 v{vXS+4}, 7, v{vXS+4}')
        A(f'v_lshrrev_b32 v{vXS+5}, 3, v{vN}')
        A(f'v_mul_u32_u24 v{vXS+5}, 3072, v{vXS+5}')
        A(f's_add_u32 s{sT0}, s{sXB}, {512 - 12288}')
        A(f'v_add3_u32 v{vXS+4}, v{vXS+4}, v{vXS+5}, s{sT0}')
        A(f'v_xor_b32 v{vXS+3}, 4, v{vXS+2}')
        A(f'v_lshl_add_u32 v{vXS+2}, v{vXS+2}, 4, v{vXS+4}')
        A(f'v_lshl_add_u32 v{vXS+3}, v{vXS+3}, 4, v{vXS+4}')
        for j in range(3):
            A(f's_waitcnt vmcnt({8 - 4*j})')
            for G in range(2):
                for q in range(2):
                    r = XQ + 24*G + 4*(2*j + q)
                    A(f'ds_read_b128 v[{r}:{r+3}], v{vXS+2+q} offset:{(6*G + j)*1024}')
        A('s_waitcnt lgkmcnt(0)')
    def setup():
        B = Asm()
        def Fv(dst, row):
            B(f'v_and_b32 v{dst}, 1, v{row}')
            B(f'v_lshlrev_b32 v{dst}, 3, v{dst}')
            B(f'v_and_or_b32 v{dst}, v{row}, 6, v{dst}')
        B(f'v_lshrrev_b32 v{vT}, 3, v{vN}')
        B(f'v_add_u32 v{vT}, s{sSTRIP}, v{vT}')
        B(f'v_max_i32 v{vT}, s{sLOR}, v{vT}')
        B(f'v_min_i32 v{vT}, s{sHIR}, v{vT}')
        B(f'v_subrev_u32 v{vT}, s{sB0}, v{vT}')
        B(f'v_and_b32 v{vT+1}, 1, v{vG}')
        B(f'v_sub_u32 v{vT+2}, v{vT+1}, v{vT}')
        B(f'v_ashrrev_i32 v{vR0}, 31, v{vT+2}')
        B(f'v_and_b32 v{vR0}, s{sNEG}, v{vR0}')
        B(f'v_sub_u32 v{vT+2}, v{vT}, v{vT+1}')
        B(f'v_ashrrev_i32 v{vR3}, 31, v{vT+2}')
        B(f'v_and_b32 v{vR3}, s{sNEG}, v{vR3}')
        B(f'v_and_b32 v{vT}, 7, v{vN}')
        B(f'v_lshrrev_b32 v{vT+1}, 1, v{vG}')
        B(f'v_subrev_u32 v{vT+3}, 7, v{vT}')
        B(f'v_ashrrev_i32 v{vT+3}, 31, v{vT+3}')
        B(f'v_and_b32 v{vT+3}, 0x7f, v{vT+3}')
        for G in range(2):
            B(f'v_add_u32 v{vT+2}, {7*G}, v{vT}')
            B(f'v_max_i32 v{vT+2}, s{sLOC}, v{vT+2}')
            B(f'v_min_i32 v{vT+2}, s{sHIC}, v{vT+2}')
            B(f'v_lshlrev_b32 v{vT+2}, v{vT+2}, v{vT+3}')
            B(f'v_lshrrev_b32 v{vT+2}, v{vT+1}, v{vT+2}')
            B(f'v_not_b32 v{vCB+G}, v{vT+2}')
        B(f'v_add_u32 v{vT}, s{sBASE}, v{vT}')
        Fv(vT+1, vT)
        B(f'v_mul_u32_u24 v{vT}, {ROWB}, v{vT}')
        B(f'v_lshrrev_b32 v{vT+2}, 3, v{vN}')
        B(f'v_mul_u32_u24 v{vT+2}, 24, v{vT+2}')
        B(f'v_add_u32 v{vT+2}, v{vT+2}, v{vG}')
        for s in range(4):
            B(f'v_add_u32 v{vT+3}, {4*s}, v{vT+2}')
            B(f'v_xor_b32 v{vT+3}, v{vT+3}, v{vT+1}')
            B(f'v_lshl_add_u32 v{vAS+s}, v{vT+3}, 4, v{vT}')
        B(f'v_and_b32 v{vT}, 1, v{vG}')
        B(f'v_lshlrev_b32 v{vT}, 2, v{vT}')
        B(f'v_lshrrev_b32 v{vT+1}, 2, v{vN}')
        B(f'v_add3_u32 v{vT}, v{vT}, v{vT+1}, s{sBASE}')
        Fv(vT+1, vT)
        B(f'v_mul_u32_u24 v{vT}, {ROWB}, v{vT}')
        B(f'v_and_b32 v{vT+2}, 1, v{vN}')
        B(f'v_lshl_add_u32 v{vT}, v{vT+2}, 3, v{vT}')
        B(f'v_lshrrev_b32 v{vT+2}, 1, v{vG}')
        B(f'v_mul_u32_u24 v{vT+2}, 24, v{vT+2}')
        B(f'v_bfe_u32 v{vT+3}, v{vN}, 1, 1')
        B(f'v_add_u32 v{vT+2}, v{vT+2}, v{vT+3}')
        for ct in range(8):
            B(f'v_add_u32 v{vT+3}, {2*ct}, v{vT+2}')
            B(f'v_xor_b32 v{vT+3}, v{vT+3}, v{vT+1}')
            B(f'v_lshl_add_u32 v{vAP+ct}, v{vT+3}, 4, v{vT}')
        B(f'v_add_u32 v{vWA1}, {SPARE}, v{vWA0}')
        B(f'v_add_u32 v{vWAM}, {MB}, v{vWA0}')
        row_addrs(WF, f's{sF}', B)
        return [l.strip() for l in B.lines]
    def masks():
        out = []
        for tl in range(7):
            a = []
            for G in range(2):
                tau = tl + 3*G
                r = sreg(G, tl)
                a.append([f'v_bfe_i32 v{r+2}, v{vCB+G}, {2*tau}, 1', f'v_and_b32 v{r+1}, s{sNEG}, v{r+2}',
                          f'v_and_b32 v{r+2}, s{sNEG}, v{r+2}', f'v_or_b32 v{r}, v{r+1}, v{vR0}', f'v_or_b32 v{r+3}, v{r+1}, v{vR3}'])
            for x, y in zip(*a): out += [x, y]
        return out

    def mshare():
        A(f's_lshl_b32 s{sT0}, s{sW}, 10')
        A(f's_add_u32 s{sT0}, s{sT0}, {MOFF}')
        for i in range(9):
            A(f's_sub_u32 m0, s{sT0}, {MOFF - MB}')
            A(f'buffer_load_dwordx4 v{vWA0}, s[{S_WS}:{S_WS+3}], s{sT0} offen sc1 lds')
            if i < 8: A(f's_add_u32 s{sT0}, s{sT0}, 8192')
    A(f's_cmp_lg_u32 s{sW}, 0')
    A('s_cbranch_scc1 M_comp')
    A(f'v_bfe_u32 v{vT+1}, v{vL}, 2, 2')
    A(f'v_lshrrev_b32 v{vT+2}, 5, v{vL}')
    A(f'v_lshlrev_b32 v{vT+3}, 1, v{vT+2}')
    A(f'v_and_b32 v{vT+4}, 3, v{vL}')
    A(f'v_xor_b32 v{vT+3}, v{vT+3}, v{vT+4}')
    A(f'v_lshlrev_b32 v{vT+3}, 4, v{vT+3}')
    A(f's_movk_i32 s{sT5}, 1152')
    A(f'v_lshl_add_u32 v{vT}, v{vG}, 3, v{vT+1}')
    A(f'v_mad_u32_u24 v{vWD}, v{vT}, s{sT5}, v{vT+3}')
    A(f'v_lshrrev_b32 v{vT}, 2, v{vL}')
    A(f'v_mad_u32_u24 v{vWD+3}, v{vT}, s{sT5}, v{vT+3}')
    A(f'v_lshrrev_b32 v{vT}, 3, v{vN}')
    A(f'v_lshlrev_b32 v{vT}, 1, v{vT}')
    A(f'v_xor_b32 v{vT}, v{vT}, v{vG}')
    A(f'v_lshl_add_u32 v{vT}, v{vN}, 2, v{vT}')
    A(f'v_lshlrev_b32 v{MWA+3}, 4, v{vT}')
    A(f'v_add_u32 v{MWA+3}, {MB}, v{MWA+3}')
    nstamp[0] = 1
    A('s_waitcnt lgkmcnt(0)')
    srd(S_W, 6, 7, 192*576*2)
    TA, TB, TD = 64, 112, 160
    def signal(off, last, tag, wait=True):
        A('v_mov_b32 v192, 1'); A('v_mov_b32 v193, 0')
        A('s_mov_b64 exec, 1')
        A('s_waitcnt vmcnt(0)')
        A(f'buffer_atomic_add v192, v193, s[{S_DBG}:{S_DBG+3}], 0 offen offset:{off} sc0 sc1')
        A('s_mov_b64 exec, -1')
    def publish(off, last, tag):
        A(f'v_readfirstlane_b32 s{sT1}, v192')
        A(f's_cmp_lg_u32 s{sT1}, {last}')
        A(f's_cbranch_scc1 {tag}')
        A('s_mov_b64 exec, 1')
        A(f'buffer_store_dword v192, v193, s[{S_DBG}:{S_DBG+3}], 0 offen offset:{128 + off} sc1')
        A('s_mov_b64 exec, -1')
        A.label(tag)
    A(f's_cmp_ge_u32 s2, {NMP}')
    A('s_cbranch_scc1 H_nom')
    A(f's_mul_hi_u32 s{sT0}, s2, 0x2aaaaaab')
    A(f's_mul_i32 s{sT1}, s{sT0}, 6')
    A(f's_sub_u32 s{sT1}, s2, s{sT1}')
    A(f's_mul_i32 s{sT0}, s{sT0}, {32*1152}')
    A(f's_mul_i32 s{sT1}, s{sT1}, {32*1152}')
    for h in range(2):
        for k in range(6):
            A(f's_mov_b32 m0, {MB + (6*h + k)*1024 - 64*k}')
            A(f'buffer_load_dwordx4 v{vWD}, s[{S_W}:{S_W+3}], s{sT1} offen offset:{64*k} lds')
            A(f's_mov_b32 m0, {MB + (12 + 6*h + k)*1024 - 384 - 64*k}')
            A(f'buffer_load_dwordx4 v{vWD}, s[{S_W}:{S_W+3}], s{sT0} offen offset:{384 + 64*k} lds')
        if h == 0:
            A(f's_add_u32 s{sT0}, s{sT0}, 4608'); A(f's_add_u32 s{sT1}, s{sT1}, 4608')
    A('s_barrier')
    srd(S_X, 4, 5, X_BYTES)
    srds()
    A(f's_lshl_b32 s{sT0}, s2, 11')
    A(f's_add_u32 s{sT0}, s{sT0}, {MOFF}')
    A('s_waitcnt vmcnt(0)')
    stamp()
    for k in range(6):
        for q in range(4):
            r = TA + 24*q + 4*k
            A(f'ds_read_b128 v[{r}:{r+3}], v{MWA+3} offset:{(6*q + k)*1024}')
        if k >= 2:
            kk = k - 2
            for h in range(2):
                for hp in range(2):
                    d = TD + 8*h + 4*hp
                    A(mf(d, TA + 24*hp + 4*kk, TB + 24*h + 4*kk, None if kk == 0 else d))
    for kk in (4, 5):
        for h in range(2):
            for hp in range(2):
                d = TD + 8*h + 4*hp
                A(mf(d, TA + 24*hp + 4*kk, TB + 24*h + 4*kk, d))
    for h in range(2):
        for q in range(4):
            A(f'v_cvt_pk_bf16_f32 v{TD+16+4*h+q}, v{TD+8*h+2*q}, v{TD+8*h+2*q+1}')
        A(f'buffer_store_dwordx4 v[{TD+16+4*h}:{TD+19+4*h}], v{vWA0}, s[{S_WS}:{S_WS+3}], s{sT0} offen offset:{1024*h} sc1')
    signal(0, NMP - 1, 'H_p1')
    A('s_barrier')
    A('s_waitcnt vmcnt(0)')
    publish(0, NMP - 1, 'H_p1')
    A('s_barrier')
    A('s_branch H_join')
    A.label('H_nom'); A.reset()
    nstamp[0] = 1
    VA, VB, VD = 64, 88, 112
    srd(S_WO, 8, 9, 192*192*2)
    A(f's_cmp_lt_u32 s2, 112')
    A('s_cbranch_scc1 H_nov1')
    A(f's_sub_u32 s{sT3}, s2, 112')
    A(f's_mul_hi_u32 s{sT0}, s{sT3}, 0x15555556')
    A(f's_mul_i32 s{sT1}, s{sT0}, 12')
    A(f's_sub_u32 s{sT1}, s{sT3}, s{sT1}')
    A(f's_mul_i32 s{sT2}, s{sT0}, {16*1152}')
    for k in range(6):
        A(f's_mov_b32 m0, {MB + 2048 + 1024*k - 768 - 64*k}')
        A(f'buffer_load_dwordx4 v{vWD+3}, s[{S_W}:{S_W+3}], s{sT2} offen offset:{768 + 64*k} lds')
    A(f'v_lshrrev_b32 v{VD}, 1, v{vL}')
    A(f'v_mul_u32_u24 v{VD}, 384, v{VD}')
    A(f'v_and_b32 v{VD+1}, 1, v{vL}')
    A(f'v_lshl_add_u32 v{VD}, v{VD+1}, 4, v{VD}')
    A(f's_lshl_b32 s{sT2}, s{sT1}, 5')
    for k in range(6):
        A(f's_mov_b32 m0, {MB + 8192 + 1024*k}')
        A(f'buffer_load_dwordx4 v{VD}, s[{S_WO}:{S_WO+3}], s{sT2} offen lds')
        A(f's_add_u32 s{sT2}, s{sT2}, {32*384}')
    A(f's_lshr_b32 s{sT2}, s{sT1}, 2')
    A(f's_mul_i32 s{sVO}, s{sT2}, 24576')
    A(f's_and_b32 s{sT1}, s{sT1}, 3')
    A(f's_lshl_b32 s{sT1}, s{sT1}, 6')
    A(f's_add_u32 s{sVO}, s{sVO}, s{sT1}')
    A(f's_lshr_b32 s{sT1}, s{sT0}, 1')
    A(f's_lshl_b32 s{sT1}, s{sT1}, 11')
    A(f's_add_u32 s{sVO}, s{sVO}, s{sT1}')
    A(f's_and_b32 s{sT0}, s{sT0}, 1')
    A(f's_lshl_b32 s{sT0}, s{sT0}, 3')
    A(f's_add_u32 s{sVO}, s{sVO}, s{sT0}')
    A.label('H_nov1'); A.reset()
    A('s_barrier')
    srd(S_X, 4, 5, X_BYTES)
    srds()
    stamp()
    A(f's_cmp_lt_u32 s2, 112')
    A('s_cbranch_scc1 H_join')
    t0, t1 = VD + 6, VD + 7
    A(f'v_lshlrev_b32 v{t1}, 3, v{vN}')
    A(f'v_lshl_add_u32 v{t1}, v{vG}, 8, v{t1}')
    A(f'v_add_u32 v{t1}, {MB}, v{t1}')
    A('s_waitcnt vmcnt(0)')
    for k in range(6):
        A(f'ds_read_b128 v[{VA+4*k}:{VA+4*k+3}], v{MWA+3} offset:{2048 + 1024*k}')
    A('s_waitcnt lgkmcnt(2)')
    for k in range(6):
        for hh in range(2):
            A(f'ds_read_b64_tr_b16 v[{VB+4*k+2*hh}:{VB+4*k+2*hh+1}], v{t1} offset:{8192 + 1024*k + 128*hh}')
    A('s_waitcnt lgkmcnt(0)')
    for k in range(6):
        A(mf(VD, VA + 4*k, VB + 4*k, None if k == 0 else VD))
    A(f'v_bfe_u32 v{t0}, v{vN}, 1, 1')
    A(f'v_mul_u32_u24 v{t0}, 12288, v{t0}')
    A(f'v_and_b32 v{t1}, 1, v{vN}')
    A(f'v_lshl_add_u32 v{t0}, v{t1}, 10, v{t0}')
    A(f'v_lshrrev_b32 v{t1}, 2, v{vN}')
    A(f'v_lshl_add_u32 v{t0}, v{t1}, 4, v{t0}')
    A(f'v_lshl_add_u32 v{t0}, v{vG}, 8, v{t0}')
    A(f'v_cvt_pk_bf16_f32 v{VD+4}, v{VD}, v{VD+1}')
    A(f'v_cvt_pk_bf16_f32 v{VD+5}, v{VD+2}, v{VD+3}')
    A(f'buffer_store_dwordx2 v[{VD+4}:{VD+5}], v{t0}, s[{S_WS}:{S_WS+3}], s{sVO} offen sc1')
    A('s_branch H_join')
    A.label('M_comp'); A.reset()
    nstamp[0] = 1
    decode()
    scalar_setup()
    xaddr()
    A('s_waitcnt lgkmcnt(0)')
    srd(S_X, 4, 5, X_BYTES)
    stamp()
    NA, NB = int(OPT.get('na', '4')), int(OPT.get('nb', '4'))
    A('s_barrier')
    for i in range(NA): xload(i)
    A(f's_cmp_lt_u32 s2, {NMP}')
    A('s_cbranch_scc1 M_x1')
    for i in range(NA, 12): xload(i)
    A.label('M_x1')
    stamp()
    srds(); scalar_setup2()
    for t in setup() + oaddr() + masks(): A(t)
    A(f's_cmp_ge_u32 s2, {NMP}')
    A('s_cbranch_scc1 M_x2')
    A.skip('s_barrier')
    for i in range(NA, NA + NB): xload(i)
    A.skip('s_barrier')
    for i in range(NA + NB, 12): xload(i)
    A.label('M_x2')
    stamp()
    xread()
    stamp()
    A('s_barrier')
    stamp()
    mshare()
    A('s_waitcnt vmcnt(6)')
    A('s_barrier')
    padat('A')
    stamp()
    bgA = []
    xrow = []
    for j in range(8):
        xrow.append(f's_add_u32 m0, s{sXL}, {16*PIECE[j]}\n s_nop 0\n buffer_load_dwordx4 v{WF+j}, s[{S_X}:{S_X+3}], s{sXR} offen{KNT} lds')
    def finA(sig, accb):
        out = []
        for G in range(2):
            for q in range(4):
                out.append(f'v_cvt_pk_bf16_f32 v{QP+24*G+4*sig+q}, v{accb+8*G+2*q}, v{accb+8*G+2*q+1}')
        return out
    def locA(f):
        if f < 60: return ('lds', vWAM, f*1024)
        if f < 62: return ('reg', WF + 4*(f-60))
        return ('lds', vWA1, (f-62)*1024)
    def bar():
        A('s_barrier')
        bgA[0:0] = xrow
    def bar4():
        A('s_waitcnt vmcnt(0)'); A('s_barrier')
        prio(3, 2)
    def b0b():
        A('s_waitcnt vmcnt(0)'); A('s_barrier')
    hA = {2: bar, 4: bar4}
    xm = {2*48+1: [f'ds_read_b128 v[{WF}:{WF+3}], v{vWAM} offset:{60*1024}'],
          2*49+1: [f'ds_read_b128 v[{WF+4}:{WF+7}], v{vWAM} offset:{61*1024}']}
    pend = gemm_phase(XQ, locA, finA, hooks=hA, bg=bgA, extra_mem=xm, ghooks={35: b0b})
    assert not bgA
    stamp()
    padat('S')
    cond('M_l1', False, lambda: A.skip('s_barrier'))
    seq = []
    for (a1, a2) in ((0, 3), (1, 4), (2, 5), (7, 6), (8, 9)):
        for s in range(6):
            seq.append((a1, s)); seq.append((a2, s))
    def users(tau):
        u = []
        if tau <= 6: u.append((0, tau))
        if tau >= 3: u.append((1, tau - 3))
        return u
    def rdS(i):
        tau, s = seq[i]
        buf = RING + 4*(i % 8)
        return f'ds_read_b128 v[{buf}:{buf+3}], v{vAS + (s % 4)} offset:{tau*768 + (256 if s >= 4 else 0)}'
    D = 7
    for i in range(D): A(rdS(i))
    for t in pend: A(t)
    vM = [12, 13]; vX = [14, 15]
    A(f's_mov_b32 s{sT1}, 0xff7fffff')
    ms, mem, side = [], {}, []
    started = [False, False]; ndone = [0, 0]
    def xl(G):
        o = []
        for sw in ('v_permlane32_swap_b32', 'v_permlane16_swap_b32'):
            o += [f'v_mov_b32 v{vX[G]}, v{vM[G]}', f'{sw} v{vM[G]}, v{vX[G]}', f'v_max_f32 v{vM[G]}, v{vM[G]}, v{vX[G]}']
        return o + [f'v_mul_f32 v{vM[G]}, s{sSC}, v{vM[G]}']
    for i, (tau, s) in enumerate(seq):
        a = RING + 4*(i % 8)
        for (G, tl) in users(tau):
            r = sreg(G, tl)
            ms.append(mf(r, a, QP + 24*G + 4*s, r))
            if s == 5:
                e = len(ms) + 3
                side.append((e, f'v_max3_f32 v{vM[G]}, v{r}, v{r+1}, ' + (f'v{vM[G]}' if started[G] else f's{sT1}')))
                side.append((e, f'v_max3_f32 v{vM[G]}, v{r+2}, v{r+3}, v{vM[G]}'))
                started[G] = True; ndone[G] += 1
        if i % 12 == 11:
            for G in range(2):
                if ndone[G] == 7:
                    side += [(len(ms) + 3 + 2*k, t) for k, t in enumerate(xl(G))]; ndone[G] = 8
        if i + D < len(seq): mem[len(ms) - 1] = [rdS(i + D)]
    bgS = [f'v_mov_b32 v{PP+q}, 0' for q in (14, 15, 16, 17)] + [f'v_mov_b32 v{ONES+q}, 0x3f803f80' for q in range(4)]
    rest = stream(ms, mem, side, bg=bgS)
    assert not bgS
    stamp()
    prio(1, 0)
    for t in rest: A(t)
    def preg(G, tl): return PP + 16*G + 2*(tl + G)
    seqP = [(sig, u, h) for sig in range(6) for u in range(5) for h in range(2)]
    def rdP(i):
        sig, u, h = seqP[i]
        ct = 2*sig + h
        buf = RING + 4*(i % 8)
        return [f'ds_read_b64_tr_b16 v[{buf+2*hh}:{buf+2*hh+1}], v{vAP + (ct % 8)} offset:{(4*u+2*hh)*384 + (256 if ct >= 8 else 0)}' for hh in range(2)]
    DP = 6
    def b4L(): A.skip('s_barrier')
    B3AT, B4AT = int(OPT.get('b3', '1')), int(OPT.get('b4', '6'))
    if B3AT < 0: cond('M_e2', True, lambda: A.skip('s_barrier'))
    for tl in range(7):
        for G in range(2):
            r = sreg(G, tl)
            for k in range(4): A(f'v_fma_f32 v{r+k}, v{r+k}, s{sSC}, -v{vM[G]}')
            for k in range(4): A(f'v_exp_f32 v{r+k}, v{r+k}')
        for G in range(2):
            r = sreg(G, tl)
            p = preg(G, tl)
            A(f'v_cvt_pk_bf16_f32 v{p}, v{r}, v{r+1}')
            A(f'v_cvt_pk_bf16_f32 v{p+1}, v{r+2}, v{r+3}')
        if tl == B3AT: cond('M_e2', True, lambda: A.skip('s_barrier'))
        if tl >= B3AT:
            for t2 in range(0 if tl == max(B3AT, 0) else tl, tl + 1):
                if t2 % 2 == 0: A(f's_mov_b32 s{sT0}, {(10 + 2*t2)*1024}')
                for G in range(2):
                    r = sreg(G, t2)
                    A(f'buffer_load_dwordx4 v[{r}:{r+3}], v{vWA0}, s[{S_WS}:{S_WS+3}], s{sT0} offen offset:{1024*(2*(t2%2)+G)} sc1')
        if tl == 5:
            for i in range(DP):
                for t in rdP(i): A(t)
        if tl == B4AT: cond('M_l2', False, b4L)
    stamp()
    prio(3, 2)
    padat('P')
    ms, first, side, hk = [], [], [], {}
    def b5L():
        cond('M_l3', False, lambda: A.skip('s_barrier'))
    if int(OPT.get('b5', '1')) < 0: b5L()
    sums = [mf(vINV + 4*G, PP + 16*G + 4*u, ONES, None if u == 0 else vINV + 4*G) for u in range(4) for G in range(2)]
    for i, (sig, u, h) in enumerate(seqP):
        a = RING + 4*(i % 8)
        accb = ACC + 16*(sig & 1)
        first.append(len(ms))
        for G in range(2):
            uu = u - G
            if 0 <= uu <= 3:
                d = accb + 8*G + 4*h
                ms.append(mf(d, a, PP + 16*G + 4*uu, None if uu == 0 else d))
        if i % 10 in (1, 9) and 1 <= sig <= 4: ms.append(sums.pop(0))
        if i % 10 == 9:
            e = len(ms) - 1
            side += [(e + 4, t, e + 16) for t in finA(sig, accb)]
            if sig == int(OPT.get('b5', '1')): hk[e] = b5L
            if sig == int(OPT.get('pv', '3')) and OPT.get('pe') == '4': hk[e] = lambda: prio(3, 1)
    assert not sums
    mem = {}
    k = 0
    nrd = 2*(len(seqP) - DP)
    ngap = first[-1] - 5
    for j in range(DP, len(seqP)):
        for t in rdP(j):
            gp = (k * ngap) // nrd
            if j >= 8: gp = max(gp, first[j - 7] - 1)
            assert gp < first[j] - 3, (j, gp, first[j])
            mem.setdefault(gp, []).append(t); k += 1
    pend = stream(ms, mem, side, hk)
    A('s_waitcnt vmcnt(0)')
    stamp()
    def b4E():
        A.skip('s_barrier')
        A.skip(f's_mul_i32 s{sT0}, s{sW}, 9216')
        A.skip(f's_sub_u32 s{sT0}, s{sT0}, {4*9216 - 12288}')
        A.skip(f's_add_u32 s{sT4}, s{sT0}, {24*1024}')
        for blk in range(3):
            A.skip(f's_mov_b32 m0, s{sT0}')
            A.skip(f's_add_u32 s{sT0}, s{sT0}, 3072')
            for i in range(3):
                A.raw(f'  buffer_load_dwordx4 v{vWA0}, s[{S_WS}:{S_WS+3}], s{sT4} offen offset:{1024*i} sc1 lds')
            A.skip(f's_add_u32 s{sT4}, s{sT4}, 3072')
    cond('M_e3', True, b4E)
    def finE(sig, accb):
        out = []
        for G in range(2):
            for r in range(4):
                for h in range(2):
                    out.append(f'v_mul_f32 v{accb+8*G+4*h+r}, v{accb+8*G+4*h+r}, v{vINV+4*G+r}')
                o = OST + 8*G + 2*r
                out.append(f'v_cvt_pk_bf16_f32 v{o+(sig&1)}, v{accb+8*G+r}, v{accb+8*G+4+r}')
                if sig & 1:
                    out.append(f'buffer_store_dwordx2 v[{o}:{o+1}], v{vOA+4*G+r}, s[{S_OUT}:{S_OUT+3}], 0 offen offset:{128*(sig>>1)}{ONT[sig>>1]}')
        return out
    def locE(f):
        if f < 10: return ('lds', vWA1, f*1024)
        if f < 24: return ('reg', sreg((f-10) % 2, (f-10) // 2))
        return ('lds', vWA0, (f-24)*1024)
    def b5E():
        def body():
            A.raw('  s_waitcnt vmcnt(0)'); A.skip('s_barrier')
        cond('M_e4', True, body)
        padat('O')
        stamp()
    for t in pend: A(t)
    bgE = [f'v_rcp_f32 v{vINV+q}, v{vINV+q}' for q in range(8)]
    hE = {}
    if OPT.get('pe') == '1': hE = {3: lambda: prio(1, 0)}
    if OPT.get('pe') == '2': hE = {2: lambda: prio(1, 2), 4: lambda: prio(1, 0)}
    if OPT.get('pe') == '3': hE = {4: lambda: prio(1, 2)}
    if OPT.get('pe') == '4':
        hE = {2: lambda: prio(2, 0), 4: lambda: prio(1, 0)}
        prio(3, 0)
    pend = gemm_phase(QP, locE, finE, swap=True, bg=bgE, hooks=hE, pace=int(OPT.get('pace', '0')), D=int(OPT.get('de', '4')), ghooks={2*(24 - int(OPT.get('de', '4'))) - 1: b5E})
    padat('Z')
    for t in pend: A(t)
    if STAMP:
        stamp()
        A('s_waitcnt vmcnt(0)')
        stamp(1)
        write_stamps()
    if 'pad' in OPT:
        A('s_waitcnt vmcnt(0)')
        A.label('PADL')
        A.raw('  s_memrealtime s[98:99]')
        A.raw('  s_waitcnt lgkmcnt(0)')
        A('s_sub_u32 s98, s98, s96')
        A(f's_cmp_lt_u32 s98, {OPT["pad"]}')
        A('s_cbranch_scc1 PADL')
    A('s_endpgm')

    A.label('M_helper'); A.reset()
    nstamp[0] = 2
    A.label('H_join'); A.reset()
    stamp()
    decode(); scalar_setup(); scalar_setup2()
    row_addrs(WF, '0')
    row_addrs(vAP, '8')
    poll('H_pollM', 128)
    A(f's_lshr_b32 s{sT0}, s2, 3')
    A(f's_mul_i32 s{sT0}, s{sT0}, 2304')
    A(f's_add_u32 s{sT0}, s{sT0}, {MOFF}')
    for i in range(3):
        A(f'buffer_load_dwordx4 v[{80+4*i}:{83+4*i}], v{vWA0}, s[{S_WS}:{S_WS+3}], s{sT0} offen offset:{1024*i} sc1')
    stamp()
    A('s_barrier')
    stamp()
    mshare()
    A('s_waitcnt vmcnt(6)')
    A('s_barrier')
    stamp()
    A('v_mov_b32 v192, 1'); A('v_mov_b32 v193, 0')
    A('s_waitcnt vmcnt(0)')
    A(f's_cmp_lt_u32 s2, 112')
    A('s_cbranch_scc1 H_nov2')
    signal(4, 143, 'H_p2')
    A.label('H_nov2'); A.reset()
    def rows(lst):
        for i in lst:
            row_soff(sT1, str(i))
            b = vAP if i & 1 else WF
            for j in range(8):
                a = b + j
                if i & 6:
                    a = 64 + j
                    A(f'v_xor_b32 v{a}, {16*(i & 6)}, v{b+j}')
                A(f's_mov_b32 m0, {i*ROWB + 16*PIECE[j]}')
                A(f'buffer_load_dwordx4 v{a}, s[{S_X}:{S_X+3}], s{sT1} offen{KNT} lds')
            if len(A.vm) >= 56: A('s_waitcnt vmcnt(40)')
    rows([0, 1, 2, 3])
    A('s_barrier')
    rows([4, 5, 6, 7, 8])
    publish(4, 143, 'H_p2')
    stamp()
    A('s_barrier')
    A('s_waitcnt vmcnt(0)')
    stamp()
    A('s_barrier')
    rows([16, 17, 18, 19])
    A('s_waitcnt vmcnt(0)')
    stamp()
    poll('H_pollV', 132)
    A(f's_lshr_b32 s{sT0}, s2, 3')
    A(f's_mul_i32 s{sT0}, s{sT0}, 2304')
    for i in range(3):
        A(f'buffer_load_dwordx4 v[{80+4*i}:{83+4*i}], v{vWA0}, s[{S_WS}:{S_WS+3}], s{sT0} offen offset:{1024*i} sc1')
    stamp()
    A('s_barrier')
    def wfr(src0, n, lds0):
        for i in range(n):
            if i % 4 == 0:
                A(f's_mov_b32 m0, {lds0 + i*1024}')
                A(f's_mov_b32 s{sT4}, {(src0 + i)*1024}')
            A(f'buffer_load_dwordx4 v{vWA0}, s[{S_WS}:{S_WS+3}], s{sT4} offen offset:{1024*(i%4)} sc1 lds')
    wfr(0, 10, SPARE)
    PF = int(OPT.get('pf', '0'))
    if PF:
        A(f'v_lshrrev_b32 v80, 2, v{vL}')
        A('v_min_u32 v80, 13, v80')
        A(f'v_add_u32 v80, s{sTC}, v80')
        A(f'v_lshl_add_u32 v81, v80, 1, s{sALC}')
        A('v_add_u32 v82, 112, v80')
        A('v_med3_i32 v80, v81, v80, v82')
        A('v_mul_u32_u24 v80, 384, v80')
        A(f'v_and_b32 v81, 3, v{vL}')
        A('v_min_u32 v81, 2, v81')
        A('v_lshl_add_u32 v80, v81, 7, v80')
        for r in range(14):
            A(f's_add_u32 s{sT0}, s{sTR}, {r}')
            A(f's_lshl_b32 s{sT1}, s{sT0}, 1')
            A(f's_add_i32 s{sT1}, s{sT1}, s{sALR}')
            A(f's_max_i32 s{sT1}, s{sT1}, s{sT0}')
            A(f's_add_i32 s{sT0}, s{sT0}, 112')
            A(f's_min_i32 s{sT1}, s{sT1}, s{sT0}')
            A(f's_mul_i32 s{sT1}, s{sT1}, 86016')
            for h in range(PF):
                A.raw(f'  buffer_load_dword v{84+h}, v80, s[{S_OUT}:{S_OUT+3}], s{sT1} offen offset:{64*h}')
        A(f's_waitcnt vmcnt({14*PF})')
    else:
        A('s_waitcnt vmcnt(0)')
    stamp()
    A('s_barrier')
    wfr(24, 12, 0)
    A('s_waitcnt vmcnt(0)')
    stamp()
    A('s_barrier')
    if STAMP:
        stamp(1)
        write_stamps()
    A.label('M_done')
    A('s_endpgm')
    A.label('CODE_END')

gen_main()
A.raw('.section .rodata,"a"')
A.raw('.p2align 6')
A.raw(f'.amdhsa_kernel {NAME}')
A.raw('  .amdhsa_next_free_vgpr 256')
A.raw('  .amdhsa_next_free_sgpr 102')
A.raw('  .amdhsa_accum_offset 256')
A.raw('  .amdhsa_group_segment_fixed_size 0')
A.raw('  .amdhsa_kernarg_size 48')
A.raw('  .amdhsa_user_sgpr_count 2')
A.raw('  .amdhsa_user_sgpr_kernarg_segment_ptr 1')
A.raw('  .amdhsa_system_sgpr_workgroup_id_x 1')
A.raw('.end_amdhsa_kernel')
open(OUT, 'w').write(A.text())
print('instr', A.n_inst, 'nops', A.nops, 'maxv', A.maxv)
```

```python
import sys, struct
sys.path.insert(0, 'gen')
from asmlib import Asm

OUT = sys.argv[1] if len(sys.argv) > 1 else 'standalone__neighborhood_nat__vision.s'
OPT = dict(a.split('=') if '=' in a else (a, '1') for a in sys.argv[2:])
STAMP = 'stamp' in OPT
XNT = ' nt' if OPT.get('xnt', '0') == '1' else ''
KNT = ' nt' if OPT.get('knt', '0') == '1' else ''
ONT = [{'0': '', '1': ' nt', '2': ' sc1', '3': ' sc0 sc1', '4': ' sc0 sc1 nt'}[c] for c in (OPT.get('ont', '2') * 3)[:3]]
NAME = 'standalone__neighborhood_nat__vision_kernel'

X_BYTES = 19267584
WS_BYTES = 268435456
ROWB = 7680
MB = 90112
SPARE = 153600
MOFF = 0x20000
NMP = 36
GAP = 73728
def f32bits(x): return struct.unpack('<I', struct.pack('<f', x))[0]
SCALE = f32bits(192 ** -0.5 * 1.4426950408889634)
NEGINF = 0xff800000
PIECE = [0, 64, 128, 192, 256, 320, 384, 416]

A = Asm()
hdr = open('standalone__neighborhood_nat__vision.s.ref').read().split('\n')
for ln in hdr:
    if ln.startswith('; @launch'): break
    A.raw(ln)
A.raw('; @launch grid=(256,1,1) block=(512,1,1) lds=163840')
A.raw('.amdgcn_target "amdgcn-amd-amdhsa--gfx950"')
A.raw('.text')

def srd(d, lo, hi, nbytes):
    A(f's_mov_b32 s{d}, s{lo}'); A(f's_and_b32 s{d+1}, s{hi}, 0xffff')
    A(f's_mov_b32 s{d+2}, {nbytes}'); A(f's_mov_b32 s{d+3}, 0x00020000')
def mf(d, a, b, c):
    cs = '0' if c is None else f'v[{c}:{c+3}]'
    return f'v_mfma_f32_16x16x32_bf16 v[{d}:{d+3}], v[{a}:{a+3}], v[{b}:{b+3}], {cs}'

S_X, S_OUT, S_WS, S_W, S_WO, S_DBG = 16, 20, 24, 28, 32, 36
sW, sPR, sPC, sTR, sTC = 40, 41, 42, 43, 44
sKR0, sKC0B = 45, 46
sLOR, sHIR, sSHR, sLOC, sHIC = 47, 48, 49, 50, 51
sBASE, sSTRIP, sNEG = 52, 53, 54
sT0, sT1, sT2, sT3, sT4, sT5 = 55, 56, 57, 58, 59, 60
sALR, sALC, sSC = 61, 62, 63
sST = 64
sXR, sXL = 100, 101
sOA = 88
sB0, sF = 92, 93
sM1, sM2 = 0, 10
sVT, sVO = 94, 95
vL, vG, vN = 1, 2, 3
vT = 4
vR0, vR3, vCB = 12, 13, 14
XQ = 16
PP = 16
vOA = 4
vINV = 56
SACC = 64
OST = 16
W1 = 64
ONES = 48
QP = 120
ACC = 168
RING = 200
WF = 232
vAS = 240
vAP = 244
vWA0, vWA1, vWAM = 252, 253, 254
vSW, vSR = 255, 199
vWD = RING
MBQ = 64
MACC = 136
MPK = 184
MWA = 192

nstamp = [0]
def stamp(real=None):
    if not STAMP: return
    i = nstamp[0]; nstamp[0] += 1
    assert i < 14
    A.raw(f'  s_mem{"real" if "rt" in OPT else ""}time s[{sST+2*i}:{sST+1+2*i}]')
    if real is not None:
        A.raw(f'  s_memrealtime s[{96+2*real}:{97+2*real}]')
def write_stamps():
    n = nstamp[0]
    A('s_waitcnt lgkmcnt(0)')
    A(f'v_mov_b32 v{RING}, 0')
    if 'dbg' in OPT:
        lbl = f'WS_skip{n}'
        A(f's_cmp_lg_u32 s2, {OPT["dbg"].split(",")[0]}')
        A(f's_cbranch_scc1 {lbl}')
        A(f's_cmp_lg_u32 s{sW}, {OPT["dbg"].split(",")[1]}')
        A(f's_cbranch_scc1 {lbl}')
        for i in range(1, n):
            A(f's_sub_u32 s{sT0}, s{sST+2*i}, s{sST}')
            A(f'v_writelane_b32 v{RING}, s{sT0}, {i}')
        A(f's_sub_u32 s{sT0}, s98, s96')
        A(f'v_writelane_b32 v{RING}, s{sT0}, 15')
        srd(S_DBG, 12, 13, 256)
        A(f'v_lshlrev_b32 v{RING+1}, 2, v{vL}')
        A('s_mov_b64 exec, 0xfffe')
        A(f'buffer_store_dword v{RING}, v{RING+1}, s[{S_DBG}:{S_DBG+3}], 0 offen')
        A.label(lbl)
        return
    for i in range(n):
        A(f'v_writelane_b32 v{RING}, s{sST+2*i}, {i}')
    A(f'v_writelane_b32 v{RING}, s96, 14')
    A(f'v_writelane_b32 v{RING}, s98, 15')
    A(f's_lshl_b32 s{sT0}, s2, 3')
    A(f's_add_u32 s{sT0}, s{sT0}, s{sW}')
    A(f's_lshl_b32 s{sT0}, s{sT0}, 6')
    A(f's_add_u32 s{sT0}, s{sT0}, 0x100000')
    A(f'v_lshlrev_b32 v{RING+1}, 2, v{vL}')
    A('s_mov_b64 exec, 0xffff')
    A(f'buffer_store_dword v{RING}, v{RING+1}, s[{S_WS}:{S_WS+3}], s{sT0} offen')

def row_addrs(b, sF, A=A):
    for j in (0, 1, 2, 7):
        A(f'v_add_u32 v{vT}, {PIECE[j]}, v{vL}')
        A(f'v_xor_b32 v{vT}, {sF}, v{vT}')
        A(f'v_mul_u32_u24 v{vT+1}, 2731, v{vT}')
        A(f'v_lshrrev_b32 v{vT+1}, 16, v{vT+1}')
        A(f'v_mul_u32_u24 v{vT+1}, 384, v{vT+1}')
        A(f'v_lshl_add_u32 v{vT}, v{vT}, 4, v{vT+1}')
        A(f'v_add_u32 v{b+j}, s{sKC0B}, v{vT}')
        if j < 3:
            A(f'v_add_u32 v{b+j+3}, {8*768}, v{b+j}')
            if j == 0: A(f'v_add_u32 v{b+6}, {16*768}, v{b}')
            A(f'v_max_i32 v{b+j}, 0, v{b+j}')
def row_soff(dst, srow):
    A(f's_add_i32 s{dst}, s{sKR0}, {srow}')
    A(f's_lshl_b32 s{dst}, s{dst}, 1')
    A(f's_add_i32 s{dst}, s{dst}, s{sPR}')
    A(f's_max_i32 s{dst}, s{dst}, 0')
    A(f's_min_i32 s{dst}, s{dst}, 223')
    A(f's_mul_i32 s{dst}, s{dst}, 86016')

def stream(ms, mem, side, hooks=None, cap=2, bg=None, flush=(), paced=None):
    side = [x if len(x) == 3 else (x[0], x[1], 10**9) for x in side]
    bg = bg if bg is not None else []
    paced = list(paced or [])
    nside = len(side)
    def slots(lo, hi):
        return sum(max(0, cap - len(mem.get(k, []))) for k in range(lo, hi + 1))
    for i, m in enumerate(ms):
        assert not (side and side[0][2] < i), ('deadline missed', side[0], i)
        A(m)
        if i + 1 < len(ms) and not (hooks and i in hooks): A.prewait(ms[i+1])
        n = 0
        for t in mem.get(i, []):
            A(t); n += 1
        if paced and not mem.get(i) and paced[0][0] <= i and nside - len(side) >= paced[0][2]:
            assert nside - len(side) <= paced[0][3], ('paced item too late', paced[0])
            A(paced.pop(0)[1]); n += 1
        c = cap
        if side and side[0][2] < len(ms):
            dl = side[0][2]
            if sum(1 for x in side if x[2] == dl) > slots(i, dl): c = cap + 1
        while side and n < c and side[0][0] <= i:
            A(side.pop(0)[1]); n += 1
        while bg and n < cap:
            A(bg.pop(0)); n += 1
        if i in flush:
            while side and side[0][0] <= i + 4: A(side.pop(0)[1])
        if hooks and i in hooks: hooks[i]()
    assert not paced
    return [x[1] for x in side]

def gemm_phase(B, loc, finish, swap=False, hooks=None, D=6, gate=None, bg=None, extra_mem=None, ghooks=None, flush=(), pace=0):
    def rd(f):
        l = loc(f)
        if l[0] == 'lds':
            buf = RING + 4*(f % 8)
            return [f'ds_read_b128 v[{buf}:{buf+3}], v{l[1]} offset:{l[2]}']
        return []
    ms, mem, side, hk, paced = [], dict(extra_mem or {}), [], dict(ghooks or {}), []
    for f in range(D):
        for t in rd(f): A(t)
    for f in range(72):
        sig, s, h = f // 12, (f % 12) // 2, f % 2
        l = loc(f)
        a = RING + 4*(f % 8) if l[0] == 'lds' else l[1]
        accb = ACC + 16*(sig & 1)
        for G in range(2):
            d = accb + 8*G + 4*h
            b = B + 24*G + 4*s
            ms.append(mf(d, b, a, None if s == 0 else d) if swap else mf(d, a, b, None if s == 0 else d))
        fn = f + D
        if fn < 72 and not (gate is not None and f < gate <= fn):
            mem[2*f] = rd(fn)
        if f % 12 == 11:
            k = 0
            for t in finish(sig, accb):
                if pace and t.startswith('buffer_store') and sig < 5:
                    paced.append((2*f + 1 + 6 + pace*k, t, len(side), len(side) + 23)); k += 1
                else:
                    side.append((2*f + 1 + 3, t, 2*f + 1 + 24))
            if hooks and sig in hooks:
                def mk(sig=sig, f=f):
                    def h():
                        hooks[sig]()
                        if gate is not None and f + 1 == gate:
                            for k in range(gate, gate + D):
                                for t in rd(k): A(t)
                    return h
                hk[2*f + 1] = mk()
    return stream(ms, mem, side, hk, bg=bg, flush=flush, paced=paced)

def poll(label, off):
    A(f'v_mov_b32 v{vT+2}, 0')
    A(f's_mov_b32 s{sT4}, 0')
    A('s_mov_b64 exec, 1')
    A.label(label)
    A(f'buffer_load_dword v{vT+3}, v{vT+2}, s[{S_DBG}:{S_DBG+3}], 0 offen offset:{off} sc1')
    A('s_waitcnt vmcnt(0)')
    A(f'v_cmp_eq_u32 vcc, 0, v{vT+3}')
    A(f's_add_u32 s{sT4}, s{sT4}, 1')
    A(f's_cmp_gt_u32 s{sT4}, 200000')
    A(f's_cbranch_scc1 {label}_x')
    A('s_cmp_lg_u64 vcc, 0')
    A(f's_cbranch_scc0 {label}_x')
    A('s_sleep 2')
    A(f's_branch {label}')
    A.label(label + '_x')
    A('s_mov_b64 exec, -1')

def cond(lbl, isE, body):
    A(f's_cmp_lt_u32 s{sW}, 4' if isE else f's_cmp_ge_u32 s{sW}, 4')
    A(f's_cbranch_scc1 {lbl}')
    body()
    A.label(lbl)

nprio = [0]
def prio(e, l):
    nprio[0] += 1
    A(f's_setprio {l}')
    if e != l: cond(f'M_pr{nprio[0]}', True, lambda: A.skip(f's_setprio {e}'))

npad = [0]
def padat(name):
    if OPT.get('padpos') != name: return
    npad[0] += 1
    A.label(f'PADM{npad[0]}')
    A.raw('  s_memrealtime s[98:99]')
    A.raw('  s_waitcnt lgkmcnt(0)')
    A.raw('  s_sub_u32 s98, s98, s96')
    A.raw(f'  s_cmp_lt_u32 s98, {OPT["padt"]}')
    A.raw(f'  s_cbranch_scc1 PADM{npad[0]}')

def gen_main():
    A.raw(f'.globl {NAME}'); A.raw('.p2align 8'); A.raw(f'.type {NAME},@function')
    A.raw(f'{NAME}:'); A.reset()
    A('s_cmp_ge_u32 s2, 256')
    A('s_cbranch_scc1 M_done')
    stamp(0)
    if 'pad' in OPT or 'padpos' in OPT: A.raw('  s_memrealtime s[96:97]')
    A('s_load_dwordx8 s[4:11], s[0:1], 0')
    A('s_load_dwordx4 s[12:15], s[0:1], 32')
    A(f'v_lshrrev_b32 v{vT}, 6, v0')
    A(f'v_and_b32 v{vL}, 63, v0')
    A(f'v_readfirstlane_b32 s{sW}, v{vT}')
    A(f'v_lshrrev_b32 v{vG}, 4, v{vL}')
    A(f'v_and_b32 v{vN}, 15, v{vL}')
    A(f'v_lshlrev_b32 v{vWA0}, 4, v{vL}')
    if OPT.get('cpf', '1') != '0':
        A('s_getpc_b64 s[16:17]')
        A('s_and_b32 s16, s16, -256')
        A('s_and_b32 s17, s17, 0xffff')
        A('s_mov_b32 s18, CODE_END-' + NAME)
        A('s_mov_b32 s19, 0x00020000')
        A(f's_lshr_b32 s{sT0}, s2, 3')
        A(f's_lshl_b32 s{sT0}, s{sT0}, 10')
        A(f's_cmp_lg_u32 s{sW}, 3')
        A('s_cbranch_scc1 M_nocpf')
        A.raw(f'  buffer_load_dwordx4 v[{MACC}:{MACC+3}], v{vWA0}, s[16:19], s{sT0} offen')
        A.label('M_nocpf')
    def decode():
        A(f's_and_b32 s{sT0}, s2, 7')
        A(f's_lshr_b32 s{sT1}, s2, 3')
        MAP = OPT.get('map', '0')
        if MAP == '0':
            A(f's_lshr_b32 s{sPR}, s{sT0}, 2')
            A(f's_bfe_u32 s{sPC}, s{sT0}, 0x10001')
            A(f's_and_b32 s{sT0}, s{sT0}, 1')
            A(f's_lshl_b32 s{sT0}, s{sT0}, 2')
            A(f's_lshr_b32 s{sTR}, s{sT1}, 3')
            A(f's_add_u32 s{sTR}, s{sTR}, s{sT0}')
            A(f's_and_b32 s{sTC}, s{sT1}, 7')
        elif MAP == '1':
            A(f's_mov_b32 s{sTR}, s{sT0}')
            A(f's_and_b32 s{sPR}, s{sT1}, 1')
            A(f's_bfe_u32 s{sPC}, s{sT1}, 0x10001')
            A(f's_lshr_b32 s{sTC}, s{sT1}, 2')
        elif MAP == '2':
            A(f's_lshr_b32 s{sPR}, s{sT0}, 2')
            A(f's_and_b32 s{sT0}, s{sT0}, 3')
            A(f's_lshl_b32 s{sT0}, s{sT0}, 1')
            A(f's_lshr_b32 s{sTR}, s{sT1}, 4')
            A(f's_add_u32 s{sTR}, s{sTR}, s{sT0}')
            A(f's_and_b32 s{sPC}, s{sT1}, 1')
            A(f's_bfe_u32 s{sTC}, s{sT1}, 0x30001')
        else:
            A(f's_and_b32 s{sPR}, s{sT1}, 1')
            A(f's_bfe_u32 s{sPC}, s{sT1}, 0x10001')
            A(f's_and_b32 s{sTR}, s{sT0}, 6')
            A(f's_lshr_b32 s{sT2}, s{sT1}, 4')
            A(f's_add_u32 s{sTR}, s{sTR}, s{sT2}')
            A(f's_and_b32 s{sT0}, s{sT0}, 1')
            A(f's_lshl_b32 s{sT0}, s{sT0}, 2')
            A(f's_bfe_u32 s{sTC}, s{sT1}, 0x20002')
            A(f's_add_u32 s{sTC}, s{sTC}, s{sT0}')
        A(f's_mul_i32 s{sTR}, s{sTR}, 14')
        A(f's_mul_i32 s{sTC}, s{sTC}, 14')
    def srds():
        srd(S_WS, 14, 15, WS_BYTES)
        srd(S_OUT, 10, 11, X_BYTES)
        srd(S_DBG, 12, 13, 256)
    def scalar_setup():
        A(f's_mul_i32 s{sALR}, s{sPR}, 13')
        A(f's_add_i32 s{sALR}, s{sALR}, -6')
        A(f's_mul_i32 s{sALC}, s{sPC}, 13')
        A(f's_add_i32 s{sALC}, s{sALC}, -6')
        A(f's_cmp_ge_u32 s{sW}, 4')
        A(f's_cselect_b32 s{sSTRIP}, -4, 3')
        A(f's_add_i32 s{sSTRIP}, s{sSTRIP}, s{sW}')
        A(f's_lshl_b32 s{sSTRIP}, s{sSTRIP}, 1')
        A(f's_add_u32 s{sOA}, s{sTR}, s{sSTRIP}')
        A(f's_mov_b32 s{sOA+1}, 86016')
        A(f's_movk_i32 s{sOA+2}, 384')
    def scalar_setup2():
        A(f's_mul_i32 s{sT0}, s{sPR}, 6')
        A(f's_add_i32 s{sKR0}, s{sTR}, s{sT0}')
        A(f's_add_i32 s{sKR0}, s{sKR0}, -6')
        A(f's_cmp_eq_i32 s{sKR0}, -6')
        A(f's_cselect_b32 s{sLOR}, 6, 0')
        A(f's_cmp_eq_i32 s{sKR0}, 98')
        A(f's_cselect_b32 s{sHIR}, 7, 13')
        A(f's_cselect_b32 s{sSHR}, 2, 0')
        A(f's_sub_i32 s{sKR0}, s{sKR0}, s{sSHR}')
        A(f's_mul_i32 s{sT0}, s{sPC}, 6')
        A(f's_add_i32 s{sT1}, s{sTC}, s{sT0}')
        A(f's_add_i32 s{sT1}, s{sT1}, -6')
        A(f's_cmp_eq_i32 s{sT1}, -6')
        A(f's_cselect_b32 s{sLOC}, 6, 0')
        A(f's_cmp_eq_i32 s{sT1}, 98')
        A(f's_cselect_b32 s{sHIC}, 7, 13')
        A(f's_lshl_b32 s{sT1}, s{sT1}, 1')
        A(f's_add_i32 s{sT1}, s{sT1}, s{sPC}')
        A(f's_mul_i32 s{sKC0B}, s{sT1}, 384')
        A(f's_max_i32 s{sB0}, s{sSTRIP}, s{sLOR}')
        A(f's_min_i32 s{sB0}, s{sB0}, s{sHIR}')
        A(f's_and_b32 s{sB0}, s{sB0}, -2')
        A(f's_add_u32 s{sBASE}, s{sB0}, s{sSHR}')
        A(f's_mov_b32 s{sNEG}, {NEGINF}')
        A(f's_mov_b32 s{sSC}, {SCALE}')
        A(f's_and_b32 s{sF}, s{sW}, 1')
        A(f's_lshl_b32 s{sF}, s{sF}, 3')
        A(f's_and_b32 s{sT1}, s{sW}, 6')
        A(f's_or_b32 s{sF}, s{sF}, s{sT1}')
        A(f's_add_u32 s{sT1}, s{sW}, 8')
        row_soff(sXR, f's{sT1}')
        A(f's_mul_i32 s{sXL}, s{sT1}, {ROWB}')

    def sreg(G, tl): return SACC + 28*G + 4*tl
    TM = [197, 198, 199, 255, 0]
    def pixaddr(dst, sel, lane):
        t0, t1, t2, t3, t4 = TM
        o = [f'v_lshrrev_b32 v{t0}, 1, v{sel}', f'v_and_b32 v{t3}, 1, v{sel}', f'v_add_u32 v{t0}, s{sOA}, v{t0}',
             f'v_lshl_add_u32 v{t4}, v{t3}, 2, s{sTC}',
             f'v_lshl_add_u32 v{t1}, v{t0}, 1, s{sALR}', f'v_add_u32 v{t2}, 112, v{t0}', f'v_lshlrev_b32 v{t3}, 30, v{t3}',
             f'v_med3_i32 v{t0}, v{t1}, v{t0}, v{t2}', f'v_mul_lo_u32 v{t0}, v{t0}, s{sOA+1}'] + lane(t0)
        for G in range(2):
            for r in range(4):
                d = dst(G, r)
                o += [f'v_add_u32 v{d}, {7*G+r}, v{t4}', f'v_lshl_add_u32 v{t1}, v{d}, 1, s{sALC}',
                      f'v_add_u32 v{t2}, 112, v{d}', f'v_med3_i32 v{d}, v{t1}, v{d}, v{t2}',
                      f'v_mad_u32_u24 v{d}, v{d}, s{sOA+2}, v{t0}']
                if r == 3: o += [f'v_add_u32 v{d}, v{d}, v{t3}']
        return o
    def oaddr(): return pixaddr(lambda G, r: vOA + 4*G + r, vG, lambda t: [f'v_lshl_add_u32 v{t}, v{vN}, 3, v{t}'])
    vXS = ACC
    sXRW, sXB = 84, 86
    def xaddr():
        A(f'v_lshrrev_b32 v{vT}, 3, v{vL}')
        A(f'v_and_b32 v{vT+1}, 7, v{vL}')
        A(f'v_and_b32 v{vT+2}, 6, v{vT}')
        A(f'v_xor_b32 v{vT+1}, v{vT+1}, v{vT+2}')
        A(f'v_add_u32 v{vT+2}, 1, v{vT}')
        A(f'v_lshrrev_b32 v{vT+2}, 3, v{vT+2}')
        A(f'v_lshlrev_b32 v{vT+2}, 26, v{vT+2}')
        A(f'v_or_b32 v{vT+1}, v{vT+1}, v{vT+2}')
        A(f'v_add_u32 v{vT}, s{sTC}, v{vT}')
        for G in range(2):
            if G: A(f'v_add_u32 v{vT}, 7, v{vT}')
            A(f'v_lshl_add_u32 v{vT+2}, v{vT}, 1, s{sALC}')
            A(f'v_add_u32 v{vT+3}, 112, v{vT}')
            A(f'v_med3_i32 v{vT+2}, v{vT+2}, v{vT}, v{vT+3}')
            A(f'v_mul_u32_u24 v{vT+2}, 384, v{vT+2}')
            A(f'v_lshl_add_u32 v{vXS+G}, v{vT+1}, 4, v{vT+2}')
        for rb in range(2):
            A(f's_add_u32 s{sT0}, s{sOA}, {rb}')
            A(f's_lshl_b32 s{sT1}, s{sT0}, 1')
            A(f's_add_i32 s{sT1}, s{sT1}, s{sALR}')
            A(f's_max_i32 s{sT1}, s{sT1}, s{sT0}')
            A(f's_add_i32 s{sT0}, s{sT0}, 112')
            A(f's_min_i32 s{sT1}, s{sT1}, s{sT0}')
            A(f's_mul_i32 s{sXRW+rb}, s{sT1}, 86016')
        A(f's_lshl_b32 s{sXB}, s{sSTRIP}, 12')
        A(f's_lshl_b32 s{sXB+1}, s{sSTRIP}, 11')
    def xload(i):
        j, G, rb = i // 4, (i >> 1) & 1, i & 1
        off = 512 + (j*4 + G*2 + rb)*1024 - 128*j if j < 2 else 61440 + (G*2 + rb)*1024 - 256
        A.skip(f's_add_u32 m0, s{sXB + j//2}, {off}')
        A.skip('s_nop 0')
        A.raw(f'  buffer_load_dwordx4 v{vXS+G}, s[{S_X}:{S_X+3}], s{sXRW+rb} offen offset:{128*j}{XNT} lds')
    def chunk(c):
        for i in range(4*c, 4*c + 4): xload(i)
    def xread_addr():
        A(f'v_and_b32 v{vXS+2}, 6, v{vN}')
        A(f'v_xor_b32 v{vXS+2}, v{vXS+2}, v{vG}')
        A(f'v_lshlrev_b32 v{vXS+6}, 7, v{vN}')
        A(f'v_xor_b32 v{vXS+3}, 4, v{vXS+2}')
        A(f'v_lshl_add_u32 v{vXS+2}, v{vXS+2}, 4, v{vXS+6}')
        A(f'v_lshl_add_u32 v{vXS+3}, v{vXS+3}, 4, v{vXS+6}')
        for q in range(2):
            A(f'v_add_u32 v{vXS+4+q}, s{sXB+1}, v{vXS+2+q}')
            A(f'v_add_u32 v{vXS+2+q}, s{sXB}, v{vXS+2+q}')
    def xread(j):
        for G in range(2):
            for q in range(2):
                r = XQ + 24*G + 4*(2*j + q)
                if j < 2: A(f'ds_read_b128 v[{r}:{r+3}], v{vXS+2+q} offset:{512 + (4*j + 2*G)*1024}')
                else: A(f'ds_read_b128 v[{r}:{r+3}], v{vXS+4+q} offset:{61440 + 2*G*1024}')
    def setup():
        B = Asm()
        def Fv(dst, row):
            B(f'v_and_b32 v{dst}, 1, v{row}')
            B(f'v_lshlrev_b32 v{dst}, 3, v{dst}')
            B(f'v_and_or_b32 v{dst}, v{row}, 6, v{dst}')
        B(f'v_lshrrev_b32 v{vT}, 3, v{vN}')
        B(f'v_add_u32 v{vT}, s{sSTRIP}, v{vT}')
        B(f'v_max_i32 v{vT}, s{sLOR}, v{vT}')
        B(f'v_min_i32 v{vT}, s{sHIR}, v{vT}')
        B(f'v_subrev_u32 v{vT}, s{sB0}, v{vT}')
        B(f'v_and_b32 v{vT+1}, 1, v{vG}')
        B(f'v_sub_u32 v{vT+2}, v{vT+1}, v{vT}')
        B(f'v_ashrrev_i32 v{vR0}, 31, v{vT+2}')
        B(f'v_and_b32 v{vR0}, s{sNEG}, v{vR0}')
        B(f'v_sub_u32 v{vT+2}, v{vT}, v{vT+1}')
        B(f'v_ashrrev_i32 v{vR3}, 31, v{vT+2}')
        B(f'v_and_b32 v{vR3}, s{sNEG}, v{vR3}')
        B(f'v_and_b32 v{vT}, 7, v{vN}')
        B(f'v_lshrrev_b32 v{vT+1}, 1, v{vG}')
        B(f'v_subrev_u32 v{vT+3}, 7, v{vT}')
        B(f'v_ashrrev_i32 v{vT+3}, 31, v{vT+3}')
        B(f'v_and_b32 v{vT+3}, 0x7f, v{vT+3}')
        for G in range(2):
            B(f'v_add_u32 v{vT+2}, {7*G}, v{vT}')
            B(f'v_max_i32 v{vT+2}, s{sLOC}, v{vT+2}')
            B(f'v_min_i32 v{vT+2}, s{sHIC}, v{vT+2}')
            B(f'v_lshlrev_b32 v{vT+2}, v{vT+2}, v{vT+3}')
            B(f'v_lshrrev_b32 v{vT+2}, v{vT+1}, v{vT+2}')
            B(f'v_not_b32 v{vCB+G}, v{vT+2}')
        B(f'v_add_u32 v{vT}, s{sBASE}, v{vT}')
        Fv(vT+1, vT)
        B(f'v_mul_u32_u24 v{vT}, {ROWB}, v{vT}')
        B(f'v_lshrrev_b32 v{vT+2}, 3, v{vN}')
        B(f'v_mul_u32_u24 v{vT+2}, 24, v{vT+2}')
        B(f'v_add_u32 v{vT+2}, v{vT+2}, v{vG}')
        for s in range(4):
            B(f'v_add_u32 v{vT+3}, {4*s}, v{vT+2}')
            B(f'v_xor_b32 v{vT+3}, v{vT+3}, v{vT+1}')
            B(f'v_lshl_add_u32 v{vAS+s}, v{vT+3}, 4, v{vT}')
        B(f'v_and_b32 v{vT}, 1, v{vG}')
        B(f'v_lshlrev_b32 v{vT}, 2, v{vT}')
        B(f'v_lshrrev_b32 v{vT+1}, 2, v{vN}')
        B(f'v_add3_u32 v{vT}, v{vT}, v{vT+1}, s{sBASE}')
        Fv(vT+1, vT)
        B(f'v_mul_u32_u24 v{vT}, {ROWB}, v{vT}')
        B(f'v_and_b32 v{vT+2}, 1, v{vN}')
        B(f'v_lshl_add_u32 v{vT}, v{vT+2}, 3, v{vT}')
        B(f'v_lshrrev_b32 v{vT+2}, 1, v{vG}')
        B(f'v_mul_u32_u24 v{vT+2}, 24, v{vT+2}')
        B(f'v_bfe_u32 v{vT+3}, v{vN}, 1, 1')
        B(f'v_add_u32 v{vT+2}, v{vT+2}, v{vT+3}')
        for ct in range(8):
            B(f'v_add_u32 v{vT+3}, {2*ct}, v{vT+2}')
            B(f'v_xor_b32 v{vT+3}, v{vT+3}, v{vT+1}')
            B(f'v_lshl_add_u32 v{vAP+ct}, v{vT+3}, 4, v{vT}')
        B(f'v_add_u32 v{vWA1}, {SPARE}, v{vWA0}')
        B(f'v_add_u32 v{vWAM}, {MB}, v{vWA0}')
        row_addrs(WF, f's{sF}', B)
        return [l.strip() for l in B.lines]
    def masks():
        out = []
        for tl in range(7):
            a = []
            for G in range(2):
                tau = tl + 3*G
                r = sreg(G, tl)
                a.append([f'v_bfe_i32 v{r+2}, v{vCB+G}, {2*tau}, 1', f'v_and_b32 v{r+1}, s{sNEG}, v{r+2}',
                          f'v_and_b32 v{r+2}, s{sNEG}, v{r+2}', f'v_or_b32 v{r}, v{r+1}, v{vR0}', f'v_or_b32 v{r+3}, v{r+1}, v{vR3}'])
            for x, y in zip(*a): out += [x, y]
        return out

    M1 = int(OPT.get('m1', '12')); MW = int(OPT.get('mw', '6'))
    def mshare(a, b):
        A(f's_lshl_b32 s{sT0}, s{sW}, 10')
        A(f's_add_u32 s{sT0}, s{sT0}, {MOFF + 4096*a}')
        for i in range(a, b):
            A(f's_sub_u32 m0, s{sT0}, {MOFF - MB}')
            A(f'buffer_load_dwordx4 v{vWA0}, s[{S_WS}:{S_WS+3}], s{sT0} offen sc1 lds')
            if i < b - 1: A(f's_add_u32 s{sT0}, s{sT0}, 4096')
    A(f's_cmp_lg_u32 s{sW}, 0')
    A('s_cbranch_scc1 M_comp')
    A(f'v_bfe_u32 v{vT+1}, v{vL}, 2, 2')
    A(f'v_lshrrev_b32 v{vT+2}, 5, v{vL}')
    A(f'v_lshlrev_b32 v{vT+3}, 1, v{vT+2}')
    A(f'v_and_b32 v{vT+4}, 3, v{vL}')
    A(f'v_xor_b32 v{vT+3}, v{vT+3}, v{vT+4}')
    A(f'v_lshlrev_b32 v{vT+3}, 4, v{vT+3}')
    A(f's_movk_i32 s{sT5}, 1152')
    A(f'v_lshl_add_u32 v{vT}, v{vG}, 3, v{vT+1}')
    A(f'v_mad_u32_u24 v{vWD}, v{vT}, s{sT5}, v{vT+3}')
    A(f'v_lshrrev_b32 v{vT}, 2, v{vL}')
    A(f'v_mad_u32_u24 v{vWD+3}, v{vT}, s{sT5}, v{vT+3}')
    A(f'v_lshrrev_b32 v{vT}, 3, v{vN}')
    A(f'v_lshlrev_b32 v{vT}, 1, v{vT}')
    A(f'v_xor_b32 v{vT}, v{vT}, v{vG}')
    A(f'v_lshl_add_u32 v{vT}, v{vN}, 2, v{vT}')
    A(f'v_lshlrev_b32 v{MWA+3}, 4, v{vT}')
    A(f'v_add_u32 v{MWA+3}, {MB}, v{MWA+3}')
    nstamp[0] = 1
    A('s_waitcnt lgkmcnt(0)')
    srd(S_W, 6, 7, 192*576*2)
    TA, TB, TD = 64, 112, 160
    def signal(off, last, tag, wait=True):
        A('v_mov_b32 v192, 1'); A('v_mov_b32 v193, 0')
        A('s_mov_b64 exec, 1')
        A('s_waitcnt vmcnt(0)')
        A(f'buffer_atomic_add v192, v193, s[{S_DBG}:{S_DBG+3}], 0 offen offset:{off} sc0 sc1')
        A('s_mov_b64 exec, -1')
    def publish(off, last, tag):
        A(f'v_readfirstlane_b32 s{sT1}, v192')
        A(f's_cmp_lg_u32 s{sT1}, {last}')
        A(f's_cbranch_scc1 {tag}')
        A('s_mov_b64 exec, 1')
        A(f'buffer_store_dword v192, v193, s[{S_DBG}:{S_DBG+3}], 0 offen offset:{128 + off} sc1')
        A('s_mov_b64 exec, -1')
        A.label(tag)
    A(f's_cmp_ge_u32 s2, {NMP}')
    A('s_cbranch_scc1 H_nom')
    A(f's_mul_hi_u32 s{sT0}, s2, 0x2aaaaaab')
    A(f's_mul_i32 s{sT1}, s{sT0}, 6')
    A(f's_sub_u32 s{sT1}, s2, s{sT1}')
    A(f's_mul_i32 s{sT0}, s{sT0}, {32*1152}')
    A(f's_mul_i32 s{sT1}, s{sT1}, {32*1152}')
    for h in range(2):
        for k in range(6):
            A(f's_mov_b32 m0, {MB + (6*h + k)*1024 - 64*k}')
            A(f'buffer_load_dwordx4 v{vWD}, s[{S_W}:{S_W+3}], s{sT1} offen offset:{64*k} lds')
            A(f's_mov_b32 m0, {MB + (12 + 6*h + k)*1024 - 384 - 64*k}')
            A(f'buffer_load_dwordx4 v{vWD}, s[{S_W}:{S_W+3}], s{sT0} offen offset:{384 + 64*k} lds')
        if h == 0:
            A(f's_add_u32 s{sT0}, s{sT0}, 4608'); A(f's_add_u32 s{sT1}, s{sT1}, 4608')
    A('s_barrier')
    srd(S_X, 4, 5, X_BYTES)
    srds()
    A(f's_lshl_b32 s{sT0}, s2, 11')
    A(f's_add_u32 s{sT0}, s{sT0}, {MOFF}')
    A('s_waitcnt vmcnt(0)')
    stamp()
    for k in range(6):
        for q in range(4):
            r = TA + 24*q + 4*k
            A(f'ds_read_b128 v[{r}:{r+3}], v{MWA+3} offset:{(6*q + k)*1024}')
        if k >= 2:
            kk = k - 2
            for h in range(2):
                for hp in range(2):
                    d = TD + 8*h + 4*hp
                    A(mf(d, TA + 24*hp + 4*kk, TB + 24*h + 4*kk, None if kk == 0 else d))
    for kk in (4, 5):
        for h in range(2):
            for hp in range(2):
                d = TD + 8*h + 4*hp
                A(mf(d, TA + 24*hp + 4*kk, TB + 24*h + 4*kk, d))
    for h in range(2):
        for q in range(4):
            A(f'v_cvt_pk_bf16_f32 v{TD+16+4*h+q}, v{TD+8*h+2*q}, v{TD+8*h+2*q+1}')
        A(f'buffer_store_dwordx4 v[{TD+16+4*h}:{TD+19+4*h}], v{vWA0}, s[{S_WS}:{S_WS+3}], s{sT0} offen offset:{1024*h} sc1')
    signal(0, NMP - 1, 'H_p1')
    A('s_barrier')
    A('s_waitcnt vmcnt(0)')
    publish(0, NMP - 1, 'H_p1')
    A('s_barrier')
    A('s_branch H_join')
    A.label('H_nom'); A.reset()
    nstamp[0] = 1
    VA, VB, VD = 64, 88, 112
    srd(S_WO, 8, 9, 192*192*2)
    A(f's_cmp_lt_u32 s2, 112')
    A('s_cbranch_scc1 H_nov1')
    A(f's_sub_u32 s{sT3}, s2, 112')
    A(f's_mul_hi_u32 s{sT0}, s{sT3}, 0x15555556')
    A(f's_mul_i32 s{sT1}, s{sT0}, 12')
    A(f's_sub_u32 s{sT1}, s{sT3}, s{sT1}')
    A(f's_mul_i32 s{sT2}, s{sT0}, {16*1152}')
    for k in range(6):
        A(f's_mov_b32 m0, {MB + 2048 + 1024*k - 768 - 64*k}')
        A(f'buffer_load_dwordx4 v{vWD+3}, s[{S_W}:{S_W+3}], s{sT2} offen offset:{768 + 64*k} lds')
    A(f'v_lshrrev_b32 v{VD}, 1, v{vL}')
    A(f'v_mul_u32_u24 v{VD}, 384, v{VD}')
    A(f'v_and_b32 v{VD+1}, 1, v{vL}')
    A(f'v_lshl_add_u32 v{VD}, v{VD+1}, 4, v{VD}')
    A(f's_lshl_b32 s{sT2}, s{sT1}, 5')
    for k in range(6):
        A(f's_mov_b32 m0, {MB + 8192 + 1024*k}')
        A(f'buffer_load_dwordx4 v{VD}, s[{S_WO}:{S_WO+3}], s{sT2} offen lds')
        A(f's_add_u32 s{sT2}, s{sT2}, {32*384}')
    A(f's_lshr_b32 s{sT2}, s{sT1}, 2')
    A(f's_mul_i32 s{sVO}, s{sT2}, 24576')
    A(f's_and_b32 s{sT1}, s{sT1}, 3')
    A(f's_lshl_b32 s{sT1}, s{sT1}, 6')
    A(f's_add_u32 s{sVO}, s{sVO}, s{sT1}')
    A(f's_lshr_b32 s{sT1}, s{sT0}, 1')
    A(f's_lshl_b32 s{sT1}, s{sT1}, 11')
    A(f's_add_u32 s{sVO}, s{sVO}, s{sT1}')
    A(f's_and_b32 s{sT0}, s{sT0}, 1')
    A(f's_lshl_b32 s{sT0}, s{sT0}, 3')
    A(f's_add_u32 s{sVO}, s{sVO}, s{sT0}')
    A.label('H_nov1'); A.reset()
    A('s_barrier')
    srd(S_X, 4, 5, X_BYTES)
    srds()
    stamp()
    A(f's_cmp_lt_u32 s2, 112')
    A('s_cbranch_scc1 H_join')
    t0, t1 = VD + 6, VD + 7
    A(f'v_lshlrev_b32 v{t1}, 3, v{vN}')
    A(f'v_lshl_add_u32 v{t1}, v{vG}, 8, v{t1}')
    A(f'v_add_u32 v{t1}, {MB}, v{t1}')
    A('s_waitcnt vmcnt(0)')
    for k in range(6):
        A(f'ds_read_b128 v[{VA+4*k}:{VA+4*k+3}], v{MWA+3} offset:{2048 + 1024*k}')
    A('s_waitcnt lgkmcnt(2)')
    for k in range(6):
        for hh in range(2):
            A(f'ds_read_b64_tr_b16 v[{VB+4*k+2*hh}:{VB+4*k+2*hh+1}], v{t1} offset:{8192 + 1024*k + 128*hh}')
    A('s_waitcnt lgkmcnt(0)')
    for k in range(6):
        A(mf(VD, VA + 4*k, VB + 4*k, None if k == 0 else VD))
    A(f'v_bfe_u32 v{t0}, v{vN}, 1, 1')
    A(f'v_mul_u32_u24 v{t0}, 12288, v{t0}')
    A(f'v_and_b32 v{t1}, 1, v{vN}')
    A(f'v_lshl_add_u32 v{t0}, v{t1}, 10, v{t0}')
    A(f'v_lshrrev_b32 v{t1}, 2, v{vN}')
    A(f'v_lshl_add_u32 v{t0}, v{t1}, 4, v{t0}')
    A(f'v_lshl_add_u32 v{t0}, v{vG}, 8, v{t0}')
    A(f'v_cvt_pk_bf16_f32 v{VD+4}, v{VD}, v{VD+1}')
    A(f'v_cvt_pk_bf16_f32 v{VD+5}, v{VD+2}, v{VD+3}')
    A(f'buffer_store_dwordx2 v[{VD+4}:{VD+5}], v{t0}, s[{S_WS}:{S_WS+3}], s{sVO} offen sc1')
    A('s_branch H_join')
    A.label('M_comp'); A.reset()
    nstamp[0] = 1
    decode()
    scalar_setup()
    xaddr()
    A('s_waitcnt lgkmcnt(0)')
    srd(S_X, 4, 5, X_BYTES)
    stamp()
    A('s_barrier')
    chunk(0)
    A(f's_cmp_lt_u32 s2, {NMP}')
    A('s_cbranch_scc1 M_x1')
    chunk(1)
    chunk(2)
    A.label('M_x1')
    stamp()
    srds(); scalar_setup2()
    for t in setup() + oaddr() + masks(): A(t)
    xread_addr()
    A(f's_cmp_ge_u32 s2, {NMP}')
    A('s_cbranch_scc1 M_x2')
    A.skip('s_barrier')
    chunk(1)
    A.skip('s_barrier')
    chunk(2)
    A.label('M_x2')
    stamp()
    for j in range(3):
        A(f's_waitcnt vmcnt({8 - 4*j})')
        xread(j)
    row_soff(sT2, f's{sW}')
    A('s_waitcnt lgkmcnt(0)')
    stamp()
    A('s_barrier')
    ER = int(OPT.get('er', '1'))
    A(f's_cmp_lt_u32 s{sW}, {ER}')
    A('s_cbranch_scc1 M_er')
    for j in range(8):
        A(f's_add_u32 m0, s{sXL}, {16*PIECE[j] - 8*ROWB}')
        A(f'buffer_load_dwordx4 v{WF+j}, s[{S_X}:{S_X+3}], s{sT2} offen{KNT} lds')
    A.label('M_er')
    A('s_barrier')
    stamp()
    A(f's_cmp_lt_u32 s{sW}, 4')
    A('s_cbranch_scc1 M_xl')
    A('s_setprio 1')
    A('s_barrier')
    A('s_branch M_pa')
    A.label('M_xl'); A.reset()
    mshare(0, M1)
    A(f's_waitcnt vmcnt({M1 - MW})')
    A('s_barrier')
    mshare(M1, 18)
    A.label('M_pa'); A.reset()
    padat('A')
    stamp()
    bgA = []
    xrow = []
    for j in range(8):
        xrow.append(f's_add_u32 m0, s{sXL}, {16*PIECE[j]}\n s_nop 0\n buffer_load_dwordx4 v{WF+j}, s[{S_X}:{S_X+3}], s{sXR} offen{KNT} lds')
    def finA(sig, accb):
        out = []
        for G in range(2):
            for q in range(4):
                out.append(f'v_cvt_pk_bf16_f32 v{QP+24*G+4*sig+q}, v{accb+8*G+2*q}, v{accb+8*G+2*q+1}')
        return out
    def locA(f):
        if f < 60: return ('lds', vWAM, f*1024)
        if f < 62: return ('reg', WF + 4*(f-60))
        return ('lds', vWA1, (f-62)*1024)
    def bar():
        A('s_barrier')
        bgA[0:0] = xrow
    def bar4():
        A('s_waitcnt vmcnt(0)'); A('s_barrier')
        prio(3, 2)
    def b0b():
        A('s_waitcnt vmcnt(0)'); A('s_barrier')
    hA = {2: bar, 4: bar4}
    xm = {2*48+1: [f'ds_read_b128 v[{WF}:{WF+3}], v{vWAM} offset:{60*1024}'],
          2*49+1: [f'ds_read_b128 v[{WF+4}:{WF+7}], v{vWAM} offset:{61*1024}']}
    pend = gemm_phase(XQ, locA, finA, hooks=hA, bg=bgA, extra_mem=xm, ghooks={2*(4*MW - 6) - 1: b0b})
    assert not bgA
    stamp()
    padat('S')
    cond('M_l1', False, lambda: A.skip('s_barrier'))
    seq = []
    for (a1, a2) in ((0, 3), (1, 4), (2, 5), (7, 6), (8, 9)):
        for s in range(6):
            seq.append((a1, s)); seq.append((a2, s))
    def users(tau):
        u = []
        if tau <= 6: u.append((0, tau))
        if tau >= 3: u.append((1, tau - 3))
        return u
    def rdS(i):
        tau, s = seq[i]
        buf = RING + 4*(i % 8)
        return f'ds_read_b128 v[{buf}:{buf+3}], v{vAS + (s % 4)} offset:{tau*768 + (256 if s >= 4 else 0)}'
    D = 7
    for i in range(D): A(rdS(i))
    for t in pend: A(t)
    vM = [12, 13]; vX = [14, 15]
    A(f's_mov_b32 s{sT1}, 0xff7fffff')
    ms, mem, side = [], {}, []
    started = [False, False]; ndone = [0, 0]
    def xl(G):
        o = []
        for sw in ('v_permlane32_swap_b32', 'v_permlane16_swap_b32'):
            o += [f'v_mov_b32 v{vX[G]}, v{vM[G]}', f'{sw} v{vM[G]}, v{vX[G]}', f'v_max_f32 v{vM[G]}, v{vM[G]}, v{vX[G]}']
        return o + [f'v_mul_f32 v{vM[G]}, s{sSC}, v{vM[G]}']
    for i, (tau, s) in enumerate(seq):
        a = RING + 4*(i % 8)
        for (G, tl) in users(tau):
            r = sreg(G, tl)
            ms.append(mf(r, a, QP + 24*G + 4*s, r))
            if s == 5:
                e = len(ms) + 3
                side.append((e, f'v_max3_f32 v{vM[G]}, v{r}, v{r+1}, ' + (f'v{vM[G]}' if started[G] else f's{sT1}')))
                side.append((e, f'v_max3_f32 v{vM[G]}, v{r+2}, v{r+3}, v{vM[G]}'))
                started[G] = True; ndone[G] += 1
        if i % 12 == 11:
            for G in range(2):
                if ndone[G] == 7:
                    side += [(len(ms) + 3 + 2*k, t) for k, t in enumerate(xl(G))]; ndone[G] = 8
        if i + D < len(seq): mem[len(ms) - 1] = [rdS(i + D)]
    bgS = [f'v_mov_b32 v{PP+q}, 0' for q in (14, 15, 16, 17)] + [f'v_mov_b32 v{ONES+q}, 0x3f803f80' for q in range(4)]
    rest = stream(ms, mem, side, bg=bgS)
    assert not bgS
    stamp()
    prio(1, 0)
    for t in rest: A(t)
    def preg(G, tl): return PP + 16*G + 2*(tl + G)
    seqP = [(sig, u, h) for sig in range(6) for u in range(5) for h in range(2)]
    def rdP(i):
        sig, u, h = seqP[i]
        ct = 2*sig + h
        buf = RING + 4*(i % 8)
        return [f'ds_read_b64_tr_b16 v[{buf+2*hh}:{buf+2*hh+1}], v{vAP + (ct % 8)} offset:{(4*u+2*hh)*384 + (256 if ct >= 8 else 0)}' for hh in range(2)]
    DP = 6
    def b4L(): A.skip('s_barrier')
    B3AT, B4AT = int(OPT.get('b3', '1')), int(OPT.get('b4', '6'))
    if B3AT < 0: cond('M_e2', True, lambda: A.skip('s_barrier'))
    for tl in range(7):
        for G in range(2):
            r = sreg(G, tl)
            for k in range(4): A(f'v_fma_f32 v{r+k}, v{r+k}, s{sSC}, -v{vM[G]}')
            for k in range(4): A(f'v_exp_f32 v{r+k}, v{r+k}')
        for G in range(2):
            r = sreg(G, tl)
            p = preg(G, tl)
            A(f'v_cvt_pk_bf16_f32 v{p}, v{r}, v{r+1}')
            A(f'v_cvt_pk_bf16_f32 v{p+1}, v{r+2}, v{r+3}')
        if tl == B3AT: cond('M_e2', True, lambda: A.skip('s_barrier'))
        if tl >= B3AT:
            for t2 in range(0 if tl == max(B3AT, 0) else tl, tl + 1):
                if t2 % 2 == 0: A(f's_mov_b32 s{sT0}, {(10 + 2*t2)*1024}')
                for G in range(2):
                    r = sreg(G, t2)
                    A(f'buffer_load_dwordx4 v[{r}:{r+3}], v{vWA0}, s[{S_WS}:{S_WS+3}], s{sT0} offen offset:{1024*(2*(t2%2)+G)} sc1')
        if tl == 5:
            for i in range(DP):
                for t in rdP(i): A(t)
        if tl == B4AT: cond('M_l2', False, b4L)
    stamp()
    prio(3, 2)
    padat('P')
    ms, first, side, hk = [], [], [], {}
    def b5L():
        cond('M_l3', False, lambda: A.skip('s_barrier'))
    if int(OPT.get('b5', '1')) < 0: b5L()
    sums = [mf(vINV + 4*G, PP + 16*G + 4*u, ONES, None if u == 0 else vINV + 4*G) for u in range(4) for G in range(2)]
    for i, (sig, u, h) in enumerate(seqP):
        a = RING + 4*(i % 8)
        accb = ACC + 16*(sig & 1)
        first.append(len(ms))
        for G in range(2):
            uu = u - G
            if 0 <= uu <= 3:
                d = accb + 8*G + 4*h
                ms.append(mf(d, a, PP + 16*G + 4*uu, None if uu == 0 else d))
        if i % 10 in (1, 9) and 1 <= sig <= 4: ms.append(sums.pop(0))
        if i % 10 == 9:
            e = len(ms) - 1
            side += [(e + 4, t, e + 16) for t in finA(sig, accb)]
            if sig == int(OPT.get('b5', '1')): hk[e] = b5L
            if sig == int(OPT.get('pv', '3')) and OPT.get('pe') == '4': hk[e] = lambda: prio(3, 1)
    assert not sums
    mem = {}
    k = 0
    nrd = 2*(len(seqP) - DP)
    ngap = first[-1] - 5
    for j in range(DP, len(seqP)):
        for t in rdP(j):
            gp = (k * ngap) // nrd
            if j >= 8: gp = max(gp, first[j - 7] - 1)
            assert gp < first[j] - 3, (j, gp, first[j])
            mem.setdefault(gp, []).append(t); k += 1
    pend = stream(ms, mem, side, hk)
    A('s_waitcnt vmcnt(0)')
    stamp()
    def b4E():
        A.skip('s_barrier')
        A.skip(f's_mul_i32 s{sT0}, s{sW}, 9216')
        A.skip(f's_sub_u32 s{sT0}, s{sT0}, {4*9216 - 12288}')
        A.skip(f's_add_u32 s{sT4}, s{sT0}, {24*1024}')
        for blk in range(3):
            A.skip(f's_mov_b32 m0, s{sT0}')
            A.skip(f's_add_u32 s{sT0}, s{sT0}, 3072')
            for i in range(3):
                A.raw(f'  buffer_load_dwordx4 v{vWA0}, s[{S_WS}:{S_WS+3}], s{sT4} offen offset:{1024*i} sc1 lds')
            A.skip(f's_add_u32 s{sT4}, s{sT4}, 3072')
    cond('M_e3', True, b4E)
    def finE(sig, accb):
        out = []
        for G in range(2):
            for r in range(4):
                for h in range(2):
                    out.append(f'v_mul_f32 v{accb+8*G+4*h+r}, v{accb+8*G+4*h+r}, v{vINV+4*G+r}')
                o = OST + 8*G + 2*r
                out.append(f'v_cvt_pk_bf16_f32 v{o+(sig&1)}, v{accb+8*G+r}, v{accb+8*G+4+r}')
                if sig & 1:
                    out.append(f'buffer_store_dwordx2 v[{o}:{o+1}], v{vOA+4*G+r}, s[{S_OUT}:{S_OUT+3}], 0 offen offset:{128*(sig>>1)}{ONT[sig>>1]}')
        return out
    def locE(f):
        if f < 10: return ('lds', vWA1, f*1024)
        if f < 24: return ('reg', sreg((f-10) % 2, (f-10) // 2))
        return ('lds', vWA0, (f-24)*1024)
    def b5E():
        def body():
            A.raw('  s_waitcnt vmcnt(0)'); A.skip('s_barrier')
        cond('M_e4', True, body)
        padat('O')
        stamp()
    for t in pend: A(t)
    bgE = [f'v_rcp_f32 v{vINV+q}, v{vINV+q}' for q in range(8)]
    hE = {}
    if OPT.get('pe') == '1': hE = {3: lambda: prio(1, 0)}
    if OPT.get('pe') == '2': hE = {2: lambda: prio(1, 2), 4: lambda: prio(1, 0)}
    if OPT.get('pe') == '3': hE = {4: lambda: prio(1, 2)}
    if OPT.get('pe') == '4':
        hE = {2: lambda: prio(2, 0), 4: lambda: prio(1, 0)}
        prio(3, 0)
    pend = gemm_phase(QP, locE, finE, swap=True, bg=bgE, hooks=hE, pace=int(OPT.get('pace', '0')), D=int(OPT.get('de', '4')), ghooks={2*(24 - int(OPT.get('de', '4'))) - 1: b5E})
    padat('Z')
    for t in pend: A(t)
    if STAMP:
        stamp()
        A('s_waitcnt vmcnt(0)')
        stamp(1)
        write_stamps()
    if 'pad' in OPT:
        A('s_waitcnt vmcnt(0)')
        A.label('PADL')
        A.raw('  s_memrealtime s[98:99]')
        A.raw('  s_waitcnt lgkmcnt(0)')
        A('s_sub_u32 s98, s98, s96')
        A(f's_cmp_lt_u32 s98, {OPT["pad"]}')
        A('s_cbranch_scc1 PADL')
    A('s_endpgm')

    A.label('M_helper'); A.reset()
    nstamp[0] = 2
    A.label('H_join'); A.reset()
    stamp()
    decode(); scalar_setup(); scalar_setup2()
    row_addrs(WF, '0')
    row_addrs(vAP, '8')
    def rows(lst):
        for i in lst:
            row_soff(sT1, str(i))
            b = vAP if i & 1 else WF
            for j in range(8):
                a = b + j
                if i & 6:
                    a = 64 + j
                    A(f'v_xor_b32 v{a}, {16*(i & 6)}, v{b+j}')
                A(f's_mov_b32 m0, {i*ROWB + 16*PIECE[j]}')
                A(f'buffer_load_dwordx4 v{a}, s[{S_X}:{S_X+3}], s{sT1} offen{KNT} lds')
            if len(A.vm) >= 56: A('s_waitcnt vmcnt(40)')
    A('s_barrier')
    if ER == 0: rows([0, 8])
    poll('H_pollM', 128)
    A(f's_lshr_b32 s{sT0}, s2, 3')
    A(f's_mul_i32 s{sT0}, s{sT0}, 2304')
    A(f's_add_u32 s{sT0}, s{sT0}, {MOFF}')
    for i in range(3):
        A(f'buffer_load_dwordx4 v[{80+4*i}:{83+4*i}], v{vWA0}, s[{S_WS}:{S_WS+3}], s{sT0} offen offset:{1024*i} sc1')
    stamp()
    A('s_barrier')
    stamp()
    mshare(0, M1)
    A(f's_waitcnt vmcnt({M1 - MW})')
    A('s_barrier')
    stamp()
    mshare(M1, 18)
    A('v_mov_b32 v192, 1'); A('v_mov_b32 v193, 0')
    A('s_waitcnt vmcnt(0)')
    A(f's_cmp_lt_u32 s2, 112')
    A('s_cbranch_scc1 H_nov2')
    signal(4, 143, 'H_p2')
    A.label('H_nov2'); A.reset()
    if ER: rows([0, 8] + list(range(1, ER)))
    A('s_barrier')
    stamp()
    A('s_barrier')
    A('s_waitcnt vmcnt(0)')
    publish(4, 143, 'H_p2')
    stamp()
    A('s_barrier')
    rows([16, 17, 18, 19])
    A('s_waitcnt vmcnt(0)')
    stamp()
    poll('H_pollV', 132)
    A(f's_lshr_b32 s{sT0}, s2, 3')
    A(f's_mul_i32 s{sT0}, s{sT0}, 2304')
    for i in range(3):
        A(f'buffer_load_dwordx4 v[{80+4*i}:{83+4*i}], v{vWA0}, s[{S_WS}:{S_WS+3}], s{sT0} offen offset:{1024*i} sc1')
    stamp()
    A('s_barrier')
    def wfr(src0, n, lds0):
        for i in range(n):
            if i % 4 == 0:
                A(f's_mov_b32 m0, {lds0 + i*1024}')
                A(f's_mov_b32 s{sT4}, {(src0 + i)*1024}')
            A(f'buffer_load_dwordx4 v{vWA0}, s[{S_WS}:{S_WS+3}], s{sT4} offen offset:{1024*(i%4)} sc1 lds')
    wfr(0, 10, SPARE)
    PF = int(OPT.get('pf', '0'))
    if PF:
        A(f'v_lshrrev_b32 v80, 2, v{vL}')
        A('v_min_u32 v80, 13, v80')
        A(f'v_add_u32 v80, s{sTC}, v80')
        A(f'v_lshl_add_u32 v81, v80, 1, s{sALC}')
        A('v_add_u32 v82, 112, v80')
        A('v_med3_i32 v80, v81, v80, v82')
        A('v_mul_u32_u24 v80, 384, v80')
        A(f'v_and_b32 v81, 3, v{vL}')
        A('v_min_u32 v81, 2, v81')
        A('v_lshl_add_u32 v80, v81, 7, v80')
        for r in range(14):
            A(f's_add_u32 s{sT0}, s{sTR}, {r}')
            A(f's_lshl_b32 s{sT1}, s{sT0}, 1')
            A(f's_add_i32 s{sT1}, s{sT1}, s{sALR}')
            A(f's_max_i32 s{sT1}, s{sT1}, s{sT0}')
            A(f's_add_i32 s{sT0}, s{sT0}, 112')
            A(f's_min_i32 s{sT1}, s{sT1}, s{sT0}')
            A(f's_mul_i32 s{sT1}, s{sT1}, 86016')
            for h in range(PF):
                A.raw(f'  buffer_load_dword v{84+h}, v80, s[{S_OUT}:{S_OUT+3}], s{sT1} offen offset:{64*h}')
        A(f's_waitcnt vmcnt({14*PF})')
    else:
        A('s_waitcnt vmcnt(0)')
    stamp()
    A('s_barrier')
    wfr(24, 12, 0)
    A('s_waitcnt vmcnt(0)')
    stamp()
    A('s_barrier')
    if STAMP:
        stamp(1)
        write_stamps()
    A.label('M_done')
    A('s_endpgm')
    A.label('CODE_END')

gen_main()
A.raw('.section .rodata,"a"')
A.raw('.p2align 6')
A.raw(f'.amdhsa_kernel {NAME}')
A.raw('  .amdhsa_next_free_vgpr 256')
A.raw('  .amdhsa_next_free_sgpr 102')
A.raw('  .amdhsa_accum_offset 256')
A.raw('  .amdhsa_group_segment_fixed_size 0')
A.raw('  .amdhsa_kernarg_size 48')
A.raw('  .amdhsa_user_sgpr_count 2')
A.raw('  .amdhsa_user_sgpr_kernarg_segment_ptr 1')
A.raw('  .amdhsa_system_sgpr_workgroup_id_x 1')
A.raw('.end_amdhsa_kernel')
open(OUT, 'w').write(A.text())
print('instr', A.n_inst, 'nops', A.nops, 'maxv', A.maxv)
```

```python
import sys, struct
sys.path.insert(0, 'gen')
from asmlib import Asm

OUT = sys.argv[1] if len(sys.argv) > 1 else 'standalone__neighborhood_nat__vision.s'
OPT = dict(a.split('=') if '=' in a else (a, '1') for a in sys.argv[2:])
STAMP = 'stamp' in OPT
XNT = ' nt' if OPT.get('xnt', '0') == '1' else ''
KNT = ' nt' if OPT.get('knt', '0') == '1' else ''
ONT = [{'0': '', '1': ' nt', '2': ' sc1', '3': ' sc0 sc1', '4': ' sc0 sc1 nt'}[c] for c in (OPT.get('ont', '2') * 3)[:3]]
NAME = 'standalone__neighborhood_nat__vision_kernel'

X_BYTES = 19267584
WS_BYTES = 268435456
ROWB = 7680
MB = 90112
SPARE = 153600
MOFF = 0x20000
NMP = 36
GAP = 73728
def f32bits(x): return struct.unpack('<I', struct.pack('<f', x))[0]
SCALE = f32bits(192 ** -0.5 * 1.4426950408889634)
NEGINF = 0xff800000
PIECE = [0, 64, 128, 192, 256, 320, 384, 416]

A = Asm()
hdr = open('standalone__neighborhood_nat__vision.s.ref').read().split('\n')
for ln in hdr:
    if ln.startswith('; @launch'): break
    A.raw(ln)
A.raw('; @launch grid=(256,1,1) block=(512,1,1) lds=163840')
A.raw('.amdgcn_target "amdgcn-amd-amdhsa--gfx950"')
A.raw('.text')

def srd(d, lo, hi, nbytes):
    A(f's_mov_b32 s{d}, s{lo}'); A(f's_and_b32 s{d+1}, s{hi}, 0xffff')
    A(f's_mov_b32 s{d+2}, {nbytes}'); A(f's_mov_b32 s{d+3}, 0x00020000')
def mf(d, a, b, c):
    cs = '0' if c is None else f'v[{c}:{c+3}]'
    return f'v_mfma_f32_16x16x32_bf16 v[{d}:{d+3}], v[{a}:{a+3}], v[{b}:{b+3}], {cs}'

S_X, S_OUT, S_WS, S_W, S_WO, S_DBG = 16, 20, 24, 28, 32, 36
sW, sPR, sPC, sTR, sTC = 40, 41, 42, 43, 44
sKR0, sKC0B = 45, 46
sLOR, sHIR, sSHR, sLOC, sHIC = 47, 48, 49, 50, 51
sBASE, sSTRIP, sNEG = 52, 53, 54
sT0, sT1, sT2, sT3, sT4, sT5 = 55, 56, 57, 58, 59, 60
sALR, sALC, sSC = 61, 62, 63
sST = 64
sXR, sXL = 100, 101
sOA = 88
sB0, sF = 92, 93
sM1, sM2 = 0, 10
sVT, sVO = 94, 95
vL, vG, vN = 1, 2, 3
vT = 4
vR0, vR3, vCB = 12, 13, 14
XQ = 16
PP = 16
vOA = 4
vINV = 56
SACC = 64
OST = 16
W1 = 64
ONES = 48
QP = 120
ACC = 168
RING = 200
WF = 232
vAS = 240
vAP = 244
vWA0, vWA1, vWAM = 252, 253, 254
vSW, vSR = 255, 199
vWD = RING
MBQ = 64
MACC = 136
MPK = 184
MWA = 192

nstamp = [0]
def stamp(real=None):
    if not STAMP: return
    i = nstamp[0]; nstamp[0] += 1
    assert i < 14
    A.raw(f'  s_mem{"real" if "rt" in OPT else ""}time s[{sST+2*i}:{sST+1+2*i}]')
    if real is not None:
        A.raw(f'  s_memrealtime s[{96+2*real}:{97+2*real}]')
def write_stamps():
    n = nstamp[0]
    A('s_waitcnt lgkmcnt(0)')
    A(f'v_mov_b32 v{RING}, 0')
    if 'dbg' in OPT:
        lbl = f'WS_skip{n}'
        A(f's_cmp_lg_u32 s2, {OPT["dbg"].split(",")[0]}')
        A(f's_cbranch_scc1 {lbl}')
        A(f's_cmp_lg_u32 s{sW}, {OPT["dbg"].split(",")[1]}')
        A(f's_cbranch_scc1 {lbl}')
        for i in range(1, n):
            A(f's_sub_u32 s{sT0}, s{sST+2*i}, s{sST}')
            A(f'v_writelane_b32 v{RING}, s{sT0}, {i}')
        A(f's_sub_u32 s{sT0}, s98, s96')
        A(f'v_writelane_b32 v{RING}, s{sT0}, 15')
        srd(S_DBG, 12, 13, 256)
        A(f'v_lshlrev_b32 v{RING+1}, 2, v{vL}')
        A('s_mov_b64 exec, 0xfffe')
        A(f'buffer_store_dword v{RING}, v{RING+1}, s[{S_DBG}:{S_DBG+3}], 0 offen')
        A.label(lbl)
        return
    for i in range(n):
        A(f'v_writelane_b32 v{RING}, s{sST+2*i}, {i}')
    A(f'v_writelane_b32 v{RING}, s96, 14')
    A(f'v_writelane_b32 v{RING}, s98, 15')
    A(f's_lshl_b32 s{sT0}, s2, 3')
    A(f's_add_u32 s{sT0}, s{sT0}, s{sW}')
    A(f's_lshl_b32 s{sT0}, s{sT0}, 6')
    A(f's_add_u32 s{sT0}, s{sT0}, 0x100000')
    A(f'v_lshlrev_b32 v{RING+1}, 2, v{vL}')
    A('s_mov_b64 exec, 0xffff')
    A(f'buffer_store_dword v{RING}, v{RING+1}, s[{S_WS}:{S_WS+3}], s{sT0} offen')

def row_addrs(b, sF, A=A):
    for j in (0, 1, 2, 7):
        A(f'v_add_u32 v{vT}, {PIECE[j]}, v{vL}')
        A(f'v_xor_b32 v{vT}, {sF}, v{vT}')
        A(f'v_mul_u32_u24 v{vT+1}, 2731, v{vT}')
        A(f'v_lshrrev_b32 v{vT+1}, 16, v{vT+1}')
        A(f'v_mul_u32_u24 v{vT+1}, 384, v{vT+1}')
        A(f'v_lshl_add_u32 v{vT}, v{vT}, 4, v{vT+1}')
        A(f'v_add_u32 v{b+j}, s{sKC0B}, v{vT}')
        if j < 3:
            A(f'v_add_u32 v{b+j+3}, {8*768}, v{b+j}')
            if j == 0: A(f'v_add_u32 v{b+6}, {16*768}, v{b}')
            A(f'v_max_i32 v{b+j}, 0, v{b+j}')
def row_soff(dst, srow):
    A(f's_add_i32 s{dst}, s{sKR0}, {srow}')
    A(f's_lshl_b32 s{dst}, s{dst}, 1')
    A(f's_add_i32 s{dst}, s{dst}, s{sPR}')
    A(f's_max_i32 s{dst}, s{dst}, 0')
    A(f's_min_i32 s{dst}, s{dst}, 223')
    A(f's_mul_i32 s{dst}, s{dst}, 86016')

def stream(ms, mem, side, hooks=None, cap=2, bg=None, flush=(), paced=None):
    side = [x if len(x) == 3 else (x[0], x[1], 10**9) for x in side]
    bg = bg if bg is not None else []
    paced = list(paced or [])
    nside = len(side)
    def slots(lo, hi):
        return sum(max(0, cap - len(mem.get(k, []))) for k in range(lo, hi + 1))
    for i, m in enumerate(ms):
        assert not (side and side[0][2] < i), ('deadline missed', side[0], i)
        A(m)
        if i + 1 < len(ms) and not (hooks and i in hooks): A.prewait(ms[i+1])
        n = 0
        for t in mem.get(i, []):
            A(t); n += 1
        if paced and not mem.get(i) and paced[0][0] <= i and nside - len(side) >= paced[0][2]:
            assert nside - len(side) <= paced[0][3], ('paced item too late', paced[0])
            A(paced.pop(0)[1]); n += 1
        c = cap
        if side and side[0][2] < len(ms):
            dl = side[0][2]
            if sum(1 for x in side if x[2] == dl) > slots(i, dl): c = cap + 1
        while side and n < c and side[0][0] <= i:
            A(side.pop(0)[1]); n += 1
        while bg and n < cap:
            A(bg.pop(0)); n += 1
        if i in flush:
            while side and side[0][0] <= i + 4: A(side.pop(0)[1])
        if hooks and i in hooks: hooks[i]()
    assert not paced
    return [x[1] for x in side]

def gemm_phase(B, loc, finish, swap=False, hooks=None, D=6, gate=None, bg=None, extra_mem=None, ghooks=None, flush=(), pace=0):
    def rd(f):
        l = loc(f)
        if l[0] == 'lds':
            buf = RING + 4*(f % 8)
            return [f'ds_read_b128 v[{buf}:{buf+3}], v{l[1]} offset:{l[2]}']
        return []
    ms, mem, side, hk, paced = [], dict(extra_mem or {}), [], dict(ghooks or {}), []
    for f in range(D):
        for t in rd(f): A(t)
    for f in range(72):
        sig, s, h = f // 12, (f % 12) // 2, f % 2
        l = loc(f)
        a = RING + 4*(f % 8) if l[0] == 'lds' else l[1]
        accb = ACC + 16*(sig & 1)
        for G in range(2):
            d = accb + 8*G + 4*h
            b = B + 24*G + 4*s
            ms.append(mf(d, b, a, None if s == 0 else d) if swap else mf(d, a, b, None if s == 0 else d))
        fn = f + D
        if fn < 72 and not (gate is not None and f < gate <= fn):
            mem[2*f] = rd(fn)
        if f % 12 == 11:
            k = 0
            for t in finish(sig, accb):
                if pace and t.startswith('buffer_store') and sig < 5:
                    paced.append((2*f + 1 + 6 + pace*k, t, len(side), len(side) + 23)); k += 1
                else:
                    side.append((2*f + 1 + 3, t, 2*f + 1 + 24))
            if hooks and sig in hooks:
                def mk(sig=sig, f=f):
                    def h():
                        hooks[sig]()
                        if gate is not None and f + 1 == gate:
                            for k in range(gate, gate + D):
                                for t in rd(k): A(t)
                    return h
                hk[2*f + 1] = mk()
    return stream(ms, mem, side, hk, bg=bg, flush=flush, paced=paced)

def poll(label, off):
    A(f'v_mov_b32 v{vT+2}, 0')
    A(f's_mov_b32 s{sT4}, 0')
    A('s_mov_b64 exec, 1')
    A.label(label)
    A(f'buffer_load_dword v{vT+3}, v{vT+2}, s[{S_DBG}:{S_DBG+3}], 0 offen offset:{off} sc1')
    A('s_waitcnt vmcnt(0)')
    A(f'v_cmp_eq_u32 vcc, 0, v{vT+3}')
    A(f's_add_u32 s{sT4}, s{sT4}, 1')
    A(f's_cmp_gt_u32 s{sT4}, 200000')
    A(f's_cbranch_scc1 {label}_x')
    A('s_cmp_lg_u64 vcc, 0')
    A(f's_cbranch_scc0 {label}_x')
    A('s_sleep 2')
    A(f's_branch {label}')
    A.label(label + '_x')
    A('s_mov_b64 exec, -1')

def cond(lbl, isE, body):
    A(f's_cmp_lt_u32 s{sW}, 4' if isE else f's_cmp_ge_u32 s{sW}, 4')
    A(f's_cbranch_scc1 {lbl}')
    body()
    A.label(lbl)

nprio = [0]
def prio(e, l):
    nprio[0] += 1
    A(f's_setprio {l}')
    if e != l: cond(f'M_pr{nprio[0]}', True, lambda: A.skip(f's_setprio {e}'))

npad = [0]
def padat(name):
    if OPT.get('padpos') != name: return
    npad[0] += 1
    A.label(f'PADM{npad[0]}')
    A.raw('  s_memrealtime s[98:99]')
    A.raw('  s_waitcnt lgkmcnt(0)')
    A.raw('  s_sub_u32 s98, s98, s96')
    A.raw(f'  s_cmp_lt_u32 s98, {OPT["padt"]}')
    A.raw(f'  s_cbranch_scc1 PADM{npad[0]}')

def gen_main():
    A.raw(f'.globl {NAME}'); A.raw('.p2align 8'); A.raw(f'.type {NAME},@function')
    A.raw(f'{NAME}:'); A.reset()
    A('s_cmp_ge_u32 s2, 256')
    A('s_cbranch_scc1 M_done')
    stamp(0)
    if 'pad' in OPT or 'padpos' in OPT: A.raw('  s_memrealtime s[96:97]')
    A('s_load_dwordx8 s[4:11], s[0:1], 0')
    A('s_load_dwordx4 s[12:15], s[0:1], 32')
    A(f'v_lshrrev_b32 v{vT}, 6, v0')
    A(f'v_and_b32 v{vL}, 63, v0')
    A(f'v_readfirstlane_b32 s{sW}, v{vT}')
    A(f'v_lshrrev_b32 v{vG}, 4, v{vL}')
    A(f'v_and_b32 v{vN}, 15, v{vL}')
    A(f'v_lshlrev_b32 v{vWA0}, 4, v{vL}')
    if OPT.get('cpf', '1') != '0':
        A('s_getpc_b64 s[16:17]')
        A('s_and_b32 s16, s16, -256')
        A('s_and_b32 s17, s17, 0xffff')
        A('s_mov_b32 s18, CODE_END-' + NAME)
        A('s_mov_b32 s19, 0x00020000')
        A(f's_lshr_b32 s{sT0}, s2, 3')
        A(f's_lshl_b32 s{sT0}, s{sT0}, 10')
        A(f's_cmp_lg_u32 s{sW}, 3')
        A('s_cbranch_scc1 M_nocpf')
        A.raw(f'  buffer_load_dwordx4 v[{MACC}:{MACC+3}], v{vWA0}, s[16:19], s{sT0} offen')
        A.label('M_nocpf')
    def decode():
        A(f's_and_b32 s{sT0}, s2, 7')
        A(f's_lshr_b32 s{sT1}, s2, 3')
        MAP = OPT.get('map', '0')
        if MAP == '0':
            A(f's_lshr_b32 s{sPR}, s{sT0}, 2')
            A(f's_bfe_u32 s{sPC}, s{sT0}, 0x10001')
            A(f's_and_b32 s{sT0}, s{sT0}, 1')
            A(f's_lshl_b32 s{sT0}, s{sT0}, 2')
            A(f's_lshr_b32 s{sTR}, s{sT1}, 3')
            A(f's_add_u32 s{sTR}, s{sTR}, s{sT0}')
            A(f's_and_b32 s{sTC}, s{sT1}, 7')
        elif MAP == '1':
            A(f's_mov_b32 s{sTR}, s{sT0}')
            A(f's_and_b32 s{sPR}, s{sT1}, 1')
            A(f's_bfe_u32 s{sPC}, s{sT1}, 0x10001')
            A(f's_lshr_b32 s{sTC}, s{sT1}, 2')
        elif MAP == '2':
            A(f's_lshr_b32 s{sPR}, s{sT0}, 2')
            A(f's_and_b32 s{sT0}, s{sT0}, 3')
            A(f's_lshl_b32 s{sT0}, s{sT0}, 1')
            A(f's_lshr_b32 s{sTR}, s{sT1}, 4')
            A(f's_add_u32 s{sTR}, s{sTR}, s{sT0}')
            A(f's_and_b32 s{sPC}, s{sT1}, 1')
            A(f's_bfe_u32 s{sTC}, s{sT1}, 0x30001')
        else:
            A(f's_and_b32 s{sPR}, s{sT1}, 1')
            A(f's_bfe_u32 s{sPC}, s{sT1}, 0x10001')
            A(f's_and_b32 s{sTR}, s{sT0}, 6')
            A(f's_lshr_b32 s{sT2}, s{sT1}, 4')
            A(f's_add_u32 s{sTR}, s{sTR}, s{sT2}')
            A(f's_and_b32 s{sT0}, s{sT0}, 1')
            A(f's_lshl_b32 s{sT0}, s{sT0}, 2')
            A(f's_bfe_u32 s{sTC}, s{sT1}, 0x20002')
            A(f's_add_u32 s{sTC}, s{sTC}, s{sT0}')
        A(f's_mul_i32 s{sTR}, s{sTR}, 14')
        A(f's_mul_i32 s{sTC}, s{sTC}, 14')
    def srds():
        srd(S_WS, 14, 15, WS_BYTES)
        srd(S_OUT, 10, 11, X_BYTES)
        srd(S_DBG, 12, 13, 256)
    def scalar_setup():
        A(f's_mul_i32 s{sALR}, s{sPR}, 13')
        A(f's_add_i32 s{sALR}, s{sALR}, -6')
        A(f's_mul_i32 s{sALC}, s{sPC}, 13')
        A(f's_add_i32 s{sALC}, s{sALC}, -6')
        A(f's_cmp_ge_u32 s{sW}, 4')
        A(f's_cselect_b32 s{sSTRIP}, -4, 3')
        A(f's_add_i32 s{sSTRIP}, s{sSTRIP}, s{sW}')
        A(f's_lshl_b32 s{sSTRIP}, s{sSTRIP}, 1')
        A(f's_add_u32 s{sOA}, s{sTR}, s{sSTRIP}')
        A(f's_mov_b32 s{sOA+1}, 86016')
        A(f's_movk_i32 s{sOA+2}, 384')
    def scalar_setup2():
        A(f's_mul_i32 s{sT0}, s{sPR}, 6')
        A(f's_add_i32 s{sKR0}, s{sTR}, s{sT0}')
        A(f's_add_i32 s{sKR0}, s{sKR0}, -6')
        A(f's_cmp_eq_i32 s{sKR0}, -6')
        A(f's_cselect_b32 s{sLOR}, 6, 0')
        A(f's_cmp_eq_i32 s{sKR0}, 98')
        A(f's_cselect_b32 s{sHIR}, 7, 13')
        A(f's_cselect_b32 s{sSHR}, 2, 0')
        A(f's_sub_i32 s{sKR0}, s{sKR0}, s{sSHR}')
        A(f's_mul_i32 s{sT0}, s{sPC}, 6')
        A(f's_add_i32 s{sT1}, s{sTC}, s{sT0}')
        A(f's_add_i32 s{sT1}, s{sT1}, -6')
        A(f's_cmp_eq_i32 s{sT1}, -6')
        A(f's_cselect_b32 s{sLOC}, 6, 0')
        A(f's_cmp_eq_i32 s{sT1}, 98')
        A(f's_cselect_b32 s{sHIC}, 7, 13')
        A(f's_lshl_b32 s{sT1}, s{sT1}, 1')
        A(f's_add_i32 s{sT1}, s{sT1}, s{sPC}')
        A(f's_mul_i32 s{sKC0B}, s{sT1}, 384')
        A(f's_max_i32 s{sB0}, s{sSTRIP}, s{sLOR}')
        A(f's_min_i32 s{sB0}, s{sB0}, s{sHIR}')
        A(f's_and_b32 s{sB0}, s{sB0}, -2')
        A(f's_add_u32 s{sBASE}, s{sB0}, s{sSHR}')
        A(f's_mov_b32 s{sNEG}, {NEGINF}')
        A(f's_mov_b32 s{sSC}, {SCALE}')
        A(f's_and_b32 s{sF}, s{sW}, 1')
        A(f's_lshl_b32 s{sF}, s{sF}, 3')
        A(f's_and_b32 s{sT1}, s{sW}, 6')
        A(f's_or_b32 s{sF}, s{sF}, s{sT1}')
        A(f's_add_u32 s{sT1}, s{sW}, 8')
        row_soff(sXR, f's{sT1}')
        A(f's_mul_i32 s{sXL}, s{sT1}, {ROWB}')

    def sreg(G, tl): return SACC + 28*G + 4*tl
    TM = [197, 198, 199, 255, 0]
    def pixaddr(dst, sel, lane):
        t0, t1, t2, t3, t4 = TM
        o = [f'v_lshrrev_b32 v{t0}, 1, v{sel}', f'v_and_b32 v{t3}, 1, v{sel}', f'v_add_u32 v{t0}, s{sOA}, v{t0}',
             f'v_lshl_add_u32 v{t4}, v{t3}, 2, s{sTC}',
             f'v_lshl_add_u32 v{t1}, v{t0}, 1, s{sALR}', f'v_add_u32 v{t2}, 112, v{t0}', f'v_lshlrev_b32 v{t3}, 30, v{t3}',
             f'v_med3_i32 v{t0}, v{t1}, v{t0}, v{t2}', f'v_mul_lo_u32 v{t0}, v{t0}, s{sOA+1}'] + lane(t0)
        for G in range(2):
            for r in range(4):
                d = dst(G, r)
                o += [f'v_add_u32 v{d}, {7*G+r}, v{t4}', f'v_lshl_add_u32 v{t1}, v{d}, 1, s{sALC}',
                      f'v_add_u32 v{t2}, 112, v{d}', f'v_med3_i32 v{d}, v{t1}, v{d}, v{t2}',
                      f'v_mad_u32_u24 v{d}, v{d}, s{sOA+2}, v{t0}']
                if r == 3: o += [f'v_add_u32 v{d}, v{d}, v{t3}']
        return o
    def oaddr(): return pixaddr(lambda G, r: vOA + 4*G + r, vG, lambda t: [f'v_lshl_add_u32 v{t}, v{vN}, 3, v{t}'])
    vXS = ACC
    sXRW, sXB = 84, 86
    def xaddr():
        A(f'v_lshrrev_b32 v{vT}, 3, v{vL}')
        A(f'v_and_b32 v{vT+1}, 7, v{vL}')
        A(f'v_and_b32 v{vT+2}, 6, v{vT}')
        A(f'v_xor_b32 v{vT+1}, v{vT+1}, v{vT+2}')
        A(f'v_add_u32 v{vT+2}, 1, v{vT}')
        A(f'v_lshrrev_b32 v{vT+2}, 3, v{vT+2}')
        A(f'v_lshlrev_b32 v{vT+2}, 26, v{vT+2}')
        A(f'v_or_b32 v{vT+1}, v{vT+1}, v{vT+2}')
        A(f'v_add_u32 v{vT}, s{sTC}, v{vT}')
        for G in range(2):
            if G: A(f'v_add_u32 v{vT}, 7, v{vT}')
            A(f'v_lshl_add_u32 v{vT+2}, v{vT}, 1, s{sALC}')
            A(f'v_add_u32 v{vT+3}, 112, v{vT}')
            A(f'v_med3_i32 v{vT+2}, v{vT+2}, v{vT}, v{vT+3}')
            A(f'v_mul_u32_u24 v{vT+2}, 384, v{vT+2}')
            A(f'v_lshl_add_u32 v{vXS+G}, v{vT+1}, 4, v{vT+2}')
        for rb in range(2):
            A(f's_add_u32 s{sT0}, s{sOA}, {rb}')
            A(f's_lshl_b32 s{sT1}, s{sT0}, 1')
            A(f's_add_i32 s{sT1}, s{sT1}, s{sALR}')
            A(f's_max_i32 s{sT1}, s{sT1}, s{sT0}')
            A(f's_add_i32 s{sT0}, s{sT0}, 112')
            A(f's_min_i32 s{sT1}, s{sT1}, s{sT0}')
            A(f's_mul_i32 s{sXRW+rb}, s{sT1}, 86016')
        A(f's_lshl_b32 s{sXB}, s{sSTRIP}, 12')
        A(f's_lshl_b32 s{sXB+1}, s{sSTRIP}, 11')
    def xload(i):
        j, G, rb = i // 4, (i >> 1) & 1, i & 1
        off = 512 + (j*4 + G*2 + rb)*1024 - 128*j if j < 2 else 61440 + (G*2 + rb)*1024 - 256
        A.skip(f's_add_u32 m0, s{sXB + j//2}, {off}')
        A.skip('s_nop 0')
        A.raw(f'  buffer_load_dwordx4 v{vXS+G}, s[{S_X}:{S_X+3}], s{sXRW+rb} offen offset:{128*j}{XNT} lds')
    def chunk(c):
        for i in range(4*c, 4*c + 4): xload(i)
    def xread_addr():
        A(f'v_and_b32 v{vXS+2}, 6, v{vN}')
        A(f'v_xor_b32 v{vXS+2}, v{vXS+2}, v{vG}')
        A(f'v_lshlrev_b32 v{vXS+6}, 7, v{vN}')
        A(f'v_xor_b32 v{vXS+3}, 4, v{vXS+2}')
        A(f'v_lshl_add_u32 v{vXS+2}, v{vXS+2}, 4, v{vXS+6}')
        A(f'v_lshl_add_u32 v{vXS+3}, v{vXS+3}, 4, v{vXS+6}')
        for q in range(2):
            A(f'v_add_u32 v{vXS+4+q}, s{sXB+1}, v{vXS+2+q}')
            A(f'v_add_u32 v{vXS+2+q}, s{sXB}, v{vXS+2+q}')
    def xread(j):
        for G in range(2):
            for q in range(2):
                r = XQ + 24*G + 4*(2*j + q)
                if j < 2: A(f'ds_read_b128 v[{r}:{r+3}], v{vXS+2+q} offset:{512 + (4*j + 2*G)*1024}')
                else: A(f'ds_read_b128 v[{r}:{r+3}], v{vXS+4+q} offset:{61440 + 2*G*1024}')
    def setup():
        B = Asm()
        def Fv(dst, row):
            B(f'v_and_b32 v{dst}, 1, v{row}')
            B(f'v_lshlrev_b32 v{dst}, 3, v{dst}')
            B(f'v_and_or_b32 v{dst}, v{row}, 6, v{dst}')
        B(f'v_lshrrev_b32 v{vT}, 3, v{vN}')
        B(f'v_add_u32 v{vT}, s{sSTRIP}, v{vT}')
        B(f'v_max_i32 v{vT}, s{sLOR}, v{vT}')
        B(f'v_min_i32 v{vT}, s{sHIR}, v{vT}')
        B(f'v_subrev_u32 v{vT}, s{sB0}, v{vT}')
        B(f'v_and_b32 v{vT+1}, 1, v{vG}')
        B(f'v_sub_u32 v{vT+2}, v{vT+1}, v{vT}')
        B(f'v_ashrrev_i32 v{vR0}, 31, v{vT+2}')
        B(f'v_and_b32 v{vR0}, s{sNEG}, v{vR0}')
        B(f'v_sub_u32 v{vT+2}, v{vT}, v{vT+1}')
        B(f'v_ashrrev_i32 v{vR3}, 31, v{vT+2}')
        B(f'v_and_b32 v{vR3}, s{sNEG}, v{vR3}')
        B(f'v_and_b32 v{vT}, 7, v{vN}')
        B(f'v_lshrrev_b32 v{vT+1}, 1, v{vG}')
        B(f'v_subrev_u32 v{vT+3}, 7, v{vT}')
        B(f'v_ashrrev_i32 v{vT+3}, 31, v{vT+3}')
        B(f'v_and_b32 v{vT+3}, 0x7f, v{vT+3}')
        for G in range(2):
            B(f'v_add_u32 v{vT+2}, {7*G}, v{vT}')
            B(f'v_max_i32 v{vT+2}, s{sLOC}, v{vT+2}')
            B(f'v_min_i32 v{vT+2}, s{sHIC}, v{vT+2}')
            B(f'v_lshlrev_b32 v{vT+2}, v{vT+2}, v{vT+3}')
            B(f'v_lshrrev_b32 v{vT+2}, v{vT+1}, v{vT+2}')
            B(f'v_not_b32 v{vCB+G}, v{vT+2}')
        B(f'v_add_u32 v{vT}, s{sBASE}, v{vT}')
        Fv(vT+1, vT)
        B(f'v_mul_u32_u24 v{vT}, {ROWB}, v{vT}')
        B(f'v_lshrrev_b32 v{vT+2}, 3, v{vN}')
        B(f'v_mul_u32_u24 v{vT+2}, 24, v{vT+2}')
        B(f'v_add_u32 v{vT+2}, v{vT+2}, v{vG}')
        for s in range(4):
            B(f'v_add_u32 v{vT+3}, {4*s}, v{vT+2}')
            B(f'v_xor_b32 v{vT+3}, v{vT+3}, v{vT+1}')
            B(f'v_lshl_add_u32 v{vAS+s}, v{vT+3}, 4, v{vT}')
        B(f'v_and_b32 v{vT}, 1, v{vG}')
        B(f'v_lshlrev_b32 v{vT}, 2, v{vT}')
        B(f'v_lshrrev_b32 v{vT+1}, 2, v{vN}')
        B(f'v_add3_u32 v{vT}, v{vT}, v{vT+1}, s{sBASE}')
        Fv(vT+1, vT)
        B(f'v_mul_u32_u24 v{vT}, {ROWB}, v{vT}')
        B(f'v_and_b32 v{vT+2}, 1, v{vN}')
        B(f'v_lshl_add_u32 v{vT}, v{vT+2}, 3, v{vT}')
        B(f'v_lshrrev_b32 v{vT+2}, 1, v{vG}')
        B(f'v_mul_u32_u24 v{vT+2}, 24, v{vT+2}')
        B(f'v_bfe_u32 v{vT+3}, v{vN}, 1, 1')
        B(f'v_add_u32 v{vT+2}, v{vT+2}, v{vT+3}')
        for ct in range(8):
            B(f'v_add_u32 v{vT+3}, {2*ct}, v{vT+2}')
            B(f'v_xor_b32 v{vT+3}, v{vT+3}, v{vT+1}')
            B(f'v_lshl_add_u32 v{vAP+ct}, v{vT+3}, 4, v{vT}')
        B(f'v_add_u32 v{vWA1}, {SPARE}, v{vWA0}')
        B(f'v_add_u32 v{vWAM}, {MB}, v{vWA0}')
        row_addrs(WF, f's{sF}', B)
        return [l.strip() for l in B.lines]
    def masks():
        out = []
        for tl in range(7):
            a = []
            for G in range(2):
                tau = tl + 3*G
                r = sreg(G, tl)
                a.append([f'v_bfe_i32 v{r+2}, v{vCB+G}, {2*tau}, 1', f'v_and_b32 v{r+1}, s{sNEG}, v{r+2}',
                          f'v_and_b32 v{r+2}, s{sNEG}, v{r+2}', f'v_or_b32 v{r}, v{r+1}, v{vR0}', f'v_or_b32 v{r+3}, v{r+1}, v{vR3}'])
            for x, y in zip(*a): out += [x, y]
        return out

    M1 = int(OPT.get('m1', '12')); MW = int(OPT.get('mw', '6'))
    def mshare(a, b):
        A(f's_lshl_b32 s{sT0}, s{sW}, 10')
        A(f's_add_u32 s{sT0}, s{sT0}, {MOFF + 4096*a}')
        for i in range(a, b):
            A(f's_sub_u32 m0, s{sT0}, {MOFF - MB}')
            A(f'buffer_load_dwordx4 v{vWA0}, s[{S_WS}:{S_WS+3}], s{sT0} offen sc1 lds')
            if i < b - 1: A(f's_add_u32 s{sT0}, s{sT0}, 4096')
    A(f's_cmp_lg_u32 s{sW}, 0')
    A('s_cbranch_scc1 M_comp')
    A(f'v_bfe_u32 v{vT+1}, v{vL}, 2, 2')
    A(f'v_lshrrev_b32 v{vT+2}, 5, v{vL}')
    A(f'v_lshlrev_b32 v{vT+3}, 1, v{vT+2}')
    A(f'v_and_b32 v{vT+4}, 3, v{vL}')
    A(f'v_xor_b32 v{vT+3}, v{vT+3}, v{vT+4}')
    A(f'v_lshlrev_b32 v{vT+3}, 4, v{vT+3}')
    A(f's_movk_i32 s{sT5}, 1152')
    A(f'v_lshl_add_u32 v{vT}, v{vG}, 3, v{vT+1}')
    A(f'v_mad_u32_u24 v{vWD}, v{vT}, s{sT5}, v{vT+3}')
    A(f'v_lshrrev_b32 v{vT}, 2, v{vL}')
    A(f'v_mad_u32_u24 v{vWD+3}, v{vT}, s{sT5}, v{vT+3}')
    A(f'v_lshrrev_b32 v{vT}, 3, v{vN}')
    A(f'v_lshlrev_b32 v{vT}, 1, v{vT}')
    A(f'v_xor_b32 v{vT}, v{vT}, v{vG}')
    A(f'v_lshl_add_u32 v{vT}, v{vN}, 2, v{vT}')
    A(f'v_lshlrev_b32 v{MWA+3}, 4, v{vT}')
    A(f'v_add_u32 v{MWA+3}, {MB}, v{MWA+3}')
    nstamp[0] = 1
    A('s_waitcnt lgkmcnt(0)')
    srd(S_W, 6, 7, 192*576*2)
    TA, TB, TD = 64, 112, 160
    def signal(off, last, tag, wait=True):
        A('v_mov_b32 v192, 1'); A('v_mov_b32 v193, 0')
        A('s_mov_b64 exec, 1')
        A('s_waitcnt vmcnt(0)')
        A(f'buffer_atomic_add v192, v193, s[{S_DBG}:{S_DBG+3}], 0 offen offset:{off} sc0 sc1')
        A('s_mov_b64 exec, -1')
    def publish(off, last, tag):
        A(f'v_readfirstlane_b32 s{sT1}, v192')
        A(f's_cmp_lg_u32 s{sT1}, {last}')
        A(f's_cbranch_scc1 {tag}')
        A('s_mov_b64 exec, 1')
        A(f'buffer_store_dword v192, v193, s[{S_DBG}:{S_DBG+3}], 0 offen offset:{128 + off} sc1')
        A('s_mov_b64 exec, -1')
        A.label(tag)
    A(f's_cmp_ge_u32 s2, {NMP}')
    A('s_cbranch_scc1 H_nom')
    A(f's_mul_hi_u32 s{sT0}, s2, 0x2aaaaaab')
    A(f's_mul_i32 s{sT1}, s{sT0}, 6')
    A(f's_sub_u32 s{sT1}, s2, s{sT1}')
    A(f's_mul_i32 s{sT0}, s{sT0}, {32*1152}')
    A(f's_mul_i32 s{sT1}, s{sT1}, {32*1152}')
    for h in range(2):
        for k in range(6):
            A(f's_mov_b32 m0, {MB + (6*h + k)*1024 - 64*k}')
            A(f'buffer_load_dwordx4 v{vWD}, s[{S_W}:{S_W+3}], s{sT1} offen offset:{64*k} lds')
            A(f's_mov_b32 m0, {MB + (12 + 6*h + k)*1024 - 384 - 64*k}')
            A(f'buffer_load_dwordx4 v{vWD}, s[{S_W}:{S_W+3}], s{sT0} offen offset:{384 + 64*k} lds')
        if h == 0:
            A(f's_add_u32 s{sT0}, s{sT0}, 4608'); A(f's_add_u32 s{sT1}, s{sT1}, 4608')
    srd(S_X, 4, 5, X_BYTES)
    srds()
    NT = 0
    if OPT.get('tw', '0') != '0':
        A('v_mov_b32 v193, 0')
        A(f's_mov_b32 s{sT0}, 0x38000')
        A(f'buffer_load_dword v190, v193, s[{S_WS}:{S_WS+3}], s{sT0} offen'); NT = 1
        if OPT['tw'] == '2':
            A(f'buffer_load_dword v191, v193, s[{S_DBG}:{S_DBG+3}], 0 offen sc1'); NT = 2
    A(f's_lshl_b32 s{sT0}, s2, 11')
    A(f's_add_u32 s{sT0}, s{sT0}, {MOFF}')
    A('s_barrier')
    A(f's_waitcnt vmcnt({NT})')
    stamp()
    for k in range(6):
        for q in range(4):
            r = TA + 24*q + 4*k
            A(f'ds_read_b128 v[{r}:{r+3}], v{MWA+3} offset:{(6*q + k)*1024}')
        if k >= 2:
            kk = k - 2
            for h in range(2):
                for hp in range(2):
                    d = TD + 8*h + 4*hp
                    A(mf(d, TA + 24*hp + 4*kk, TB + 24*h + 4*kk, None if kk == 0 else d))
    for kk in (4, 5):
        for h in range(2):
            for hp in range(2):
                d = TD + 8*h + 4*hp
                A(mf(d, TA + 24*hp + 4*kk, TB + 24*h + 4*kk, d))
    for h in range(2):
        for q in range(4):
            A(f'v_cvt_pk_bf16_f32 v{TD+16+4*h+q}, v{TD+8*h+2*q}, v{TD+8*h+2*q+1}')
        A(f'buffer_store_dwordx4 v[{TD+16+4*h}:{TD+19+4*h}], v{vWA0}, s[{S_WS}:{S_WS+3}], s{sT0} offen offset:{1024*h} sc1')
    signal(0, NMP - 1, 'H_p1')
    A('s_barrier')
    A('s_waitcnt vmcnt(0)')
    publish(0, NMP - 1, 'H_p1')
    A('s_barrier')
    A('s_branch H_join')
    A.label('H_nom'); A.reset()
    nstamp[0] = 1
    VA, VB, VD = 64, 88, 112
    srd(S_WO, 8, 9, 192*192*2)
    A(f's_cmp_lt_u32 s2, 112')
    A('s_cbranch_scc1 H_nov1')
    A(f's_sub_u32 s{sT3}, s2, 112')
    A(f's_mul_hi_u32 s{sT0}, s{sT3}, 0x15555556')
    A(f's_mul_i32 s{sT1}, s{sT0}, 12')
    A(f's_sub_u32 s{sT1}, s{sT3}, s{sT1}')
    A(f's_mul_i32 s{sT2}, s{sT0}, {16*1152}')
    for k in range(6):
        A(f's_mov_b32 m0, {MB + 2048 + 1024*k - 768 - 64*k}')
        A(f'buffer_load_dwordx4 v{vWD+3}, s[{S_W}:{S_W+3}], s{sT2} offen offset:{768 + 64*k} lds')
    A(f'v_lshrrev_b32 v{VD}, 1, v{vL}')
    A(f'v_mul_u32_u24 v{VD}, 384, v{VD}')
    A(f'v_and_b32 v{VD+1}, 1, v{vL}')
    A(f'v_lshl_add_u32 v{VD}, v{VD+1}, 4, v{VD}')
    A(f's_lshl_b32 s{sT2}, s{sT1}, 5')
    for k in range(6):
        A(f's_mov_b32 m0, {MB + 8192 + 1024*k}')
        A(f'buffer_load_dwordx4 v{VD}, s[{S_WO}:{S_WO+3}], s{sT2} offen lds')
        A(f's_add_u32 s{sT2}, s{sT2}, {32*384}')
    A(f's_lshr_b32 s{sT2}, s{sT1}, 2')
    A(f's_mul_i32 s{sVO}, s{sT2}, 24576')
    A(f's_and_b32 s{sT1}, s{sT1}, 3')
    A(f's_lshl_b32 s{sT1}, s{sT1}, 6')
    A(f's_add_u32 s{sVO}, s{sVO}, s{sT1}')
    A(f's_lshr_b32 s{sT1}, s{sT0}, 1')
    A(f's_lshl_b32 s{sT1}, s{sT1}, 11')
    A(f's_add_u32 s{sVO}, s{sVO}, s{sT1}')
    A(f's_and_b32 s{sT0}, s{sT0}, 1')
    A(f's_lshl_b32 s{sT0}, s{sT0}, 3')
    A(f's_add_u32 s{sVO}, s{sVO}, s{sT0}')
    A.label('H_nov1'); A.reset()
    A('s_barrier')
    srd(S_X, 4, 5, X_BYTES)
    srds()
    stamp()
    A(f's_cmp_lt_u32 s2, 112')
    A('s_cbranch_scc1 H_join')
    t0, t1 = VD + 6, VD + 7
    A(f'v_lshlrev_b32 v{t1}, 3, v{vN}')
    A(f'v_lshl_add_u32 v{t1}, v{vG}, 8, v{t1}')
    A(f'v_add_u32 v{t1}, {MB}, v{t1}')
    A('s_waitcnt vmcnt(0)')
    for k in range(6):
        A(f'ds_read_b128 v[{VA+4*k}:{VA+4*k+3}], v{MWA+3} offset:{2048 + 1024*k}')
    A('s_waitcnt lgkmcnt(2)')
    for k in range(6):
        for hh in range(2):
            A(f'ds_read_b64_tr_b16 v[{VB+4*k+2*hh}:{VB+4*k+2*hh+1}], v{t1} offset:{8192 + 1024*k + 128*hh}')
    A('s_waitcnt lgkmcnt(0)')
    for k in range(6):
        A(mf(VD, VA + 4*k, VB + 4*k, None if k == 0 else VD))
    A(f'v_bfe_u32 v{t0}, v{vN}, 1, 1')
    A(f'v_mul_u32_u24 v{t0}, 12288, v{t0}')
    A(f'v_and_b32 v{t1}, 1, v{vN}')
    A(f'v_lshl_add_u32 v{t0}, v{t1}, 10, v{t0}')
    A(f'v_lshrrev_b32 v{t1}, 2, v{vN}')
    A(f'v_lshl_add_u32 v{t0}, v{t1}, 4, v{t0}')
    A(f'v_lshl_add_u32 v{t0}, v{vG}, 8, v{t0}')
    A(f'v_cvt_pk_bf16_f32 v{VD+4}, v{VD}, v{VD+1}')
    A(f'v_cvt_pk_bf16_f32 v{VD+5}, v{VD+2}, v{VD+3}')
    A(f'buffer_store_dwordx2 v[{VD+4}:{VD+5}], v{t0}, s[{S_WS}:{S_WS+3}], s{sVO} offen sc1')
    A('s_branch H_join')
    A.label('M_comp'); A.reset()
    nstamp[0] = 1
    decode()
    scalar_setup()
    xaddr()
    A('s_waitcnt lgkmcnt(0)')
    srd(S_X, 4, 5, X_BYTES)
    stamp()
    A('s_barrier')
    chunk(0)
    A(f's_cmp_lt_u32 s2, {NMP}')
    A('s_cbranch_scc1 M_x1')
    chunk(1)
    chunk(2)
    A.label('M_x1')
    stamp()
    if OPT.get('tlb', '0') == '1':
        A(f's_add_u32 s90, s10, s{sXRW}'); A('s_addc_u32 s91, s11, 0')
        A.raw('  s_load_dword s83, s[90:91], 0')
        A.raw('  s_load_dword s83, s[14:15], 0x38000')
        A(f's_movk_i32 s{sOA+2}, 384')
    srds(); scalar_setup2()
    for t in setup() + oaddr() + masks(): A(t)
    xread_addr()
    A(f's_cmp_ge_u32 s2, {NMP}')
    A('s_cbranch_scc1 M_x2')
    A.skip('s_barrier')
    chunk(1)
    A.skip('s_barrier')
    chunk(2)
    A.label('M_x2')
    stamp()
    for j in range(3):
        A(f's_waitcnt vmcnt({8 - 4*j})')
        xread(j)
    row_soff(sT2, f's{sW}')
    A('s_waitcnt lgkmcnt(0)')
    stamp()
    A('s_barrier')
    ER = int(OPT.get('er', '1'))
    A(f's_cmp_lt_u32 s{sW}, {ER}')
    A('s_cbranch_scc1 M_er')
    for j in range(8):
        A(f's_add_u32 m0, s{sXL}, {16*PIECE[j] - 8*ROWB}')
        A(f'buffer_load_dwordx4 v{WF+j}, s[{S_X}:{S_X+3}], s{sT2} offen{KNT} lds')
    A.label('M_er')
    A('s_barrier')
    stamp()
    A(f's_cmp_lt_u32 s{sW}, 4')
    A('s_cbranch_scc1 M_xl')
    A('s_setprio 1')
    A('s_barrier')
    A('s_branch M_pa')
    A.label('M_xl'); A.reset()
    mshare(0, M1)
    A(f's_waitcnt vmcnt({M1 - MW})')
    A('s_barrier')
    mshare(M1, 18)
    A.label('M_pa'); A.reset()
    padat('A')
    stamp()
    bgA = []
    xrow = []
    for j in range(8):
        xrow.append(f's_add_u32 m0, s{sXL}, {16*PIECE[j]}\n s_nop 0\n buffer_load_dwordx4 v{WF+j}, s[{S_X}:{S_X+3}], s{sXR} offen{KNT} lds')
    def finA(sig, accb):
        out = []
        for G in range(2):
            for q in range(4):
                out.append(f'v_cvt_pk_bf16_f32 v{QP+24*G+4*sig+q}, v{accb+8*G+2*q}, v{accb+8*G+2*q+1}')
        return out
    def locA(f):
        if f < 60: return ('lds', vWAM, f*1024)
        if f < 62: return ('reg', WF + 4*(f-60))
        return ('lds', vWA1, (f-62)*1024)
    def bar():
        A('s_barrier')
        bgA[0:0] = xrow
    def bar4():
        A('s_waitcnt vmcnt(0)'); A('s_barrier')
        prio(3, 2)
    def b0b():
        A('s_waitcnt vmcnt(0)'); A('s_barrier')
    hA = {2: bar, 4: bar4}
    xm = {2*48+1: [f'ds_read_b128 v[{WF}:{WF+3}], v{vWAM} offset:{60*1024}'],
          2*49+1: [f'ds_read_b128 v[{WF+4}:{WF+7}], v{vWAM} offset:{61*1024}']}
    pend = gemm_phase(XQ, locA, finA, hooks=hA, bg=bgA, extra_mem=xm, ghooks={2*(4*MW - 6) - 1: b0b})
    assert not bgA
    stamp()
    padat('S')
    cond('M_l1', False, lambda: A.skip('s_barrier'))
    seq = []
    for (a1, a2) in ((0, 3), (1, 4), (2, 5), (7, 6), (8, 9)):
        for s in range(6):
            seq.append((a1, s)); seq.append((a2, s))
    def users(tau):
        u = []
        if tau <= 6: u.append((0, tau))
        if tau >= 3: u.append((1, tau - 3))
        return u
    def rdS(i):
        tau, s = seq[i]
        buf = RING + 4*(i % 8)
        return f'ds_read_b128 v[{buf}:{buf+3}], v{vAS + (s % 4)} offset:{tau*768 + (256 if s >= 4 else 0)}'
    D = 7
    for i in range(D): A(rdS(i))
    for t in pend: A(t)
    vM = [12, 13]; vX = [14, 15]
    A(f's_mov_b32 s{sT1}, 0xff7fffff')
    ms, mem, side = [], {}, []
    started = [False, False]; ndone = [0, 0]
    def xl(G):
        o = []
        for sw in ('v_permlane32_swap_b32', 'v_permlane16_swap_b32'):
            o += [f'v_mov_b32 v{vX[G]}, v{vM[G]}', f'{sw} v{vM[G]}, v{vX[G]}', f'v_max_f32 v{vM[G]}, v{vM[G]}, v{vX[G]}']
        return o + [f'v_mul_f32 v{vM[G]}, s{sSC}, v{vM[G]}']
    for i, (tau, s) in enumerate(seq):
        a = RING + 4*(i % 8)
        for (G, tl) in users(tau):
            r = sreg(G, tl)
            ms.append(mf(r, a, QP + 24*G + 4*s, r))
            if s == 5:
                e = len(ms) + 3
                side.append((e, f'v_max3_f32 v{vM[G]}, v{r}, v{r+1}, ' + (f'v{vM[G]}' if started[G] else f's{sT1}')))
                side.append((e, f'v_max3_f32 v{vM[G]}, v{r+2}, v{r+3}, v{vM[G]}'))
                started[G] = True; ndone[G] += 1
        if i % 12 == 11:
            for G in range(2):
                if ndone[G] == 7:
                    side += [(len(ms) + 3 + 2*k, t) for k, t in enumerate(xl(G))]; ndone[G] = 8
        if i + D < len(seq): mem[len(ms) - 1] = [rdS(i + D)]
    bgS = [f'v_mov_b32 v{PP+q}, 0' for q in (14, 15, 16, 17)] + [f'v_mov_b32 v{ONES+q}, 0x3f803f80' for q in range(4)]
    rest = stream(ms, mem, side, bg=bgS)
    assert not bgS
    stamp()
    prio(1, 0)
    for t in rest: A(t)
    def preg(G, tl): return PP + 16*G + 2*(tl + G)
    seqP = [(sig, u, h) for sig in range(6) for u in range(5) for h in range(2)]
    def rdP(i):
        sig, u, h = seqP[i]
        ct = 2*sig + h
        buf = RING + 4*(i % 8)
        return [f'ds_read_b64_tr_b16 v[{buf+2*hh}:{buf+2*hh+1}], v{vAP + (ct % 8)} offset:{(4*u+2*hh)*384 + (256 if ct >= 8 else 0)}' for hh in range(2)]
    DP = 6
    def b4L(): A.skip('s_barrier')
    B3AT, B4AT = int(OPT.get('b3', '1')), int(OPT.get('b4', '6'))
    if B3AT < 0: cond('M_e2', True, lambda: A.skip('s_barrier'))
    for tl in range(7):
        for G in range(2):
            r = sreg(G, tl)
            for k in range(4): A(f'v_fma_f32 v{r+k}, v{r+k}, s{sSC}, -v{vM[G]}')
            for k in range(4): A(f'v_exp_f32 v{r+k}, v{r+k}')
        for G in range(2):
            r = sreg(G, tl)
            p = preg(G, tl)
            A(f'v_cvt_pk_bf16_f32 v{p}, v{r}, v{r+1}')
            A(f'v_cvt_pk_bf16_f32 v{p+1}, v{r+2}, v{r+3}')
        if tl == B3AT: cond('M_e2', True, lambda: A.skip('s_barrier'))
        if tl >= B3AT:
            for t2 in range(0 if tl == max(B3AT, 0) else tl, tl + 1):
                if t2 % 2 == 0: A(f's_mov_b32 s{sT0}, {(10 + 2*t2)*1024}')
                for G in range(2):
                    r = sreg(G, t2)
                    A(f'buffer_load_dwordx4 v[{r}:{r+3}], v{vWA0}, s[{S_WS}:{S_WS+3}], s{sT0} offen offset:{1024*(2*(t2%2)+G)} sc1')
        if tl == 5:
            for i in range(DP):
                for t in rdP(i): A(t)
        if tl == B4AT: cond('M_l2', False, b4L)
    stamp()
    prio(3, 2)
    padat('P')
    ms, first, side, hk = [], [], [], {}
    def b5L():
        cond('M_l3', False, lambda: A.skip('s_barrier'))
    if int(OPT.get('b5', '1')) < 0: b5L()
    sums = [mf(vINV + 4*G, PP + 16*G + 4*u, ONES, None if u == 0 else vINV + 4*G) for u in range(4) for G in range(2)]
    for i, (sig, u, h) in enumerate(seqP):
        a = RING + 4*(i % 8)
        accb = ACC + 16*(sig & 1)
        first.append(len(ms))
        for G in range(2):
            uu = u - G
            if 0 <= uu <= 3:
                d = accb + 8*G + 4*h
                ms.append(mf(d, a, PP + 16*G + 4*uu, None if uu == 0 else d))
        if i % 10 in (1, 9) and 1 <= sig <= 4: ms.append(sums.pop(0))
        if i % 10 == 9:
            e = len(ms) - 1
            side += [(e + 4, t, e + 16) for t in finA(sig, accb)]
            if sig == int(OPT.get('b5', '1')): hk[e] = b5L
            if sig == int(OPT.get('pv', '3')) and OPT.get('pe') == '4': hk[e] = lambda: prio(3, 1)
    assert not sums
    mem = {}
    k = 0
    nrd = 2*(len(seqP) - DP)
    ngap = first[-1] - 5
    for j in range(DP, len(seqP)):
        for t in rdP(j):
            gp = (k * ngap) // nrd
            if j >= 8: gp = max(gp, first[j - 7] - 1)
            assert gp < first[j] - 3, (j, gp, first[j])
            mem.setdefault(gp, []).append(t); k += 1
    pend = stream(ms, mem, side, hk)
    A('s_waitcnt vmcnt(0)')
    stamp()
    def b4E():
        A.skip('s_barrier')
        A.skip(f's_mul_i32 s{sT0}, s{sW}, 9216')
        A.skip(f's_sub_u32 s{sT0}, s{sT0}, {4*9216 - 12288}')
        A.skip(f's_add_u32 s{sT4}, s{sT0}, {24*1024}')
        for blk in range(3):
            A.skip(f's_mov_b32 m0, s{sT0}')
            A.skip(f's_add_u32 s{sT0}, s{sT0}, 3072')
            for i in range(3):
                A.raw(f'  buffer_load_dwordx4 v{vWA0}, s[{S_WS}:{S_WS+3}], s{sT4} offen offset:{1024*i} sc1 lds')
            A.skip(f's_add_u32 s{sT4}, s{sT4}, 3072')
    cond('M_e3', True, b4E)
    def finE(sig, accb):
        out = []
        for G in range(2):
            for r in range(4):
                for h in range(2):
                    out.append(f'v_mul_f32 v{accb+8*G+4*h+r}, v{accb+8*G+4*h+r}, v{vINV+4*G+r}')
                o = OST + 8*G + 2*r
                out.append(f'v_cvt_pk_bf16_f32 v{o+(sig&1)}, v{accb+8*G+r}, v{accb+8*G+4+r}')
                if sig & 1:
                    out.append(f'buffer_store_dwordx2 v[{o}:{o+1}], v{vOA+4*G+r}, s[{S_OUT}:{S_OUT+3}], 0 offen offset:{128*(sig>>1)}{ONT[sig>>1]}')
        return out
    def locE(f):
        if f < 10: return ('lds', vWA1, f*1024)
        if f < 24: return ('reg', sreg((f-10) % 2, (f-10) // 2))
        return ('lds', vWA0, (f-24)*1024)
    def b5E():
        def body():
            A.raw('  s_waitcnt vmcnt(0)'); A.skip('s_barrier')
        cond('M_e4', True, body)
        padat('O')
        stamp()
    for t in pend: A(t)
    bgE = [f'v_rcp_f32 v{vINV+q}, v{vINV+q}' for q in range(8)]
    hE = {}
    if OPT.get('pe') == '1': hE = {3: lambda: prio(1, 0)}
    if OPT.get('pe') == '2': hE = {2: lambda: prio(1, 2), 4: lambda: prio(1, 0)}
    if OPT.get('pe') == '3': hE = {4: lambda: prio(1, 2)}
    if OPT.get('pe') == '4':
        hE = {2: lambda: prio(2, 0), 4: lambda: prio(1, 0)}
        prio(3, 0)
    pend = gemm_phase(QP, locE, finE, swap=True, bg=bgE, hooks=hE, pace=int(OPT.get('pace', '4')), D=int(OPT.get('de', '4')), ghooks={2*(24 - int(OPT.get('de', '4'))) - 1: b5E})
    padat('Z')
    for t in pend: A(t)
    if STAMP:
        stamp()
        A('s_waitcnt vmcnt(0)')
        stamp(1)
        write_stamps()
    if 'pad' in OPT:
        A('s_waitcnt vmcnt(0)')
        A.label('PADL')
        A.raw('  s_memrealtime s[98:99]')
        A.raw('  s_waitcnt lgkmcnt(0)')
        A('s_sub_u32 s98, s98, s96')
        A(f's_cmp_lt_u32 s98, {OPT["pad"]}')
        A('s_cbranch_scc1 PADL')
    A('s_endpgm')

    A.label('M_helper'); A.reset()
    nstamp[0] = 2
    A.label('H_join'); A.reset()
    stamp()
    decode(); scalar_setup(); scalar_setup2()
    row_addrs(WF, '0')
    row_addrs(vAP, '8')
    def rows(lst):
        for i in lst:
            row_soff(sT1, str(i))
            b = vAP if i & 1 else WF
            for j in range(8):
                a = b + j
                if i & 6:
                    a = 64 + j
                    A(f'v_xor_b32 v{a}, {16*(i & 6)}, v{b+j}')
                A(f's_mov_b32 m0, {i*ROWB + 16*PIECE[j]}')
                A(f'buffer_load_dwordx4 v{a}, s[{S_X}:{S_X+3}], s{sT1} offen{KNT} lds')
            if len(A.vm) >= 56: A('s_waitcnt vmcnt(40)')
    A('s_barrier')
    if ER == 0: rows([0, 8])
    poll('H_pollM', 128)
    A(f's_lshr_b32 s{sT0}, s2, 3')
    A(f's_mul_i32 s{sT0}, s{sT0}, 2304')
    A(f's_add_u32 s{sT0}, s{sT0}, {MOFF}')
    for i in range(3):
        A(f'buffer_load_dwordx4 v[{80+4*i}:{83+4*i}], v{vWA0}, s[{S_WS}:{S_WS+3}], s{sT0} offen offset:{1024*i} sc1')
    stamp()
    A('s_barrier')
    stamp()
    mshare(0, M1)
    A(f's_waitcnt vmcnt({M1 - MW})')
    A('s_barrier')
    stamp()
    mshare(M1, 18)
    A('v_mov_b32 v192, 1'); A('v_mov_b32 v193, 0')
    A('s_waitcnt vmcnt(0)')
    A(f's_cmp_lt_u32 s2, 112')
    A('s_cbranch_scc1 H_nov2')
    signal(4, 143, 'H_p2')
    A.label('H_nov2'); A.reset()
    if ER: rows([0, 8] + list(range(1, ER)))
    A('s_barrier')
    stamp()
    A('s_barrier')
    A('s_waitcnt vmcnt(0)')
    publish(4, 143, 'H_p2')
    stamp()
    A('s_barrier')
    rows([16, 17, 18, 19])
    A('s_waitcnt vmcnt(0)')
    stamp()
    poll('H_pollV', 132)
    A(f's_lshr_b32 s{sT0}, s2, 3')
    A(f's_mul_i32 s{sT0}, s{sT0}, 2304')
    for i in range(3):
        A(f'buffer_load_dwordx4 v[{80+4*i}:{83+4*i}], v{vWA0}, s[{S_WS}:{S_WS+3}], s{sT0} offen offset:{1024*i} sc1')
    stamp()
    A('s_barrier')
    def wfr(src0, n, lds0):
        for i in range(n):
            if i % 4 == 0:
                A(f's_mov_b32 m0, {lds0 + i*1024}')
                A(f's_mov_b32 s{sT4}, {(src0 + i)*1024}')
            A(f'buffer_load_dwordx4 v{vWA0}, s[{S_WS}:{S_WS+3}], s{sT4} offen offset:{1024*(i%4)} sc1 lds')
    wfr(0, 10, SPARE)
    PF = int(OPT.get('pf', '0'))
    if PF:
        A(f'v_lshrrev_b32 v80, 2, v{vL}')
        A('v_min_u32 v80, 13, v80')
        A(f'v_add_u32 v80, s{sTC}, v80')
        A(f'v_lshl_add_u32 v81, v80, 1, s{sALC}')
        A('v_add_u32 v82, 112, v80')
        A('v_med3_i32 v80, v81, v80, v82')
        A('v_mul_u32_u24 v80, 384, v80')
        A(f'v_and_b32 v81, 3, v{vL}')
        A('v_min_u32 v81, 2, v81')
        A('v_lshl_add_u32 v80, v81, 7, v80')
        for r in range(14):
            A(f's_add_u32 s{sT0}, s{sTR}, {r}')
            A(f's_lshl_b32 s{sT1}, s{sT0}, 1')
            A(f's_add_i32 s{sT1}, s{sT1}, s{sALR}')
            A(f's_max_i32 s{sT1}, s{sT1}, s{sT0}')
            A(f's_add_i32 s{sT0}, s{sT0}, 112')
            A(f's_min_i32 s{sT1}, s{sT1}, s{sT0}')
            A(f's_mul_i32 s{sT1}, s{sT1}, 86016')
            for h in range(PF):
                A.raw(f'  buffer_load_dword v{84+h}, v80, s[{S_OUT}:{S_OUT+3}], s{sT1} offen offset:{64*h}')
        A(f's_waitcnt vmcnt({14*PF})')
    else:
        A('s_waitcnt vmcnt(0)')
    stamp()
    A('s_barrier')
    wfr(24, 12, 0)
    A('s_waitcnt vmcnt(0)')
    stamp()
    A('s_barrier')
    if STAMP:
        stamp(1)
        write_stamps()
    A.label('M_done')
    A('s_endpgm')
    A.label('CODE_END')

gen_main()
A.raw('.section .rodata,"a"')
A.raw('.p2align 6')
A.raw(f'.amdhsa_kernel {NAME}')
A.raw('  .amdhsa_next_free_vgpr 256')
A.raw('  .amdhsa_next_free_sgpr 102')
A.raw('  .amdhsa_accum_offset 256')
A.raw('  .amdhsa_group_segment_fixed_size 0')
A.raw('  .amdhsa_kernarg_size 48')
A.raw('  .amdhsa_user_sgpr_count 2')
A.raw('  .amdhsa_user_sgpr_kernarg_segment_ptr 1')
A.raw('  .amdhsa_system_sgpr_workgroup_id_x 1')
A.raw('.end_amdhsa_kernel')
open(OUT, 'w').write(A.text())
print('instr', A.n_inst, 'nops', A.nops, 'maxv', A.maxv)
```

```python
import sys, struct
sys.path.insert(0, 'gen')
from asmlib import Asm

OUT = sys.argv[1] if len(sys.argv) > 1 else 'standalone__neighborhood_nat__vision.s'
OPT = dict(a.split('=') if '=' in a else (a, '1') for a in sys.argv[2:])
STAMP = 'stamp' in OPT
XNT = ' nt' if OPT.get('xnt', '0') == '1' else ''
KNT = ' nt' if OPT.get('knt', '0') == '1' else ''
ONT = [{'0': '', '1': ' nt', '2': ' sc1', '3': ' sc0 sc1', '4': ' sc0 sc1 nt'}[c] for c in (OPT.get('ont', '2') * 3)[:3]]
NAME = 'standalone__neighborhood_nat__vision_kernel'

X_BYTES = 19267584
WS_BYTES = 268435456
ROWB = 7680
MB = 90112
SPARE = 153600
MOFF = 0x20000
NMP = 36
GAP = 73728
def f32bits(x): return struct.unpack('<I', struct.pack('<f', x))[0]
SCALE = f32bits(192 ** -0.5 * 1.4426950408889634)
NEGINF = 0xff800000
PIECE = [0, 64, 128, 192, 256, 320, 384, 416]

A = Asm()
hdr = open('standalone__neighborhood_nat__vision.s.ref').read().split('\n')
for ln in hdr:
    if ln.startswith('; @launch'): break
    A.raw(ln)
A.raw('; @launch grid=(256,1,1) block=(512,1,1) lds=163840')
A.raw('.amdgcn_target "amdgcn-amd-amdhsa--gfx950"')
A.raw('.text')

def srd(d, lo, hi, nbytes):
    A(f's_mov_b32 s{d}, s{lo}'); A(f's_and_b32 s{d+1}, s{hi}, 0xffff')
    A(f's_mov_b32 s{d+2}, {nbytes}'); A(f's_mov_b32 s{d+3}, 0x00020000')
def mf(d, a, b, c):
    cs = '0' if c is None else f'v[{c}:{c+3}]'
    return f'v_mfma_f32_16x16x32_bf16 v[{d}:{d+3}], v[{a}:{a+3}], v[{b}:{b+3}], {cs}'

S_X, S_OUT, S_WS, S_W, S_WO, S_DBG = 16, 20, 24, 28, 32, 36
sW, sPR, sPC, sTR, sTC = 40, 41, 42, 43, 44
sKR0, sKC0B = 45, 46
sLOR, sHIR, sSHR, sLOC, sHIC = 47, 48, 49, 50, 51
sBASE, sSTRIP, sNEG = 52, 53, 54
sT0, sT1, sT2, sT3, sT4, sT5 = 55, 56, 57, 58, 59, 60
sALR, sALC, sSC = 61, 62, 63
sST = 64
sXR, sXL = 100, 101
sOA = 88
sB0, sF = 92, 93
sM1, sM2 = 0, 10
sVT, sVO = 94, 95
vL, vG, vN = 1, 2, 3
vT = 4
vR0, vR3, vCB = 12, 13, 14
XQ = 16
PP = 16
vOA = 4
vINV = 56
SACC = 64
OST = 16
W1 = 64
ONES = 48
QP = 120
ACC = 168
RING = 200
WF = 232
vAS = 240
vAP = 244
vWA0, vWA1, vWAM = 252, 253, 254
vSW, vSR = 255, 199
vWD = RING
MBQ = 64
MACC = 136
MPK = 184
MWA = 192

nstamp = [0]
def stamp(real=None):
    if not STAMP: return
    i = nstamp[0]; nstamp[0] += 1
    assert i < 14
    A.raw(f'  s_mem{"real" if "rt" in OPT else ""}time s[{sST+2*i}:{sST+1+2*i}]')
    if real is not None:
        A.raw(f'  s_memrealtime s[{96+2*real}:{97+2*real}]')
def write_stamps():
    n = nstamp[0]
    A('s_waitcnt lgkmcnt(0)')
    A(f'v_mov_b32 v{RING}, 0')
    if 'dbg' in OPT:
        lbl = f'WS_skip{n}'
        A(f's_cmp_lg_u32 s2, {OPT["dbg"].split(",")[0]}')
        A(f's_cbranch_scc1 {lbl}')
        A(f's_cmp_lg_u32 s{sW}, {OPT["dbg"].split(",")[1]}')
        A(f's_cbranch_scc1 {lbl}')
        for i in range(1, n):
            A(f's_sub_u32 s{sT0}, s{sST+2*i}, s{sST}')
            A(f'v_writelane_b32 v{RING}, s{sT0}, {i}')
        A(f's_sub_u32 s{sT0}, s98, s96')
        A(f'v_writelane_b32 v{RING}, s{sT0}, 15')
        srd(S_DBG, 12, 13, 256)
        A(f'v_lshlrev_b32 v{RING+1}, 2, v{vL}')
        A('s_mov_b64 exec, 0xfffe')
        A(f'buffer_store_dword v{RING}, v{RING+1}, s[{S_DBG}:{S_DBG+3}], 0 offen')
        A.label(lbl)
        return
    for i in range(n):
        A(f'v_writelane_b32 v{RING}, s{sST+2*i}, {i}')
    A(f'v_writelane_b32 v{RING}, s96, 14')
    A(f'v_writelane_b32 v{RING}, s98, 15')
    A(f's_lshl_b32 s{sT0}, s2, 3')
    A(f's_add_u32 s{sT0}, s{sT0}, s{sW}')
    A(f's_lshl_b32 s{sT0}, s{sT0}, 6')
    A(f's_add_u32 s{sT0}, s{sT0}, 0x100000')
    A(f'v_lshlrev_b32 v{RING+1}, 2, v{vL}')
    A('s_mov_b64 exec, 0xffff')
    A(f'buffer_store_dword v{RING}, v{RING+1}, s[{S_WS}:{S_WS+3}], s{sT0} offen')

def row_addrs(b, sF, A=A):
    for j in (0, 1, 2, 7):
        A(f'v_add_u32 v{vT}, {PIECE[j]}, v{vL}')
        A(f'v_xor_b32 v{vT}, {sF}, v{vT}')
        A(f'v_mul_u32_u24 v{vT+1}, 2731, v{vT}')
        A(f'v_lshrrev_b32 v{vT+1}, 16, v{vT+1}')
        A(f'v_mul_u32_u24 v{vT+1}, 384, v{vT+1}')
        A(f'v_lshl_add_u32 v{vT}, v{vT}, 4, v{vT+1}')
        A(f'v_add_u32 v{b+j}, s{sKC0B}, v{vT}')
        if j < 3:
            A(f'v_add_u32 v{b+j+3}, {8*768}, v{b+j}')
            if j == 0: A(f'v_add_u32 v{b+6}, {16*768}, v{b}')
            A(f'v_max_i32 v{b+j}, 0, v{b+j}')
def row_soff(dst, srow):
    A(f's_add_i32 s{dst}, s{sKR0}, {srow}')
    A(f's_lshl_b32 s{dst}, s{dst}, 1')
    A(f's_add_i32 s{dst}, s{dst}, s{sPR}')
    A(f's_max_i32 s{dst}, s{dst}, 0')
    A(f's_min_i32 s{dst}, s{dst}, 223')
    A(f's_mul_i32 s{dst}, s{dst}, 86016')

def stream(ms, mem, side, hooks=None, cap=2, bg=None, flush=(), paced=None):
    side = [x if len(x) == 3 else (x[0], x[1], 10**9) for x in side]
    bg = bg if bg is not None else []
    paced = list(paced or [])
    nside = len(side)
    def slots(lo, hi):
        return sum(max(0, cap - len(mem.get(k, []))) for k in range(lo, hi + 1))
    for i, m in enumerate(ms):
        assert not (side and side[0][2] < i), ('deadline missed', side[0], i)
        A(m)
        if i + 1 < len(ms) and not (hooks and i in hooks): A.prewait(ms[i+1])
        n = 0
        for t in mem.get(i, []):
            A(t); n += 1
        if paced and not mem.get(i) and paced[0][0] <= i and nside - len(side) >= paced[0][2]:
            assert nside - len(side) <= paced[0][3], ('paced item too late', paced[0])
            A(paced.pop(0)[1]); n += 1
        c = cap
        if side and side[0][2] < len(ms):
            dl = side[0][2]
            if sum(1 for x in side if x[2] == dl) > slots(i, dl): c = cap + 1
        while side and n < c and side[0][0] <= i:
            A(side.pop(0)[1]); n += 1
        while bg and n < cap:
            A(bg.pop(0)); n += 1
        if i in flush:
            while side and side[0][0] <= i + 4: A(side.pop(0)[1])
        if hooks and i in hooks: hooks[i]()
    assert not paced
    return [x[1] for x in side]

def gemm_phase(B, loc, finish, swap=False, hooks=None, D=6, gate=None, bg=None, extra_mem=None, ghooks=None, flush=(), pace=0):
    def rd(f):
        l = loc(f)
        if l[0] == 'lds':
            buf = RING + 4*(f % 8)
            return [f'ds_read_b128 v[{buf}:{buf+3}], v{l[1]} offset:{l[2]}']
        return []
    ms, mem, side, hk, paced = [], dict(extra_mem or {}), [], dict(ghooks or {}), []
    for f in range(D):
        for t in rd(f): A(t)
    for f in range(72):
        sig, s, h = f // 12, (f % 12) // 2, f % 2
        l = loc(f)
        a = RING + 4*(f % 8) if l[0] == 'lds' else l[1]
        accb = ACC + 16*(sig & 1)
        for G in range(2):
            d = accb + 8*G + 4*h
            b = B + 24*G + 4*s
            ms.append(mf(d, b, a, None if s == 0 else d) if swap else mf(d, a, b, None if s == 0 else d))
        fn = f + D
        if fn < 72 and not (gate is not None and f < gate <= fn):
            mem[2*f] = rd(fn)
        if f % 12 == 11:
            k = 0
            for t in finish(sig, accb):
                if pace and t.startswith('buffer_store') and sig < 5:
                    paced.append((2*f + 1 + 6 + pace*k, t, len(side), len(side) + 23)); k += 1
                else:
                    side.append((2*f + 1 + 3, t, 2*f + 1 + 24))
            if hooks and sig in hooks:
                def mk(sig=sig, f=f):
                    def h():
                        hooks[sig]()
                        if gate is not None and f + 1 == gate:
                            for k in range(gate, gate + D):
                                for t in rd(k): A(t)
                    return h
                hk[2*f + 1] = mk()
    return stream(ms, mem, side, hk, bg=bg, flush=flush, paced=paced)

def poll(label, off):
    A(f'v_mov_b32 v{vT+2}, 0')
    A(f's_mov_b32 s{sT4}, 0')
    A('s_mov_b64 exec, 1')
    A.label(label)
    A(f'buffer_load_dword v{vT+3}, v{vT+2}, s[{S_DBG}:{S_DBG+3}], 0 offen offset:{off} sc1')
    A('s_waitcnt vmcnt(0)')
    A(f'v_cmp_eq_u32 vcc, 0, v{vT+3}')
    A(f's_add_u32 s{sT4}, s{sT4}, 1')
    A(f's_cmp_gt_u32 s{sT4}, 200000')
    A(f's_cbranch_scc1 {label}_x')
    A('s_cmp_lg_u64 vcc, 0')
    A(f's_cbranch_scc0 {label}_x')
    A('s_sleep 2')
    A(f's_branch {label}')
    A.label(label + '_x')
    A('s_mov_b64 exec, -1')

def cond(lbl, isE, body):
    A(f's_cmp_lt_u32 s{sW}, 4' if isE else f's_cmp_ge_u32 s{sW}, 4')
    A(f's_cbranch_scc1 {lbl}')
    body()
    A.label(lbl)

nprio = [0]
def prio(e, l):
    nprio[0] += 1
    A(f's_setprio {l}')
    if e != l: cond(f'M_pr{nprio[0]}', True, lambda: A.skip(f's_setprio {e}'))

npad = [0]
def padat(name):
    if OPT.get('padpos') != name: return
    npad[0] += 1
    A.label(f'PADM{npad[0]}')
    A.raw('  s_memrealtime s[98:99]')
    A.raw('  s_waitcnt lgkmcnt(0)')
    A.raw('  s_sub_u32 s98, s98, s96')
    A.raw(f'  s_cmp_lt_u32 s98, {OPT["padt"]}')
    A.raw(f'  s_cbranch_scc1 PADM{npad[0]}')

def gen_main():
    A.raw(f'.globl {NAME}'); A.raw('.p2align 8'); A.raw(f'.type {NAME},@function')
    A.raw(f'{NAME}:'); A.reset()
    A('s_cmp_ge_u32 s2, 256')
    A('s_cbranch_scc1 M_done')
    stamp(0)
    if 'pad' in OPT or 'padpos' in OPT: A.raw('  s_memrealtime s[96:97]')
    A('s_load_dwordx8 s[4:11], s[0:1], 0')
    A('s_load_dwordx4 s[12:15], s[0:1], 32')
    A(f'v_lshrrev_b32 v{vT}, 6, v0')
    A(f'v_and_b32 v{vL}, 63, v0')
    A(f'v_readfirstlane_b32 s{sW}, v{vT}')
    A(f'v_lshrrev_b32 v{vG}, 4, v{vL}')
    A(f'v_and_b32 v{vN}, 15, v{vL}')
    A(f'v_lshlrev_b32 v{vWA0}, 4, v{vL}')
    if OPT.get('cpf', '1') != '0':
        A('s_getpc_b64 s[16:17]')
        A('s_and_b32 s16, s16, -256')
        A('s_and_b32 s17, s17, 0xffff')
        A('s_mov_b32 s18, CODE_END-' + NAME)
        A('s_mov_b32 s19, 0x00020000')
        A(f's_lshr_b32 s{sT0}, s2, 3')
        A(f's_lshl_b32 s{sT0}, s{sT0}, 10')
        A(f's_cmp_lg_u32 s{sW}, 3')
        A('s_cbranch_scc1 M_nocpf')
        A.raw(f'  buffer_load_dwordx4 v[{MACC}:{MACC+3}], v{vWA0}, s[16:19], s{sT0} offen')
        A.label('M_nocpf')
    def decode():
        A(f's_and_b32 s{sT0}, s2, 7')
        A(f's_lshr_b32 s{sT1}, s2, 3')
        MAP = OPT.get('map', '0')
        if MAP == '0':
            A(f's_lshr_b32 s{sPR}, s{sT0}, 2')
            A(f's_bfe_u32 s{sPC}, s{sT0}, 0x10001')
            A(f's_and_b32 s{sT0}, s{sT0}, 1')
            A(f's_lshl_b32 s{sT0}, s{sT0}, 2')
            A(f's_lshr_b32 s{sTR}, s{sT1}, 3')
            A(f's_add_u32 s{sTR}, s{sTR}, s{sT0}')
            A(f's_and_b32 s{sTC}, s{sT1}, 7')
        elif MAP == '1':
            A(f's_mov_b32 s{sTR}, s{sT0}')
            A(f's_and_b32 s{sPR}, s{sT1}, 1')
            A(f's_bfe_u32 s{sPC}, s{sT1}, 0x10001')
            A(f's_lshr_b32 s{sTC}, s{sT1}, 2')
        elif MAP == '2':
            A(f's_lshr_b32 s{sPR}, s{sT0}, 2')
            A(f's_and_b32 s{sT0}, s{sT0}, 3')
            A(f's_lshl_b32 s{sT0}, s{sT0}, 1')
            A(f's_lshr_b32 s{sTR}, s{sT1}, 4')
            A(f's_add_u32 s{sTR}, s{sTR}, s{sT0}')
            A(f's_and_b32 s{sPC}, s{sT1}, 1')
            A(f's_bfe_u32 s{sTC}, s{sT1}, 0x30001')
        else:
            A(f's_and_b32 s{sPR}, s{sT1}, 1')
            A(f's_bfe_u32 s{sPC}, s{sT1}, 0x10001')
            A(f's_and_b32 s{sTR}, s{sT0}, 6')
            A(f's_lshr_b32 s{sT2}, s{sT1}, 4')
            A(f's_add_u32 s{sTR}, s{sTR}, s{sT2}')
            A(f's_and_b32 s{sT0}, s{sT0}, 1')
            A(f's_lshl_b32 s{sT0}, s{sT0}, 2')
            A(f's_bfe_u32 s{sTC}, s{sT1}, 0x20002')
            A(f's_add_u32 s{sTC}, s{sTC}, s{sT0}')
        A(f's_mul_i32 s{sTR}, s{sTR}, 14')
        A(f's_mul_i32 s{sTC}, s{sTC}, 14')
    def srds():
        srd(S_WS, 14, 15, WS_BYTES)
        srd(S_OUT, 10, 11, X_BYTES)
        srd(S_DBG, 12, 13, 256)
    def scalar_setup():
        A(f's_mul_i32 s{sALR}, s{sPR}, 13')
        A(f's_add_i32 s{sALR}, s{sALR}, -6')
        A(f's_mul_i32 s{sALC}, s{sPC}, 13')
        A(f's_add_i32 s{sALC}, s{sALC}, -6')
        A(f's_cmp_ge_u32 s{sW}, 4')
        A(f's_cselect_b32 s{sSTRIP}, -4, 3')
        A(f's_add_i32 s{sSTRIP}, s{sSTRIP}, s{sW}')
        A(f's_lshl_b32 s{sSTRIP}, s{sSTRIP}, 1')
        A(f's_add_u32 s{sOA}, s{sTR}, s{sSTRIP}')
        A(f's_mov_b32 s{sOA+1}, 86016')
        A(f's_movk_i32 s{sOA+2}, 384')
    def scalar_setup2():
        A(f's_mul_i32 s{sT0}, s{sPR}, 6')
        A(f's_add_i32 s{sKR0}, s{sTR}, s{sT0}')
        A(f's_add_i32 s{sKR0}, s{sKR0}, -6')
        A(f's_cmp_eq_i32 s{sKR0}, -6')
        A(f's_cselect_b32 s{sLOR}, 6, 0')
        A(f's_cmp_eq_i32 s{sKR0}, 98')
        A(f's_cselect_b32 s{sHIR}, 7, 13')
        A(f's_cselect_b32 s{sSHR}, 2, 0')
        A(f's_sub_i32 s{sKR0}, s{sKR0}, s{sSHR}')
        A(f's_mul_i32 s{sT0}, s{sPC}, 6')
        A(f's_add_i32 s{sT1}, s{sTC}, s{sT0}')
        A(f's_add_i32 s{sT1}, s{sT1}, -6')
        A(f's_cmp_eq_i32 s{sT1}, -6')
        A(f's_cselect_b32 s{sLOC}, 6, 0')
        A(f's_cmp_eq_i32 s{sT1}, 98')
        A(f's_cselect_b32 s{sHIC}, 7, 13')
        A(f's_lshl_b32 s{sT1}, s{sT1}, 1')
        A(f's_add_i32 s{sT1}, s{sT1}, s{sPC}')
        A(f's_mul_i32 s{sKC0B}, s{sT1}, 384')
        A(f's_max_i32 s{sB0}, s{sSTRIP}, s{sLOR}')
        A(f's_min_i32 s{sB0}, s{sB0}, s{sHIR}')
        A(f's_and_b32 s{sB0}, s{sB0}, -2')
        A(f's_add_u32 s{sBASE}, s{sB0}, s{sSHR}')
        A(f's_mov_b32 s{sNEG}, {NEGINF}')
        A(f's_mov_b32 s{sSC}, {SCALE}')
        A(f's_and_b32 s{sF}, s{sW}, 1')
        A(f's_lshl_b32 s{sF}, s{sF}, 3')
        A(f's_and_b32 s{sT1}, s{sW}, 6')
        A(f's_or_b32 s{sF}, s{sF}, s{sT1}')
        A(f's_add_u32 s{sT1}, s{sW}, 8')
        row_soff(sXR, f's{sT1}')
        A(f's_mul_i32 s{sXL}, s{sT1}, {ROWB}')

    def sreg(G, tl): return SACC + 28*G + 4*tl
    TM = [197, 198, 199, 255, 0]
    def pixaddr(dst, sel, lane):
        t0, t1, t2, t3, t4 = TM
        o = [f'v_lshrrev_b32 v{t0}, 1, v{sel}', f'v_and_b32 v{t3}, 1, v{sel}', f'v_add_u32 v{t0}, s{sOA}, v{t0}',
             f'v_lshl_add_u32 v{t4}, v{t3}, 2, s{sTC}',
             f'v_lshl_add_u32 v{t1}, v{t0}, 1, s{sALR}', f'v_add_u32 v{t2}, 112, v{t0}', f'v_lshlrev_b32 v{t3}, 30, v{t3}',
             f'v_med3_i32 v{t0}, v{t1}, v{t0}, v{t2}', f'v_mul_lo_u32 v{t0}, v{t0}, s{sOA+1}'] + lane(t0)
        for G in range(2):
            for r in range(4):
                d = dst(G, r)
                o += [f'v_add_u32 v{d}, {7*G+r}, v{t4}', f'v_lshl_add_u32 v{t1}, v{d}, 1, s{sALC}',
                      f'v_add_u32 v{t2}, 112, v{d}', f'v_med3_i32 v{d}, v{t1}, v{d}, v{t2}',
                      f'v_mad_u32_u24 v{d}, v{d}, s{sOA+2}, v{t0}']
                if r == 3: o += [f'v_add_u32 v{d}, v{d}, v{t3}']
        return o
    def oaddr(): return pixaddr(lambda G, r: vOA + 4*G + r, vG, lambda t: [f'v_lshl_add_u32 v{t}, v{vN}, 3, v{t}'])
    vXS = ACC
    sXRW, sXB = 84, 86
    def xaddr():
        A(f'v_lshrrev_b32 v{vT}, 3, v{vL}')
        A(f'v_and_b32 v{vT+1}, 7, v{vL}')
        A(f'v_and_b32 v{vT+2}, 6, v{vT}')
        A(f'v_xor_b32 v{vT+1}, v{vT+1}, v{vT+2}')
        A(f'v_add_u32 v{vT+2}, 1, v{vT}')
        A(f'v_lshrrev_b32 v{vT+2}, 3, v{vT+2}')
        A(f'v_lshlrev_b32 v{vT+2}, 26, v{vT+2}')
        A(f'v_or_b32 v{vT+1}, v{vT+1}, v{vT+2}')
        A(f'v_add_u32 v{vT}, s{sTC}, v{vT}')
        for G in range(2):
            if G: A(f'v_add_u32 v{vT}, 7, v{vT}')
            A(f'v_lshl_add_u32 v{vT+2}, v{vT}, 1, s{sALC}')
            A(f'v_add_u32 v{vT+3}, 112, v{vT}')
            A(f'v_med3_i32 v{vT+2}, v{vT+2}, v{vT}, v{vT+3}')
            A(f'v_mul_u32_u24 v{vT+2}, 384, v{vT+2}')
            A(f'v_lshl_add_u32 v{vXS+G}, v{vT+1}, 4, v{vT+2}')
        for rb in range(2):
            A(f's_add_u32 s{sT0}, s{sOA}, {rb}')
            A(f's_lshl_b32 s{sT1}, s{sT0}, 1')
            A(f's_add_i32 s{sT1}, s{sT1}, s{sALR}')
            A(f's_max_i32 s{sT1}, s{sT1}, s{sT0}')
            A(f's_add_i32 s{sT0}, s{sT0}, 112')
            A(f's_min_i32 s{sT1}, s{sT1}, s{sT0}')
            A(f's_mul_i32 s{sXRW+rb}, s{sT1}, 86016')
        A(f's_lshl_b32 s{sXB}, s{sSTRIP}, 12')
        A(f's_lshl_b32 s{sXB+1}, s{sSTRIP}, 11')
    def xload(i):
        j, G, rb = i // 4, (i >> 1) & 1, i & 1
        off = 512 + (j*4 + G*2 + rb)*1024 - 128*j if j < 2 else 61440 + (G*2 + rb)*1024 - 256
        A.skip(f's_add_u32 m0, s{sXB + j//2}, {off}')
        A.skip('s_nop 0')
        A.raw(f'  buffer_load_dwordx4 v{vXS+G}, s[{S_X}:{S_X+3}], s{sXRW+rb} offen offset:{128*j}{XNT} lds')
    def chunk(c):
        for i in range(4*c, 4*c + 4): xload(i)
    def xread_addr():
        A(f'v_and_b32 v{vXS+2}, 6, v{vN}')
        A(f'v_xor_b32 v{vXS+2}, v{vXS+2}, v{vG}')
        A(f'v_lshlrev_b32 v{vXS+6}, 7, v{vN}')
        A(f'v_xor_b32 v{vXS+3}, 4, v{vXS+2}')
        A(f'v_lshl_add_u32 v{vXS+2}, v{vXS+2}, 4, v{vXS+6}')
        A(f'v_lshl_add_u32 v{vXS+3}, v{vXS+3}, 4, v{vXS+6}')
        for q in range(2):
            A(f'v_add_u32 v{vXS+4+q}, s{sXB+1}, v{vXS+2+q}')
            A(f'v_add_u32 v{vXS+2+q}, s{sXB}, v{vXS+2+q}')
    def xread(j):
        for G in range(2):
            for q in range(2):
                r = XQ + 24*G + 4*(2*j + q)
                if j < 2: A(f'ds_read_b128 v[{r}:{r+3}], v{vXS+2+q} offset:{512 + (4*j + 2*G)*1024}')
                else: A(f'ds_read_b128 v[{r}:{r+3}], v{vXS+4+q} offset:{61440 + 2*G*1024}')
    def setup():
        B = Asm()
        def Fv(dst, row):
            B(f'v_and_b32 v{dst}, 1, v{row}')
            B(f'v_lshlrev_b32 v{dst}, 3, v{dst}')
            B(f'v_and_or_b32 v{dst}, v{row}, 6, v{dst}')
        B(f'v_lshrrev_b32 v{vT}, 3, v{vN}')
        B(f'v_add_u32 v{vT}, s{sSTRIP}, v{vT}')
        B(f'v_max_i32 v{vT}, s{sLOR}, v{vT}')
        B(f'v_min_i32 v{vT}, s{sHIR}, v{vT}')
        B(f'v_subrev_u32 v{vT}, s{sB0}, v{vT}')
        B(f'v_and_b32 v{vT+1}, 1, v{vG}')
        B(f'v_sub_u32 v{vT+2}, v{vT+1}, v{vT}')
        B(f'v_ashrrev_i32 v{vR0}, 31, v{vT+2}')
        B(f'v_and_b32 v{vR0}, s{sNEG}, v{vR0}')
        B(f'v_sub_u32 v{vT+2}, v{vT}, v{vT+1}')
        B(f'v_ashrrev_i32 v{vR3}, 31, v{vT+2}')
        B(f'v_and_b32 v{vR3}, s{sNEG}, v{vR3}')
        B(f'v_and_b32 v{vT}, 7, v{vN}')
        B(f'v_lshrrev_b32 v{vT+1}, 1, v{vG}')
        B(f'v_subrev_u32 v{vT+3}, 7, v{vT}')
        B(f'v_ashrrev_i32 v{vT+3}, 31, v{vT+3}')
        B(f'v_and_b32 v{vT+3}, 0x7f, v{vT+3}')
        for G in range(2):
            B(f'v_add_u32 v{vT+2}, {7*G}, v{vT}')
            B(f'v_max_i32 v{vT+2}, s{sLOC}, v{vT+2}')
            B(f'v_min_i32 v{vT+2}, s{sHIC}, v{vT+2}')
            B(f'v_lshlrev_b32 v{vT+2}, v{vT+2}, v{vT+3}')
            B(f'v_lshrrev_b32 v{vT+2}, v{vT+1}, v{vT+2}')
            B(f'v_not_b32 v{vCB+G}, v{vT+2}')
        B(f'v_add_u32 v{vT}, s{sBASE}, v{vT}')
        Fv(vT+1, vT)
        B(f'v_mul_u32_u24 v{vT}, {ROWB}, v{vT}')
        B(f'v_lshrrev_b32 v{vT+2}, 3, v{vN}')
        B(f'v_mul_u32_u24 v{vT+2}, 24, v{vT+2}')
        B(f'v_add_u32 v{vT+2}, v{vT+2}, v{vG}')
        for s in range(4):
            B(f'v_add_u32 v{vT+3}, {4*s}, v{vT+2}')
            B(f'v_xor_b32 v{vT+3}, v{vT+3}, v{vT+1}')
            B(f'v_lshl_add_u32 v{vAS+s}, v{vT+3}, 4, v{vT}')
        B(f'v_and_b32 v{vT}, 1, v{vG}')
        B(f'v_lshlrev_b32 v{vT}, 2, v{vT}')
        B(f'v_lshrrev_b32 v{vT+1}, 2, v{vN}')
        B(f'v_add3_u32 v{vT}, v{vT}, v{vT+1}, s{sBASE}')
        Fv(vT+1, vT)
        B(f'v_mul_u32_u24 v{vT}, {ROWB}, v{vT}')
        B(f'v_and_b32 v{vT+2}, 1, v{vN}')
        B(f'v_lshl_add_u32 v{vT}, v{vT+2}, 3, v{vT}')
        B(f'v_lshrrev_b32 v{vT+2}, 1, v{vG}')
        B(f'v_mul_u32_u24 v{vT+2}, 24, v{vT+2}')
        B(f'v_bfe_u32 v{vT+3}, v{vN}, 1, 1')
        B(f'v_add_u32 v{vT+2}, v{vT+2}, v{vT+3}')
        for ct in range(8):
            B(f'v_add_u32 v{vT+3}, {2*ct}, v{vT+2}')
            B(f'v_xor_b32 v{vT+3}, v{vT+3}, v{vT+1}')
            B(f'v_lshl_add_u32 v{vAP+ct}, v{vT+3}, 4, v{vT}')
        B(f'v_add_u32 v{vWA1}, {SPARE}, v{vWA0}')
        B(f'v_add_u32 v{vWAM}, {MB}, v{vWA0}')
        row_addrs(WF, f's{sF}', B)
        return [l.strip() for l in B.lines]
    def masks():
        out = []
        for tl in range(7):
            a = []
            for G in range(2):
                tau = tl + 3*G
                r = sreg(G, tl)
                a.append([f'v_bfe_i32 v{r+2}, v{vCB+G}, {2*tau}, 1', f'v_and_b32 v{r+1}, s{sNEG}, v{r+2}',
                          f'v_and_b32 v{r+2}, s{sNEG}, v{r+2}', f'v_or_b32 v{r}, v{r+1}, v{vR0}', f'v_or_b32 v{r+3}, v{r+1}, v{vR3}'])
            for x, y in zip(*a): out += [x, y]
        return out

    M1 = int(OPT.get('m1', '12')); MW = int(OPT.get('mw', '6'))
    def mshare(a, b):
        A(f's_lshl_b32 s{sT0}, s{sW}, 10')
        A(f's_add_u32 s{sT0}, s{sT0}, {MOFF + 4096*a}')
        for i in range(a, b):
            A(f's_sub_u32 m0, s{sT0}, {MOFF - MB}')
            A(f'buffer_load_dwordx4 v{vWA0}, s[{S_WS}:{S_WS+3}], s{sT0} offen sc1 lds')
            if i < b - 1: A(f's_add_u32 s{sT0}, s{sT0}, 4096')
    A(f's_cmp_lg_u32 s{sW}, 0')
    A('s_cbranch_scc1 M_comp')
    A(f'v_bfe_u32 v{vT+1}, v{vL}, 2, 2')
    A(f'v_lshrrev_b32 v{vT+2}, 5, v{vL}')
    A(f'v_lshlrev_b32 v{vT+3}, 1, v{vT+2}')
    A(f'v_and_b32 v{vT+4}, 3, v{vL}')
    A(f'v_xor_b32 v{vT+3}, v{vT+3}, v{vT+4}')
    A(f'v_lshlrev_b32 v{vT+3}, 4, v{vT+3}')
    A(f's_movk_i32 s{sT5}, 1152')
    A(f'v_lshl_add_u32 v{vT}, v{vG}, 3, v{vT+1}')
    A(f'v_mad_u32_u24 v{vWD}, v{vT}, s{sT5}, v{vT+3}')
    A(f'v_lshrrev_b32 v{vT}, 2, v{vL}')
    A(f'v_mad_u32_u24 v{vWD+3}, v{vT}, s{sT5}, v{vT+3}')
    A(f'v_lshrrev_b32 v{vT}, 3, v{vN}')
    A(f'v_lshlrev_b32 v{vT}, 1, v{vT}')
    A(f'v_xor_b32 v{vT}, v{vT}, v{vG}')
    A(f'v_lshl_add_u32 v{vT}, v{vN}, 2, v{vT}')
    A(f'v_lshlrev_b32 v{MWA+3}, 4, v{vT}')
    A(f'v_add_u32 v{MWA+3}, {MB}, v{MWA+3}')
    nstamp[0] = 1
    A('s_waitcnt lgkmcnt(0)')
    srd(S_W, 6, 7, 192*576*2)
    TA, TB, TD = 64, 112, 160
    def signal(off, last, tag, wait=True):
        A('v_mov_b32 v192, 1'); A('v_mov_b32 v193, 0')
        A('s_mov_b64 exec, 1')
        A('s_waitcnt vmcnt(0)')
        A(f'buffer_atomic_add v192, v193, s[{S_DBG}:{S_DBG+3}], 0 offen offset:{off} sc0 sc1')
        A('s_mov_b64 exec, -1')
    def publish(off, last, tag):
        A(f'v_readfirstlane_b32 s{sT1}, v192')
        A(f's_cmp_lg_u32 s{sT1}, {last}')
        A(f's_cbranch_scc1 {tag}')
        A('s_mov_b64 exec, 1')
        A(f'buffer_store_dword v192, v193, s[{S_DBG}:{S_DBG+3}], 0 offen offset:{128 + off} sc1')
        A('s_mov_b64 exec, -1')
        A.label(tag)
    A(f's_cmp_ge_u32 s2, {NMP}')
    A('s_cbranch_scc1 H_nom')
    A(f's_mul_hi_u32 s{sT0}, s2, 0x2aaaaaab')
    A(f's_mul_i32 s{sT1}, s{sT0}, 6')
    A(f's_sub_u32 s{sT1}, s2, s{sT1}')
    A(f's_mul_i32 s{sT0}, s{sT0}, {32*1152}')
    A(f's_mul_i32 s{sT1}, s{sT1}, {32*1152}')
    for h in range(2):
        for k in range(6):
            A(f's_mov_b32 m0, {MB + (6*h + k)*1024 - 64*k}')
            A(f'buffer_load_dwordx4 v{vWD}, s[{S_W}:{S_W+3}], s{sT1} offen offset:{64*k} lds')
            A(f's_mov_b32 m0, {MB + (12 + 6*h + k)*1024 - 384 - 64*k}')
            A(f'buffer_load_dwordx4 v{vWD}, s[{S_W}:{S_W+3}], s{sT0} offen offset:{384 + 64*k} lds')
        if h == 0:
            A(f's_add_u32 s{sT0}, s{sT0}, 4608'); A(f's_add_u32 s{sT1}, s{sT1}, 4608')
    srd(S_X, 4, 5, X_BYTES)
    srds()
    NT = 0
    if OPT.get('tw', '0') != '0':
        A('v_mov_b32 v193, 0')
        A(f's_mov_b32 s{sT0}, 0x38000')
        A(f'buffer_load_dword v190, v193, s[{S_WS}:{S_WS+3}], s{sT0} offen'); NT = 1
        if OPT['tw'] == '2':
            A(f'buffer_load_dword v191, v193, s[{S_DBG}:{S_DBG+3}], 0 offen sc1'); NT = 2
    A(f's_lshl_b32 s{sT0}, s2, 11')
    A(f's_add_u32 s{sT0}, s{sT0}, {MOFF}')
    A('s_barrier')
    A(f's_waitcnt vmcnt({NT})')
    stamp()
    for k in range(6):
        for q in range(4):
            r = TA + 24*q + 4*k
            A(f'ds_read_b128 v[{r}:{r+3}], v{MWA+3} offset:{(6*q + k)*1024}')
        if k >= 2:
            kk = k - 2
            for h in range(2):
                for hp in range(2):
                    d = TD + 8*h + 4*hp
                    A(mf(d, TA + 24*hp + 4*kk, TB + 24*h + 4*kk, None if kk == 0 else d))
    for kk in (4, 5):
        for h in range(2):
            for hp in range(2):
                d = TD + 8*h + 4*hp
                A(mf(d, TA + 24*hp + 4*kk, TB + 24*h + 4*kk, d))
    for h in range(2):
        for q in range(4):
            A(f'v_cvt_pk_bf16_f32 v{TD+16+4*h+q}, v{TD+8*h+2*q}, v{TD+8*h+2*q+1}')
        A(f'buffer_store_dwordx4 v[{TD+16+4*h}:{TD+19+4*h}], v{vWA0}, s[{S_WS}:{S_WS+3}], s{sT0} offen offset:{1024*h} sc1')
    signal(0, NMP - 1, 'H_p1')
    A('s_barrier')
    A('s_waitcnt vmcnt(0)')
    publish(0, NMP - 1, 'H_p1')
    A('s_barrier')
    A('s_branch H_join')
    A.label('H_nom'); A.reset()
    nstamp[0] = 1
    VA, VB, VD = 64, 88, 112
    srd(S_WO, 8, 9, 192*192*2)
    A(f's_cmp_ge_u32 s2, {NMP + 144}')
    A('s_cbranch_scc1 H_nov1')
    A(f's_sub_u32 s{sT3}, s2, {NMP}')
    A(f's_mul_hi_u32 s{sT0}, s{sT3}, 0x15555556')
    A(f's_mul_i32 s{sT1}, s{sT0}, 12')
    A(f's_sub_u32 s{sT1}, s{sT3}, s{sT1}')
    A(f's_mul_i32 s{sT2}, s{sT0}, {16*1152}')
    for k in range(6):
        A(f's_mov_b32 m0, {MB + 2048 + 1024*k - 768 - 64*k}')
        A(f'buffer_load_dwordx4 v{vWD+3}, s[{S_W}:{S_W+3}], s{sT2} offen offset:{768 + 64*k} lds')
    A(f'v_lshrrev_b32 v{VD}, 1, v{vL}')
    A(f'v_mul_u32_u24 v{VD}, 384, v{VD}')
    A(f'v_and_b32 v{VD+1}, 1, v{vL}')
    A(f'v_lshl_add_u32 v{VD}, v{VD+1}, 4, v{VD}')
    A(f's_lshl_b32 s{sT2}, s{sT1}, 5')
    for k in range(6):
        A(f's_mov_b32 m0, {MB + 8192 + 1024*k}')
        A(f'buffer_load_dwordx4 v{VD}, s[{S_WO}:{S_WO+3}], s{sT2} offen lds')
        A(f's_add_u32 s{sT2}, s{sT2}, {32*384}')
    A(f's_lshr_b32 s{sT2}, s{sT1}, 2')
    A(f's_mul_i32 s{sVO}, s{sT2}, 24576')
    A(f's_and_b32 s{sT1}, s{sT1}, 3')
    A(f's_lshl_b32 s{sT1}, s{sT1}, 6')
    A(f's_add_u32 s{sVO}, s{sVO}, s{sT1}')
    A(f's_lshr_b32 s{sT1}, s{sT0}, 1')
    A(f's_lshl_b32 s{sT1}, s{sT1}, 11')
    A(f's_add_u32 s{sVO}, s{sVO}, s{sT1}')
    A(f's_and_b32 s{sT0}, s{sT0}, 1')
    A(f's_lshl_b32 s{sT0}, s{sT0}, 3')
    A(f's_add_u32 s{sVO}, s{sVO}, s{sT0}')
    A.label('H_nov1'); A.reset()
    A('s_barrier')
    srd(S_X, 4, 5, X_BYTES)
    srds()
    stamp()
    A(f's_cmp_ge_u32 s2, {NMP + 144}')
    A('s_cbranch_scc1 H_join')
    t0, t1 = VD + 6, VD + 7
    A(f'v_lshlrev_b32 v{t1}, 3, v{vN}')
    A(f'v_lshl_add_u32 v{t1}, v{vG}, 8, v{t1}')
    A(f'v_add_u32 v{t1}, {MB}, v{t1}')
    A('s_waitcnt vmcnt(0)')
    for k in range(6):
        A(f'ds_read_b128 v[{VA+4*k}:{VA+4*k+3}], v{MWA+3} offset:{2048 + 1024*k}')
    A('s_waitcnt lgkmcnt(2)')
    for k in range(6):
        for hh in range(2):
            A(f'ds_read_b64_tr_b16 v[{VB+4*k+2*hh}:{VB+4*k+2*hh+1}], v{t1} offset:{8192 + 1024*k + 128*hh}')
    A('s_waitcnt lgkmcnt(0)')
    for k in range(6):
        A(mf(VD, VA + 4*k, VB + 4*k, None if k == 0 else VD))
    A(f'v_bfe_u32 v{t0}, v{vN}, 1, 1')
    A(f'v_mul_u32_u24 v{t0}, 12288, v{t0}')
    A(f'v_and_b32 v{t1}, 1, v{vN}')
    A(f'v_lshl_add_u32 v{t0}, v{t1}, 10, v{t0}')
    A(f'v_lshrrev_b32 v{t1}, 2, v{vN}')
    A(f'v_lshl_add_u32 v{t0}, v{t1}, 4, v{t0}')
    A(f'v_lshl_add_u32 v{t0}, v{vG}, 8, v{t0}')
    A(f'v_cvt_pk_bf16_f32 v{VD+4}, v{VD}, v{VD+1}')
    A(f'v_cvt_pk_bf16_f32 v{VD+5}, v{VD+2}, v{VD+3}')
    A(f'buffer_store_dwordx2 v[{VD+4}:{VD+5}], v{t0}, s[{S_WS}:{S_WS+3}], s{sVO} offen sc1')
    A('s_branch H_join')
    A.label('M_comp'); A.reset()
    nstamp[0] = 1
    decode()
    scalar_setup()
    xaddr()
    A('s_waitcnt lgkmcnt(0)')
    srd(S_X, 4, 5, X_BYTES)
    stamp()
    A('s_barrier')
    chunk(0)
    A(f's_cmp_lt_u32 s2, {NMP}')
    A('s_cbranch_scc1 M_x1')
    chunk(1)
    chunk(2)
    A.label('M_x1')
    stamp()
    if OPT.get('tlb', '0') == '1':
        A(f's_add_u32 s90, s10, s{sXRW}'); A('s_addc_u32 s91, s11, 0')
        A.raw('  s_load_dword s83, s[90:91], 0')
        A.raw('  s_load_dword s83, s[14:15], 0x38000')
        A(f's_movk_i32 s{sOA+2}, 384')
    srds(); scalar_setup2()
    for t in setup() + oaddr() + masks(): A(t)
    xread_addr()
    A(f's_cmp_ge_u32 s2, {NMP}')
    A('s_cbranch_scc1 M_x2')
    A.skip('s_barrier')
    chunk(1)
    A.skip('s_barrier')
    chunk(2)
    A.label('M_x2')
    stamp()
    for j in range(3):
        A(f's_waitcnt vmcnt({8 - 4*j})')
        xread(j)
    row_soff(sT2, f's{sW}')
    A('s_waitcnt lgkmcnt(0)')
    stamp()
    A('s_barrier')
    ER = int(OPT.get('er', '1'))
    A(f's_cmp_lt_u32 s{sW}, {ER}')
    A('s_cbranch_scc1 M_er')
    for j in range(8):
        A(f's_add_u32 m0, s{sXL}, {16*PIECE[j] - 8*ROWB}')
        A(f'buffer_load_dwordx4 v{WF+j}, s[{S_X}:{S_X+3}], s{sT2} offen{KNT} lds')
    A.label('M_er')
    A('s_barrier')
    stamp()
    A(f's_cmp_lt_u32 s{sW}, 4')
    A('s_cbranch_scc1 M_xl')
    A('s_setprio 1')
    A('s_barrier')
    A('s_branch M_pa')
    A.label('M_xl'); A.reset()
    mshare(0, M1)
    A(f's_waitcnt vmcnt({M1 - MW})')
    A('s_barrier')
    mshare(M1, 18)
    A.label('M_pa'); A.reset()
    padat('A')
    stamp()
    bgA = []
    xrow = []
    for j in range(8):
        xrow.append(f's_add_u32 m0, s{sXL}, {16*PIECE[j]}\n s_nop 0\n buffer_load_dwordx4 v{WF+j}, s[{S_X}:{S_X+3}], s{sXR} offen{KNT} lds')
    def finA(sig, accb):
        out = []
        for G in range(2):
            for q in range(4):
                out.append(f'v_cvt_pk_bf16_f32 v{QP+24*G+4*sig+q}, v{accb+8*G+2*q}, v{accb+8*G+2*q+1}')
        return out
    def locA(f):
        if f < 60: return ('lds', vWAM, f*1024)
        if f < 62: return ('reg', WF + 4*(f-60))
        return ('lds', vWA1, (f-62)*1024)
    def bar():
        A('s_barrier')
        if OPT.get('hr', '1') == '0': bgA[0:0] = xrow
    def bar4():
        A('s_waitcnt vmcnt(0)'); A('s_barrier')
        prio(3, 2)
    def b0b():
        A('s_waitcnt vmcnt(0)'); A('s_barrier')
    hA = {2: bar, 4: bar4}
    xm = {2*48+1: [f'ds_read_b128 v[{WF}:{WF+3}], v{vWAM} offset:{60*1024}'],
          2*49+1: [f'ds_read_b128 v[{WF+4}:{WF+7}], v{vWAM} offset:{61*1024}']}
    pend = gemm_phase(XQ, locA, finA, hooks=hA, bg=bgA, extra_mem=xm, ghooks={2*(4*MW - 6) - 1: b0b})
    assert not bgA
    stamp()
    padat('S')
    cond('M_l1', False, lambda: A.skip('s_barrier'))
    seq = []
    for (a1, a2) in ((0, 3), (1, 4), (2, 5), (7, 6), (8, 9)):
        for s in range(6):
            seq.append((a1, s)); seq.append((a2, s))
    def users(tau):
        u = []
        if tau <= 6: u.append((0, tau))
        if tau >= 3: u.append((1, tau - 3))
        return u
    def rdS(i):
        tau, s = seq[i]
        buf = RING + 4*(i % 8)
        return f'ds_read_b128 v[{buf}:{buf+3}], v{vAS + (s % 4)} offset:{tau*768 + (256 if s >= 4 else 0)}'
    D = 7
    for i in range(D): A(rdS(i))
    for t in pend: A(t)
    vM = [12, 13]; vX = [14, 15]
    A(f's_mov_b32 s{sT1}, 0xff7fffff')
    ms, mem, side = [], {}, []
    started = [False, False]; ndone = [0, 0]
    def xl(G):
        o = []
        for sw in ('v_permlane32_swap_b32', 'v_permlane16_swap_b32'):
            o += [f'v_mov_b32 v{vX[G]}, v{vM[G]}', f'{sw} v{vM[G]}, v{vX[G]}', f'v_max_f32 v{vM[G]}, v{vM[G]}, v{vX[G]}']
        return o + [f'v_mul_f32 v{vM[G]}, s{sSC}, v{vM[G]}']
    for i, (tau, s) in enumerate(seq):
        a = RING + 4*(i % 8)
        for (G, tl) in users(tau):
            r = sreg(G, tl)
            ms.append(mf(r, a, QP + 24*G + 4*s, r))
            if s == 5:
                e = len(ms) + 3
                side.append((e, f'v_max3_f32 v{vM[G]}, v{r}, v{r+1}, ' + (f'v{vM[G]}' if started[G] else f's{sT1}')))
                side.append((e, f'v_max3_f32 v{vM[G]}, v{r+2}, v{r+3}, v{vM[G]}'))
                started[G] = True; ndone[G] += 1
        if i % 12 == 11:
            for G in range(2):
                if ndone[G] == 7:
                    side += [(len(ms) + 3 + 2*k, t) for k, t in enumerate(xl(G))]; ndone[G] = 8
        if i + D < len(seq): mem[len(ms) - 1] = [rdS(i + D)]
    bgS = [f'v_mov_b32 v{PP+q}, 0' for q in (14, 15, 16, 17)] + [f'v_mov_b32 v{ONES+q}, 0x3f803f80' for q in range(4)]
    rest = stream(ms, mem, side, bg=bgS)
    assert not bgS
    stamp()
    prio(1, 0)
    for t in rest: A(t)
    def preg(G, tl): return PP + 16*G + 2*(tl + G)
    seqP = [(sig, u, h) for sig in range(6) for u in range(5) for h in range(2)]
    def rdP(i):
        sig, u, h = seqP[i]
        ct = 2*sig + h
        buf = RING + 4*(i % 8)
        return [f'ds_read_b64_tr_b16 v[{buf+2*hh}:{buf+2*hh+1}], v{vAP + (ct % 8)} offset:{(4*u+2*hh)*384 + (256 if ct >= 8 else 0)}' for hh in range(2)]
    DP = 6
    def b4L(): A.skip('s_barrier')
    B3AT, B4AT = int(OPT.get('b3', '1')), int(OPT.get('b4', '6'))
    if B3AT < 0: cond('M_e2', True, lambda: A.skip('s_barrier'))
    for tl in range(7):
        for G in range(2):
            r = sreg(G, tl)
            for k in range(4): A(f'v_fma_f32 v{r+k}, v{r+k}, s{sSC}, -v{vM[G]}')
            for k in range(4): A(f'v_exp_f32 v{r+k}, v{r+k}')
        for G in range(2):
            r = sreg(G, tl)
            p = preg(G, tl)
            A(f'v_cvt_pk_bf16_f32 v{p}, v{r}, v{r+1}')
            A(f'v_cvt_pk_bf16_f32 v{p+1}, v{r+2}, v{r+3}')
        if tl == B3AT: cond('M_e2', True, lambda: A.skip('s_barrier'))
        if tl >= B3AT:
            for t2 in range(0 if tl == max(B3AT, 0) else tl, tl + 1):
                if t2 % 2 == 0: A(f's_mov_b32 s{sT0}, {(10 + 2*t2)*1024}')
                for G in range(2):
                    r = sreg(G, t2)
                    A(f'buffer_load_dwordx4 v[{r}:{r+3}], v{vWA0}, s[{S_WS}:{S_WS+3}], s{sT0} offen offset:{1024*(2*(t2%2)+G)} sc1')
        if tl == 5:
            for i in range(DP):
                for t in rdP(i): A(t)
        if tl == B4AT: cond('M_l2', False, b4L)
    stamp()
    prio(3, 2)
    padat('P')
    ms, first, side, hk = [], [], [], {}
    def b5L():
        cond('M_l3', False, lambda: A.skip('s_barrier'))
    if int(OPT.get('b5', '1')) < 0: b5L()
    sums = [mf(vINV + 4*G, PP + 16*G + 4*u, ONES, None if u == 0 else vINV + 4*G) for u in range(4) for G in range(2)]
    for i, (sig, u, h) in enumerate(seqP):
        a = RING + 4*(i % 8)
        accb = ACC + 16*(sig & 1)
        first.append(len(ms))
        for G in range(2):
            uu = u - G
            if 0 <= uu <= 3:
                d = accb + 8*G + 4*h
                ms.append(mf(d, a, PP + 16*G + 4*uu, None if uu == 0 else d))
        if i % 10 in (1, 9) and 1 <= sig <= 4: ms.append(sums.pop(0))
        if i % 10 == 9:
            e = len(ms) - 1
            side += [(e + 4, t, e + 16) for t in finA(sig, accb)]
            if sig == int(OPT.get('b5', '1')): hk[e] = b5L
            if sig == int(OPT.get('pv', '3')) and OPT.get('pe') == '4': hk[e] = lambda: prio(3, 1)
    assert not sums
    mem = {}
    k = 0
    nrd = 2*(len(seqP) - DP)
    ngap = first[-1] - 5
    for j in range(DP, len(seqP)):
        for t in rdP(j):
            gp = (k * ngap) // nrd
            if j >= 8: gp = max(gp, first[j - 7] - 1)
            assert gp < first[j] - 3, (j, gp, first[j])
            mem.setdefault(gp, []).append(t); k += 1
    pend = stream(ms, mem, side, hk)
    A('s_waitcnt vmcnt(0)')
    stamp()
    W4 = OPT.get('w4', '1') == '1'
    def wvo(f0, n):
        for i in range(n):
            if i % 4 == 0:
                A.skip(f's_mov_b32 m0, {(f0 - 24 + i)*1024}')
                A.skip(f's_mov_b32 s{sT4}, {(f0 + i)*1024}')
            A.raw(f'  buffer_load_dwordx4 v{vWA0}, s[{S_WS}:{S_WS+3}], s{sT4} offen offset:{1024*(i%4)} sc1 lds')
    def b4E():
        if W4:
            A.skip(f's_cmp_lg_u32 s{sW}, 4')
            A.skip('s_cbranch_scc1 M_e3a')
            wvo(24, 15)
            A.raw('  s_waitcnt vmcnt(0)')
            A.skip('s_barrier')
            wvo(39, 16)
            A.skip('s_branch M_e3')
            A.label('M_e3a')
            A.skip('s_barrier')
            return
        A.skip('s_barrier')
        A.skip(f's_mul_i32 s{sT0}, s{sW}, 9216')
        A.skip(f's_sub_u32 s{sT0}, s{sT0}, {4*9216 - 12288}')
        A.skip(f's_add_u32 s{sT4}, s{sT0}, {24*1024}')
        for blk in range(3):
            A.skip(f's_mov_b32 m0, s{sT0}')
            A.skip(f's_add_u32 s{sT0}, s{sT0}, 3072')
            for i in range(3):
                A.raw(f'  buffer_load_dwordx4 v{vWA0}, s[{S_WS}:{S_WS+3}], s{sT4} offen offset:{1024*i} sc1 lds')
            A.skip(f's_add_u32 s{sT4}, s{sT4}, 3072')
    cond('M_e3', True, b4E)
    def finE(sig, accb):
        out = []
        for G in range(2):
            for r in range(4):
                for h in range(2):
                    out.append(f'v_mul_f32 v{accb+8*G+4*h+r}, v{accb+8*G+4*h+r}, v{vINV+4*G+r}')
                o = OST + 8*G + 2*r
                out.append(f'v_cvt_pk_bf16_f32 v{o+(sig&1)}, v{accb+8*G+r}, v{accb+8*G+4+r}')
                if sig & 1:
                    out.append(f'buffer_store_dwordx2 v[{o}:{o+1}], v{vOA+4*G+r}, s[{S_OUT}:{S_OUT+3}], 0 offen offset:{128*(sig>>1)}{ONT[sig>>1]}')
        return out
    def locE(f):
        if f < 10: return ('lds', vWA1, f*1024)
        if f < 24: return ('reg', sreg((f-10) % 2, (f-10) // 2))
        return ('lds', vWA0, (f-24)*1024)
    def b5E():
        def body():
            A.raw(f'  s_waitcnt vmcnt({len(A.vm)})'); A.skip('s_barrier')
        cond('M_e4', True, body)
        padat('O')
        stamp()
    for t in pend: A(t)
    bgE = [f'v_rcp_f32 v{vINV+q}, v{vINV+q}' for q in range(8)]
    hE = {}
    if OPT.get('pe') == '1': hE = {3: lambda: prio(1, 0)}
    if OPT.get('pe') == '2': hE = {2: lambda: prio(1, 2), 4: lambda: prio(1, 0)}
    if OPT.get('pe') == '3': hE = {4: lambda: prio(1, 2)}
    if OPT.get('pe') == '4':
        hE = {2: lambda: prio(2, 0), 4: lambda: prio(1, 0)}
        prio(3, 0)
    pend = gemm_phase(QP, locE, finE, swap=True, bg=bgE, hooks=hE, pace=int(OPT.get('pace', '4')), D=int(OPT.get('de', '4')), ghooks={2*((39 if W4 else 24) - int(OPT.get('de', '4'))) - 1: b5E})
    padat('Z')
    for t in pend: A(t)
    if STAMP:
        stamp()
        A('s_waitcnt vmcnt(0)')
        stamp(1)
        write_stamps()
    if 'pad' in OPT:
        A('s_waitcnt vmcnt(0)')
        A.label('PADL')
        A.raw('  s_memrealtime s[98:99]')
        A.raw('  s_waitcnt lgkmcnt(0)')
        A('s_sub_u32 s98, s98, s96')
        A(f's_cmp_lt_u32 s98, {OPT["pad"]}')
        A('s_cbranch_scc1 PADL')
    A('s_endpgm')

    A.label('M_helper'); A.reset()
    nstamp[0] = 2
    A.label('H_join'); A.reset()
    stamp()
    decode(); scalar_setup(); scalar_setup2()
    row_addrs(WF, '0')
    row_addrs(vAP, '8')
    def rows(lst):
        for i in lst:
            row_soff(sT1, str(i))
            b = vAP if i & 1 else WF
            for j in range(8):
                a = b + j
                if i & 6:
                    a = 64 + j
                    A(f'v_xor_b32 v{a}, {16*(i & 6)}, v{b+j}')
                A(f's_mov_b32 m0, {i*ROWB + 16*PIECE[j]}')
                A(f'buffer_load_dwordx4 v{a}, s[{S_X}:{S_X+3}], s{sT1} offen{KNT} lds')
            if len(A.vm) >= 56: A('s_waitcnt vmcnt(40)')
    A('s_barrier')
    if ER == 0: rows([0, 8])
    poll('H_pollM', 128)
    A(f's_lshr_b32 s{sT0}, s2, 3')
    A(f's_mul_i32 s{sT0}, s{sT0}, 2304')
    A(f's_add_u32 s{sT0}, s{sT0}, {MOFF}')
    for i in range(3):
        A(f'buffer_load_dwordx4 v[{80+4*i}:{83+4*i}], v{vWA0}, s[{S_WS}:{S_WS+3}], s{sT0} offen offset:{1024*i} sc1')
    stamp()
    A('s_barrier')
    stamp()
    mshare(0, M1)
    A(f's_waitcnt vmcnt({M1 - MW})')
    A('s_barrier')
    stamp()
    mshare(M1, 18)
    A('v_mov_b32 v192, 1'); A('v_mov_b32 v193, 0')
    A('s_waitcnt vmcnt(0)')
    A(f's_sub_u32 s{sT3}, s2, {NMP}')
    A(f's_cmp_ge_u32 s{sT3}, 144')
    A('s_cbranch_scc1 H_nov2')
    signal(4, 143, 'H_p2')
    A.label('H_nov2'); A.reset()
    if ER: rows([0, 8] + list(range(1, ER)))
    A('s_barrier')
    if OPT.get('hr', '1') == '1': rows([9, 10])
    stamp()
    A('s_barrier')
    if OPT.get('hr', '1') == '1': rows([11, 12, 13, 14, 15])
    A('s_waitcnt vmcnt(0)')
    publish(4, 143, 'H_p2')
    stamp()
    A('s_barrier')
    rows([16, 17, 18, 19])
    A('s_waitcnt vmcnt(0)')
    stamp()
    poll('H_pollV', 132)
    A(f's_lshr_b32 s{sT0}, s2, 3')
    A(f's_mul_i32 s{sT0}, s{sT0}, 2304')
    for i in range(3):
        A(f'buffer_load_dwordx4 v[{80+4*i}:{83+4*i}], v{vWA0}, s[{S_WS}:{S_WS+3}], s{sT0} offen offset:{1024*i} sc1')
    stamp()
    A('s_barrier')
    def wfr(src0, n, lds0):
        for i in range(n):
            if i % 4 == 0:
                A(f's_mov_b32 m0, {lds0 + i*1024}')
                A(f's_mov_b32 s{sT4}, {(src0 + i)*1024}')
            A(f'buffer_load_dwordx4 v{vWA0}, s[{S_WS}:{S_WS+3}], s{sT4} offen offset:{1024*(i%4)} sc1 lds')
    wfr(0, 10, SPARE)
    PF = int(OPT.get('pf', '0'))
    if PF:
        A(f'v_lshrrev_b32 v80, 2, v{vL}')
        A('v_min_u32 v80, 13, v80')
        A(f'v_add_u32 v80, s{sTC}, v80')
        A(f'v_lshl_add_u32 v81, v80, 1, s{sALC}')
        A('v_add_u32 v82, 112, v80')
        A('v_med3_i32 v80, v81, v80, v82')
        A('v_mul_u32_u24 v80, 384, v80')
        A(f'v_and_b32 v81, 3, v{vL}')
        A('v_min_u32 v81, 2, v81')
        A('v_lshl_add_u32 v80, v81, 7, v80')
        for r in range(14):
            A(f's_add_u32 s{sT0}, s{sTR}, {r}')
            A(f's_lshl_b32 s{sT1}, s{sT0}, 1')
            A(f's_add_i32 s{sT1}, s{sT1}, s{sALR}')
            A(f's_max_i32 s{sT1}, s{sT1}, s{sT0}')
            A(f's_add_i32 s{sT0}, s{sT0}, 112')
            A(f's_min_i32 s{sT1}, s{sT1}, s{sT0}')
            A(f's_mul_i32 s{sT1}, s{sT1}, 86016')
            for h in range(PF):
                A.raw(f'  buffer_load_dword v{84+h}, v80, s[{S_OUT}:{S_OUT+3}], s{sT1} offen offset:{64*h}')
        A(f's_waitcnt vmcnt({14*PF})')
    else:
        A('s_waitcnt vmcnt(0)')
    stamp()
    A('s_barrier')
    if W4: wfr(55, 17, 31*1024)
    else: wfr(24, 12, 0)
    A('s_waitcnt vmcnt(0)')
    stamp()
    A('s_barrier')
    if STAMP:
        stamp(1)
        write_stamps()
    A.label('M_done')
    A('s_endpgm')
    A.label('CODE_END')

gen_main()
A.raw('.section .rodata,"a"')
A.raw('.p2align 6')
A.raw(f'.amdhsa_kernel {NAME}')
A.raw('  .amdhsa_next_free_vgpr 256')
A.raw('  .amdhsa_next_free_sgpr 102')
A.raw('  .amdhsa_accum_offset 256')
A.raw('  .amdhsa_group_segment_fixed_size 0')
A.raw('  .amdhsa_kernarg_size 48')
A.raw('  .amdhsa_user_sgpr_count 2')
A.raw('  .amdhsa_user_sgpr_kernarg_segment_ptr 1')
A.raw('  .amdhsa_system_sgpr_workgroup_id_x 1')
A.raw('.end_amdhsa_kernel')
open(OUT, 'w').write(A.text())
print('instr', A.n_inst, 'nops', A.nops, 'maxv', A.maxv)
```

```python
import sys, struct
sys.path.insert(0, 'gen')
from asmlib import Asm

OUT = sys.argv[1] if len(sys.argv) > 1 else 'standalone__neighborhood_nat__vision.s'
OPT = dict(a.split('=') if '=' in a else (a, '1') for a in sys.argv[2:])
STAMP = 'stamp' in OPT
XNT = ' nt' if OPT.get('xnt', '0') == '1' else ''
KNT = ' nt' if OPT.get('knt', '0') == '1' else ''
ONT = [{'0': '', '1': ' nt', '2': ' sc1', '3': ' sc0 sc1', '4': ' sc0 sc1 nt'}[c] for c in (OPT.get('ont', '2') * 3)[:3]]
NAME = 'standalone__neighborhood_nat__vision_kernel'

X_BYTES = 19267584
WS_BYTES = 268435456
ROWB = 7680
MB = 90112
SPARE = 153600
MOFF = 0x20000
NMP = 36
GAP = 73728
def f32bits(x): return struct.unpack('<I', struct.pack('<f', x))[0]
SCALE = f32bits(192 ** -0.5 * 1.4426950408889634)
NEGINF = 0xff800000
PIECE = [0, 64, 128, 192, 256, 320, 384, 416]

A = Asm()
hdr = open('standalone__neighborhood_nat__vision.s.ref').read().split('\n')
for ln in hdr:
    if ln.startswith('; @launch'): break
    A.raw(ln)
A.raw('; @launch grid=(256,1,1) block=(512,1,1) lds=163840')
A.raw('.amdgcn_target "amdgcn-amd-amdhsa--gfx950"')
A.raw('.text')

def srd(d, lo, hi, nbytes):
    A(f's_mov_b32 s{d}, s{lo}'); A(f's_and_b32 s{d+1}, s{hi}, 0xffff')
    A(f's_mov_b32 s{d+2}, {nbytes}'); A(f's_mov_b32 s{d+3}, 0x00020000')
def mf(d, a, b, c):
    cs = '0' if c is None else f'v[{c}:{c+3}]'
    return f'v_mfma_f32_16x16x32_bf16 v[{d}:{d+3}], v[{a}:{a+3}], v[{b}:{b+3}], {cs}'

S_X, S_OUT, S_WS, S_W, S_WO, S_DBG = 16, 20, 24, 28, 32, 36
sW, sPR, sPC, sTR, sTC = 40, 41, 42, 43, 44
sKR0, sKC0B = 45, 46
sLOR, sHIR, sSHR, sLOC, sHIC = 47, 48, 49, 50, 51
sBASE, sSTRIP, sNEG = 52, 53, 54
sT0, sT1, sT2, sT3, sT4, sT5 = 55, 56, 57, 58, 59, 60
sALR, sALC, sSC = 61, 62, 63
sST = 64
sXR, sXL = 100, 101
sOA = 88
sB0, sF = 92, 93
sM1, sM2 = 0, 10
sVT, sVO = 94, 95
vL, vG, vN = 1, 2, 3
vT = 4
vR0, vR3, vCB = 12, 13, 14
XQ = 16
PP = 16
vOA = 4
vINV = 56
SACC = 64
OST = 16
W1 = 64
ONES = 48
QP = 120
ACC = 168
RING = 200
WF = 232
vAS = 240
vAP = 244
vWA0, vWA1, vWAM = 252, 253, 254
vSW, vSR = 255, 199
vWD = RING
MBQ = 64
MACC = 136
MPK = 184
MWA = 192

nstamp = [0]
def stamp(real=None):
    if not STAMP: return
    i = nstamp[0]; nstamp[0] += 1
    assert i < 14
    A.raw(f'  s_mem{"real" if "rt" in OPT else ""}time s[{sST+2*i}:{sST+1+2*i}]')
    if real is not None:
        A.raw(f'  s_memrealtime s[{96+2*real}:{97+2*real}]')
def write_stamps():
    n = nstamp[0]
    A('s_waitcnt lgkmcnt(0)')
    A(f'v_mov_b32 v{RING}, 0')
    if 'dbg' in OPT:
        lbl = f'WS_skip{n}'
        A(f's_cmp_lg_u32 s2, {OPT["dbg"].split(",")[0]}')
        A(f's_cbranch_scc1 {lbl}')
        A(f's_cmp_lg_u32 s{sW}, {OPT["dbg"].split(",")[1]}')
        A(f's_cbranch_scc1 {lbl}')
        for i in range(1, n):
            A(f's_sub_u32 s{sT0}, s{sST+2*i}, s{sST}')
            A(f'v_writelane_b32 v{RING}, s{sT0}, {i}')
        A(f's_sub_u32 s{sT0}, s98, s96')
        A(f'v_writelane_b32 v{RING}, s{sT0}, 15')
        srd(S_DBG, 12, 13, 256)
        A(f'v_lshlrev_b32 v{RING+1}, 2, v{vL}')
        A('s_mov_b64 exec, 0xfffe')
        A(f'buffer_store_dword v{RING}, v{RING+1}, s[{S_DBG}:{S_DBG+3}], 0 offen')
        A.label(lbl)
        return
    for i in range(n):
        A(f'v_writelane_b32 v{RING}, s{sST+2*i}, {i}')
    A(f'v_writelane_b32 v{RING}, s96, 14')
    A(f'v_writelane_b32 v{RING}, s98, 15')
    A(f's_lshl_b32 s{sT0}, s2, 3')
    A(f's_add_u32 s{sT0}, s{sT0}, s{sW}')
    A(f's_lshl_b32 s{sT0}, s{sT0}, 6')
    A(f's_add_u32 s{sT0}, s{sT0}, 0x100000')
    A(f'v_lshlrev_b32 v{RING+1}, 2, v{vL}')
    A('s_mov_b64 exec, 0xffff')
    A(f'buffer_store_dword v{RING}, v{RING+1}, s[{S_WS}:{S_WS+3}], s{sT0} offen')

def row_addrs(b, sF, A=A):
    for j in (0, 1, 2, 7):
        A(f'v_add_u32 v{vT}, {PIECE[j]}, v{vL}')
        A(f'v_xor_b32 v{vT}, {sF}, v{vT}')
        A(f'v_mul_u32_u24 v{vT+1}, 2731, v{vT}')
        A(f'v_lshrrev_b32 v{vT+1}, 16, v{vT+1}')
        A(f'v_mul_u32_u24 v{vT+1}, 384, v{vT+1}')
        A(f'v_lshl_add_u32 v{vT}, v{vT}, 4, v{vT+1}')
        A(f'v_add_u32 v{b+j}, s{sKC0B}, v{vT}')
        if j < 3:
            A(f'v_add_u32 v{b+j+3}, {8*768}, v{b+j}')
            if j == 0: A(f'v_add_u32 v{b+6}, {16*768}, v{b}')
            A(f'v_max_i32 v{b+j}, 0, v{b+j}')
def row_soff(dst, srow):
    A(f's_add_i32 s{dst}, s{sKR0}, {srow}')
    A(f's_lshl_b32 s{dst}, s{dst}, 1')
    A(f's_add_i32 s{dst}, s{dst}, s{sPR}')
    A(f's_max_i32 s{dst}, s{dst}, 0')
    A(f's_min_i32 s{dst}, s{dst}, 223')
    A(f's_mul_i32 s{dst}, s{dst}, 86016')

def stream(ms, mem, side, hooks=None, cap=2, bg=None, flush=(), paced=None):
    side = [x if len(x) == 3 else (x[0], x[1], 10**9) for x in side]
    bg = bg if bg is not None else []
    paced = list(paced or [])
    nside = len(side)
    def slots(lo, hi):
        return sum(max(0, cap - len(mem.get(k, []))) for k in range(lo, hi + 1))
    for i, m in enumerate(ms):
        assert not (side and side[0][2] < i), ('deadline missed', side[0], i)
        A(m)
        if i + 1 < len(ms) and not (hooks and i in hooks): A.prewait(ms[i+1])
        n = 0
        for t in mem.get(i, []):
            A(t); n += 1
        if paced and not mem.get(i) and paced[0][0] <= i and nside - len(side) >= paced[0][2]:
            assert nside - len(side) <= paced[0][3], ('paced item too late', paced[0])
            A(paced.pop(0)[1]); n += 1
        c = cap
        if side and side[0][2] < len(ms):
            dl = side[0][2]
            if sum(1 for x in side if x[2] == dl) > slots(i, dl): c = cap + 1
        while side and n < c and side[0][0] <= i:
            A(side.pop(0)[1]); n += 1
        while bg and n < cap:
            A(bg.pop(0)); n += 1
        if i in flush:
            while side and side[0][0] <= i + 4: A(side.pop(0)[1])
        if hooks and i in hooks: hooks[i]()
    assert not paced
    return [x[1] for x in side]

def gemm_phase(B, loc, finish, swap=False, hooks=None, D=6, gate=None, bg=None, extra_mem=None, ghooks=None, flush=(), pace=0):
    def rd(f):
        l = loc(f)
        if l[0] == 'lds':
            buf = RING + 4*(f % 8)
            return [f'ds_read_b128 v[{buf}:{buf+3}], v{l[1]} offset:{l[2]}']
        return []
    ms, mem, side, hk, paced = [], dict(extra_mem or {}), [], dict(ghooks or {}), []
    for f in range(D):
        for t in rd(f): A(t)
    for f in range(72):
        sig, s, h = f // 12, (f % 12) // 2, f % 2
        l = loc(f)
        a = RING + 4*(f % 8) if l[0] == 'lds' else l[1]
        accb = ACC + 16*(sig & 1)
        for G in range(2):
            d = accb + 8*G + 4*h
            b = B + 24*G + 4*s
            ms.append(mf(d, b, a, None if s == 0 else d) if swap else mf(d, a, b, None if s == 0 else d))
        fn = f + D
        if fn < 72 and not (gate is not None and f < gate <= fn):
            mem[2*f] = rd(fn)
        if f % 12 == 11:
            k = 0
            for t in finish(sig, accb):
                if pace and t.startswith('buffer_store') and sig < 5:
                    paced.append((2*f + 1 + 6 + pace*k, t, len(side), len(side) + 23)); k += 1
                else:
                    side.append((2*f + 1 + 3, t, 2*f + 1 + 24))
            if hooks and sig in hooks:
                def mk(sig=sig, f=f):
                    def h():
                        hooks[sig]()
                        if gate is not None and f + 1 == gate:
                            for k in range(gate, gate + D):
                                for t in rd(k): A(t)
                    return h
                hk[2*f + 1] = mk()
    return stream(ms, mem, side, hk, bg=bg, flush=flush, paced=paced)

def poll(label, off, want=None):
    A(f'v_mov_b32 v{vT+2}, 0')
    A(f's_mov_b32 s{sT4}, 0')
    A('s_mov_b64 exec, 1')
    A.label(label)
    A(f'buffer_load_dword v{vT+3}, v{vT+2}, s[{S_DBG}:{S_DBG+3}], 0 offen offset:{off} sc1')
    A('s_waitcnt vmcnt(0)')
    A(f'v_cmp_eq_u32 vcc, 0, v{vT+3}' if want is None else f'v_cmp_ne_u32 vcc, {want}, v{vT+3}')
    A(f's_add_u32 s{sT4}, s{sT4}, 1')
    A(f's_cmp_gt_u32 s{sT4}, 200000')
    A(f's_cbranch_scc1 {label}_x')
    A('s_cmp_lg_u64 vcc, 0')
    A(f's_cbranch_scc0 {label}_x')
    A(f's_sleep {OPT.get("slp", "6")}')
    A(f's_branch {label}')
    A.label(label + '_x')
    A('s_mov_b64 exec, -1')

def cond(lbl, isE, body):
    A(f's_cmp_lt_u32 s{sW}, 4' if isE else f's_cmp_ge_u32 s{sW}, 4')
    A(f's_cbranch_scc1 {lbl}')
    body()
    A.label(lbl)

nprio = [0]
def prio(e, l):
    nprio[0] += 1
    A(f's_setprio {l}')
    if e != l: cond(f'M_pr{nprio[0]}', True, lambda: A.skip(f's_setprio {e}'))

npad = [0]
def padat(name):
    if OPT.get('padpos') != name: return
    npad[0] += 1
    A.label(f'PADM{npad[0]}')
    A.raw('  s_memrealtime s[98:99]')
    A.raw('  s_waitcnt lgkmcnt(0)')
    A.raw('  s_sub_u32 s98, s98, s96')
    A.raw(f'  s_cmp_lt_u32 s98, {OPT["padt"]}')
    A.raw(f'  s_cbranch_scc1 PADM{npad[0]}')

def gen_main():
    A.raw(f'.globl {NAME}'); A.raw('.p2align 8'); A.raw(f'.type {NAME},@function')
    A.raw(f'{NAME}:'); A.reset()
    A('s_cmp_ge_u32 s2, 256')
    A('s_cbranch_scc1 M_done')
    stamp(0)
    if 'pad' in OPT or 'padpos' in OPT: A.raw('  s_memrealtime s[96:97]')
    A('s_load_dwordx8 s[4:11], s[0:1], 0')
    A('s_load_dwordx4 s[12:15], s[0:1], 32')
    A(f'v_lshrrev_b32 v{vT}, 6, v0')
    A(f'v_and_b32 v{vL}, 63, v0')
    A(f'v_readfirstlane_b32 s{sW}, v{vT}')
    A(f'v_lshrrev_b32 v{vG}, 4, v{vL}')
    A(f'v_and_b32 v{vN}, 15, v{vL}')
    A(f'v_lshlrev_b32 v{vWA0}, 4, v{vL}')
    def decode():
        A(f's_and_b32 s{sT0}, s2, 7')
        A(f's_lshr_b32 s{sT1}, s2, 3')
        MAP = OPT.get('map', '0')
        if MAP == '0':
            A(f's_lshr_b32 s{sPR}, s{sT0}, 2')
            A(f's_bfe_u32 s{sPC}, s{sT0}, 0x10001')
            A(f's_and_b32 s{sT0}, s{sT0}, 1')
            A(f's_lshl_b32 s{sT0}, s{sT0}, 2')
            A(f's_lshr_b32 s{sTR}, s{sT1}, 3')
            A(f's_add_u32 s{sTR}, s{sTR}, s{sT0}')
            A(f's_and_b32 s{sTC}, s{sT1}, 7')
        elif MAP == '1':
            A(f's_mov_b32 s{sTR}, s{sT0}')
            A(f's_and_b32 s{sPR}, s{sT1}, 1')
            A(f's_bfe_u32 s{sPC}, s{sT1}, 0x10001')
            A(f's_lshr_b32 s{sTC}, s{sT1}, 2')
        elif MAP == '2':
            A(f's_lshr_b32 s{sPR}, s{sT0}, 2')
            A(f's_and_b32 s{sT0}, s{sT0}, 3')
            A(f's_lshl_b32 s{sT0}, s{sT0}, 1')
            A(f's_lshr_b32 s{sTR}, s{sT1}, 4')
            A(f's_add_u32 s{sTR}, s{sTR}, s{sT0}')
            A(f's_and_b32 s{sPC}, s{sT1}, 1')
            A(f's_bfe_u32 s{sTC}, s{sT1}, 0x30001')
        else:
            A(f's_and_b32 s{sPR}, s{sT1}, 1')
            A(f's_bfe_u32 s{sPC}, s{sT1}, 0x10001')
            A(f's_and_b32 s{sTR}, s{sT0}, 6')
            A(f's_lshr_b32 s{sT2}, s{sT1}, 4')
            A(f's_add_u32 s{sTR}, s{sTR}, s{sT2}')
            A(f's_and_b32 s{sT0}, s{sT0}, 1')
            A(f's_lshl_b32 s{sT0}, s{sT0}, 2')
            A(f's_bfe_u32 s{sTC}, s{sT1}, 0x20002')
            A(f's_add_u32 s{sTC}, s{sTC}, s{sT0}')
        A(f's_mul_i32 s{sTR}, s{sTR}, 14')
        A(f's_mul_i32 s{sTC}, s{sTC}, 14')
    def srds():
        srd(S_WS, 14, 15, WS_BYTES)
        srd(S_OUT, 10, 11, X_BYTES)
        srd(S_DBG, 12, 13, 256)
    def scalar_setup():
        A(f's_mul_i32 s{sALR}, s{sPR}, 13')
        A(f's_add_i32 s{sALR}, s{sALR}, -6')
        A(f's_mul_i32 s{sALC}, s{sPC}, 13')
        A(f's_add_i32 s{sALC}, s{sALC}, -6')
        A(f's_cmp_ge_u32 s{sW}, 4')
        A(f's_cselect_b32 s{sSTRIP}, -4, 3')
        A(f's_add_i32 s{sSTRIP}, s{sSTRIP}, s{sW}')
        A(f's_lshl_b32 s{sSTRIP}, s{sSTRIP}, 1')
        A(f's_add_u32 s{sOA}, s{sTR}, s{sSTRIP}')
        A(f's_mov_b32 s{sOA+1}, 86016')
        A(f's_movk_i32 s{sOA+2}, 384')
    def scalar_setup2():
        A(f's_mul_i32 s{sT0}, s{sPR}, 6')
        A(f's_add_i32 s{sKR0}, s{sTR}, s{sT0}')
        A(f's_add_i32 s{sKR0}, s{sKR0}, -6')
        A(f's_cmp_eq_i32 s{sKR0}, -6')
        A(f's_cselect_b32 s{sLOR}, 6, 0')
        A(f's_cmp_eq_i32 s{sKR0}, 98')
        A(f's_cselect_b32 s{sHIR}, 7, 13')
        A(f's_cselect_b32 s{sSHR}, 2, 0')
        A(f's_sub_i32 s{sKR0}, s{sKR0}, s{sSHR}')
        A(f's_mul_i32 s{sT0}, s{sPC}, 6')
        A(f's_add_i32 s{sT1}, s{sTC}, s{sT0}')
        A(f's_add_i32 s{sT1}, s{sT1}, -6')
        A(f's_cmp_eq_i32 s{sT1}, -6')
        A(f's_cselect_b32 s{sLOC}, 6, 0')
        A(f's_cmp_eq_i32 s{sT1}, 98')
        A(f's_cselect_b32 s{sHIC}, 7, 13')
        A(f's_lshl_b32 s{sT1}, s{sT1}, 1')
        A(f's_add_i32 s{sT1}, s{sT1}, s{sPC}')
        A(f's_mul_i32 s{sKC0B}, s{sT1}, 384')
        A(f's_max_i32 s{sB0}, s{sSTRIP}, s{sLOR}')
        A(f's_min_i32 s{sB0}, s{sB0}, s{sHIR}')
        A(f's_and_b32 s{sB0}, s{sB0}, -2')
        A(f's_add_u32 s{sBASE}, s{sB0}, s{sSHR}')
        A(f's_mov_b32 s{sNEG}, {NEGINF}')
        A(f's_mov_b32 s{sSC}, {SCALE}')
        A(f's_and_b32 s{sF}, s{sW}, 1')
        A(f's_lshl_b32 s{sF}, s{sF}, 3')
        A(f's_and_b32 s{sT1}, s{sW}, 6')
        A(f's_or_b32 s{sF}, s{sF}, s{sT1}')
        A(f's_add_u32 s{sT1}, s{sW}, 8')
        row_soff(sXR, f's{sT1}')
        A(f's_mul_i32 s{sXL}, s{sT1}, {ROWB}')

    def sreg(G, tl): return SACC + 28*G + 4*tl
    TM = [197, 198, 199, 255, 0]
    def pixaddr(dst, sel, lane):
        t0, t1, t2, t3, t4 = TM
        o = [f'v_lshrrev_b32 v{t0}, 1, v{sel}', f'v_and_b32 v{t3}, 1, v{sel}', f'v_add_u32 v{t0}, s{sOA}, v{t0}',
             f'v_lshl_add_u32 v{t4}, v{t3}, 2, s{sTC}',
             f'v_lshl_add_u32 v{t1}, v{t0}, 1, s{sALR}', f'v_add_u32 v{t2}, 112, v{t0}', f'v_lshlrev_b32 v{t3}, 30, v{t3}',
             f'v_med3_i32 v{t0}, v{t1}, v{t0}, v{t2}', f'v_mul_lo_u32 v{t0}, v{t0}, s{sOA+1}'] + lane(t0)
        for G in range(2):
            for r in range(4):
                d = dst(G, r)
                o += [f'v_add_u32 v{d}, {7*G+r}, v{t4}', f'v_lshl_add_u32 v{t1}, v{d}, 1, s{sALC}',
                      f'v_add_u32 v{t2}, 112, v{d}', f'v_med3_i32 v{d}, v{t1}, v{d}, v{t2}',
                      f'v_mad_u32_u24 v{d}, v{d}, s{sOA+2}, v{t0}']
                if r == 3: o += [f'v_add_u32 v{d}, v{d}, v{t3}']
        return o
    def oaddr(): return pixaddr(lambda G, r: vOA + 4*G + r, vG, lambda t: [f'v_lshl_add_u32 v{t}, v{vN}, 3, v{t}'])
    vXS = ACC
    sXRW, sXB = 84, 86
    def xaddr():
        A(f'v_lshrrev_b32 v{vT}, 3, v{vL}')
        A(f'v_and_b32 v{vT+1}, 7, v{vL}')
        A(f'v_and_b32 v{vT+2}, 6, v{vT}')
        A(f'v_xor_b32 v{vT+1}, v{vT+1}, v{vT+2}')
        A(f'v_add_u32 v{vT+2}, 1, v{vT}')
        A(f'v_lshrrev_b32 v{vT+2}, 3, v{vT+2}')
        A(f'v_lshlrev_b32 v{vT+2}, 26, v{vT+2}')
        A(f'v_or_b32 v{vT+1}, v{vT+1}, v{vT+2}')
        A(f'v_add_u32 v{vT}, s{sTC}, v{vT}')
        for G in range(2):
            if G: A(f'v_add_u32 v{vT}, 7, v{vT}')
            A(f'v_lshl_add_u32 v{vT+2}, v{vT}, 1, s{sALC}')
            A(f'v_add_u32 v{vT+3}, 112, v{vT}')
            A(f'v_med3_i32 v{vT+2}, v{vT+2}, v{vT}, v{vT+3}')
            A(f'v_mul_u32_u24 v{vT+2}, 384, v{vT+2}')
            A(f'v_lshl_add_u32 v{vXS+G}, v{vT+1}, 4, v{vT+2}')
        for rb in range(2):
            A(f's_add_u32 s{sT0}, s{sOA}, {rb}')
            A(f's_lshl_b32 s{sT1}, s{sT0}, 1')
            A(f's_add_i32 s{sT1}, s{sT1}, s{sALR}')
            A(f's_max_i32 s{sT1}, s{sT1}, s{sT0}')
            A(f's_add_i32 s{sT0}, s{sT0}, 112')
            A(f's_min_i32 s{sT1}, s{sT1}, s{sT0}')
            A(f's_mul_i32 s{sXRW+rb}, s{sT1}, 86016')
        A(f's_lshl_b32 s{sXB}, s{sSTRIP}, 12')
        A(f's_lshl_b32 s{sXB+1}, s{sSTRIP}, 11')
    def xload(i):
        j, G, rb = i // 4, (i >> 1) & 1, i & 1
        off = 512 + (j*4 + G*2 + rb)*1024 - 128*j if j < 2 else 61440 + (G*2 + rb)*1024 - 256
        A.skip(f's_add_u32 m0, s{sXB + j//2}, {off}')
        A.skip('s_nop 0')
        A.raw(f'  buffer_load_dwordx4 v{vXS+G}, s[{S_X}:{S_X+3}], s{sXRW+rb} offen offset:{128*j}{XNT} lds')
    def chunk(c):
        for i in range(4*c, 4*c + 4): xload(i)
    def xread_addr():
        A(f'v_and_b32 v{vXS+2}, 6, v{vN}')
        A(f'v_xor_b32 v{vXS+2}, v{vXS+2}, v{vG}')
        A(f'v_lshlrev_b32 v{vXS+6}, 7, v{vN}')
        A(f'v_xor_b32 v{vXS+3}, 4, v{vXS+2}')
        A(f'v_lshl_add_u32 v{vXS+2}, v{vXS+2}, 4, v{vXS+6}')
        A(f'v_lshl_add_u32 v{vXS+3}, v{vXS+3}, 4, v{vXS+6}')
        for q in range(2):
            A(f'v_add_u32 v{vXS+4+q}, s{sXB+1}, v{vXS+2+q}')
            A(f'v_add_u32 v{vXS+2+q}, s{sXB}, v{vXS+2+q}')
    def xread(j):
        for G in range(2):
            for q in range(2):
                r = XQ + 24*G + 4*(2*j + q)
                if j < 2: A(f'ds_read_b128 v[{r}:{r+3}], v{vXS+2+q} offset:{512 + (4*j + 2*G)*1024}')
                else: A(f'ds_read_b128 v[{r}:{r+3}], v{vXS+4+q} offset:{61440 + 2*G*1024}')
    def setup():
        B = Asm()
        def Fv(dst, row):
            B(f'v_and_b32 v{dst}, 1, v{row}')
            B(f'v_lshlrev_b32 v{dst}, 3, v{dst}')
            B(f'v_and_or_b32 v{dst}, v{row}, 6, v{dst}')
        B(f'v_lshrrev_b32 v{vT}, 3, v{vN}')
        B(f'v_add_u32 v{vT}, s{sSTRIP}, v{vT}')
        B(f'v_max_i32 v{vT}, s{sLOR}, v{vT}')
        B(f'v_min_i32 v{vT}, s{sHIR}, v{vT}')
        B(f'v_subrev_u32 v{vT}, s{sB0}, v{vT}')
        B(f'v_and_b32 v{vT+1}, 1, v{vG}')
        B(f'v_sub_u32 v{vT+2}, v{vT+1}, v{vT}')
        B(f'v_ashrrev_i32 v{vR0}, 31, v{vT+2}')
        B(f'v_and_b32 v{vR0}, s{sNEG}, v{vR0}')
        B(f'v_sub_u32 v{vT+2}, v{vT}, v{vT+1}')
        B(f'v_ashrrev_i32 v{vR3}, 31, v{vT+2}')
        B(f'v_and_b32 v{vR3}, s{sNEG}, v{vR3}')
        B(f'v_and_b32 v{vT}, 7, v{vN}')
        B(f'v_lshrrev_b32 v{vT+1}, 1, v{vG}')
        B(f'v_subrev_u32 v{vT+3}, 7, v{vT}')
        B(f'v_ashrrev_i32 v{vT+3}, 31, v{vT+3}')
        B(f'v_and_b32 v{vT+3}, 0x7f, v{vT+3}')
        for G in range(2):
            B(f'v_add_u32 v{vT+2}, {7*G}, v{vT}')
            B(f'v_max_i32 v{vT+2}, s{sLOC}, v{vT+2}')
            B(f'v_min_i32 v{vT+2}, s{sHIC}, v{vT+2}')
            B(f'v_lshlrev_b32 v{vT+2}, v{vT+2}, v{vT+3}')
            B(f'v_lshrrev_b32 v{vT+2}, v{vT+1}, v{vT+2}')
            B(f'v_not_b32 v{vCB+G}, v{vT+2}')
        B(f'v_add_u32 v{vT}, s{sBASE}, v{vT}')
        Fv(vT+1, vT)
        B(f'v_mul_u32_u24 v{vT}, {ROWB}, v{vT}')
        B(f'v_lshrrev_b32 v{vT+2}, 3, v{vN}')
        B(f'v_mul_u32_u24 v{vT+2}, 24, v{vT+2}')
        B(f'v_add_u32 v{vT+2}, v{vT+2}, v{vG}')
        for s in range(4):
            B(f'v_add_u32 v{vT+3}, {4*s}, v{vT+2}')
            B(f'v_xor_b32 v{vT+3}, v{vT+3}, v{vT+1}')
            B(f'v_lshl_add_u32 v{vAS+s}, v{vT+3}, 4, v{vT}')
        B(f'v_and_b32 v{vT}, 1, v{vG}')
        B(f'v_lshlrev_b32 v{vT}, 2, v{vT}')
        B(f'v_lshrrev_b32 v{vT+1}, 2, v{vN}')
        B(f'v_add3_u32 v{vT}, v{vT}, v{vT+1}, s{sBASE}')
        Fv(vT+1, vT)
        B(f'v_mul_u32_u24 v{vT}, {ROWB}, v{vT}')
        B(f'v_and_b32 v{vT+2}, 1, v{vN}')
        B(f'v_lshl_add_u32 v{vT}, v{vT+2}, 3, v{vT}')
        B(f'v_lshrrev_b32 v{vT+2}, 1, v{vG}')
        B(f'v_mul_u32_u24 v{vT+2}, 24, v{vT+2}')
        B(f'v_bfe_u32 v{vT+3}, v{vN}, 1, 1')
        B(f'v_add_u32 v{vT+2}, v{vT+2}, v{vT+3}')
        for ct in range(8):
            B(f'v_add_u32 v{vT+3}, {2*ct}, v{vT+2}')
            B(f'v_xor_b32 v{vT+3}, v{vT+3}, v{vT+1}')
            B(f'v_lshl_add_u32 v{vAP+ct}, v{vT+3}, 4, v{vT}')
        B(f'v_add_u32 v{vWA1}, {SPARE}, v{vWA0}')
        B(f'v_add_u32 v{vWAM}, {MB}, v{vWA0}')
        row_addrs(WF, f's{sF}', B)
        return [l.strip() for l in B.lines]
    def masks():
        out = []
        for tl in range(7):
            a = []
            for G in range(2):
                tau = tl + 3*G
                r = sreg(G, tl)
                a.append([f'v_bfe_i32 v{r+2}, v{vCB+G}, {2*tau}, 1', f'v_and_b32 v{r+1}, s{sNEG}, v{r+2}',
                          f'v_and_b32 v{r+2}, s{sNEG}, v{r+2}', f'v_or_b32 v{r}, v{r+1}, v{vR0}', f'v_or_b32 v{r+3}, v{r+1}, v{vR3}'])
            for x, y in zip(*a): out += [x, y]
        return out

    MF = int(OPT.get('mf', '24'))
    def mshare(a, b):
        A(f's_lshl_b32 s{sT0}, s{sW}, 10')
        A(f's_add_u32 s{sT0}, s{sT0}, {MOFF + 4096*a}')
        for i in range(a, b):
            A(f's_sub_u32 m0, s{sT0}, {MOFF - MB}')
            A(f'buffer_load_dwordx4 v{vWA0}, s[{S_WS}:{S_WS+3}], s{sT0} offen sc1 lds')
            if i < b - 1: A(f's_add_u32 s{sT0}, s{sT0}, 4096')
    TA, TB, TD = 64, 112, 160
    def signal(off, last, tag, wait=True):
        A('v_mov_b32 v192, 1'); A('v_mov_b32 v193, 0')
        A('s_mov_b64 exec, 1')
        A('s_waitcnt vmcnt(0)')
        A(f'buffer_atomic_add v192, v193, s[{S_DBG}:{S_DBG+3}], 0 offen offset:{off} sc0 sc1')
        A('s_mov_b64 exec, -1')
    def publish(off, last, tag):
        A(f'v_readfirstlane_b32 s{sT1}, v192')
        A(f's_cmp_lg_u32 s{sT1}, {last}')
        A(f's_cbranch_scc1 {tag}')
        A('s_mov_b64 exec, 1')
        A(f'buffer_store_dword v192, v193, s[{S_DBG}:{S_DBG+3}], 0 offen offset:{128 + off} sc1')
        A('s_mov_b64 exec, -1')
        A.label(tag)
    def swz16():
        A(f'v_bfe_u32 v{vT+1}, v{vL}, 2, 2')
        A(f'v_lshrrev_b32 v{vT+2}, 5, v{vL}')
        A(f'v_lshlrev_b32 v{vT+3}, 1, v{vT+2}')
        A(f'v_and_b32 v{vT+4}, 3, v{vL}')
        A(f'v_xor_b32 v{vT+3}, v{vT+3}, v{vT+4}')
        A(f'v_lshlrev_b32 v{vT+3}, 4, v{vT+3}')
        A(f's_movk_i32 s{sT5}, 1152')
    def wread():
        A(f'v_lshrrev_b32 v{vT}, 3, v{vN}')
        A(f'v_lshlrev_b32 v{vT}, 1, v{vT}')
        A(f'v_xor_b32 v{vT}, v{vT}, v{vG}')
        A(f'v_lshl_add_u32 v{vT}, v{vN}, 2, v{vT}')
        A(f'v_lshlrev_b32 v{MWA+3}, 4, v{vT}')
        A(f'v_add_u32 v{MWA+3}, {MB}, v{MWA+3}')
    def wlanes():
        swz16()
        A(f'v_lshrrev_b32 v{vT}, 2, v{vL}')
        A(f'v_mad_u32_u24 v{vWD+3}, v{vT}, s{sT5}, v{vT+3}')
        wread()
    A(f's_cmp_lg_u32 s{sW}, 0')
    A('s_cbranch_scc1 M_comp')
    A('s_getpc_b64 s[16:17]')
    A('s_and_b32 s16, s16, -256')
    A('s_and_b32 s17, s17, 0xffff')
    A('s_mov_b32 s18, CODE_END-' + NAME)
    A('s_mov_b32 s19, 0x00020000')
    A(f's_lshr_b32 s{sT0}, s2, 3')
    A(f's_lshl_b32 s{sT0}, s{sT0}, 10')
    A(f'buffer_load_dwordx4 v[188:191], v{vWA0}, s[16:19], s{sT0} offen')
    A(f's_cmp_ge_u32 s2, {NMP + 72}')
    A('s_cbranch_scc1 H_nom')
    swz16()
    A(f's_mov_b32 m0, {MB}')
    A(f's_mov_b32 s{S_W+2}, {192*576*2}'); A(f's_mov_b32 s{S_W+3}, 0x00020000')
    A(f's_cmp_ge_u32 s2, {NMP}')
    A('s_cbranch_scc1 H_vf')
    A(f'v_lshl_add_u32 v{vT}, v{vG}, 3, v{vT+1}')
    A(f's_mul_hi_u32 s{sT0}, s2, 0x2aaaaaab')
    A(f's_mul_i32 s{sT1}, s{sT0}, 6')
    A(f's_sub_u32 s{sT1}, s2, s{sT1}')
    A(f's_mul_i32 s{sT1}, s{sT1}, {32*1152}')
    A(f's_mul_i32 s{sT0}, s{sT0}, {32*1152}')
    A(f's_sub_u32 s{sT0}, s{sT0}, s{sT1}')
    A(f's_add_i32 s{sT0}, s{sT0}, {384 - 4608}')
    A(f's_movk_i32 s{sT2}, 4608')
    A(f's_mov_b32 s{sT4}, {MB + 24576}')
    A('s_branch H_tl0')
    A.label('H_vf')
    A(f'v_lshrrev_b32 v{vT}, 2, v{vL}')
    A(f's_sub_u32 s{sVT}, s2, {NMP}')
    A(f's_mul_hi_u32 s{sVO}, s{sVT}, 0x15555556')
    A(f's_mul_i32 s{sT1}, s{sVO}, {32*1152}')
    A(f's_addk_i32 s{sT1}, 768')
    A(f's_movk_i32 s{sT2}, {16*1152}')
    A(f's_mov_b32 s{sT4}, {MB + 12288}')
    A.label('H_tl0')
    A(f'v_mad_u32_u24 v{vWD}, v{vT}, s{sT5}, v{vT+3}')
    A('s_waitcnt lgkmcnt(0)')
    A(f's_mov_b64 s[{S_W}:{S_W+1}], s[6:7]')
    A.label('H_tl')
    for k in range(6):
        A(f'buffer_load_dwordx4 v{vWD}, s[{S_W}:{S_W+3}], s{sT1} offen offset:{64*k} lds')
        A(f's_addk_i32 m0, {960 if k < 5 else 960 + 384}')
    A(f's_add_u32 s{sT1}, s{sT1}, s{sT2}')
    A(f's_mov_b32 s{sT3}, s{sT2}'); A(f's_mov_b32 s{sT2}, s{sT0}'); A(f's_mov_b32 s{sT0}, s{sT3}')
    A(f's_cmp_lt_u32 m0, s{sT4}')
    A('s_cbranch_scc1 H_tl')
    A(f's_cmp_ge_u32 s2, {NMP}')
    A('s_cbranch_scc1 H_vf2')
    A('s_barrier')
    A('s_branch H_task2')
    A.label('H_vf2')
    srd(S_WO, 8, 9, 192*192*2)
    A(f'v_lshrrev_b32 v{vT}, 1, v{vL}')
    A(f'v_mul_u32_u24 v{vT}, 384, v{vT}')
    A(f'v_and_b32 v{vT+1}, 1, v{vL}')
    A(f'v_lshl_add_u32 v{vT}, v{vT+1}, 4, v{vT}')
    A(f's_mul_i32 s{sT1}, s{sVO}, 12')
    A(f's_sub_u32 s{sT1}, s{sVT}, s{sT1}')
    A(f's_lshl_b32 s{sT2}, s{sT1}, 5')
    A.label('H_tl2')
    A(f'buffer_load_dwordx4 v{vT}, s[{S_WO}:{S_WO+3}], s{sT2} offen lds')
    A('s_addk_i32 m0, 1024')
    A(f's_addk_i32 s{sT2}, {32*384}')
    A(f's_cmp_lt_u32 m0, {MB + 18432}')
    A('s_cbranch_scc1 H_tl2')
    A('s_branch H_nom')
    A.label('M_comp'); A.reset()
    nstamp[0] = 1
    decode()
    scalar_setup()
    xaddr()
    A('s_waitcnt lgkmcnt(0)')
    srd(S_X, 4, 5, X_BYTES)
    stamp()
    A(f's_cmp_ge_u32 s2, {NMP}')
    A('s_cbranch_scc1 M_x0')
    A.skip('s_barrier')
    A.label('M_x0')
    XK = int(OPT.get('xk', '3'))
    if XK:
        for i in range(XK): xload(i)
    else:
        chunk(0)
        A(f's_cmp_lt_u32 s2, {NMP}')
        A('s_cbranch_scc1 M_x1')
        chunk(1)
        chunk(2)
    A.label('M_x1')
    A('s_branch M_c2')
    sv = nstamp[0]
    A.label('H_task2'); A.reset()
    nstamp[0] = 1
    wread()
    srd(S_X, 4, 5, X_BYTES)
    srds()
    A(f's_lshl_b32 s{sT0}, s2, 11')
    A(f's_add_u32 s{sT0}, s{sT0}, {MOFF}')
    A('s_waitcnt vmcnt(0)')
    stamp()
    for k in range(6):
        for q in range(4):
            r = TA + 24*q + 4*k
            A(f'ds_read_b128 v[{r}:{r+3}], v{MWA+3} offset:{(6*q + k)*1024}')
        if k >= 2:
            kk = k - 2
            for h in range(2):
                for hp in range(2):
                    d = TD + 8*h + 4*hp
                    A(mf(d, TA + 24*hp + 4*kk, TB + 24*h + 4*kk, None if kk == 0 else d))
    for kk in (4, 5):
        for h in range(2):
            for hp in range(2):
                d = TD + 8*h + 4*hp
                A(mf(d, TA + 24*hp + 4*kk, TB + 24*h + 4*kk, d))
    for h in range(2):
        for q in range(4):
            A(f'v_cvt_pk_bf16_f32 v{TD+16+4*h+q}, v{TD+8*h+2*q}, v{TD+8*h+2*q+1}')
        A(f'buffer_store_dwordx4 v[{TD+16+4*h}:{TD+19+4*h}], v{vWA0}, s[{S_WS}:{S_WS+3}], s{sT0} offen offset:{1024*h} sc1')
    signal(0, NMP - 1, 'H_p1')
    if not XK: A('s_barrier')
    A('s_waitcnt vmcnt(0)')
    publish(0, NMP - 1, 'H_p1')
    if not XK: A('s_barrier')
    A('s_branch H_join')
    A.label('H_nom'); A.reset()
    nstamp[0] = 1
    A('s_waitcnt lgkmcnt(0)')
    srd(S_X, 4, 5, X_BYTES)
    srds()
    stamp()
    A('s_branch H_join')
    A.label('M_c2'); A.reset()
    nstamp[0] = sv
    stamp()
    if OPT.get('tlb', '0') == '1':
        A(f's_add_u32 s90, s10, s{sXRW}'); A('s_addc_u32 s91, s11, 0')
        A.raw('  s_load_dword s83, s[90:91], 0')
        A.raw('  s_load_dword s83, s[14:15], 0x38000')
        A(f's_movk_i32 s{sOA+2}, 384')
    srds(); scalar_setup2()
    rest = setup() + oaddr() + masks()
    if XK:
        per = int(OPT.get('xv', '24'))
        PG = int(OPT.get('pg', '10'))
        xread_addr()
        for i in range(XK, 12):
            for t in rest[:per]: A(t)
            rest = rest[per:]
            A.raw(f'  s_waitcnt vmcnt({XK - 1})')
            xload(i)
            if i == PG:
                A.raw(f'  s_waitcnt vmcnt({PG - 7})')
                xread(0); xread(1)
                A('s_waitcnt lgkmcnt(0)')
                A('s_barrier')
        for t in rest: A(t)
    else:
        for t in rest: A(t)
        A(f's_cmp_ge_u32 s2, {NMP}')
        A('s_cbranch_scc1 M_x2')
        A.skip('s_barrier')
        chunk(1)
        A.skip('s_barrier')
        chunk(2)
    A.label('M_x2')
    stamp()
    A('s_waitcnt vmcnt(0)')
    xread(2)
    row_soff(sT2, f's{sW}')
    A('s_waitcnt lgkmcnt(0)')
    stamp()
    A('s_barrier')
    stamp()
    ER = int(OPT.get('er', '4'))
    A(f's_cmp_lt_u32 s{sW}, 4')
    A('s_cbranch_scc1 M_xl')
    A.skip('s_setprio 1')
    A.label('M_xl')
    A(f's_cmp_ge_u32 s{sW}, {ER}')
    A('s_cbranch_scc1 M_pa')
    for j in range(8):
        A(f's_add_u32 m0, s{sXL}, {16*PIECE[j] - 8*ROWB}')
        A(f'buffer_load_dwordx4 v{WF+j}, s[{S_X}:{S_X+3}], s{sT2} offen{KNT} lds')
    A.label('M_pa'); A.reset()
    padat('A')
    stamp()
    bgA = []
    xrow = []
    for j in range(8):
        xrow.append(f's_add_u32 m0, s{sXL}, {16*PIECE[j]}\n s_nop 0\n buffer_load_dwordx4 v{WF+j}, s[{S_X}:{S_X+3}], s{sXR} offen{KNT} lds')
    def finA(sig, accb):
        out = []
        for G in range(2):
            for q in range(4):
                out.append(f'v_cvt_pk_bf16_f32 v{QP+24*G+4*sig+q}, v{accb+8*G+2*q}, v{accb+8*G+2*q+1}')
        return out
    def locA(f):
        if f < 60: return ('lds', vWAM, f*1024)
        if f < 62: return ('reg', WF + 4*(f-60))
        return ('lds', vWA1, (f-62)*1024)
    def bar():
        A('s_barrier')
        if OPT.get('hr', '1') == '0': bgA[0:0] = xrow
    def bar4():
        A('s_waitcnt vmcnt(0)'); A('s_barrier')
        prio(3, 2)
    def b0b():
        A('s_waitcnt vmcnt(0)'); A('s_barrier')
    hA = {2: bar, 4: bar4}
    xm = {2*48+1: [f'ds_read_b128 v[{WF}:{WF+3}], v{vWAM} offset:{60*1024}'],
          2*49+1: [f'ds_read_b128 v[{WF+4}:{WF+7}], v{vWAM} offset:{61*1024}']}
    pend = gemm_phase(XQ, locA, finA, hooks=hA, bg=bgA, extra_mem=xm, ghooks={2*(MF - 6) - 1: lambda: A('s_barrier')})
    assert not bgA
    stamp()
    padat('S')
    cond('M_l1', False, lambda: A.skip('s_barrier'))
    seq = []
    for (a1, a2) in ((0, 3), (1, 4), (2, 5), (7, 6), (8, 9)):
        for s in range(6):
            seq.append((a1, s)); seq.append((a2, s))
    def users(tau):
        u = []
        if tau <= 6: u.append((0, tau))
        if tau >= 3: u.append((1, tau - 3))
        return u
    def rdS(i):
        tau, s = seq[i]
        buf = RING + 4*(i % 8)
        return f'ds_read_b128 v[{buf}:{buf+3}], v{vAS + (s % 4)} offset:{tau*768 + (256 if s >= 4 else 0)}'
    D = 7
    for i in range(D): A(rdS(i))
    for t in pend: A(t)
    vM = [12, 13]; vX = [14, 15]
    A(f's_mov_b32 s{sT1}, 0xff7fffff')
    ms, mem, side = [], {}, []
    started = [False, False]; ndone = [0, 0]
    def xl(G):
        o = []
        for sw in ('v_permlane32_swap_b32', 'v_permlane16_swap_b32'):
            o += [f'v_mov_b32 v{vX[G]}, v{vM[G]}', f'{sw} v{vM[G]}, v{vX[G]}', f'v_max_f32 v{vM[G]}, v{vM[G]}, v{vX[G]}']
        return o + [f'v_mul_f32 v{vM[G]}, s{sSC}, v{vM[G]}']
    for i, (tau, s) in enumerate(seq):
        a = RING + 4*(i % 8)
        for (G, tl) in users(tau):
            r = sreg(G, tl)
            ms.append(mf(r, a, QP + 24*G + 4*s, r))
            if s == 5:
                e = len(ms) + 3
                side.append((e, f'v_max3_f32 v{vM[G]}, v{r}, v{r+1}, ' + (f'v{vM[G]}' if started[G] else f's{sT1}')))
                side.append((e, f'v_max3_f32 v{vM[G]}, v{r+2}, v{r+3}, v{vM[G]}'))
                started[G] = True; ndone[G] += 1
        if i % 12 == 11:
            for G in range(2):
                if ndone[G] == 7:
                    side += [(len(ms) + 3 + 2*k, t) for k, t in enumerate(xl(G))]; ndone[G] = 8
        if i + D < len(seq): mem[len(ms) - 1] = [rdS(i + D)]
    bgS = [f'v_mov_b32 v{PP+q}, 0' for q in (14, 15, 16, 17)] + [f'v_mov_b32 v{ONES+q}, 0x3f803f80' for q in range(4)]
    rest = stream(ms, mem, side, bg=bgS)
    assert not bgS
    stamp()
    prio(1, 0)
    for t in rest: A(t)
    def preg(G, tl): return PP + 16*G + 2*(tl + G)
    seqP = [(sig, u, h) for sig in range(6) for u in range(5) for h in range(2)]
    def rdP(i):
        sig, u, h = seqP[i]
        ct = 2*sig + h
        buf = RING + 4*(i % 8)
        return [f'ds_read_b64_tr_b16 v[{buf+2*hh}:{buf+2*hh+1}], v{vAP + (ct % 8)} offset:{(4*u+2*hh)*384 + (256 if ct >= 8 else 0)}' for hh in range(2)]
    DP = 6
    def b4L(): A.skip('s_barrier')
    B3AT, B4AT = int(OPT.get('b3', '1')), int(OPT.get('b4', '6'))
    if B3AT < 0: cond('M_e2', True, lambda: A.skip('s_barrier'))
    for tl in range(7):
        for G in range(2):
            r = sreg(G, tl)
            for k in range(4): A(f'v_fma_f32 v{r+k}, v{r+k}, s{sSC}, -v{vM[G]}')
            for k in range(4): A(f'v_exp_f32 v{r+k}, v{r+k}')
        for G in range(2):
            r = sreg(G, tl)
            p = preg(G, tl)
            A(f'v_cvt_pk_bf16_f32 v{p}, v{r}, v{r+1}')
            A(f'v_cvt_pk_bf16_f32 v{p+1}, v{r+2}, v{r+3}')
        if tl == B3AT: cond('M_e2', True, lambda: A.skip('s_barrier'))
        if tl >= B3AT:
            for t2 in range(0 if tl == max(B3AT, 0) else tl, tl + 1):
                if t2 % 2 == 0: A(f's_mov_b32 s{sT0}, {(10 + 2*t2)*1024}')
                for G in range(2):
                    r = sreg(G, t2)
                    A(f'buffer_load_dwordx4 v[{r}:{r+3}], v{vWA0}, s[{S_WS}:{S_WS+3}], s{sT0} offen offset:{1024*(2*(t2%2)+G)} sc1')
        if tl == 5:
            for i in range(DP):
                for t in rdP(i): A(t)
        if tl == B4AT: cond('M_l2', False, b4L)
    stamp()
    prio(3, 2)
    padat('P')
    ms, first, side, hk = [], [], [], {}
    def b5L():
        cond('M_l3', False, lambda: A.skip('s_barrier'))
    if int(OPT.get('b5', '1')) < 0: b5L()
    sums = [mf(vINV + 4*G, PP + 16*G + 4*u, ONES, None if u == 0 else vINV + 4*G) for u in range(4) for G in range(2)]
    for i, (sig, u, h) in enumerate(seqP):
        a = RING + 4*(i % 8)
        accb = ACC + 16*(sig & 1)
        first.append(len(ms))
        for G in range(2):
            uu = u - G
            if 0 <= uu <= 3:
                d = accb + 8*G + 4*h
                ms.append(mf(d, a, PP + 16*G + 4*uu, None if uu == 0 else d))
        if i % 10 in (1, 9) and 1 <= sig <= 4: ms.append(sums.pop(0))
        if i % 10 == 9:
            e = len(ms) - 1
            side += [(e + 4, t, e + 16) for t in finA(sig, accb)]
            if sig == int(OPT.get('b5', '1')): hk[e] = b5L
            if sig == int(OPT.get('pv', '3')) and OPT.get('pe') == '4': hk[e] = lambda: prio(3, 1)
    assert not sums
    mem = {}
    k = 0
    nrd = 2*(len(seqP) - DP)
    ngap = first[-1] - 5
    for j in range(DP, len(seqP)):
        for t in rdP(j):
            gp = (k * ngap) // nrd
            if j >= 8: gp = max(gp, first[j - 7] - 1)
            assert gp < first[j] - 3, (j, gp, first[j])
            mem.setdefault(gp, []).append(t); k += 1
    pend = stream(ms, mem, side, hk)
    A('s_waitcnt vmcnt(0)')
    stamp()
    W4 = OPT.get('w4', '1') == '1'
    def wvo(f0, n):
        for i in range(n):
            if i % 4 == 0:
                A.skip(f's_mov_b32 m0, {(f0 - 24 + i)*1024}')
                A.skip(f's_mov_b32 s{sT4}, {(f0 + i)*1024}')
            A.raw(f'  buffer_load_dwordx4 v{vWA0}, s[{S_WS}:{S_WS+3}], s{sT4} offen offset:{1024*(i%4)} sc1 lds')
    def b4E():
        if W4:
            A.skip(f's_cmp_lg_u32 s{sW}, 4')
            A.skip('s_cbranch_scc1 M_e3a')
            wvo(24, 15)
            A.raw('  s_waitcnt vmcnt(0)')
            A.skip('s_barrier')
            wvo(39, 16)
            A.skip('s_branch M_e3')
            A.label('M_e3a')
            A.skip('s_barrier')
            return
        A.skip('s_barrier')
        A.skip(f's_mul_i32 s{sT0}, s{sW}, 9216')
        A.skip(f's_sub_u32 s{sT0}, s{sT0}, {4*9216 - 12288}')
        A.skip(f's_add_u32 s{sT4}, s{sT0}, {24*1024}')
        for blk in range(3):
            A.skip(f's_mov_b32 m0, s{sT0}')
            A.skip(f's_add_u32 s{sT0}, s{sT0}, 3072')
            for i in range(3):
                A.raw(f'  buffer_load_dwordx4 v{vWA0}, s[{S_WS}:{S_WS+3}], s{sT4} offen offset:{1024*i} sc1 lds')
            A.skip(f's_add_u32 s{sT4}, s{sT4}, 3072')
    cond('M_e3', True, b4E)
    def finE(sig, accb):
        out = []
        for G in range(2):
            for r in range(4):
                for h in range(2):
                    out.append(f'v_mul_f32 v{accb+8*G+4*h+r}, v{accb+8*G+4*h+r}, v{vINV+4*G+r}')
                o = OST + 8*G + 2*r
                out.append(f'v_cvt_pk_bf16_f32 v{o+(sig&1)}, v{accb+8*G+r}, v{accb+8*G+4+r}')
                if sig & 1:
                    out.append(f'buffer_store_dwordx2 v[{o}:{o+1}], v{vOA+4*G+r}, s[{S_OUT}:{S_OUT+3}], 0 offen offset:{128*(sig>>1)}{ONT[sig>>1]}')
        return out
    def locE(f):
        if f < 10: return ('lds', vWA1, f*1024)
        if f < 24: return ('reg', sreg((f-10) % 2, (f-10) // 2))
        return ('lds', vWA0, (f-24)*1024)
    def b5E():
        def body():
            A.raw(f'  s_waitcnt vmcnt({len(A.vm)})'); A.skip('s_barrier')
        cond('M_e4', True, body)
        padat('O')
        stamp()
    for t in pend: A(t)
    bgE = [f'v_rcp_f32 v{vINV+q}, v{vINV+q}' for q in range(8)]
    hE = {}
    if OPT.get('pe') == '1': hE = {3: lambda: prio(1, 0)}
    if OPT.get('pe') == '2': hE = {2: lambda: prio(1, 2), 4: lambda: prio(1, 0)}
    if OPT.get('pe') == '3': hE = {4: lambda: prio(1, 2)}
    if OPT.get('pe') == '4':
        hE = {2: lambda: prio(2, 0), 4: lambda: prio(1, 0)}
        prio(3, 0)
    pend = gemm_phase(QP, locE, finE, swap=True, bg=bgE, hooks=hE, pace=int(OPT.get('pace', '4')), D=int(OPT.get('de', '4')), ghooks={2*((39 if W4 else 24) - int(OPT.get('de', '4'))) - 1: b5E})
    padat('Z')
    for t in pend: A(t)
    if STAMP:
        stamp()
        A('s_waitcnt vmcnt(0)')
        stamp(1)
        write_stamps()
    if 'pad' in OPT:
        A('s_waitcnt vmcnt(0)')
        A.label('PADL')
        A.raw('  s_memrealtime s[98:99]')
        A.raw('  s_waitcnt lgkmcnt(0)')
        A('s_sub_u32 s98, s98, s96')
        A(f's_cmp_lt_u32 s98, {OPT["pad"]}')
        A('s_cbranch_scc1 PADL')
    A('s_endpgm')

    A.label('M_helper'); A.reset()
    nstamp[0] = 2
    A.label('H_join'); A.reset()
    stamp()
    wread()
    A(f's_sub_u32 s{sVT}, s2, {NMP}')
    A('v_mov_b32 v192, 1'); A('v_mov_b32 v193, 0')
    A(f'v_bfe_u32 v180, v{vN}, 1, 1')
    A('v_mul_u32_u24 v180, 12288, v180')
    A(f'v_and_b32 v181, 1, v{vN}')
    A('v_lshl_add_u32 v180, v181, 10, v180')
    A(f'v_lshrrev_b32 v181, 2, v{vN}')
    A('v_lshl_add_u32 v180, v181, 4, v180')
    A(f'v_lshl_add_u32 v180, v{vG}, 8, v180')
    A(f'v_lshlrev_b32 v181, 3, v{vN}')
    A(f'v_lshl_add_u32 v181, v{vG}, 8, v181')
    A(f'v_add_u32 v181, {MB + 12288}, v181')
    VS = 4*ROWB + 1024
    VA, VB, VD = 96, 144, 168
    t0, t1 = VD + 12, VD + 13
    def isv(lbl):
        A(f's_cmp_ge_u32 s{sVT}, 72')
        A(f's_cbranch_scc1 {lbl}')
    decode(); scalar_setup(); scalar_setup2()
    row_addrs(WF, '0')
    row_addrs(vAP, '8')
    def rows(lst):
        for i in lst:
            row_soff(sT1, str(i))
            b = vAP if i & 1 else WF
            for j in range(8):
                a = b + j
                if i & 6:
                    a = 64 + j
                    A(f'v_xor_b32 v{a}, {16*(i & 6)}, v{b+j}')
                A(f's_mov_b32 m0, {i*ROWB + 16*PIECE[j]}')
                A(f'buffer_load_dwordx4 v{a}, s[{S_X}:{S_X+3}], s{sT1} offen{KNT} lds')
            if len(A.vm) >= 54: A('s_waitcnt vmcnt(40)')
    isv('H_v2')
    A(f's_mul_hi_u32 s{sT0}, s{sVT}, 0x15555556')
    A(f's_mul_i32 s{sT1}, s{sT0}, 12')
    A(f's_sub_u32 s{sT1}, s{sVT}, s{sT1}')
    A(f's_lshr_b32 s{sT2}, s{sT1}, 2')
    A(f's_mul_i32 s{sVO}, s{sT2}, 24576')
    A(f's_and_b32 s{sT1}, s{sT1}, 3')
    A(f's_lshl_b32 s{sT1}, s{sT1}, 6')
    A(f's_add_u32 s{sVO}, s{sVO}, s{sT1}')
    A(f's_lshl_b32 s{sT1}, s{sT0}, 11')
    A(f's_add_u32 s{sVO}, s{sVO}, s{sT1}')
    A('s_waitcnt vmcnt(0)')
    for i in range(12):
        A(f'ds_read_b128 v[{VA+4*i}:{VA+4*i+3}], v{MWA+3} offset:{1024*i}')
    A('s_waitcnt lgkmcnt(2)')
    for k in range(6):
        for hh in range(2):
            A(f'ds_read_b64_tr_b16 v[{VB+4*k+2*hh}:{VB+4*k+2*hh+1}], v{t1} offset:{1024*k + 128*hh}')
    A('s_waitcnt lgkmcnt(0)')
    for k in range(6):
        for hp in range(2):
            A(mf(VD + 4*hp, VA + 24*hp + 4*k, VB + 4*k, None if k == 0 else VD + 4*hp))
    for q in range(4):
        A(f'v_cvt_pk_bf16_f32 v{VD+8+q}, v{VD+2*q}, v{VD+2*q+1}')
    A(f'buffer_store_dwordx4 v[{VD+8}:{VD+11}], v{t0}, s[{S_WS}:{S_WS+3}], s{sVO} offen sc1')
    A.label('H_v2'); A.reset()
    A('s_barrier')
    poll('H_pollM', 128)
    A(f's_lshr_b32 s{sT0}, s2, 3')
    A(f's_mul_i32 s{sT0}, s{sT0}, 2304')
    A(f's_add_u32 s{sT0}, s{sT0}, {MOFF}')
    for i in range(3):
        A(f'buffer_load_dwordx4 v[{80+4*i}:{83+4*i}], v{vWA0}, s[{S_WS}:{S_WS+3}], s{sT0} offen offset:{1024*i} sc1')
    stamp()
    for i in range(72):
        if i % 4 == 0:
            A(f's_mov_b32 m0, {MB + i*1024}')
            A(f's_mov_b32 s{sT4}, {MOFF + i*1024}')
        A(f'buffer_load_dwordx4 v{vWA0}, s[{S_WS}:{S_WS+3}], s{sT4} offen offset:{1024*(i%4)} sc1 lds')
        if i == MF + 27:
            A('s_waitcnt vmcnt(28)')
            stamp()
            A('s_barrier')
            stamp()
    hr = [0] + list(range(ER, 11))
    R1, R2 = int(OPT.get('r1', '2')), int(OPT.get('r2', '4'))
    A('s_waitcnt vmcnt(30)')
    rows(hr[:R1])
    A(f's_waitcnt vmcnt({8*R1})')
    isv('H_v3')
    A('s_mov_b64 exec, 1')
    A.raw(f'  buffer_atomic_add v192, v193, s[{S_DBG}:{S_DBG+3}], 0 offen offset:4 sc1')
    A('s_mov_b64 exec, -1')
    A.label('H_v3')
    A('s_barrier')
    rows(hr[R1:R1+R2])
    stamp()
    A('s_barrier')
    rows(hr[R1+R2:] + [11, 12, 13, 14, 15])
    A('s_waitcnt vmcnt(0)')
    stamp()
    A('s_barrier')
    rows([16, 17, 18, 19])
    A('s_waitcnt vmcnt(0)')
    stamp()
    poll('H_pollV', 4, 72)
    A(f's_lshr_b32 s{sT0}, s2, 3')
    A(f's_mul_i32 s{sT0}, s{sT0}, 2304')
    for i in range(3):
        A(f'buffer_load_dwordx4 v[{80+4*i}:{83+4*i}], v{vWA0}, s[{S_WS}:{S_WS+3}], s{sT0} offen offset:{1024*i} sc1')
    stamp()
    A('s_barrier')
    def wfr(src0, n, lds0):
        for i in range(n):
            if i % 4 == 0:
                A(f's_mov_b32 m0, {lds0 + i*1024}')
                A(f's_mov_b32 s{sT4}, {(src0 + i)*1024}')
            A(f'buffer_load_dwordx4 v{vWA0}, s[{S_WS}:{S_WS+3}], s{sT4} offen offset:{1024*(i%4)} sc1 lds')
    wfr(0, 10, SPARE)
    PF = int(OPT.get('pf', '0'))
    if PF:
        A(f'v_lshrrev_b32 v80, 2, v{vL}')
        A('v_min_u32 v80, 13, v80')
        A(f'v_add_u32 v80, s{sTC}, v80')
        A(f'v_lshl_add_u32 v81, v80, 1, s{sALC}')
        A('v_add_u32 v82, 112, v80')
        A('v_med3_i32 v80, v81, v80, v82')
        A('v_mul_u32_u24 v80, 384, v80')
        A(f'v_and_b32 v81, 3, v{vL}')
        A('v_min_u32 v81, 2, v81')
        A('v_lshl_add_u32 v80, v81, 7, v80')
        for r in range(14):
            A(f's_add_u32 s{sT0}, s{sTR}, {r}')
            A(f's_lshl_b32 s{sT1}, s{sT0}, 1')
            A(f's_add_i32 s{sT1}, s{sT1}, s{sALR}')
            A(f's_max_i32 s{sT1}, s{sT1}, s{sT0}')
            A(f's_add_i32 s{sT0}, s{sT0}, 112')
            A(f's_min_i32 s{sT1}, s{sT1}, s{sT0}')
            A(f's_mul_i32 s{sT1}, s{sT1}, 86016')
            for h in range(PF):
                A.raw(f'  buffer_load_dword v{84+h}, v80, s[{S_OUT}:{S_OUT+3}], s{sT1} offen offset:{64*h}')
        A(f's_waitcnt vmcnt({14*PF})')
    else:
        A('s_waitcnt vmcnt(0)')
    stamp()
    A('s_barrier')
    if W4: wfr(55, 17, 31*1024)
    else: wfr(24, 12, 0)
    A('s_waitcnt vmcnt(0)')
    stamp()
    A('s_barrier')
    if STAMP:
        stamp(1)
        write_stamps()
    A.label('M_done')
    A('s_endpgm')
    A.label('CODE_END')

gen_main()
A.raw('.section .rodata,"a"')
A.raw('.p2align 6')
A.raw(f'.amdhsa_kernel {NAME}')
A.raw('  .amdhsa_next_free_vgpr 256')
A.raw('  .amdhsa_next_free_sgpr 102')
A.raw('  .amdhsa_accum_offset 256')
A.raw('  .amdhsa_group_segment_fixed_size 0')
A.raw('  .amdhsa_kernarg_size 48')
A.raw('  .amdhsa_user_sgpr_count 2')
A.raw('  .amdhsa_user_sgpr_kernarg_segment_ptr 1')
A.raw('  .amdhsa_system_sgpr_workgroup_id_x 1')
A.raw('.end_amdhsa_kernel')
open(OUT, 'w').write(A.text())
print('instr', A.n_inst, 'nops', A.nops, 'maxv', A.maxv)
```

```python
import sys, struct
sys.path.insert(0, 'gen')
from asmlib import Asm

OUT = sys.argv[1] if len(sys.argv) > 1 else 'standalone__neighborhood_nat__vision.s'
OPT = dict(a.split('=') if '=' in a else (a, '1') for a in sys.argv[2:])
STAMP = 'stamp' in OPT
XNT = ' nt' if OPT.get('xnt', '0') == '1' else ''
KNT = ' nt' if OPT.get('knt', '0') == '1' else ''
ONT = [{'0': '', '1': ' nt', '2': ' sc1', '3': ' sc0 sc1', '4': ' sc0 sc1 nt'}[c] for c in (OPT.get('ont', '2') * 3)[:3]]
NAME = 'standalone__neighborhood_nat__vision_kernel'

X_BYTES = 19267584
WS_BYTES = 268435456
ROWB = 7680
MB = 90112
SPARE = 153600
MOFF = 0x20000
NMP = 36
GAP = 73728
def f32bits(x): return struct.unpack('<I', struct.pack('<f', x))[0]
SCALE = f32bits(192 ** -0.5 * 1.4426950408889634)
NEGINF = 0xff800000
PIECE = [0, 64, 128, 192, 256, 320, 384, 416]

A = Asm()
hdr = open('standalone__neighborhood_nat__vision.s.ref').read().split('\n')
for ln in hdr:
    if ln.startswith('; @launch'): break
    A.raw(ln)
A.raw('; @launch grid=(256,1,1) block=(512,1,1) lds=163840')
A.raw('.amdgcn_target "amdgcn-amd-amdhsa--gfx950"')
A.raw('.text')

def srd(d, lo, hi, nbytes):
    A(f's_mov_b32 s{d}, s{lo}'); A(f's_and_b32 s{d+1}, s{hi}, 0xffff')
    A(f's_mov_b32 s{d+2}, {nbytes}'); A(f's_mov_b32 s{d+3}, 0x00020000')
def mf(d, a, b, c):
    cs = '0' if c is None else f'v[{c}:{c+3}]'
    return f'v_mfma_f32_16x16x32_bf16 v[{d}:{d+3}], v[{a}:{a+3}], v[{b}:{b+3}], {cs}'

S_X, S_OUT, S_WS, S_W, S_WO, S_DBG = 16, 20, 24, 28, 32, 36
sW, sPR, sPC, sTR, sTC = 40, 41, 42, 43, 44
sKR0, sKC0B = 45, 46
sLOR, sHIR, sSHR, sLOC, sHIC = 47, 48, 49, 50, 51
sBASE, sSTRIP, sNEG = 52, 53, 54
sT0, sT1, sT2, sT3, sT4, sT5 = 55, 56, 57, 58, 59, 60
sALR, sCB, sSC = 61, 62, 63
sCS, sCC, sPS = 50, 91, 3
NT = (6, 7)
sST = 64
sXR, sXL = 100, 101
sOA = 88
sB0, sF = 92, 93
sM1, sM2 = 0, 10
sVT, sVO = 94, 95
vL, vG, vN = 1, 2, 3
vT = 4
vR0, vR3, vCB = 12, 13, 14
XQ = 16
PP = 16
vOA = 4
vINV = 56
SACC = 64
OST = 16
W1 = 64
ONES = 48
QP = 120
ACC = 168
RING = 200
WF = 232
vAS = 240
vAP = 244
vWA0, vWA1, vWAM = 252, 253, 254
vSW, vSR = 255, 199
vWD = RING
MBQ = 64
MACC = 136
MPK = 184
MWA = 192

nstamp = [0]
def stamp(real=None):
    if not STAMP: return
    i = nstamp[0]; nstamp[0] += 1
    assert i < 14
    A.raw(f'  s_mem{"real" if "rt" in OPT else ""}time s[{sST+2*i}:{sST+1+2*i}]')
    if real is not None:
        A.raw(f'  s_memrealtime s[{96+2*real}:{97+2*real}]')
def write_stamps():
    n = nstamp[0]
    A('s_waitcnt lgkmcnt(0)')
    A(f'v_mov_b32 v{RING}, 0')
    if 'dbg' in OPT:
        lbl = f'WS_skip{n}'
        A(f's_cmp_lg_u32 s2, {OPT["dbg"].split(",")[0]}')
        A(f's_cbranch_scc1 {lbl}')
        A(f's_cmp_lg_u32 s{sW}, {OPT["dbg"].split(",")[1]}')
        A(f's_cbranch_scc1 {lbl}')
        for i in range(1, n):
            A(f's_sub_u32 s{sT0}, s{sST+2*i}, s{sST}')
            A(f'v_writelane_b32 v{RING}, s{sT0}, {i}')
        A(f's_sub_u32 s{sT0}, s98, s96')
        A(f'v_writelane_b32 v{RING}, s{sT0}, 15')
        srd(S_DBG, 12, 13, 256)
        A(f'v_lshlrev_b32 v{RING+1}, 2, v{vL}')
        A('s_mov_b64 exec, 0xfffe')
        A(f'buffer_store_dword v{RING}, v{RING+1}, s[{S_DBG}:{S_DBG+3}], 0 offen')
        A.label(lbl)
        return
    for i in range(n):
        A(f'v_writelane_b32 v{RING}, s{sST+2*i}, {i}')
    A(f'v_writelane_b32 v{RING}, s96, 14')
    A(f'v_writelane_b32 v{RING}, s98, 15')
    A(f's_lshl_b32 s{sT0}, s2, 3')
    A(f's_add_u32 s{sT0}, s{sT0}, s{sW}')
    A(f's_lshl_b32 s{sT0}, s{sT0}, 6')
    A(f's_add_u32 s{sT0}, s{sT0}, 0x100000')
    A(f'v_lshlrev_b32 v{RING+1}, 2, v{vL}')
    A('s_mov_b64 exec, 0xffff')
    A(f'buffer_store_dword v{RING}, v{RING+1}, s[{S_WS}:{S_WS+3}], s{sT0} offen')

def row_addrs(b, sF, A=A):
    for j in (0, 1, 2, 7):
        A(f'v_add_u32 v{vT}, {PIECE[j]}, v{vL}')
        A(f'v_xor_b32 v{vT}, {sF}, v{vT}')
        A(f'v_mul_u32_u24 v{vT+1}, 2731, v{vT}')
        A(f'v_lshrrev_b32 v{vT+1}, 16, v{vT+1}')
        A(f'v_mul_i32_i24 v{vT+1}, s{sCC}, v{vT+1}')
        A(f'v_lshl_add_u32 v{vT}, v{vT}, 4, v{vT+1}')
        A(f'v_add_u32 v{b+j}, s{sKC0B}, v{vT}')
        if j < 3:
            A(f'v_add_u32 v{b+j+3}, s{sPS}, v{b+j}')
            if j == 0: A(f'v_add_u32 v{b+6}, s{sPS}, v{b+3}')
    for j in (5, 6, 7):
        A(f'v_max_i32 v{b+j}, 0, v{b+j}')
def row_soff(dst, srow):
    A(f's_add_i32 s{dst}, s{sKR0}, {srow}')
    A(f's_lshl_b32 s{dst}, s{dst}, 1')
    A(f's_add_i32 s{dst}, s{dst}, s{sPR}')
    A(f's_max_i32 s{dst}, s{dst}, 0')
    A(f's_min_i32 s{dst}, s{dst}, 223')
    A(f's_mul_i32 s{dst}, s{dst}, 86016')

def stream(ms, mem, side, hooks=None, cap=2, bg=None, flush=(), paced=None):
    side = [x if len(x) == 3 else (x[0], x[1], 10**9) for x in side]
    bg = bg if bg is not None else []
    paced = list(paced or [])
    nside = len(side)
    def slots(lo, hi):
        return sum(max(0, cap - len(mem.get(k, []))) for k in range(lo, hi + 1))
    for i, m in enumerate(ms):
        assert not (side and side[0][2] < i), ('deadline missed', side[0], i)
        A(m)
        if i + 1 < len(ms) and not (hooks and i in hooks): A.prewait(ms[i+1])
        n = 0
        for t in mem.get(i, []):
            A(t); n += 1
        if paced and not mem.get(i) and paced[0][0] <= i and nside - len(side) >= paced[0][2]:
            assert nside - len(side) <= paced[0][3], ('paced item too late', paced[0])
            A(paced.pop(0)[1]); n += 1
        c = cap
        if side and side[0][2] < len(ms):
            dl = side[0][2]
            if sum(1 for x in side if x[2] == dl) > slots(i, dl): c = cap + 1
        while side and n < c and side[0][0] <= i:
            A(side.pop(0)[1]); n += 1
        while bg and n < cap:
            A(bg.pop(0)); n += 1
        if i in flush:
            while side and side[0][0] <= i + 4: A(side.pop(0)[1])
        if hooks and i in hooks: hooks[i]()
    assert not paced
    return [x[1] for x in side]

def gemm_phase(B, loc, finish, swap=False, hooks=None, D=6, gate=None, bg=None, extra_mem=None, ghooks=None, flush=(), pace=0, side0=(), xl=None):
    def bufof(f): return xl + 4*(f - 60) if xl is not None and f >= 60 else RING + 4*(f % 8)
    def rd(f):
        l = loc(f)
        if l[0] == 'lds':
            buf = bufof(f)
            return [f'ds_read_b128 v[{buf}:{buf+3}], v{l[1]} offset:{l[2]}']
        return []
    ms, mem, side, hk, paced = [], dict(extra_mem or {}), list(side0), dict(ghooks or {}), []
    for f in range(D):
        for t in rd(f): A(t)
    for f in range(72):
        sig, s, h = f // 12, (f % 12) // 2, f % 2
        l = loc(f)
        a = bufof(f) if l[0] == 'lds' else l[1]
        accb = ACC + 16*(sig & 1)
        for G in range(2):
            d = accb + 8*G + 4*h
            b = B + 24*G + 4*s
            ms.append(mf(d, b, a, None if s == 0 else d) if swap else mf(d, a, b, None if s == 0 else d))
        fn = f + D
        if xl is not None and fn >= 60:
            if fn < 72: mem[2*(60 - D) + fn - 60] = rd(fn)
        elif fn < 72 and not (gate is not None and f < gate <= fn):
            mem[2*f] = rd(fn)
        if f == 71 and xl is not None:
            ms[120:] = ms[120::2] + ms[121::2]
            fin = finish(sig, accb)
            side += [(135, t) for t in fin[:len(fin)//2]] + [(999, t) for t in fin[len(fin)//2:]]
            continue
        if f % 12 == 11:
            k = 0
            for t in finish(sig, accb):
                if pace and t.startswith('buffer_store') and sig < 5:
                    paced.append((2*f + 1 + 6 + pace*k, t, len(side), len(side) + 23)); k += 1
                else:
                    side.append((2*f + 1 + 3, t, 2*f + 1 + 24))
            if hooks and sig in hooks:
                def mk(sig=sig, f=f):
                    def h():
                        hooks[sig]()
                        if gate is not None and f + 1 == gate:
                            for k in range(gate, gate + D):
                                for t in rd(k): A(t)
                    return h
                hk[2*f + 1] = mk()
    return stream(ms, mem, side, hk, bg=bg, flush=flush, paced=paced)

def poll(label, off):
    A(f'v_mov_b32 v{vT+2}, 0')
    A(f's_mov_b32 s{sT4}, 0')
    A('s_mov_b64 exec, 1')
    A.label(label)
    A(f'buffer_load_dword v{vT+3}, v{vT+2}, s[{S_DBG}:{S_DBG+3}], 0 offen offset:{off} sc1')
    A('s_waitcnt vmcnt(0)')
    A(f'v_cmp_eq_u32 vcc, 0, v{vT+3}')
    A(f's_add_u32 s{sT4}, s{sT4}, 1')
    A(f's_cmp_gt_u32 s{sT4}, 200000')
    A(f's_cbranch_scc1 {label}_x')
    A('s_cmp_lg_u64 vcc, 0')
    A(f's_cbranch_scc0 {label}_x')
    A('s_sleep 2')
    A(f's_branch {label}')
    A.label(label + '_x')
    A('s_mov_b64 exec, -1')

def cond(lbl, isE, body):
    A(f's_cmp_lt_u32 s{sW}, 4' if isE else f's_cmp_ge_u32 s{sW}, 4')
    A(f's_cbranch_scc1 {lbl}')
    body()
    A.label(lbl)

nprio = [0]
def prio(e, l):
    nprio[0] += 1
    A(f's_setprio {l}')
    if e != l: cond(f'M_pr{nprio[0]}', True, lambda: A.skip(f's_setprio {e}'))

npad = [0]
def padat(name):
    if OPT.get('padpos') != name: return
    npad[0] += 1
    A.label(f'PADM{npad[0]}')
    A.raw('  s_memrealtime s[98:99]')
    A.raw('  s_waitcnt lgkmcnt(0)')
    A.raw('  s_sub_u32 s98, s98, s96')
    A.raw(f'  s_cmp_lt_u32 s98, {OPT["padt"]}')
    A.raw(f'  s_cbranch_scc1 PADM{npad[0]}')

def gen_main():
    A.raw(f'.globl {NAME}'); A.raw('.p2align 8'); A.raw(f'.type {NAME},@function')
    A.raw(f'{NAME}:'); A.reset()
    A('s_cmp_ge_u32 s2, 256')
    A('s_cbranch_scc1 M_done')
    stamp(0)
    if 'pad' in OPT or 'padpos' in OPT: A.raw('  s_memrealtime s[96:97]')
    A('s_load_dwordx8 s[4:11], s[0:1], 0')
    A('s_load_dwordx4 s[12:15], s[0:1], 32')
    A(f'v_lshrrev_b32 v{vT}, 6, v0')
    A(f'v_and_b32 v{vL}, 63, v0')
    A(f'v_readfirstlane_b32 s{sW}, v{vT}')
    A(f'v_lshrrev_b32 v{vG}, 4, v{vL}')
    A(f'v_and_b32 v{vN}, 15, v{vL}')
    A(f'v_lshlrev_b32 v{vWA0}, 4, v{vL}')
    if OPT.get('cpf', '1') != '0':
        A('s_getpc_b64 s[16:17]')
        A('s_and_b32 s16, s16, -256')
        A('s_and_b32 s17, s17, 0xffff')
        A('s_mov_b32 s18, CODE_END-' + NAME)
        A('s_mov_b32 s19, 0x00020000')
        A(f's_lshr_b32 s{sT0}, s2, 3')
        A(f's_lshl_b32 s{sT0}, s{sT0}, 10')
        A(f's_cmp_lg_u32 s{sW}, 3')
        A('s_cbranch_scc1 M_nocpf')
        A.raw(f'  buffer_load_dwordx4 v[{MACC}:{MACC+3}], v{vWA0}, s[16:19], s{sT0} offen')
        A.label('M_nocpf')
    def decode():
        A(f's_and_b32 s{sT0}, s2, 7')
        A(f's_lshr_b32 s{sT1}, s2, 3')
        MAP = OPT.get('map', '0')
        if MAP == '0':
            A(f's_lshr_b32 s{sPR}, s{sT0}, 2')
            A(f's_bfe_u32 s{sPC}, s{sT0}, 0x10001')
            A(f's_and_b32 s{sT0}, s{sT0}, 1')
            A(f's_lshl_b32 s{sT0}, s{sT0}, 2')
            A(f's_lshr_b32 s{sTR}, s{sT1}, 3')
            A(f's_add_u32 s{sTR}, s{sTR}, s{sT0}')
            A(f's_and_b32 s{sTC}, s{sT1}, 7')
        elif MAP == '1':
            A(f's_mov_b32 s{sTR}, s{sT0}')
            A(f's_and_b32 s{sPR}, s{sT1}, 1')
            A(f's_bfe_u32 s{sPC}, s{sT1}, 0x10001')
            A(f's_lshr_b32 s{sTC}, s{sT1}, 2')
        elif MAP == '2':
            A(f's_lshr_b32 s{sPR}, s{sT0}, 2')
            A(f's_and_b32 s{sT0}, s{sT0}, 3')
            A(f's_lshl_b32 s{sT0}, s{sT0}, 1')
            A(f's_lshr_b32 s{sTR}, s{sT1}, 4')
            A(f's_add_u32 s{sTR}, s{sTR}, s{sT0}')
            A(f's_and_b32 s{sPC}, s{sT1}, 1')
            A(f's_bfe_u32 s{sTC}, s{sT1}, 0x30001')
        else:
            A(f's_and_b32 s{sPR}, s{sT1}, 1')
            A(f's_bfe_u32 s{sPC}, s{sT1}, 0x10001')
            A(f's_and_b32 s{sTR}, s{sT0}, 6')
            A(f's_lshr_b32 s{sT2}, s{sT1}, 4')
            A(f's_add_u32 s{sTR}, s{sTR}, s{sT2}')
            A(f's_and_b32 s{sT0}, s{sT0}, 1')
            A(f's_lshl_b32 s{sT0}, s{sT0}, 2')
            A(f's_bfe_u32 s{sTC}, s{sT1}, 0x20002')
            A(f's_add_u32 s{sTC}, s{sTC}, s{sT0}')
        A(f's_mul_i32 s{sTR}, s{sTR}, 14')
        A(f's_mul_i32 s{sTC}, s{sTC}, 14')
    def srds():
        srd(S_WS, 14, 15, WS_BYTES)
        srd(S_OUT, 10, 11, X_BYTES)
        srd(S_DBG, 12, 13, 256)
    def scalar_setup():
        A(f's_mul_i32 s{sALR}, s{sPR}, 13')
        A(f's_add_i32 s{sALR}, s{sALR}, -6')
        A(f's_cmp_eq_u32 s{sPC}, 0')
        A(f's_cselect_b32 s{sCB}, {223*384}, 0')
        A(f's_cselect_b32 s{sCS}, -1, 1')
        A(f's_mulk_i32 s{sCS}, 384')
        A(f's_cmp_ge_u32 s{sW}, 4')
        A(f's_cselect_b32 s{sSTRIP}, -4, 3')
        A(f's_add_i32 s{sSTRIP}, s{sSTRIP}, s{sW}')
        A(f's_lshl_b32 s{sSTRIP}, s{sSTRIP}, 1')
        A(f's_add_u32 s{sOA}, s{sTR}, s{sSTRIP}')
        A(f's_mov_b32 s{sOA+1}, 86016')
    def scalar_setup2():
        A(f's_mul_i32 s{sT0}, s{sPR}, 6')
        A(f's_add_i32 s{sKR0}, s{sTR}, s{sT0}')
        A(f's_add_i32 s{sKR0}, s{sKR0}, -6')
        A(f's_cmp_eq_i32 s{sKR0}, -6')
        A(f's_cselect_b32 s{sLOR}, 6, 0')
        A(f's_cmp_eq_i32 s{sKR0}, 98')
        A(f's_cselect_b32 s{sHIR}, 7, 13')
        A(f's_cselect_b32 s{sSHR}, 2, 0')
        A(f's_sub_i32 s{sKR0}, s{sKR0}, s{sSHR}')
        A(f's_cmp_eq_i32 s{sTC}, 98')
        A(f's_cselect_b32 s{sHIC}, 7, 13')
        A(f's_lshl_b32 s{sT1}, s{sTC}, 1')
        A(f's_add_i32 s{sT1}, s{sT1}, 1')
        A(f's_mul_i32 s{sKC0B}, s{sT1}, s{sCS}')
        A(f's_add_i32 s{sKC0B}, s{sKC0B}, s{sCB}')
        A(f's_lshl_b32 s{sCC}, s{sCS}, 1')
        A(f's_lshl_b32 s{sPS}, s{sCC}, 3')
        A(f's_add_i32 s{sCC}, s{sCC}, -384')
        A(f's_max_i32 s{sB0}, s{sSTRIP}, s{sLOR}')
        A(f's_min_i32 s{sB0}, s{sB0}, s{sHIR}')
        A(f's_and_b32 s{sB0}, s{sB0}, -2')
        A(f's_add_u32 s{sBASE}, s{sB0}, s{sSHR}')
        A(f's_mov_b32 s{sNEG}, {NEGINF}')
        A(f's_mov_b32 s{sSC}, {SCALE}')
        A(f's_and_b32 s{sF}, s{sW}, 1')
        A(f's_lshl_b32 s{sF}, s{sF}, 3')
        A(f's_and_b32 s{sT1}, s{sW}, 6')
        A(f's_or_b32 s{sF}, s{sF}, s{sT1}')
        A(f's_add_u32 s{sT1}, s{sW}, 8')
        row_soff(sXR, f's{sT1}')
        A(f's_mul_i32 s{sXL}, s{sT1}, {ROWB}')

    def sreg(G, tl): return SACC + 24*G + 4*tl
    TM = [197, 198, 199, 255, 0]
    def pixaddr(dst, sel, lane):
        t0, t1, t2, t3, t4 = TM
        o = [f'v_lshrrev_b32 v{t0}, 1, v{sel}', f'v_and_b32 v{t3}, 1, v{sel}', f'v_add_u32 v{t0}, s{sOA}, v{t0}',
             f'v_lshl_add_u32 v{t4}, v{t3}, 2, s{sTC}',
             f'v_lshl_add_u32 v{t1}, v{t0}, 1, s{sALR}', f'v_add_u32 v{t2}, 112, v{t0}', f'v_lshlrev_b32 v{t3}, 30, v{t3}',
             f'v_med3_i32 v{t0}, v{t1}, v{t0}, v{t2}', f'v_mul_lo_u32 v{t0}, v{t0}, s{sOA+1}'] + lane(t0)
        o += [f'v_add_u32 v{t0}, s{sCB}, v{t0}']
        for G in range(2):
            for r in range(4):
                d = dst(G, r)
                o += [f'v_lshl_add_u32 v{t1}, v{t4}, 1, {2*(6*G+r) + 7}', f'v_add_u32 v{t2}, {6*G+r+112}, v{t4}',
                      f'v_min_u32 v{d}, v{t1}, v{t2}', f'v_mad_i32_i24 v{d}, v{d}, s{sCS}, v{t0}']
                if G == 0 and r >= 2: o += [f'v_add_u32 v{d}, v{d}, v{t3}']
        return o
    def oaddr(): return pixaddr(lambda G, r: vOA + 4*G + r, vG, lambda t: [f'v_lshl_add_u32 v{t}, v{vN}, 3, v{t}'])
    vXS = ACC
    sXRW, sXB = 84, 86
    def xaddr():
        A(f'v_lshrrev_b32 v{vT}, 3, v{vL}')
        A(f'v_and_b32 v{vT+1}, 7, v{vL}')
        A(f'v_and_b32 v{vT+2}, 6, v{vT}')
        A(f'v_xor_b32 v{vT+1}, v{vT+1}, v{vT+2}')
        A(f'v_lshl_add_u32 v{vT+1}, v{vT+1}, 4, s{sCB}')
        A(f'v_add_u32 v{vT+4}, 2, v{vT}')
        A(f'v_lshrrev_b32 v{vT+4}, 3, v{vT+4}')
        A(f'v_add_u32 v{vT}, s{sTC}, v{vT}')
        for G in range(2):
            A(f'v_lshl_add_u32 v{vT+2}, v{vT}, 1, {12*G + 7}')
            A(f'v_add_u32 v{vT+3}, {6*G + 112}, v{vT}')
            A(f'v_min_u32 v{vT+2}, v{vT+2}, v{vT+3}')
            A(f'v_mad_i32_i24 v{vXS+G}, v{vT+2}, s{sCS}, v{vT+1}')
        A(f'v_lshl_add_u32 v{vXS}, v{vT+4}, 30, v{vXS}')
        for rb in range(2):
            A(f's_add_u32 s{sT0}, s{sOA}, {rb}')
            A(f's_lshl_b32 s{sT1}, s{sT0}, 1')
            A(f's_add_i32 s{sT1}, s{sT1}, s{sALR}')
            A(f's_max_i32 s{sT1}, s{sT1}, s{sT0}')
            A(f's_add_i32 s{sT0}, s{sT0}, 112')
            A(f's_min_i32 s{sT1}, s{sT1}, s{sT0}')
            A(f's_mul_i32 s{sXRW+rb}, s{sT1}, 86016')
        A(f's_lshl_b32 s{sXB}, s{sSTRIP}, 12')
        A(f's_lshl_b32 s{sXB+1}, s{sSTRIP}, 11')
    def xload(i):
        j, G, rb = i // 4, (i >> 1) & 1, i & 1
        off = 512 + (j*4 + G*2 + rb)*1024 - 128*j if j < 2 else 61440 + (G*2 + rb)*1024 - 256
        A.skip(f's_add_u32 m0, s{sXB + j//2}, {off}')
        A.skip('s_nop 0')
        A.raw(f'  buffer_load_dwordx4 v{vXS+G}, s[{S_X}:{S_X+3}], s{sXRW+rb} offen offset:{128*j}{XNT} lds')
    def chunk(c):
        for i in range(4*c, 4*c + 4): xload(i)
    def xread_addr():
        A(f'v_and_b32 v{vXS+2}, 6, v{vN}')
        A(f'v_xor_b32 v{vXS+2}, v{vXS+2}, v{vG}')
        A(f'v_lshlrev_b32 v{vXS+6}, 7, v{vN}')
        A(f'v_xor_b32 v{vXS+3}, 4, v{vXS+2}')
        A(f'v_lshl_add_u32 v{vXS+2}, v{vXS+2}, 4, v{vXS+6}')
        A(f'v_lshl_add_u32 v{vXS+3}, v{vXS+3}, 4, v{vXS+6}')
        for q in range(2):
            A(f'v_add_u32 v{vXS+4+q}, s{sXB+1}, v{vXS+2+q}')
            A(f'v_add_u32 v{vXS+2+q}, s{sXB}, v{vXS+2+q}')
    def xread(j):
        for G in range(2):
            for q in range(2):
                r = XQ + 24*G + 4*(2*j + q)
                if j < 2: A(f'ds_read_b128 v[{r}:{r+3}], v{vXS+2+q} offset:{512 + (4*j + 2*G)*1024}')
                else: A(f'ds_read_b128 v[{r}:{r+3}], v{vXS+4+q} offset:{61440 + 2*G*1024}')
    def setup():
        B = Asm()
        def Fv(dst, row):
            B(f'v_and_b32 v{dst}, 1, v{row}')
            B(f'v_lshlrev_b32 v{dst}, 3, v{dst}')
            B(f'v_and_or_b32 v{dst}, v{row}, 6, v{dst}')
        B(f'v_lshrrev_b32 v{vT}, 3, v{vN}')
        B(f'v_add_u32 v{vT}, s{sSTRIP}, v{vT}')
        B(f'v_max_i32 v{vT}, s{sLOR}, v{vT}')
        B(f'v_min_i32 v{vT}, s{sHIR}, v{vT}')
        B(f'v_subrev_u32 v{vT}, s{sB0}, v{vT}')
        B(f'v_and_b32 v{vT+1}, 1, v{vG}')
        B(f'v_sub_u32 v{vT+2}, v{vT+1}, v{vT}')
        B(f'v_ashrrev_i32 v{vR0}, 31, v{vT+2}')
        B(f'v_and_b32 v{vR0}, s{sNEG}, v{vR0}')
        B(f'v_sub_u32 v{vT+2}, v{vT}, v{vT+1}')
        B(f'v_ashrrev_i32 v{vR3}, 31, v{vT+2}')
        B(f'v_and_b32 v{vR3}, s{sNEG}, v{vR3}')
        B(f'v_and_b32 v{vT}, 7, v{vN}')
        B(f'v_lshrrev_b32 v{vT+1}, 1, v{vG}')
        B(f'v_subrev_u32 v{vT+3}, 6, v{vT}')
        B(f'v_ashrrev_i32 v{vT+3}, 31, v{vT+3}')
        B(f'v_and_b32 v{vT+3}, 0x7f, v{vT+3}')
        for G in range(2):
            if G: B(f'v_mov_b32 v{vT+3}, 0x7f')
            B(f'v_add_u32 v{vT+2}, {6*G}, v{vT}')
            B(f'v_min_i32 v{vT+2}, s{sHIC}, v{vT+2}')
            B(f'v_lshlrev_b32 v{vT+2}, v{vT+2}, v{vT+3}')
            B(f'v_lshrrev_b32 v{vT+2}, v{vT+1}, v{vT+2}')
            B(f'v_not_b32 v{vCB+G}, v{vT+2}')
        B(f'v_add_u32 v{vT}, s{sBASE}, v{vT}')
        Fv(vT+1, vT)
        B(f'v_mul_u32_u24 v{vT}, {ROWB}, v{vT}')
        B(f'v_lshrrev_b32 v{vT+2}, 3, v{vN}')
        B(f'v_mul_u32_u24 v{vT+2}, 24, v{vT+2}')
        B(f'v_add_u32 v{vT+2}, v{vT+2}, v{vG}')
        for s in range(4):
            B(f'v_add_u32 v{vT+3}, {4*s}, v{vT+2}')
            B(f'v_xor_b32 v{vT+3}, v{vT+3}, v{vT+1}')
            B(f'v_lshl_add_u32 v{vAS+s}, v{vT+3}, 4, v{vT}')
        B(f'v_and_b32 v{vT}, 1, v{vG}')
        B(f'v_lshlrev_b32 v{vT}, 2, v{vT}')
        B(f'v_lshrrev_b32 v{vT+1}, 2, v{vN}')
        B(f'v_add3_u32 v{vT}, v{vT}, v{vT+1}, s{sBASE}')
        Fv(vT+1, vT)
        B(f'v_mul_u32_u24 v{vT}, {ROWB}, v{vT}')
        B(f'v_and_b32 v{vT+2}, 1, v{vN}')
        B(f'v_lshl_add_u32 v{vT}, v{vT+2}, 3, v{vT}')
        B(f'v_lshrrev_b32 v{vT+2}, 1, v{vG}')
        B(f'v_mul_u32_u24 v{vT+2}, 24, v{vT+2}')
        B(f'v_bfe_u32 v{vT+3}, v{vN}, 1, 1')
        B(f'v_add_u32 v{vT+2}, v{vT+2}, v{vT+3}')
        for ct in range(8):
            B(f'v_add_u32 v{vT+3}, {2*ct}, v{vT+2}')
            B(f'v_xor_b32 v{vT+3}, v{vT+3}, v{vT+1}')
            B(f'v_lshl_add_u32 v{vAP+ct}, v{vT+3}, 4, v{vT}')
        B(f'v_add_u32 v{vWA1}, {SPARE}, v{vWA0}')
        B(f'v_add_u32 v{vWAM}, {MB}, v{vWA0}')
        row_addrs(WF, f's{sF}', B)
        return [l.strip() for l in B.lines]
    def masks():
        out = []
        for G in range(2):
            for tl in range(NT[G]):
                tau = tl + 3*G
                r = sreg(G, tl)
                out += [f'v_bfe_i32 v{r+2}, v{vCB+G}, {2*tau}, 1', f'v_and_b32 v{r+1}, s{sNEG}, v{r+2}',
                        f'v_and_b32 v{r+2}, s{sNEG}, v{r+2}', f'v_or_b32 v{r}, v{r+1}, v{vR0}', f'v_or_b32 v{r+3}, v{r+1}, v{vR3}']
        return out

    M1 = int(OPT.get('m1', '12')); MW = int(OPT.get('mw', '6'))
    def mshare(a, b):
        A(f's_lshl_b32 s{sT0}, s{sW}, 10')
        A(f's_add_u32 s{sT0}, s{sT0}, {MOFF + 4096*a}')
        for i in range(a, b):
            A(f's_sub_u32 m0, s{sT0}, {MOFF - MB}')
            A(f'buffer_load_dwordx4 v{vWA0}, s[{S_WS}:{S_WS+3}], s{sT0} offen sc1 lds')
            if i < b - 1: A(f's_add_u32 s{sT0}, s{sT0}, 4096')
    A(f's_cmp_lg_u32 s{sW}, 0')
    A('s_cbranch_scc1 M_comp')
    A(f'v_bfe_u32 v{vT+1}, v{vL}, 2, 2')
    A(f'v_lshrrev_b32 v{vT+2}, 5, v{vL}')
    A(f'v_lshlrev_b32 v{vT+3}, 1, v{vT+2}')
    A(f'v_and_b32 v{vT+4}, 3, v{vL}')
    A(f'v_xor_b32 v{vT+3}, v{vT+3}, v{vT+4}')
    A(f'v_lshlrev_b32 v{vT+3}, 4, v{vT+3}')
    A(f's_movk_i32 s{sT5}, 1152')
    A(f'v_lshl_add_u32 v{vT}, v{vG}, 3, v{vT+1}')
    A(f'v_mad_u32_u24 v{vWD}, v{vT}, s{sT5}, v{vT+3}')
    A(f'v_lshrrev_b32 v{vT}, 2, v{vL}')
    A(f'v_mad_u32_u24 v{vWD+3}, v{vT}, s{sT5}, v{vT+3}')
    A(f'v_lshrrev_b32 v{vT}, 3, v{vN}')
    A(f'v_lshlrev_b32 v{vT}, 1, v{vT}')
    A(f'v_xor_b32 v{vT}, v{vT}, v{vG}')
    A(f'v_lshl_add_u32 v{vT}, v{vN}, 2, v{vT}')
    A(f'v_lshlrev_b32 v{MWA+3}, 4, v{vT}')
    A(f'v_add_u32 v{MWA+3}, {MB}, v{MWA+3}')
    nstamp[0] = 1
    A('s_waitcnt lgkmcnt(0)')
    srd(S_W, 6, 7, 192*576*2)
    TA, TB, TD = 64, 112, 160
    def signal(off, last, tag, wait=True):
        A('v_mov_b32 v192, 1'); A('v_mov_b32 v193, 0')
        A('s_mov_b64 exec, 1')
        A('s_waitcnt vmcnt(0)')
        A(f'buffer_atomic_add v192, v193, s[{S_DBG}:{S_DBG+3}], 0 offen offset:{off} sc0 sc1')
        A('s_mov_b64 exec, -1')
    def publish(off, last, tag):
        A(f'v_readfirstlane_b32 s{sT1}, v192')
        A(f's_cmp_lg_u32 s{sT1}, {last}')
        A(f's_cbranch_scc1 {tag}')
        A('s_mov_b64 exec, 1')
        A(f'buffer_store_dword v192, v193, s[{S_DBG}:{S_DBG+3}], 0 offen offset:{128 + off} sc1')
        A('s_mov_b64 exec, -1')
        A.label(tag)
    A(f's_cmp_ge_u32 s2, {NMP}')
    A('s_cbranch_scc1 H_nom')
    A(f's_mul_hi_u32 s{sT0}, s2, 0x2aaaaaab')
    A(f's_mul_i32 s{sT1}, s{sT0}, 6')
    A(f's_sub_u32 s{sT1}, s2, s{sT1}')
    A(f's_mul_i32 s{sT0}, s{sT0}, {32*1152}')
    A(f's_mul_i32 s{sT1}, s{sT1}, {32*1152}')
    for h in range(2):
        for k in range(6):
            A(f's_mov_b32 m0, {MB + (6*h + k)*1024 - 64*k}')
            A(f'buffer_load_dwordx4 v{vWD}, s[{S_W}:{S_W+3}], s{sT1} offen offset:{64*k} lds')
            A(f's_mov_b32 m0, {MB + (12 + 6*h + k)*1024 - 384 - 64*k}')
            A(f'buffer_load_dwordx4 v{vWD}, s[{S_W}:{S_W+3}], s{sT0} offen offset:{384 + 64*k} lds')
        if h == 0:
            A(f's_add_u32 s{sT0}, s{sT0}, 4608'); A(f's_add_u32 s{sT1}, s{sT1}, 4608')
    srd(S_X, 4, 5, X_BYTES)
    srds()
    NTW = 0
    if OPT.get('tw', '0') != '0':
        A('v_mov_b32 v193, 0')
        A(f's_mov_b32 s{sT0}, 0x38000')
        A(f'buffer_load_dword v190, v193, s[{S_WS}:{S_WS+3}], s{sT0} offen'); NTW = 1
        if OPT['tw'] == '2':
            A(f'buffer_load_dword v191, v193, s[{S_DBG}:{S_DBG+3}], 0 offen sc1'); NTW = 2
    A(f's_lshl_b32 s{sT0}, s2, 11')
    A(f's_add_u32 s{sT0}, s{sT0}, {MOFF}')
    A('s_barrier')
    A(f's_waitcnt vmcnt({NTW})')
    stamp()
    for k in range(6):
        for q in range(4):
            r = TA + 24*q + 4*k
            A(f'ds_read_b128 v[{r}:{r+3}], v{MWA+3} offset:{(6*q + k)*1024}')
        if k >= 2:
            kk = k - 2
            for h in range(2):
                for hp in range(2):
                    d = TD + 8*h + 4*hp
                    A(mf(d, TA + 24*hp + 4*kk, TB + 24*h + 4*kk, None if kk == 0 else d))
    for kk in (4, 5):
        for h in range(2):
            for hp in range(2):
                d = TD + 8*h + 4*hp
                A(mf(d, TA + 24*hp + 4*kk, TB + 24*h + 4*kk, d))
    for h in range(2):
        for q in range(4):
            A(f'v_cvt_pk_bf16_f32 v{TD+16+4*h+q}, v{TD+8*h+2*q}, v{TD+8*h+2*q+1}')
        A(f'buffer_store_dwordx4 v[{TD+16+4*h}:{TD+19+4*h}], v{vWA0}, s[{S_WS}:{S_WS+3}], s{sT0} offen offset:{1024*h} sc1')
    signal(0, NMP - 1, 'H_p1')
    A('s_barrier')
    A('s_waitcnt vmcnt(0)')
    publish(0, NMP - 1, 'H_p1')
    A('s_barrier')
    A('s_branch H_join')
    A.label('H_nom'); A.reset()
    nstamp[0] = 1
    VA, VB, VD = 64, 88, 112
    srd(S_WO, 8, 9, 192*192*2)
    A(f's_cmp_ge_u32 s2, {NMP + 144}')
    A('s_cbranch_scc1 H_nov1')
    A(f's_sub_u32 s{sT3}, s2, {NMP}')
    A(f's_mul_hi_u32 s{sT0}, s{sT3}, 0x15555556')
    A(f's_mul_i32 s{sT1}, s{sT0}, 12')
    A(f's_sub_u32 s{sT1}, s{sT3}, s{sT1}')
    A(f's_mul_i32 s{sT2}, s{sT0}, {16*1152}')
    for k in range(6):
        A(f's_mov_b32 m0, {MB + 2048 + 1024*k - 768 - 64*k}')
        A(f'buffer_load_dwordx4 v{vWD+3}, s[{S_W}:{S_W+3}], s{sT2} offen offset:{768 + 64*k} lds')
    A(f'v_lshrrev_b32 v{VD}, 1, v{vL}')
    A(f'v_mul_u32_u24 v{VD}, 384, v{VD}')
    A(f'v_and_b32 v{VD+1}, 1, v{vL}')
    A(f'v_lshl_add_u32 v{VD}, v{VD+1}, 4, v{VD}')
    A(f's_lshl_b32 s{sT2}, s{sT1}, 5')
    for k in range(6):
        A(f's_mov_b32 m0, {MB + 8192 + 1024*k}')
        A(f'buffer_load_dwordx4 v{VD}, s[{S_WO}:{S_WO+3}], s{sT2} offen lds')
        A(f's_add_u32 s{sT2}, s{sT2}, {32*384}')
    A(f's_lshr_b32 s{sT2}, s{sT1}, 2')
    A(f's_mul_i32 s{sVO}, s{sT2}, 24576')
    A(f's_and_b32 s{sT1}, s{sT1}, 3')
    A(f's_lshl_b32 s{sT1}, s{sT1}, 6')
    A(f's_add_u32 s{sVO}, s{sVO}, s{sT1}')
    A(f's_lshr_b32 s{sT1}, s{sT0}, 1')
    A(f's_lshl_b32 s{sT1}, s{sT1}, 11')
    A(f's_add_u32 s{sVO}, s{sVO}, s{sT1}')
    A(f's_and_b32 s{sT0}, s{sT0}, 1')
    A(f's_lshl_b32 s{sT0}, s{sT0}, 3')
    A(f's_add_u32 s{sVO}, s{sVO}, s{sT0}')
    A.label('H_nov1'); A.reset()
    A('s_barrier')
    srd(S_X, 4, 5, X_BYTES)
    srds()
    stamp()
    A(f's_cmp_ge_u32 s2, {NMP + 144}')
    A('s_cbranch_scc1 H_join')
    t0, t1 = VD + 6, VD + 7
    A(f'v_lshlrev_b32 v{t1}, 3, v{vN}')
    A(f'v_lshl_add_u32 v{t1}, v{vG}, 8, v{t1}')
    A(f'v_add_u32 v{t1}, {MB}, v{t1}')
    A('s_waitcnt vmcnt(0)')
    for k in range(6):
        A(f'ds_read_b128 v[{VA+4*k}:{VA+4*k+3}], v{MWA+3} offset:{2048 + 1024*k}')
    A('s_waitcnt lgkmcnt(2)')
    for k in range(6):
        for hh in range(2):
            A(f'ds_read_b64_tr_b16 v[{VB+4*k+2*hh}:{VB+4*k+2*hh+1}], v{t1} offset:{8192 + 1024*k + 128*hh}')
    A('s_waitcnt lgkmcnt(0)')
    for k in range(6):
        A(mf(VD, VA + 4*k, VB + 4*k, None if k == 0 else VD))
    A(f'v_bfe_u32 v{t0}, v{vN}, 1, 1')
    A(f'v_mul_u32_u24 v{t0}, 12288, v{t0}')
    A(f'v_and_b32 v{t1}, 1, v{vN}')
    A(f'v_lshl_add_u32 v{t0}, v{t1}, 10, v{t0}')
    A(f'v_lshrrev_b32 v{t1}, 2, v{vN}')
    A(f'v_lshl_add_u32 v{t0}, v{t1}, 4, v{t0}')
    A(f'v_lshl_add_u32 v{t0}, v{vG}, 8, v{t0}')
    A(f'v_cvt_pk_bf16_f32 v{VD+4}, v{VD}, v{VD+1}')
    A(f'v_cvt_pk_bf16_f32 v{VD+5}, v{VD+2}, v{VD+3}')
    A(f'buffer_store_dwordx2 v[{VD+4}:{VD+5}], v{t0}, s[{S_WS}:{S_WS+3}], s{sVO} offen sc1')
    A('s_branch H_join')
    A.label('M_comp'); A.reset()
    nstamp[0] = 1
    decode()
    scalar_setup()
    xaddr()
    A('s_waitcnt lgkmcnt(0)')
    srd(S_X, 4, 5, X_BYTES)
    stamp()
    A('s_barrier')
    chunk(0)
    A(f's_cmp_lt_u32 s2, {NMP}')
    A('s_cbranch_scc1 M_x1')
    chunk(1)
    chunk(2)
    A.label('M_x1')
    stamp()
    if OPT.get('tlb', '0') == '1':
        A(f's_add_u32 s90, s10, s{sXRW}'); A('s_addc_u32 s91, s11, 0')
        A.raw('  s_load_dword s83, s[90:91], 0')
        A.raw('  s_load_dword s83, s[14:15], 0x38000')
        A(f's_movk_i32 s{sOA+2}, 384')
    srds(); scalar_setup2()
    for t in setup() + oaddr() + masks(): A(t)
    xread_addr()
    A(f's_cmp_ge_u32 s2, {NMP}')
    A('s_cbranch_scc1 M_x2')
    A.skip('s_barrier')
    chunk(1)
    A.skip('s_barrier')
    chunk(2)
    A.label('M_x2')
    stamp()
    for j in range(3):
        A(f's_waitcnt vmcnt({8 - 4*j})')
        xread(j)
    row_soff(sT2, f's{sW}')
    A('s_waitcnt lgkmcnt(0)')
    stamp()
    A('s_barrier')
    ER = int(OPT.get('er', '1'))
    A(f's_cmp_lt_u32 s{sW}, {ER}')
    A('s_cbranch_scc1 M_er')
    for j in range(8):
        A(f's_add_u32 m0, s{sXL}, {16*PIECE[j] - 8*ROWB}')
        A(f'buffer_load_dwordx4 v{WF+j}, s[{S_X}:{S_X+3}], s{sT2} offen{KNT} lds')
    A.label('M_er')
    A('s_barrier')
    stamp()
    A(f's_cmp_lt_u32 s{sW}, 4')
    A('s_cbranch_scc1 M_xl')
    A('s_setprio 1')
    A('s_barrier')
    A('s_branch M_pa')
    A.label('M_xl'); A.reset()
    mshare(0, M1)
    A(f's_waitcnt vmcnt({M1 - MW})')
    A('s_barrier')
    mshare(M1, 18)
    A.label('M_pa'); A.reset()
    padat('A')
    stamp()
    bgA = []
    xrow = []
    for j in range(8):
        xrow.append(f's_add_u32 m0, s{sXL}, {16*PIECE[j]}\n s_nop 0\n buffer_load_dwordx4 v{WF+j}, s[{S_X}:{S_X+3}], s{sXR} offen{KNT} lds')
    def finA(sig, accb):
        out = []
        for G in range(2):
            for q in range(4):
                out.append(f'v_cvt_pk_bf16_f32 v{QP+24*G+4*sig+q}, v{accb+8*G+2*q}, v{accb+8*G+2*q+1}')
        return out
    def locA(f):
        if f < 60: return ('lds', vWAM, f*1024)
        if f < 62: return ('reg', WF + 4*(f-60))
        return ('lds', vWA1, (f-62)*1024)
    def bar():
        A('s_barrier')
        if OPT.get('hr', '1') == '0': bgA[0:0] = xrow
    def bar4():
        A('s_waitcnt vmcnt(0)'); A('s_barrier')
        prio(3, 2)
    def b0b():
        A('s_waitcnt vmcnt(0)'); A('s_barrier')
    hA = {2: bar, 4: bar4}
    seq = []
    for (a1, a2) in ((0, 3), (1, 4), (2, 5), (6, 7), (8, 9)):
        for s in range(6):
            seq.append((a1, s)); seq.append((a2, s))
    def users(tau):
        u = []
        if tau <= 5: u.append((0, tau))
        if tau >= 3: u.append((1, tau - 3))
        return u
    def rdS(i):
        tau, s = seq[i]
        buf = RING + 4*(i % 8)
        return f'ds_read_b128 v[{buf}:{buf+3}], v{vAS + (s % 4)} offset:{tau*768 + (256 if s >= 4 else 0)}'
    SP = OPT.get('sp', '1') == '1'
    xm = {2*48+1: [f'ds_read_b128 v[{WF}:{WF+3}], v{vWAM} offset:{60*1024}'],
          2*49+1: [f'ds_read_b128 v[{WF+4}:{WF+7}], v{vWAM} offset:{61*1024}']}
    gh = {2*(4*MW - 6) - 1: b0b}
    if SP:
        for i in range(6): xm[2*(66 + i)] = [rdS(i)]
        xm[143] = [rdS(6)]
        gh[131] = lambda: cond('M_l1', False, lambda: (A.raw('  s_waitcnt lgkmcnt(0)'), A.skip('s_barrier')))
    pend = gemm_phase(XQ, locA, finA, hooks=hA, bg=bgA, extra_mem=xm, ghooks=gh)
    assert not bgA
    stamp()
    padat('S')
    if not SP: cond('M_l1', False, lambda: A.skip('s_barrier'))
    D = 7
    if not SP:
        for i in range(D): A(rdS(i))
        for t in pend: A(t)
        pend = []
    vM = [12, 13]; vX = [14, 15]
    A(f's_mov_b32 s{sT1}, 0xff7fffff')
    ms, mem, side = [], {}, [(3, t, 12) for t in pend]
    started = [False, False]; ndone = [0, 0]
    def xl(G):
        o = []
        for sw in ('v_permlane32_swap_b32', 'v_permlane16_swap_b32'):
            o += [f'v_mov_b32 v{vX[G]}, v{vM[G]}', f'{sw} v{vM[G]}, v{vX[G]}', f'v_max_f32 v{vM[G]}, v{vM[G]}, v{vX[G]}']
        return o + [f'v_mul_f32 v{vM[G]}, s{sSC}, v{vM[G]}']
    for i, (tau, s) in enumerate(seq):
        a = RING + 4*(i % 8)
        for (G, tl) in users(tau):
            r = sreg(G, tl)
            ms.append(mf(r, a, QP + 24*G + 4*s, r))
            if s == 5:
                e = len(ms) + 3
                side.append((e, f'v_max3_f32 v{vM[G]}, v{r}, v{r+1}, ' + (f'v{vM[G]}' if started[G] else f's{sT1}')))
                side.append((e, f'v_max3_f32 v{vM[G]}, v{r+2}, v{r+3}, v{vM[G]}'))
                started[G] = True; ndone[G] += 1
        if i % 12 == 11:
            for G in range(2):
                if ndone[G] == NT[G]:
                    side += [(len(ms) + 3, t) for t in xl(G)]; ndone[G] = 8
                    if G == 0 and OPT.get('ef', '1') == '1':
                        side += [(0, f'v_fma_f32 v{q}, v{q}, s{sSC}, -v{vM[0]}') for q in range(sreg(0, 0), sreg(0, 6))]
        if i + D < len(seq): mem[len(ms) - 1] = [rdS(i + D)]
    bgS = [f'v_mov_b32 v{PP+q}, 0' for q in (16, 17)] + [f'v_mov_b32 v{ONES+q}, 0x3f803f80' for q in range(4)]
    rest = stream(ms, mem, side, bg=bgS)
    assert not bgS
    stamp()
    prio(1, 0)
    for t in rest: A(t)
    def preg(G, tl): return PP + 16*G + 2*(tl + G)
    seqP = [(sig, u, h) for sig in range(6) for u in range(5) for h in range(2)]
    def rdP(i):
        sig, u, h = seqP[i]
        ct = 2*sig + h
        buf = RING + 4*(i % 8)
        return [f'ds_read_b64_tr_b16 v[{buf+2*hh}:{buf+2*hh+1}], v{vAP + (ct % 8)} offset:{(4*u+2*hh)*384 + (256 if ct >= 8 else 0)}' for hh in range(2)]
    DP = 6
    def b4L(): A.skip('s_barrier')
    B3AT, B4AT = int(OPT.get('b3', '1')), int(OPT.get('b4', '6'))
    if B3AT < 0: cond('M_e2', True, lambda: A.skip('s_barrier'))
    def wreg(i):
        return sreg(i % 2, i // 2) if i != 12 else WF
    for tl in range(7):
        for G in range(2):
            if tl >= NT[G]: continue
            r = sreg(G, tl)
            if G == 1 or OPT.get('ef', '1') != '1':
                for k in range(4): A(f'v_fma_f32 v{r+k}, v{r+k}, s{sSC}, -v{vM[G]}')
            for k in range(4): A(f'v_exp_f32 v{r+k}, v{r+k}')
        for G in range(2):
            if tl >= NT[G]: continue
            r = sreg(G, tl)
            p = preg(G, tl)
            A(f'v_cvt_pk_bf16_f32 v{p}, v{r}, v{r+1}')
            A(f'v_cvt_pk_bf16_f32 v{p+1}, v{r+2}, v{r+3}')
        if tl == B3AT: cond('M_e2', True, lambda: A.skip('s_barrier'))
        if tl >= B3AT:
            for t2 in range(0 if tl == max(B3AT, 0) else tl, tl + 1):
                if t2 % 2 == 0: A(f's_mov_b32 s{sT0}, {2*t2*1024}')
                for G in range(2):
                    r = wreg(2*t2 + G)
                    A(f'buffer_load_dwordx4 v[{r}:{r+3}], v{vWA0}, s[{S_WS}:{S_WS+3}], s{sT0} offen offset:{1024*(2*(t2%2)+G)} sc1')
        if tl == 5:
            for i in range(DP):
                for t in rdP(i): A(t)
        if tl == B4AT: cond('M_l2', False, b4L)
    stamp()
    prio(3, 2)
    padat('P')
    ms, first, side, hk = [], [], [], {}
    def b5L():
        cond('M_l3', False, lambda: A.skip('s_barrier'))
    if int(OPT.get('b5', '1')) < 0: b5L()
    sums = [mf(vINV + 4*G, PP + 16*G + 4*u, ONES, None if u == 0 else vINV + 4*G) for u in range(4) for G in range(2) if u < 3 + G]
    for i, (sig, u, h) in enumerate(seqP):
        a = RING + 4*(i % 8)
        accb = ACC + 16*(sig & 1)
        first.append(len(ms))
        for G in range(2):
            uu = u - G
            if 0 <= uu <= 2 + G:
                d = accb + 8*G + 4*h
                ms.append(mf(d, a, PP + 16*G + 4*uu, None if uu == 0 else d))
        if sums and (i % 10 == 7 or i == 11): ms.append(sums.pop(0))
        if i % 10 == 9:
            e = len(ms) - 1
            side += [(e + 4, t, e + 15) for t in finA(sig, accb)]
            if sig == int(OPT.get('b5', '1')): hk[e] = b5L
            if sig == int(OPT.get('pv', '3')) and OPT.get('pe') == '4': hk[e] = lambda: prio(3, 1)
    assert not sums
    mem = {}
    k = 0
    nrd = 2*(len(seqP) - DP)
    ngap = first[-1] - 5
    for j in range(DP, len(seqP)):
        for t in rdP(j):
            gp = (k * ngap) // nrd
            if j >= 8: gp = max(gp, first[j - 7] - 1)
            assert gp < first[j] - 3, (j, gp, first[j])
            mem.setdefault(gp, []).append(t); k += 1
    pend = stream(ms, mem, side, hk)
    A('s_waitcnt vmcnt(0)')
    stamp()
    W4 = OPT.get('w4', '1') == '1'
    def wvo(f0, n):
        for i in range(n):
            if i % 4 == 0:
                A.skip(f's_mov_b32 m0, {(f0 - 24 + i)*1024}')
                A.skip(f's_mov_b32 s{sT4}, {(f0 + i)*1024}')
            A.raw(f'  buffer_load_dwordx4 v{vWA0}, s[{S_WS}:{S_WS+3}], s{sT4} offen offset:{1024*(i%4)} sc1 lds')
    A(f's_cmp_lg_u32 s{sW}, 4')
    A('s_cbranch_scc1 M_e3b')
    wvo(24, 15)
    A.label('M_e3b')
    def b4E():
        def body():
            A.skip(f's_cmp_lg_u32 s{sW}, 4')
            A.skip('s_cbranch_scc1 M_e3a')
            A.raw('  s_waitcnt vmcnt(0)')
            A.skip('s_barrier')
            wvo(39, 16)
            A.skip('s_branch M_e3')
            A.label('M_e3a')
            A.skip('s_barrier')
        cond('M_e3', True, body)
    def finE(sig, accb):
        out = []
        for G in range(2):
            for r in range(4):
                for h in range(2):
                    out.append(f'v_mul_f32 v{accb+8*G+4*h+r}, v{accb+8*G+4*h+r}, v{vINV+4*G+r}')
                o = OST + 8*G + 2*r
                out.append(f'v_cvt_pk_bf16_f32 v{o+(sig&1)}, v{accb+8*G+r}, v{accb+8*G+4+r}')
                if sig & 1:
                    out.append(f'buffer_store_dwordx2 v[{o}:{o+1}], v{vOA+4*G+r}, s[{S_OUT}:{S_OUT+3}], 0 offen offset:{128*(sig>>1)}{ONT[sig>>1]}')
        return out
    def locE(f):
        if f < 14: return ('reg', wreg(f))
        if f < 24: return ('lds', vWA1, (f - 14)*1024)
        return ('lds', vWA0, (f-24)*1024)
    def b5E():
        def body():
            A.raw(f'  s_waitcnt vmcnt({len(A.vm)})'); A.skip('s_barrier')
        cond('M_e4', True, body)
        padat('O')
        stamp()
    bgE = [t for q in range(8) for t in (f'v_rcp_f32 v{vINV+q}, v{vINV+q}', '')]
    DE = int(OPT.get('de', '4')); GB4 = int(OPT.get('gb4', '13'))
    assert GB4 < 2*(14 - DE)
    pend = gemm_phase(QP, locE, finE, swap=True, bg=bgE, pace=int(OPT.get('pace', '4')), D=DE,
                      ghooks={GB4: b4E, 2*(39 - DE) - 1: b5E}, side0=[(3, t, 16) for t in pend],
                      xl=SACC if OPT.get('xl', '1') == '1' else None)
    padat('Z')
    for t in pend: A(t)
    if STAMP:
        stamp()
        A('s_waitcnt vmcnt(0)')
        stamp(1)
        write_stamps()
    if 'pad' in OPT:
        A('s_waitcnt vmcnt(0)')
        A.label('PADL')
        A.raw('  s_memrealtime s[98:99]')
        A.raw('  s_waitcnt lgkmcnt(0)')
        A('s_sub_u32 s98, s98, s96')
        A(f's_cmp_lt_u32 s98, {OPT["pad"]}')
        A('s_cbranch_scc1 PADL')
    A('s_endpgm')

    A.label('M_helper'); A.reset()
    nstamp[0] = 2
    A.label('H_join'); A.reset()
    stamp()
    decode(); scalar_setup(); scalar_setup2()
    row_addrs(WF, '0')
    row_addrs(vAP, '8')
    def rows(lst):
        for i in lst:
            row_soff(sT1, str(i))
            b = vAP if i & 1 else WF
            for j in range(8):
                a = b + j
                if i & 6:
                    a = 64 + j
                    A(f'v_xor_b32 v{a}, {16*(i & 6)}, v{b+j}')
                A(f's_mov_b32 m0, {i*ROWB + 16*PIECE[j]}')
                A(f'buffer_load_dwordx4 v{a}, s[{S_X}:{S_X+3}], s{sT1} offen{KNT} lds')
            if len(A.vm) >= 56: A('s_waitcnt vmcnt(40)')
    A('s_barrier')
    if ER == 0: rows([0, 8])
    poll('H_pollM', 128)
    A(f's_lshr_b32 s{sT0}, s2, 3')
    A(f's_mul_i32 s{sT0}, s{sT0}, 2304')
    A(f's_add_u32 s{sT0}, s{sT0}, {MOFF}')
    for i in range(3):
        A(f'buffer_load_dwordx4 v[{80+4*i}:{83+4*i}], v{vWA0}, s[{S_WS}:{S_WS+3}], s{sT0} offen offset:{1024*i} sc1')
    stamp()
    A('s_barrier')
    stamp()
    mshare(0, M1)
    A(f's_waitcnt vmcnt({M1 - MW})')
    A('s_barrier')
    stamp()
    mshare(M1, 18)
    A('v_mov_b32 v192, 1'); A('v_mov_b32 v193, 0')
    A('s_waitcnt vmcnt(0)')
    A(f's_sub_u32 s{sT3}, s2, {NMP}')
    A(f's_cmp_ge_u32 s{sT3}, 144')
    A('s_cbranch_scc1 H_nov2')
    signal(4, 143, 'H_p2')
    A.label('H_nov2'); A.reset()
    if ER: rows([0, 8] + list(range(1, ER)))
    A('s_barrier')
    if OPT.get('hr', '1') == '1': rows([9, 10])
    stamp()
    A('s_barrier')
    rows([11, 12])
    A('s_waitcnt vmcnt(16)')
    publish(4, 143, 'H_p2')
    rows([13, 14, 15])
    A('s_waitcnt vmcnt(0)')
    stamp()
    A('s_barrier')
    rows([16, 17, 18, 19])
    A('s_waitcnt vmcnt(0)')
    stamp()
    poll('H_pollV', 132)
    A(f's_lshr_b32 s{sT0}, s2, 3')
    A(f's_mul_i32 s{sT0}, s{sT0}, 2304')
    for i in range(3):
        A(f'buffer_load_dwordx4 v[{80+4*i}:{83+4*i}], v{vWA0}, s[{S_WS}:{S_WS+3}], s{sT0} offen offset:{1024*i} sc1')
    stamp()
    A('s_barrier')
    def wfr(src0, n, lds0):
        for i in range(n):
            if i % 4 == 0:
                A(f's_mov_b32 m0, {lds0 + i*1024}')
                A(f's_mov_b32 s{sT4}, {(src0 + i)*1024}')
            A(f'buffer_load_dwordx4 v{vWA0}, s[{S_WS}:{S_WS+3}], s{sT4} offen offset:{1024*(i%4)} sc1 lds')
    wfr(14, 10, SPARE)
    A('s_waitcnt vmcnt(0)')
    stamp()
    A('s_barrier')
    if W4: wfr(55, 17, 31*1024)
    else: wfr(24, 12, 0)
    A('s_waitcnt vmcnt(0)')
    stamp()
    A('s_barrier')
    if STAMP:
        stamp(1)
        write_stamps()
    A.label('M_done')
    A('s_endpgm')
    A.label('CODE_END')

gen_main()
A.raw('.section .rodata,"a"')
A.raw('.p2align 6')
A.raw(f'.amdhsa_kernel {NAME}')
A.raw('  .amdhsa_next_free_vgpr 256')
A.raw('  .amdhsa_next_free_sgpr 102')
A.raw('  .amdhsa_accum_offset 256')
A.raw('  .amdhsa_group_segment_fixed_size 0')
A.raw('  .amdhsa_kernarg_size 48')
A.raw('  .amdhsa_user_sgpr_count 2')
A.raw('  .amdhsa_user_sgpr_kernarg_segment_ptr 1')
A.raw('  .amdhsa_system_sgpr_workgroup_id_x 1')
A.raw('.end_amdhsa_kernel')
open(OUT, 'w').write(A.text())
print('instr', A.n_inst, 'nops', A.nops, 'maxv', A.maxv)
```

```python
import sys, struct
sys.path.insert(0, 'gen')
from asmlib import Asm

OUT = sys.argv[1] if len(sys.argv) > 1 else 'standalone__neighborhood_nat__vision.s'
OPT = dict(a.split('=') if '=' in a else (a, '1') for a in sys.argv[2:])
STAMP = 'stamp' in OPT
XNT = ' nt' if OPT.get('xnt', '0') == '1' else ''
KNT = ' nt' if OPT.get('knt', '0') == '1' else ''
ONT = [{'0': '', '1': ' nt', '2': ' sc1', '3': ' sc0 sc1', '4': ' sc0 sc1 nt'}[c] for c in (OPT.get('ont', '2') * 3)[:3]]
NAME = 'standalone__neighborhood_nat__vision_kernel'

X_BYTES = 19267584
WS_BYTES = 268435456
ROWB = 7680
MB = 90112
SPARE = 153600
MOFF = 0x20000
NMP = 36
GAP = 73728
def f32bits(x): return struct.unpack('<I', struct.pack('<f', x))[0]
SCALE = f32bits(192 ** -0.5 * 1.4426950408889634)
NEGINF = 0xff800000
PIECE = [0, 64, 128, 192, 256, 320, 384, 416]

A = Asm()
hdr = open('standalone__neighborhood_nat__vision.s.ref').read().split('\n')
for ln in hdr:
    if ln.startswith('; @launch'): break
    A.raw(ln)
A.raw('; @launch grid=(256,1,1) block=(512,1,1) lds=163840')
A.raw('.amdgcn_target "amdgcn-amd-amdhsa--gfx950"')
A.raw('.text')

def srd(d, lo, hi, nbytes):
    A(f's_mov_b32 s{d}, s{lo}'); A(f's_and_b32 s{d+1}, s{hi}, 0xffff')
    A(f's_mov_b32 s{d+2}, {nbytes}'); A(f's_mov_b32 s{d+3}, 0x00020000')
def mf(d, a, b, c):
    cs = '0' if c is None else f'v[{c}:{c+3}]'
    return f'v_mfma_f32_16x16x32_bf16 v[{d}:{d+3}], v[{a}:{a+3}], v[{b}:{b+3}], {cs}'

S_X, S_OUT, S_WS, S_W, S_WO, S_DBG = 16, 20, 24, 28, 32, 36
sW, sPR, sPC, sTR, sTC = 40, 41, 42, 43, 44
sKR0, sKC0B = 45, 46
sLOR, sHIR, sSHR, sLOC, sHIC = 47, 48, 49, 50, 51
sBASE, sSTRIP, sNEG = 52, 53, 54
sT0, sT1, sT2, sT3, sT4, sT5 = 55, 56, 57, 58, 59, 60
sALR, sCB, sSC = 61, 62, 63
sCS, sCC, sPS = 50, 91, 3
NT = (6, 7)
sST = 64
sXR, sXL = 100, 101
sOA = 88
sB0, sF = 92, 93
sM1, sM2 = 0, 10
sVT, sVO = 94, 95
vL, vG, vN = 1, 2, 3
vT = 4
vR0, vR3, vCB = 12, 13, 14
XQ = 16
PP = 16
vOA = 4
vINV = 56
SACC = 64
OST = 16
W1 = 64
ONES = 48
QP = 120
ACC = 168
RING = 200
WF = 232
vAS = 240
vAP = 244
vWA0, vWA1, vWAM = 252, 253, 254
vSW, vSR = 255, 199
vWD = RING
MBQ = 64
MACC = 136
MPK = 184
MWA = 192

nstamp = [0]
def stamp(real=None):
    if not STAMP: return
    i = nstamp[0]; nstamp[0] += 1
    assert i < 14
    A.raw(f'  s_mem{"real" if "rt" in OPT else ""}time s[{sST+2*i}:{sST+1+2*i}]')
    if real is not None:
        A.raw(f'  s_memrealtime s[{96+2*real}:{97+2*real}]')
def write_stamps():
    n = nstamp[0]
    A('s_waitcnt lgkmcnt(0)')
    A(f'v_mov_b32 v{RING}, 0')
    if 'dbg' in OPT:
        lbl = f'WS_skip{n}'
        A(f's_cmp_lg_u32 s2, {OPT["dbg"].split(",")[0]}')
        A(f's_cbranch_scc1 {lbl}')
        A(f's_cmp_lg_u32 s{sW}, {OPT["dbg"].split(",")[1]}')
        A(f's_cbranch_scc1 {lbl}')
        for i in range(1, n):
            A(f's_sub_u32 s{sT0}, s{sST+2*i}, s{sST}')
            A(f'v_writelane_b32 v{RING}, s{sT0}, {i}')
        A(f's_sub_u32 s{sT0}, s98, s96')
        A(f'v_writelane_b32 v{RING}, s{sT0}, 15')
        srd(S_DBG, 12, 13, 256)
        A(f'v_lshlrev_b32 v{RING+1}, 2, v{vL}')
        A('s_mov_b64 exec, 0xfffe')
        A(f'buffer_store_dword v{RING}, v{RING+1}, s[{S_DBG}:{S_DBG+3}], 0 offen')
        A.label(lbl)
        return
    for i in range(n):
        A(f'v_writelane_b32 v{RING}, s{sST+2*i}, {i}')
    A(f'v_writelane_b32 v{RING}, s96, 14')
    A(f'v_writelane_b32 v{RING}, s98, 15')
    A(f's_lshl_b32 s{sT0}, s2, 3')
    A(f's_add_u32 s{sT0}, s{sT0}, s{sW}')
    A(f's_lshl_b32 s{sT0}, s{sT0}, 6')
    A(f's_add_u32 s{sT0}, s{sT0}, 0x100000')
    A(f'v_lshlrev_b32 v{RING+1}, 2, v{vL}')
    A('s_mov_b64 exec, 0xffff')
    A(f'buffer_store_dword v{RING}, v{RING+1}, s[{S_WS}:{S_WS+3}], s{sT0} offen')

def row_addrs(b, sF, A=A):
    for j in (0, 1, 2, 7):
        A(f'v_add_u32 v{vT}, {PIECE[j]}, v{vL}')
        A(f'v_xor_b32 v{vT}, {sF}, v{vT}')
        A(f'v_mul_u32_u24 v{vT+1}, 2731, v{vT}')
        A(f'v_lshrrev_b32 v{vT+1}, 16, v{vT+1}')
        A(f'v_mul_i32_i24 v{vT+1}, s{sCC}, v{vT+1}')
        A(f'v_lshl_add_u32 v{vT}, v{vT}, 4, v{vT+1}')
        A(f'v_add_u32 v{b+j}, s{sKC0B}, v{vT}')
        if j < 3:
            A(f'v_add_u32 v{b+j+3}, s{sPS}, v{b+j}')
            if j == 0: A(f'v_add_u32 v{b+6}, s{sPS}, v{b+3}')
    for j in (5, 6, 7):
        A(f'v_max_i32 v{b+j}, 0, v{b+j}')
def row_soff(dst, srow):
    A(f's_add_i32 s{dst}, s{sKR0}, {srow}')
    A(f's_lshl_b32 s{dst}, s{dst}, 1')
    A(f's_add_i32 s{dst}, s{dst}, s{sPR}')
    A(f's_max_i32 s{dst}, s{dst}, 0')
    A(f's_min_i32 s{dst}, s{dst}, 223')
    A(f's_mul_i32 s{dst}, s{dst}, 86016')

def stream(ms, mem, side, hooks=None, cap=2, bg=None, flush=(), paced=None):
    side = [x if len(x) == 3 else (x[0], x[1], 10**9) for x in side]
    bg = bg if bg is not None else []
    paced = list(paced or [])
    nside = len(side)
    def slots(lo, hi):
        return sum(max(0, cap - len(mem.get(k, []))) for k in range(lo, hi + 1))
    for i, m in enumerate(ms):
        assert not (side and side[0][2] < i), ('deadline missed', side[0], i)
        A(m)
        if i + 1 < len(ms) and not (hooks and i in hooks): A.prewait(ms[i+1])
        n = 0
        for t in mem.get(i, []):
            A(t); n += 1
        if paced and not mem.get(i) and paced[0][0] <= i and nside - len(side) >= paced[0][2]:
            assert nside - len(side) <= paced[0][3], ('paced item too late', paced[0])
            A(paced.pop(0)[1]); n += 1
        c = cap
        if side and side[0][2] < len(ms):
            dl = side[0][2]
            if sum(1 for x in side if x[2] == dl) > slots(i, dl): c = cap + 1
        while side and n < c and side[0][0] <= i:
            A(side.pop(0)[1]); n += 1
        while bg and n < cap:
            A(bg.pop(0)); n += 1
        if i in flush:
            while side and side[0][0] <= i + 4: A(side.pop(0)[1])
        if hooks and i in hooks: hooks[i]()
    assert not paced
    return [x[1] for x in side]

def gemm_phase(B, loc, finish, swap=False, hooks=None, D=6, gate=None, bg=None, extra_mem=None, ghooks=None, flush=(), pace=0, side0=(), xl=None):
    def bufof(f): return xl + 4*(f - 60) if xl is not None and f >= 60 else RING + 4*(f % 8)
    def rd(f):
        l = loc(f)
        if l[0] == 'lds':
            buf = bufof(f)
            return [f'ds_read_b128 v[{buf}:{buf+3}], v{l[1]} offset:{l[2]}']
        return []
    ms, mem, side, hk, paced = [], dict(extra_mem or {}), list(side0), dict(ghooks or {}), []
    for f in range(D):
        for t in rd(f): A(t)
    for f in range(72):
        sig, s, h = f // 12, (f % 12) // 2, f % 2
        l = loc(f)
        a = bufof(f) if l[0] == 'lds' else l[1]
        accb = ACC + 16*(sig & 1)
        for G in range(2):
            d = accb + 8*G + 4*h
            b = B + 24*G + 4*s
            ms.append(mf(d, b, a, None if s == 0 else d) if swap else mf(d, a, b, None if s == 0 else d))
        fn = f + D
        if xl is not None and fn >= 60:
            if fn < 72: mem[2*(60 - D) + fn - 60] = rd(fn)
        elif fn < 72 and not (gate is not None and f < gate <= fn):
            mem[2*f] = rd(fn)
        if f == 71 and xl is not None:
            ms[120:] = ms[120::2] + ms[121::2]
            fin = finish(sig, accb)
            side += [(135, t) for t in fin[:len(fin)//2]] + [(999, t) for t in fin[len(fin)//2:]]
            continue
        if f % 12 == 11:
            k = 0
            for t in finish(sig, accb):
                if pace and t.startswith('buffer_store') and sig < 5:
                    paced.append((2*f + 1 + 6 + pace*k, t, len(side), len(side) + 23)); k += 1
                else:
                    side.append((2*f + 1 + 3, t, 2*f + 1 + 24))
            if hooks and sig in hooks:
                def mk(sig=sig, f=f):
                    def h():
                        hooks[sig]()
                        if gate is not None and f + 1 == gate:
                            for k in range(gate, gate + D):
                                for t in rd(k): A(t)
                    return h
                hk[2*f + 1] = mk()
    return stream(ms, mem, side, hk, bg=bg, flush=flush, paced=paced)

def poll(label, off, want=1):
    A(f'v_mov_b32 v{vT+2}, 0')
    A(f's_mov_b32 s{sT4}, 0')
    A('s_mov_b64 exec, 1')
    A.label(label)
    A(f'buffer_load_dword v{vT+3}, v{vT+2}, s[{S_DBG}:{S_DBG+3}], 0 offen offset:{off} sc1')
    A('s_waitcnt vmcnt(0)')
    A(f'v_cmp_gt_u32 vcc, {want}, v{vT+3}')
    A(f's_add_u32 s{sT4}, s{sT4}, 1')
    A(f's_cmp_gt_u32 s{sT4}, 200000')
    A(f's_cbranch_scc1 {label}_x')
    A('s_cmp_lg_u64 vcc, 0')
    A(f's_cbranch_scc0 {label}_x')
    A('s_sleep 2')
    A(f's_branch {label}')
    A.label(label + '_x')
    A('s_mov_b64 exec, -1')

def cond(lbl, isE, body):
    A(f's_cmp_lt_u32 s{sW}, 4' if isE else f's_cmp_ge_u32 s{sW}, 4')
    A(f's_cbranch_scc1 {lbl}')
    body()
    A.label(lbl)

nprio = [0]
def prio(e, l):
    nprio[0] += 1
    A(f's_setprio {l}')
    if e != l: cond(f'M_pr{nprio[0]}', True, lambda: A.skip(f's_setprio {e}'))

npad = [0]
def padat(name):
    if OPT.get('padpos') != name: return
    npad[0] += 1
    A.label(f'PADM{npad[0]}')
    A.raw('  s_memrealtime s[98:99]')
    A.raw('  s_waitcnt lgkmcnt(0)')
    A.raw('  s_sub_u32 s98, s98, s96')
    A.raw(f'  s_cmp_lt_u32 s98, {OPT["padt"]}')
    A.raw(f'  s_cbranch_scc1 PADM{npad[0]}')

def gen_main():
    A.raw(f'.globl {NAME}'); A.raw('.p2align 8'); A.raw(f'.type {NAME},@function')
    A.raw(f'{NAME}:'); A.reset()
    A('s_cmp_ge_u32 s2, 256')
    A('s_cbranch_scc1 M_done')
    stamp(0)
    if 'pad' in OPT or 'padpos' in OPT: A.raw('  s_memrealtime s[96:97]')
    A('s_load_dwordx8 s[4:11], s[0:1], 0')
    A('s_load_dwordx4 s[12:15], s[0:1], 32')
    A(f'v_lshrrev_b32 v{vT}, 6, v0')
    A(f'v_and_b32 v{vL}, 63, v0')
    A(f'v_readfirstlane_b32 s{sW}, v{vT}')
    A(f'v_lshrrev_b32 v{vG}, 4, v{vL}')
    A(f'v_and_b32 v{vN}, 15, v{vL}')
    A(f'v_lshlrev_b32 v{vWA0}, 4, v{vL}')
    def decode():
        A(f's_and_b32 s{sT0}, s2, 7')
        A(f's_lshr_b32 s{sT1}, s2, 3')
        MAP = OPT.get('map', '0')
        if MAP == '0':
            A(f's_lshr_b32 s{sPR}, s{sT0}, 2')
            A(f's_bfe_u32 s{sPC}, s{sT0}, 0x10001')
            A(f's_and_b32 s{sT0}, s{sT0}, 1')
            A(f's_lshl_b32 s{sT0}, s{sT0}, 2')
            A(f's_lshr_b32 s{sTR}, s{sT1}, 3')
            A(f's_add_u32 s{sTR}, s{sTR}, s{sT0}')
            A(f's_and_b32 s{sTC}, s{sT1}, 7')
        elif MAP == '1':
            A(f's_mov_b32 s{sTR}, s{sT0}')
            A(f's_and_b32 s{sPR}, s{sT1}, 1')
            A(f's_bfe_u32 s{sPC}, s{sT1}, 0x10001')
            A(f's_lshr_b32 s{sTC}, s{sT1}, 2')
        elif MAP == '2':
            A(f's_lshr_b32 s{sPR}, s{sT0}, 2')
            A(f's_and_b32 s{sT0}, s{sT0}, 3')
            A(f's_lshl_b32 s{sT0}, s{sT0}, 1')
            A(f's_lshr_b32 s{sTR}, s{sT1}, 4')
            A(f's_add_u32 s{sTR}, s{sTR}, s{sT0}')
            A(f's_and_b32 s{sPC}, s{sT1}, 1')
            A(f's_bfe_u32 s{sTC}, s{sT1}, 0x30001')
        else:
            A(f's_and_b32 s{sPR}, s{sT1}, 1')
            A(f's_bfe_u32 s{sPC}, s{sT1}, 0x10001')
            A(f's_and_b32 s{sTR}, s{sT0}, 6')
            A(f's_lshr_b32 s{sT2}, s{sT1}, 4')
            A(f's_add_u32 s{sTR}, s{sTR}, s{sT2}')
            A(f's_and_b32 s{sT0}, s{sT0}, 1')
            A(f's_lshl_b32 s{sT0}, s{sT0}, 2')
            A(f's_bfe_u32 s{sTC}, s{sT1}, 0x20002')
            A(f's_add_u32 s{sTC}, s{sTC}, s{sT0}')
        A(f's_mul_i32 s{sTR}, s{sTR}, 14')
        A(f's_mul_i32 s{sTC}, s{sTC}, 14')
    def srds():
        srd(S_WS, 14, 15, WS_BYTES)
        srd(S_OUT, 10, 11, X_BYTES)
        srd(S_DBG, 12, 13, 256)
    def scalar_setup():
        A(f's_mul_i32 s{sALR}, s{sPR}, 13')
        A(f's_add_i32 s{sALR}, s{sALR}, -6')
        A(f's_cmp_eq_u32 s{sPC}, 0')
        A(f's_cselect_b32 s{sCB}, {223*384}, 0')
        A(f's_cselect_b32 s{sCS}, -1, 1')
        A(f's_mulk_i32 s{sCS}, 384')
        A(f's_cmp_ge_u32 s{sW}, 4')
        A(f's_cselect_b32 s{sSTRIP}, -4, 3')
        A(f's_add_i32 s{sSTRIP}, s{sSTRIP}, s{sW}')
        A(f's_lshl_b32 s{sSTRIP}, s{sSTRIP}, 1')
        A(f's_add_u32 s{sOA}, s{sTR}, s{sSTRIP}')
        A(f's_mov_b32 s{sOA+1}, 86016')
    def scalar_setup2():
        A(f's_mul_i32 s{sT0}, s{sPR}, 6')
        A(f's_add_i32 s{sKR0}, s{sTR}, s{sT0}')
        A(f's_add_i32 s{sKR0}, s{sKR0}, -6')
        A(f's_cmp_eq_i32 s{sKR0}, -6')
        A(f's_cselect_b32 s{sLOR}, 6, 0')
        A(f's_cmp_eq_i32 s{sKR0}, 98')
        A(f's_cselect_b32 s{sHIR}, 7, 13')
        A(f's_cselect_b32 s{sSHR}, 2, 0')
        A(f's_sub_i32 s{sKR0}, s{sKR0}, s{sSHR}')
        A(f's_cmp_eq_i32 s{sTC}, 98')
        A(f's_cselect_b32 s{sHIC}, 7, 13')
        A(f's_lshl_b32 s{sT1}, s{sTC}, 1')
        A(f's_add_i32 s{sT1}, s{sT1}, 1')
        A(f's_mul_i32 s{sKC0B}, s{sT1}, s{sCS}')
        A(f's_add_i32 s{sKC0B}, s{sKC0B}, s{sCB}')
        A(f's_lshl_b32 s{sCC}, s{sCS}, 1')
        A(f's_lshl_b32 s{sPS}, s{sCC}, 3')
        A(f's_add_i32 s{sCC}, s{sCC}, -384')
        A(f's_max_i32 s{sB0}, s{sSTRIP}, s{sLOR}')
        A(f's_min_i32 s{sB0}, s{sB0}, s{sHIR}')
        A(f's_and_b32 s{sB0}, s{sB0}, -2')
        A(f's_add_u32 s{sBASE}, s{sB0}, s{sSHR}')
        A(f's_mov_b32 s{sNEG}, {NEGINF}')
        A(f's_mov_b32 s{sSC}, {SCALE}')
        A(f's_and_b32 s{sF}, s{sW}, 1')
        A(f's_lshl_b32 s{sF}, s{sF}, 3')
        A(f's_and_b32 s{sT1}, s{sW}, 6')
        A(f's_or_b32 s{sF}, s{sF}, s{sT1}')
        A(f's_add_u32 s{sT1}, s{sW}, 8')
        row_soff(sXR, f's{sT1}')
        A(f's_mul_i32 s{sXL}, s{sT1}, {ROWB}')

    def sreg(G, tl): return SACC + 24*G + 4*tl
    TM = [197, 198, 199, 255, 0]
    def pixaddr(dst, sel, lane):
        t0, t1, t2, t3, t4 = TM
        o = [f'v_lshrrev_b32 v{t0}, 1, v{sel}', f'v_and_b32 v{t3}, 1, v{sel}', f'v_add_u32 v{t0}, s{sOA}, v{t0}',
             f'v_lshl_add_u32 v{t4}, v{t3}, 2, s{sTC}',
             f'v_lshl_add_u32 v{t1}, v{t0}, 1, s{sALR}', f'v_add_u32 v{t2}, 112, v{t0}', f'v_lshlrev_b32 v{t3}, 30, v{t3}',
             f'v_med3_i32 v{t0}, v{t1}, v{t0}, v{t2}', f'v_mul_lo_u32 v{t0}, v{t0}, s{sOA+1}'] + lane(t0)
        o += [f'v_add_u32 v{t0}, s{sCB}, v{t0}']
        for G in range(2):
            for r in range(4):
                d = dst(G, r)
                o += [f'v_lshl_add_u32 v{t1}, v{t4}, 1, {2*(6*G+r) + 7}', f'v_add_u32 v{t2}, {6*G+r+112}, v{t4}',
                      f'v_min_u32 v{d}, v{t1}, v{t2}', f'v_mad_i32_i24 v{d}, v{d}, s{sCS}, v{t0}']
                if G == 0 and r >= 2: o += [f'v_add_u32 v{d}, v{d}, v{t3}']
        return o
    def oaddr(): return pixaddr(lambda G, r: vOA + 4*G + r, vG, lambda t: [f'v_lshl_add_u32 v{t}, v{vN}, 3, v{t}'])
    vXS = ACC
    sXRW, sXB = 84, 86
    def xaddr():
        A(f'v_lshrrev_b32 v{vT}, 3, v{vL}')
        A(f'v_and_b32 v{vT+1}, 7, v{vL}')
        A(f'v_and_b32 v{vT+2}, 6, v{vT}')
        A(f'v_xor_b32 v{vT+1}, v{vT+1}, v{vT+2}')
        A(f'v_lshl_add_u32 v{vT+1}, v{vT+1}, 4, s{sCB}')
        A(f'v_add_u32 v{vT+4}, 2, v{vT}')
        A(f'v_lshrrev_b32 v{vT+4}, 3, v{vT+4}')
        A(f'v_add_u32 v{vT}, s{sTC}, v{vT}')
        for G in range(2):
            A(f'v_lshl_add_u32 v{vT+2}, v{vT}, 1, {12*G + 7}')
            A(f'v_add_u32 v{vT+3}, {6*G + 112}, v{vT}')
            A(f'v_min_u32 v{vT+2}, v{vT+2}, v{vT+3}')
            A(f'v_mad_i32_i24 v{vXS+G}, v{vT+2}, s{sCS}, v{vT+1}')
        A(f'v_lshl_add_u32 v{vXS}, v{vT+4}, 30, v{vXS}')
        for rb in range(2):
            A(f's_add_u32 s{sT0}, s{sOA}, {rb}')
            A(f's_lshl_b32 s{sT1}, s{sT0}, 1')
            A(f's_add_i32 s{sT1}, s{sT1}, s{sALR}')
            A(f's_max_i32 s{sT1}, s{sT1}, s{sT0}')
            A(f's_add_i32 s{sT0}, s{sT0}, 112')
            A(f's_min_i32 s{sT1}, s{sT1}, s{sT0}')
            A(f's_mul_i32 s{sXRW+rb}, s{sT1}, 86016')
        A(f's_lshl_b32 s{sXB}, s{sSTRIP}, 12')
        A(f's_lshl_b32 s{sXB+1}, s{sSTRIP}, 11')
    def xload(i):
        j, G, rb = i // 4, (i >> 1) & 1, i & 1
        off = 512 + (j*4 + G*2 + rb)*1024 - 128*j if j < 2 else 61440 + (G*2 + rb)*1024 - 256
        A.skip(f's_add_u32 m0, s{sXB + j//2}, {off}')
        A.skip('s_nop 0')
        A.raw(f'  buffer_load_dwordx4 v{vXS+G}, s[{S_X}:{S_X+3}], s{sXRW+rb} offen offset:{128*j}{XNT} lds')
    def chunk(c):
        for i in range(4*c, 4*c + 4): xload(i)
    def xread_addr():
        A(f'v_and_b32 v{vXS+2}, 6, v{vN}')
        A(f'v_xor_b32 v{vXS+2}, v{vXS+2}, v{vG}')
        A(f'v_lshlrev_b32 v{vXS+6}, 7, v{vN}')
        A(f'v_xor_b32 v{vXS+3}, 4, v{vXS+2}')
        A(f'v_lshl_add_u32 v{vXS+2}, v{vXS+2}, 4, v{vXS+6}')
        A(f'v_lshl_add_u32 v{vXS+3}, v{vXS+3}, 4, v{vXS+6}')
        for q in range(2):
            A(f'v_add_u32 v{vXS+4+q}, s{sXB+1}, v{vXS+2+q}')
            A(f'v_add_u32 v{vXS+2+q}, s{sXB}, v{vXS+2+q}')
    def xread(j):
        for G in range(2):
            for q in range(2):
                r = XQ + 24*G + 4*(2*j + q)
                if j < 2: A(f'ds_read_b128 v[{r}:{r+3}], v{vXS+2+q} offset:{512 + (4*j + 2*G)*1024}')
                else: A(f'ds_read_b128 v[{r}:{r+3}], v{vXS+4+q} offset:{61440 + 2*G*1024}')
    def setup():
        B = Asm()
        def Fv(dst, row):
            B(f'v_and_b32 v{dst}, 1, v{row}')
            B(f'v_lshlrev_b32 v{dst}, 3, v{dst}')
            B(f'v_and_or_b32 v{dst}, v{row}, 6, v{dst}')
        B(f'v_lshrrev_b32 v{vT}, 3, v{vN}')
        B(f'v_add_u32 v{vT}, s{sSTRIP}, v{vT}')
        B(f'v_max_i32 v{vT}, s{sLOR}, v{vT}')
        B(f'v_min_i32 v{vT}, s{sHIR}, v{vT}')
        B(f'v_subrev_u32 v{vT}, s{sB0}, v{vT}')
        B(f'v_and_b32 v{vT+1}, 1, v{vG}')
        B(f'v_sub_u32 v{vT+2}, v{vT+1}, v{vT}')
        B(f'v_ashrrev_i32 v{vR0}, 31, v{vT+2}')
        B(f'v_and_b32 v{vR0}, s{sNEG}, v{vR0}')
        B(f'v_sub_u32 v{vT+2}, v{vT}, v{vT+1}')
        B(f'v_ashrrev_i32 v{vR3}, 31, v{vT+2}')
        B(f'v_and_b32 v{vR3}, s{sNEG}, v{vR3}')
        B(f'v_and_b32 v{vT}, 7, v{vN}')
        B(f'v_lshrrev_b32 v{vT+1}, 1, v{vG}')
        B(f'v_subrev_u32 v{vT+3}, 6, v{vT}')
        B(f'v_ashrrev_i32 v{vT+3}, 31, v{vT+3}')
        B(f'v_and_b32 v{vT+3}, 0x7f, v{vT+3}')
        for G in range(2):
            if G: B(f'v_mov_b32 v{vT+3}, 0x7f')
            B(f'v_add_u32 v{vT+2}, {6*G}, v{vT}')
            B(f'v_min_i32 v{vT+2}, s{sHIC}, v{vT+2}')
            B(f'v_lshlrev_b32 v{vT+2}, v{vT+2}, v{vT+3}')
            B(f'v_lshrrev_b32 v{vT+2}, v{vT+1}, v{vT+2}')
            B(f'v_not_b32 v{vCB+G}, v{vT+2}')
        B(f'v_add_u32 v{vT}, s{sBASE}, v{vT}')
        Fv(vT+1, vT)
        B(f'v_mul_u32_u24 v{vT}, {ROWB}, v{vT}')
        B(f'v_lshrrev_b32 v{vT+2}, 3, v{vN}')
        B(f'v_mul_u32_u24 v{vT+2}, 24, v{vT+2}')
        B(f'v_add_u32 v{vT+2}, v{vT+2}, v{vG}')
        for s in range(4):
            B(f'v_add_u32 v{vT+3}, {4*s}, v{vT+2}')
            B(f'v_xor_b32 v{vT+3}, v{vT+3}, v{vT+1}')
            B(f'v_lshl_add_u32 v{vAS+s}, v{vT+3}, 4, v{vT}')
        B(f'v_and_b32 v{vT}, 1, v{vG}')
        B(f'v_lshlrev_b32 v{vT}, 2, v{vT}')
        B(f'v_lshrrev_b32 v{vT+1}, 2, v{vN}')
        B(f'v_add3_u32 v{vT}, v{vT}, v{vT+1}, s{sBASE}')
        Fv(vT+1, vT)
        B(f'v_mul_u32_u24 v{vT}, {ROWB}, v{vT}')
        B(f'v_and_b32 v{vT+2}, 1, v{vN}')
        B(f'v_lshl_add_u32 v{vT}, v{vT+2}, 3, v{vT}')
        B(f'v_lshrrev_b32 v{vT+2}, 1, v{vG}')
        B(f'v_mul_u32_u24 v{vT+2}, 24, v{vT+2}')
        B(f'v_bfe_u32 v{vT+3}, v{vN}, 1, 1')
        B(f'v_add_u32 v{vT+2}, v{vT+2}, v{vT+3}')
        for ct in range(8):
            B(f'v_add_u32 v{vT+3}, {2*ct}, v{vT+2}')
            B(f'v_xor_b32 v{vT+3}, v{vT+3}, v{vT+1}')
            B(f'v_lshl_add_u32 v{vAP+ct}, v{vT+3}, 4, v{vT}')
        B(f'v_add_u32 v{vWA1}, {SPARE}, v{vWA0}')
        B(f'v_add_u32 v{vWAM}, {MB}, v{vWA0}')
        row_addrs(WF, f's{sF}', B)
        return [l.strip() for l in B.lines]
    def masks():
        out = []
        for G in range(2):
            for tl in range(NT[G]):
                tau = tl + 3*G
                r = sreg(G, tl)
                out += [f'v_bfe_i32 v{r+2}, v{vCB+G}, {2*tau}, 1', f'v_and_b32 v{r+1}, s{sNEG}, v{r+2}',
                        f'v_and_b32 v{r+2}, s{sNEG}, v{r+2}', f'v_or_b32 v{r}, v{r+1}, v{vR0}', f'v_or_b32 v{r+3}, v{r+1}, v{vR3}']
        return out

    M1 = int(OPT.get('m1', '12')); MW = int(OPT.get('mw', '6'))
    def mshare(a, b):
        A(f's_lshl_b32 s{sT0}, s{sW}, 10')
        A(f's_add_u32 s{sT0}, s{sT0}, {MOFF + 4096*a}')
        for i in range(a, b):
            A(f's_sub_u32 m0, s{sT0}, {MOFF - MB}')
            A(f'buffer_load_dwordx4 v{vWA0}, s[{S_WS}:{S_WS+3}], s{sT0} offen sc1 lds')
            if i < b - 1: A(f's_add_u32 s{sT0}, s{sT0}, 4096')
    TA, TB, TD = 64, 112, 160
    def signal(off, last, tag, wait=True):
        A('v_mov_b32 v192, 1'); A('v_mov_b32 v193, 0')
        A('s_mov_b64 exec, 1')
        A('s_waitcnt vmcnt(0)')
        A(f'buffer_atomic_add v192, v193, s[{S_DBG}:{S_DBG+3}], 0 offen offset:{off} sc0 sc1')
        A('s_mov_b64 exec, -1')
    def publish(off, last, tag):
        A(f'v_readfirstlane_b32 s{sT1}, v192')
        A(f's_cmp_lg_u32 s{sT1}, {last}')
        A(f's_cbranch_scc1 {tag}')
        A('s_mov_b64 exec, 1')
        A(f'buffer_store_dword v192, v193, s[{S_DBG}:{S_DBG+3}], 0 offen offset:{128 + off} sc1')
        A('s_mov_b64 exec, -1')
        A.label(tag)
    def swz16():
        A(f'v_bfe_u32 v{vT+1}, v{vL}, 2, 2')
        A(f'v_lshrrev_b32 v{vT+2}, 5, v{vL}')
        A(f'v_lshlrev_b32 v{vT+3}, 1, v{vT+2}')
        A(f'v_and_b32 v{vT+4}, 3, v{vL}')
        A(f'v_xor_b32 v{vT+3}, v{vT+3}, v{vT+4}')
        A(f'v_lshlrev_b32 v{vT+3}, 4, v{vT+3}')
        A(f's_movk_i32 s{sT5}, 1152')
    def wread():
        A(f'v_lshrrev_b32 v{vT}, 3, v{vN}')
        A(f'v_lshlrev_b32 v{vT}, 1, v{vT}')
        A(f'v_xor_b32 v{vT}, v{vT}, v{vG}')
        A(f'v_lshl_add_u32 v{vT}, v{vN}, 2, v{vT}')
        A(f'v_lshlrev_b32 v{MWA+3}, 4, v{vT}')
        A(f'v_add_u32 v{MWA+3}, {MB}, v{MWA+3}')
    def wlanes():
        swz16()
        A(f'v_lshrrev_b32 v{vT}, 2, v{vL}')
        A(f'v_mad_u32_u24 v{vWD+3}, v{vT}, s{sT5}, v{vT+3}')
        wread()
    A(f's_cmp_lg_u32 s{sW}, 0')
    A('s_cbranch_scc1 M_comp')
    A('s_getpc_b64 s[16:17]')
    A('s_and_b32 s16, s16, -256')
    A('s_and_b32 s17, s17, 0xffff')
    A('s_mov_b32 s18, CODE_END-' + NAME)
    A('s_mov_b32 s19, 0x00020000')
    A(f's_lshr_b32 s{sT0}, s2, 3')
    A(f's_lshl_b32 s{sT0}, s{sT0}, 10')
    A(f'buffer_load_dwordx4 v[188:191], v{vWA0}, s[16:19], s{sT0} offen')
    A(f's_cmp_ge_u32 s2, {NMP + 72}')
    A('s_cbranch_scc1 H_nom')
    swz16()
    A(f's_mov_b32 m0, {MB}')
    A(f's_mov_b32 s{S_W+2}, {192*576*2}'); A(f's_mov_b32 s{S_W+3}, 0x00020000')
    A(f's_cmp_ge_u32 s2, {NMP}')
    A('s_cbranch_scc1 H_vf')
    A(f'v_lshl_add_u32 v{vT}, v{vG}, 3, v{vT+1}')
    A(f's_mul_hi_u32 s{sT0}, s2, 0x2aaaaaab')
    A(f's_mul_i32 s{sT1}, s{sT0}, 6')
    A(f's_sub_u32 s{sT1}, s2, s{sT1}')
    A(f's_mul_i32 s{sT1}, s{sT1}, {32*1152}')
    A(f's_mul_i32 s{sT0}, s{sT0}, {32*1152}')
    A(f's_sub_u32 s{sT0}, s{sT0}, s{sT1}')
    A(f's_add_i32 s{sT0}, s{sT0}, {384 - 4608}')
    A(f's_movk_i32 s{sT2}, 4608')
    A(f's_mov_b32 s{sT4}, {MB + 24576}')
    A('s_branch H_tl0')
    A.label('H_vf')
    A(f'v_lshrrev_b32 v{vT}, 2, v{vL}')
    A(f's_sub_u32 s{sVT}, s2, {NMP}')
    A(f's_mul_hi_u32 s{sVO}, s{sVT}, 0x15555556')
    A(f's_mul_i32 s{sT1}, s{sVO}, {32*1152}')
    A(f's_addk_i32 s{sT1}, 768')
    A(f's_movk_i32 s{sT2}, {16*1152}')
    A(f's_mov_b32 s{sT4}, {MB + 12288}')
    A.label('H_tl0')
    A(f'v_mad_u32_u24 v{vWD}, v{vT}, s{sT5}, v{vT+3}')
    A('s_waitcnt lgkmcnt(0)')
    A(f's_mov_b64 s[{S_W}:{S_W+1}], s[6:7]')
    A.label('H_tl')
    for k in range(6):
        A(f'buffer_load_dwordx4 v{vWD}, s[{S_W}:{S_W+3}], s{sT1} offen offset:{64*k} lds')
        A(f's_addk_i32 m0, {960 if k < 5 else 960 + 384}')
    A(f's_add_u32 s{sT1}, s{sT1}, s{sT2}')
    A(f's_mov_b32 s{sT3}, s{sT2}'); A(f's_mov_b32 s{sT2}, s{sT0}'); A(f's_mov_b32 s{sT0}, s{sT3}')
    A(f's_cmp_lt_u32 m0, s{sT4}')
    A('s_cbranch_scc1 H_tl')
    A(f's_cmp_ge_u32 s2, {NMP}')
    A('s_cbranch_scc1 H_vf2')
    A('s_barrier')
    A('s_branch H_task2')
    A.label('H_vf2')
    srd(S_WO, 8, 9, 192*192*2)
    A(f'v_lshrrev_b32 v{vT}, 1, v{vL}')
    A(f'v_mul_u32_u24 v{vT}, 384, v{vT}')
    A(f'v_and_b32 v{vT+1}, 1, v{vL}')
    A(f'v_lshl_add_u32 v{vT}, v{vT+1}, 4, v{vT}')
    A(f's_mul_i32 s{sT1}, s{sVO}, 12')
    A(f's_sub_u32 s{sT1}, s{sVT}, s{sT1}')
    A(f's_lshl_b32 s{sT2}, s{sT1}, 5')
    A.label('H_tl2')
    A(f'buffer_load_dwordx4 v{vT}, s[{S_WO}:{S_WO+3}], s{sT2} offen lds')
    A('s_addk_i32 m0, 1024')
    A(f's_addk_i32 s{sT2}, {32*384}')
    A(f's_cmp_lt_u32 m0, {MB + 18432}')
    A('s_cbranch_scc1 H_tl2')
    A('s_branch H_nom')
    A.label('M_comp'); A.reset()
    nstamp[0] = 1
    decode()
    scalar_setup()
    xaddr()
    A('s_waitcnt lgkmcnt(0)')
    srd(S_X, 4, 5, X_BYTES)
    stamp()
    A(f's_cmp_ge_u32 s2, {NMP}')
    A('s_cbranch_scc1 M_x0')
    A.skip('s_barrier')
    A.label('M_x0')
    chunk(0)
    A(f's_cmp_lt_u32 s2, {NMP}')
    A('s_cbranch_scc1 M_x1')
    chunk(1)
    chunk(2)
    A.label('M_x1')
    A('s_branch M_c2')
    sv = nstamp[0]
    A.label('H_task2'); A.reset()
    nstamp[0] = 1
    wread()
    srd(S_X, 4, 5, X_BYTES)
    srds()
    A(f's_lshl_b32 s{sT0}, s2, 11')
    A(f's_add_u32 s{sT0}, s{sT0}, {MOFF}')
    A('s_waitcnt vmcnt(0)')
    stamp()
    for k in range(6):
        for q in range(4):
            r = TA + 24*q + 4*k
            A(f'ds_read_b128 v[{r}:{r+3}], v{MWA+3} offset:{(6*q + k)*1024}')
        if k >= 2:
            kk = k - 2
            for h in range(2):
                for hp in range(2):
                    d = TD + 8*h + 4*hp
                    A(mf(d, TA + 24*hp + 4*kk, TB + 24*h + 4*kk, None if kk == 0 else d))
    for kk in (4, 5):
        for h in range(2):
            for hp in range(2):
                d = TD + 8*h + 4*hp
                A(mf(d, TA + 24*hp + 4*kk, TB + 24*h + 4*kk, d))
    for h in range(2):
        for q in range(4):
            A(f'v_cvt_pk_bf16_f32 v{TD+16+4*h+q}, v{TD+8*h+2*q}, v{TD+8*h+2*q+1}')
        A(f'buffer_store_dwordx4 v[{TD+16+4*h}:{TD+19+4*h}], v{vWA0}, s[{S_WS}:{S_WS+3}], s{sT0} offen offset:{1024*h} sc1')
    signal(0, NMP - 1, 'H_p1')
    A('s_barrier')
    A('s_waitcnt vmcnt(0)')
    publish(0, NMP - 1, 'H_p1')
    A('s_barrier')
    A('s_branch H_join')
    A.label('H_nom'); A.reset()
    nstamp[0] = 1
    A('s_waitcnt lgkmcnt(0)')
    srd(S_X, 4, 5, X_BYTES)
    srds()
    stamp()
    A('s_branch H_join')
    A.label('M_c2'); A.reset()
    nstamp[0] = sv
    stamp()
    if OPT.get('tlb', '0') == '1':
        A(f's_add_u32 s90, s10, s{sXRW}'); A('s_addc_u32 s91, s11, 0')
        A.raw('  s_load_dword s83, s[90:91], 0')
        A.raw('  s_load_dword s83, s[14:15], 0x38000')
        A(f's_movk_i32 s{sOA+2}, 384')
    srds(); scalar_setup2()
    for t in setup() + oaddr() + masks(): A(t)
    xread_addr()
    A(f's_cmp_ge_u32 s2, {NMP}')
    A('s_cbranch_scc1 M_x2')
    A.skip('s_barrier')
    chunk(1)
    A.skip('s_barrier')
    chunk(2)
    A.label('M_x2')
    stamp()
    for j in range(3):
        A(f's_waitcnt vmcnt({8 - 4*j})')
        xread(j)
    row_soff(sT2, f's{sW}')
    A('s_waitcnt lgkmcnt(0)')
    stamp()
    A('s_barrier')
    ER = int(OPT.get('er', '1'))
    A(f's_cmp_lt_u32 s{sW}, {ER}')
    A('s_cbranch_scc1 M_er')
    for j in range(8):
        A(f's_add_u32 m0, s{sXL}, {16*PIECE[j] - 8*ROWB}')
        A(f'buffer_load_dwordx4 v{WF+j}, s[{S_X}:{S_X+3}], s{sT2} offen{KNT} lds')
    A.label('M_er')
    A('s_barrier')
    stamp()
    A(f's_cmp_lt_u32 s{sW}, 4')
    A('s_cbranch_scc1 M_xl')
    A('s_setprio 1')
    A('s_barrier')
    A('s_branch M_pa')
    A.label('M_xl'); A.reset()
    mshare(0, M1)
    A(f's_waitcnt vmcnt({M1 - MW})')
    A('s_barrier')
    mshare(M1, 18)
    A.label('M_pa'); A.reset()
    padat('A')
    stamp()
    bgA = []
    xrow = []
    for j in range(8):
        xrow.append(f's_add_u32 m0, s{sXL}, {16*PIECE[j]}\n s_nop 0\n buffer_load_dwordx4 v{WF+j}, s[{S_X}:{S_X+3}], s{sXR} offen{KNT} lds')
    def finA(sig, accb):
        out = []
        for G in range(2):
            for q in range(4):
                out.append(f'v_cvt_pk_bf16_f32 v{QP+24*G+4*sig+q}, v{accb+8*G+2*q}, v{accb+8*G+2*q+1}')
        return out
    def locA(f):
        if f < 60: return ('lds', vWAM, f*1024)
        if f < 62: return ('reg', WF + 4*(f-60))
        return ('lds', vWA1, (f-62)*1024)
    def bar():
        A('s_barrier')
        if OPT.get('hr', '1') == '0': bgA[0:0] = xrow
    def bar4():
        A('s_waitcnt vmcnt(0)'); A('s_barrier')
        prio(3, 2)
    def b0b():
        A('s_waitcnt vmcnt(0)'); A('s_barrier')
    hA = {2: bar, 4: bar4}
    seq = []
    for (a1, a2) in ((0, 3), (1, 4), (2, 5), (6, 7), (8, 9)):
        for s in range(6):
            seq.append((a1, s)); seq.append((a2, s))
    def users(tau):
        u = []
        if tau <= 5: u.append((0, tau))
        if tau >= 3: u.append((1, tau - 3))
        return u
    def rdS(i):
        tau, s = seq[i]
        buf = RING + 4*(i % 8)
        return f'ds_read_b128 v[{buf}:{buf+3}], v{vAS + (s % 4)} offset:{tau*768 + (256 if s >= 4 else 0)}'
    SP = OPT.get('sp', '1') == '1'
    xm = {2*48+1: [f'ds_read_b128 v[{WF}:{WF+3}], v{vWAM} offset:{60*1024}'],
          2*49+1: [f'ds_read_b128 v[{WF+4}:{WF+7}], v{vWAM} offset:{61*1024}']}
    gh = {2*(4*MW - 6) - 1: b0b}
    if SP:
        for i in range(6): xm[2*(66 + i)] = [rdS(i)]
        xm[143] = [rdS(6)]
        gh[131] = lambda: cond('M_l1', False, lambda: (A.raw('  s_waitcnt lgkmcnt(0)'), A.skip('s_barrier')))
    pend = gemm_phase(XQ, locA, finA, hooks=hA, bg=bgA, extra_mem=xm, ghooks=gh)
    assert not bgA
    stamp()
    padat('S')
    if not SP: cond('M_l1', False, lambda: A.skip('s_barrier'))
    D = 7
    if not SP:
        for i in range(D): A(rdS(i))
        for t in pend: A(t)
        pend = []
    vM = [12, 13]; vX = [14, 15]
    A(f's_mov_b32 s{sT1}, 0xff7fffff')
    ms, mem, side = [], {}, [(3, t, 12) for t in pend]
    started = [False, False]; ndone = [0, 0]
    def xl(G):
        o = []
        for sw in ('v_permlane32_swap_b32', 'v_permlane16_swap_b32'):
            o += [f'v_mov_b32 v{vX[G]}, v{vM[G]}', f'{sw} v{vM[G]}, v{vX[G]}', f'v_max_f32 v{vM[G]}, v{vM[G]}, v{vX[G]}']
        return o + [f'v_mul_f32 v{vM[G]}, s{sSC}, v{vM[G]}']
    for i, (tau, s) in enumerate(seq):
        a = RING + 4*(i % 8)
        for (G, tl) in users(tau):
            r = sreg(G, tl)
            ms.append(mf(r, a, QP + 24*G + 4*s, r))
            if s == 5:
                e = len(ms) + 3
                side.append((e, f'v_max3_f32 v{vM[G]}, v{r}, v{r+1}, ' + (f'v{vM[G]}' if started[G] else f's{sT1}')))
                side.append((e, f'v_max3_f32 v{vM[G]}, v{r+2}, v{r+3}, v{vM[G]}'))
                started[G] = True; ndone[G] += 1
        if i % 12 == 11:
            for G in range(2):
                if ndone[G] == NT[G]:
                    side += [(len(ms) + 3, t) for t in xl(G)]; ndone[G] = 8
                    if G == 0 and OPT.get('ef', '1') == '1':
                        side += [(0, f'v_fma_f32 v{q}, v{q}, s{sSC}, -v{vM[0]}') for q in range(sreg(0, 0), sreg(0, 6))]
        if i + D < len(seq): mem[len(ms) - 1] = [rdS(i + D)]
    bgS = [f'v_mov_b32 v{PP+q}, 0' for q in (16, 17)] + [f'v_mov_b32 v{ONES+q}, 0x3f803f80' for q in range(4)]
    rest = stream(ms, mem, side, bg=bgS)
    assert not bgS
    stamp()
    prio(1, 0)
    for t in rest: A(t)
    def preg(G, tl): return PP + 16*G + 2*(tl + G)
    seqP = [(sig, u, h) for sig in range(6) for u in range(5) for h in range(2)]
    def rdP(i):
        sig, u, h = seqP[i]
        ct = 2*sig + h
        buf = RING + 4*(i % 8)
        return [f'ds_read_b64_tr_b16 v[{buf+2*hh}:{buf+2*hh+1}], v{vAP + (ct % 8)} offset:{(4*u+2*hh)*384 + (256 if ct >= 8 else 0)}' for hh in range(2)]
    DP = int(OPT.get('dp', '6'))
    def b4L(): A.skip('s_barrier')
    B3AT, B4AT = int(OPT.get('b3', '1')), int(OPT.get('b4', '6'))
    if B3AT < 0: cond('M_e2', True, lambda: A.skip('s_barrier'))
    def wreg(i):
        return sreg(i % 2, i // 2) if i != 12 else WF
    for tl in range(7):
        for G in range(2):
            if tl >= NT[G]: continue
            r = sreg(G, tl)
            if G == 1 or OPT.get('ef', '1') != '1':
                for k in range(4): A(f'v_fma_f32 v{r+k}, v{r+k}, s{sSC}, -v{vM[G]}')
            for k in range(4): A(f'v_exp_f32 v{r+k}, v{r+k}')
        for G in range(2):
            if tl >= NT[G]: continue
            r = sreg(G, tl)
            p = preg(G, tl)
            A(f'v_cvt_pk_bf16_f32 v{p}, v{r}, v{r+1}')
            A(f'v_cvt_pk_bf16_f32 v{p+1}, v{r+2}, v{r+3}')
        if tl == B3AT: cond('M_e2', True, lambda: A.skip('s_barrier'))
        if tl >= B3AT:
            for t2 in range(0 if tl == max(B3AT, 0) else tl, tl + 1):
                if t2 % 2 == 0: A(f's_mov_b32 s{sT0}, {2*t2*1024}')
                for G in range(2):
                    r = wreg(2*t2 + G)
                    A(f'buffer_load_dwordx4 v[{r}:{r+3}], v{vWA0}, s[{S_WS}:{S_WS+3}], s{sT0} offen offset:{1024*(2*(t2%2)+G)} sc1')
        if tl == 5:
            for i in range(DP):
                for t in rdP(i): A(t)
        if tl == B4AT: cond('M_l2', False, b4L)
    stamp()
    prio(3, 2)
    padat('P')
    ms, first, side, hk = [], [], [], {}
    def b5L():
        cond('M_l3', False, lambda: A.skip('s_barrier'))
    if int(OPT.get('b5', '1')) < 0: b5L()
    sums = [mf(vINV + 4*G, PP + 16*G + 4*u, ONES, None if u == 0 else vINV + 4*G) for u in range(4) for G in range(2) if u < 3 + G]
    for i, (sig, u, h) in enumerate(seqP):
        a = RING + 4*(i % 8)
        accb = ACC + 16*(sig & 1)
        first.append(len(ms))
        for G in range(2):
            uu = u - G
            if 0 <= uu <= 2 + G:
                d = accb + 8*G + 4*h
                ms.append(mf(d, a, PP + 16*G + 4*uu, None if uu == 0 else d))
        if sums and (i % 10 == 7 or i == 11): ms.append(sums.pop(0))
        if i % 10 == 9:
            e = len(ms) - 1
            side += [(e + 4, t, e + 15) for t in finA(sig, accb)]
            if sig == int(OPT.get('b5', '1')): hk[e] = b5L
            if sig == int(OPT.get('pv', '3')) and OPT.get('pe') == '4': hk[e] = lambda: prio(3, 1)
    assert not sums
    mem = {}
    k = 0
    nrd = 2*(len(seqP) - DP)
    ngap = first[-1] - int(OPT.get('ng', '5'))
    for j in range(DP, len(seqP)):
        for t in rdP(j):
            gp = (k * ngap) // nrd
            if j >= 8: gp = max(gp, first[j - 7] - 1)
            assert gp < first[j] - 3, (j, gp, first[j])
            mem.setdefault(gp, []).append(t); k += 1
    pend = stream(ms, mem, side, hk)
    A('s_waitcnt vmcnt(0)')
    stamp()
    W4 = OPT.get('w4', '1') == '1'
    def wvo(f0, n):
        for i in range(n):
            if i % 4 == 0:
                A.skip(f's_mov_b32 m0, {(f0 - 24 + i)*1024}')
                A.skip(f's_mov_b32 s{sT4}, {(f0 + i)*1024}')
            A.raw(f'  buffer_load_dwordx4 v{vWA0}, s[{S_WS}:{S_WS+3}], s{sT4} offen offset:{1024*(i%4)} sc1 lds')
    A(f's_cmp_lg_u32 s{sW}, 4')
    A('s_cbranch_scc1 M_e3b')
    wvo(24, 15)
    A.label('M_e3b')
    def b4E():
        def body():
            A.skip(f's_cmp_lg_u32 s{sW}, 4')
            A.skip('s_cbranch_scc1 M_e3a')
            A.raw('  s_waitcnt vmcnt(0)')
            A.skip('s_barrier')
            wvo(39, 16)
            A.skip('s_branch M_e3')
            A.label('M_e3a')
            A.skip('s_barrier')
        cond('M_e3', True, body)
    def finE(sig, accb):
        out = []
        for G in range(2):
            for r in range(4):
                for h in range(2):
                    out.append(f'v_mul_f32 v{accb+8*G+4*h+r}, v{accb+8*G+4*h+r}, v{vINV+4*G+r}')
                o = OST + 8*G + 2*r
                out.append(f'v_cvt_pk_bf16_f32 v{o+(sig&1)}, v{accb+8*G+r}, v{accb+8*G+4+r}')
                if sig & 1:
                    out.append(f'buffer_store_dwordx2 v[{o}:{o+1}], v{vOA+4*G+r}, s[{S_OUT}:{S_OUT+3}], 0 offen offset:{128*(sig>>1)}{ONT[sig>>1]}')
        return out
    def locE(f):
        if f < 14: return ('reg', wreg(f))
        if f < 24: return ('lds', vWA1, (f - 14)*1024)
        return ('lds', vWA0, (f-24)*1024)
    def b5E():
        def body():
            A.raw(f'  s_waitcnt vmcnt({len(A.vm)})'); A.skip('s_barrier')
        cond('M_e4', True, body)
        padat('O')
        stamp()
    bgE = [t for q in range(8) for t in (f'v_rcp_f32 v{vINV+q}, v{vINV+q}', '')]
    DE = int(OPT.get('de', '4')); GB4 = int(OPT.get('gb4', '13'))
    assert GB4 < 2*(14 - DE)
    pend = gemm_phase(QP, locE, finE, swap=True, bg=bgE, pace=int(OPT.get('pace', '4')), D=DE,
                      ghooks={GB4: b4E, 2*(39 - DE) - 1: b5E}, side0=[(3, t, 16) for t in pend],
                      xl=SACC if OPT.get('xl', '1') == '1' else None)
    padat('Z')
    for t in pend: A(t)
    if STAMP:
        stamp()
        A('s_waitcnt vmcnt(0)')
        stamp(1)
        write_stamps()
    if 'pad' in OPT:
        A('s_waitcnt vmcnt(0)')
        A.label('PADL')
        A.raw('  s_memrealtime s[98:99]')
        A.raw('  s_waitcnt lgkmcnt(0)')
        A('s_sub_u32 s98, s98, s96')
        A(f's_cmp_lt_u32 s98, {OPT["pad"]}')
        A('s_cbranch_scc1 PADL')
    A('s_endpgm')

    A.label('M_helper'); A.reset()
    nstamp[0] = 2
    A.label('H_join'); A.reset()
    stamp()
    wread()
    A(f's_sub_u32 s{sVT}, s2, {NMP}')
    A('v_mov_b32 v192, 1'); A('v_mov_b32 v193, 0')
    A(f'v_bfe_u32 v180, v{vN}, 1, 1')
    A('v_mul_u32_u24 v180, 12288, v180')
    A(f'v_and_b32 v181, 1, v{vN}')
    A('v_lshl_add_u32 v180, v181, 10, v180')
    A(f'v_lshrrev_b32 v181, 2, v{vN}')
    A('v_lshl_add_u32 v180, v181, 4, v180')
    A(f'v_lshl_add_u32 v180, v{vG}, 8, v180')
    A(f'v_lshlrev_b32 v181, 3, v{vN}')
    A(f'v_lshl_add_u32 v181, v{vG}, 8, v181')
    A(f'v_add_u32 v181, {MB + 12288}, v181')
    VS = 4*ROWB + 1024
    VA, VB, VD = 96, 144, 168
    t0, t1 = VD + 12, VD + 13
    def isv(lbl):
        A(f's_cmp_ge_u32 s{sVT}, 72')
        A(f's_cbranch_scc1 {lbl}')
    decode(); scalar_setup(); scalar_setup2()
    row_addrs(WF, '0')
    row_addrs(vAP, '8')
    def rows(lst):
        for i in lst:
            row_soff(sT1, str(i))
            b = vAP if i & 1 else WF
            for j in range(8):
                a = b + j
                if i & 6:
                    a = 64 + j
                    A(f'v_xor_b32 v{a}, {16*(i & 6)}, v{b+j}')
                A(f's_mov_b32 m0, {i*ROWB + 16*PIECE[j]}')
                A(f'buffer_load_dwordx4 v{a}, s[{S_X}:{S_X+3}], s{sT1} offen{KNT} lds')
            if len(A.vm) >= 54: A('s_waitcnt vmcnt(40)')
    isv('H_v2')
    A(f's_mul_hi_u32 s{sT0}, s{sVT}, 0x15555556')
    A(f's_mul_i32 s{sT1}, s{sT0}, 12')
    A(f's_sub_u32 s{sT1}, s{sVT}, s{sT1}')
    A(f's_lshr_b32 s{sT2}, s{sT1}, 2')
    A(f's_mul_i32 s{sVO}, s{sT2}, 24576')
    A(f's_and_b32 s{sT1}, s{sT1}, 3')
    A(f's_lshl_b32 s{sT1}, s{sT1}, 6')
    A(f's_add_u32 s{sVO}, s{sVO}, s{sT1}')
    A(f's_lshl_b32 s{sT1}, s{sT0}, 11')
    A(f's_add_u32 s{sVO}, s{sVO}, s{sT1}')
    A('s_waitcnt vmcnt(0)')
    for i in range(12):
        A(f'ds_read_b128 v[{VA+4*i}:{VA+4*i+3}], v{MWA+3} offset:{1024*i}')
    A('s_waitcnt lgkmcnt(2)')
    for k in range(6):
        for hh in range(2):
            A(f'ds_read_b64_tr_b16 v[{VB+4*k+2*hh}:{VB+4*k+2*hh+1}], v{t1} offset:{1024*k + 128*hh}')
    A('s_waitcnt lgkmcnt(0)')
    for k in range(6):
        for hp in range(2):
            A(mf(VD + 4*hp, VA + 24*hp + 4*k, VB + 4*k, None if k == 0 else VD + 4*hp))
    for q in range(4):
        A(f'v_cvt_pk_bf16_f32 v{VD+8+q}, v{VD+2*q}, v{VD+2*q+1}')
    A(f'buffer_store_dwordx4 v[{VD+8}:{VD+11}], v{t0}, s[{S_WS}:{S_WS+3}], s{sVO} offen sc1')
    A.label('H_v2'); A.reset()
    A('s_barrier')
    if ER == 0: rows([0, 8])
    poll('H_pollM', 128)
    A(f's_lshr_b32 s{sT0}, s2, 3')
    A(f's_mul_i32 s{sT0}, s{sT0}, 2304')
    A(f's_add_u32 s{sT0}, s{sT0}, {MOFF}')
    for i in range(3):
        A(f'buffer_load_dwordx4 v[{80+4*i}:{83+4*i}], v{vWA0}, s[{S_WS}:{S_WS+3}], s{sT0} offen offset:{1024*i} sc1')
    stamp()
    A('s_barrier')
    stamp()
    mshare(0, M1)
    A(f's_waitcnt vmcnt({M1 - MW})')
    A('s_barrier')
    stamp()
    mshare(M1, 18)
    A('s_waitcnt vmcnt(0)')
    isv('H_v3')
    A('s_mov_b64 exec, 1')
    A.raw(f'  buffer_atomic_add v192, v193, s[{S_DBG}:{S_DBG+3}], 0 offen offset:4 sc1')
    A('s_mov_b64 exec, -1')
    A.label('H_v3')
    if ER: rows([0, 8] + list(range(1, ER)))
    A('s_barrier')
    if OPT.get('hr', '1') == '1': rows([9, 10])
    stamp()
    A('s_barrier')
    rows([11, 12, 13, 14, 15])
    A('s_waitcnt vmcnt(0)')
    stamp()
    A('s_barrier')
    rows([16, 17, 18, 19])
    A('s_waitcnt vmcnt(0)')
    stamp()
    poll('H_pollV', 4, 72)
    A(f's_lshr_b32 s{sT0}, s2, 3')
    A(f's_mul_i32 s{sT0}, s{sT0}, 2304')
    for i in range(3):
        A(f'buffer_load_dwordx4 v[{80+4*i}:{83+4*i}], v{vWA0}, s[{S_WS}:{S_WS+3}], s{sT0} offen offset:{1024*i} sc1')
    stamp()
    A('s_barrier')
    def wfr(src0, n, lds0):
        for i in range(n):
            if i % 4 == 0:
                A(f's_mov_b32 m0, {lds0 + i*1024}')
                A(f's_mov_b32 s{sT4}, {(src0 + i)*1024}')
            A(f'buffer_load_dwordx4 v{vWA0}, s[{S_WS}:{S_WS+3}], s{sT4} offen offset:{1024*(i%4)} sc1 lds')
    wfr(14, 10, SPARE)
    A('s_waitcnt vmcnt(0)')
    stamp()
    A('s_barrier')
    if W4: wfr(55, 17, 31*1024)
    else: wfr(24, 12, 0)
    A('s_waitcnt vmcnt(0)')
    stamp()
    A('s_barrier')
    if STAMP:
        stamp(1)
        write_stamps()
    A.label('M_done')
    A('s_endpgm')
    A.label('CODE_END')

gen_main()
A.raw('.section .rodata,"a"')
A.raw('.p2align 6')
A.raw(f'.amdhsa_kernel {NAME}')
A.raw('  .amdhsa_next_free_vgpr 256')
A.raw('  .amdhsa_next_free_sgpr 102')
A.raw('  .amdhsa_accum_offset 256')
A.raw('  .amdhsa_group_segment_fixed_size 0')
A.raw('  .amdhsa_kernarg_size 48')
A.raw('  .amdhsa_user_sgpr_count 2')
A.raw('  .amdhsa_user_sgpr_kernarg_segment_ptr 1')
A.raw('  .amdhsa_system_sgpr_workgroup_id_x 1')
A.raw('.end_amdhsa_kernel')
open(OUT, 'w').write(A.text())
print('instr', A.n_inst, 'nops', A.nops, 'maxv', A.maxv)
```

```python
import sys, struct
sys.path.insert(0, 'gen')
from asmlib import Asm

OUT = sys.argv[1] if len(sys.argv) > 1 else 'standalone__neighborhood_nat__vision.s'
OPT = dict(a.split('=') if '=' in a else (a, '1') for a in sys.argv[2:])
STAMP = 'stamp' in OPT
XNT = ' nt' if OPT.get('xnt', '0') == '1' else ''
KNT = ' nt' if OPT.get('knt', '0') == '1' else ''
ONT = [{'0': '', '1': ' nt', '2': ' sc1', '3': ' sc0 sc1', '4': ' sc0 sc1 nt'}[c] for c in (OPT.get('ont', '2') * 3)[:3]]
NAME = 'standalone__neighborhood_nat__vision_kernel'

X_BYTES = 19267584
WS_BYTES = 268435456
ROWB = 7680
MB = 90112
SPARE = 153600
MOFF = 0x20000
NMP = 36
GAP = 73728
def f32bits(x): return struct.unpack('<I', struct.pack('<f', x))[0]
SCALE = f32bits(192 ** -0.5 * 1.4426950408889634)
NEGINF = 0xff800000
PIECE = [0, 64, 128, 192, 256, 320, 384, 416]

A = Asm()
hdr = open('standalone__neighborhood_nat__vision.s.ref').read().split('\n')
for ln in hdr:
    if ln.startswith('; @launch'): break
    A.raw(ln)
A.raw('; @launch grid=(256,1,1) block=(512,1,1) lds=163840')
A.raw('.amdgcn_target "amdgcn-amd-amdhsa--gfx950"')
A.raw('.text')

def srd(d, lo, hi, nbytes):
    A(f's_mov_b32 s{d}, s{lo}'); A(f's_and_b32 s{d+1}, s{hi}, 0xffff')
    A(f's_mov_b32 s{d+2}, {nbytes}'); A(f's_mov_b32 s{d+3}, 0x00020000')
def mf(d, a, b, c):
    cs = '0' if c is None else f'v[{c}:{c+3}]'
    return f'v_mfma_f32_16x16x32_bf16 v[{d}:{d+3}], v[{a}:{a+3}], v[{b}:{b+3}], {cs}'

S_X, S_OUT, S_WS, S_W, S_WO, S_DBG = 16, 20, 24, 28, 32, 36
sW, sPR, sPC, sTR, sTC = 40, 41, 42, 43, 44
sKR0, sKC0B = 45, 46
sLOR, sHIR, sSHR, sLOC, sHIC = 47, 48, 49, 50, 51
sBASE, sSTRIP, sNEG = 52, 53, 54
sT0, sT1, sT2, sT3, sT4, sT5 = 55, 56, 57, 58, 59, 60
sALR, sCB, sSC = 61, 62, 63
sCS, sCC, sPS = 50, 91, 3
NT = (6, 7)
sST = 64
sXR, sXL = 100, 101
sOA = 88
sB0, sF = 92, 93
sM1, sM2 = 0, 10
sVT, sVO = 94, 95
vL, vG, vN = 1, 2, 3
vT = 4
vR0, vR3, vCB = 12, 13, 14
XQ = 16
PP = 16
vOA = 4
vINV = 56
SACC = 64
OST = 16
W1 = 64
ONES = 48
QP = 120
ACC = 168
RING = 200
WF = 232
vAS = 240
vAP = 244
vWA0, vWA1, vWAM = 252, 253, 254
vSW, vSR = 255, 199
vWD = RING
MBQ = 64
MACC = 136
MPK = 184
MWA = 192

nstamp = [0]
def stamp(real=None):
    if not STAMP: return
    i = nstamp[0]; nstamp[0] += 1
    assert i < 14
    A.raw(f'  s_mem{"real" if "rt" in OPT else ""}time s[{sST+2*i}:{sST+1+2*i}]')
    if real is not None:
        A.raw(f'  s_memrealtime s[{96+2*real}:{97+2*real}]')
def write_stamps():
    n = nstamp[0]
    A('s_waitcnt lgkmcnt(0)')
    A(f'v_mov_b32 v{RING}, 0')
    if 'dbg' in OPT:
        lbl = f'WS_skip{n}'
        A(f's_cmp_lg_u32 s2, {OPT["dbg"].split(",")[0]}')
        A(f's_cbranch_scc1 {lbl}')
        A(f's_cmp_lg_u32 s{sW}, {OPT["dbg"].split(",")[1]}')
        A(f's_cbranch_scc1 {lbl}')
        for i in range(1, n):
            A(f's_sub_u32 s{sT0}, s{sST+2*i}, s{sST}')
            A(f'v_writelane_b32 v{RING}, s{sT0}, {i}')
        A(f's_sub_u32 s{sT0}, s98, s96')
        A(f'v_writelane_b32 v{RING}, s{sT0}, 15')
        srd(S_DBG, 12, 13, 256)
        A(f'v_lshlrev_b32 v{RING+1}, 2, v{vL}')
        A('s_mov_b64 exec, 0xfffe')
        A(f'buffer_store_dword v{RING}, v{RING+1}, s[{S_DBG}:{S_DBG+3}], 0 offen')
        A.label(lbl)
        return
    for i in range(n):
        A(f'v_writelane_b32 v{RING}, s{sST+2*i}, {i}')
    A(f'v_writelane_b32 v{RING}, s96, 14')
    A(f'v_writelane_b32 v{RING}, s98, 15')
    A(f's_lshl_b32 s{sT0}, s2, 3')
    A(f's_add_u32 s{sT0}, s{sT0}, s{sW}')
    A(f's_lshl_b32 s{sT0}, s{sT0}, 6')
    A(f's_add_u32 s{sT0}, s{sT0}, 0x100000')
    A(f'v_lshlrev_b32 v{RING+1}, 2, v{vL}')
    A('s_mov_b64 exec, 0xffff')
    A(f'buffer_store_dword v{RING}, v{RING+1}, s[{S_WS}:{S_WS+3}], s{sT0} offen')

def row_addrs(b, sF, A=A):
    for j in (0, 1, 2, 7):
        A(f'v_add_u32 v{vT}, {PIECE[j]}, v{vL}')
        A(f'v_xor_b32 v{vT}, {sF}, v{vT}')
        A(f'v_mul_u32_u24 v{vT+1}, 2731, v{vT}')
        A(f'v_lshrrev_b32 v{vT+1}, 16, v{vT+1}')
        A(f'v_mul_i32_i24 v{vT+1}, s{sCC}, v{vT+1}')
        A(f'v_lshl_add_u32 v{vT}, v{vT}, 4, v{vT+1}')
        A(f'v_add_u32 v{b+j}, s{sKC0B}, v{vT}')
        if j < 3:
            A(f'v_add_u32 v{b+j+3}, s{sPS}, v{b+j}')
            if j == 0: A(f'v_add_u32 v{b+6}, s{sPS}, v{b+3}')
    for j in (5, 6, 7):
        A(f'v_max_i32 v{b+j}, 0, v{b+j}')
def row_soff(dst, srow):
    A(f's_add_i32 s{dst}, s{sKR0}, {srow}')
    A(f's_lshl_b32 s{dst}, s{dst}, 1')
    A(f's_add_i32 s{dst}, s{dst}, s{sPR}')
    A(f's_max_i32 s{dst}, s{dst}, 0')
    A(f's_min_i32 s{dst}, s{dst}, 223')
    A(f's_mul_i32 s{dst}, s{dst}, 86016')

def stream(ms, mem, side, hooks=None, cap=2, bg=None, flush=(), paced=None):
    side = [x if len(x) == 3 else (x[0], x[1], 10**9) for x in side]
    bg = bg if bg is not None else []
    paced = list(paced or [])
    nside = len(side)
    def slots(lo, hi):
        return sum(max(0, cap - len(mem.get(k, []))) for k in range(lo, hi + 1))
    for i, m in enumerate(ms):
        assert not (side and side[0][2] < i), ('deadline missed', side[0], i)
        A(m)
        if i + 1 < len(ms) and not (hooks and i in hooks): A.prewait(ms[i+1])
        n = 0
        for t in mem.get(i, []):
            A(t); n += 1
        if paced and not mem.get(i) and paced[0][0] <= i and nside - len(side) >= paced[0][2]:
            assert nside - len(side) <= paced[0][3], ('paced item too late', paced[0])
            A(paced.pop(0)[1]); n += 1
        c = cap
        if side and side[0][2] < len(ms):
            dl = side[0][2]
            if sum(1 for x in side if x[2] == dl) > slots(i, dl): c = cap + 1
        while side and n < c and side[0][0] <= i:
            A(side.pop(0)[1]); n += 1
        while bg and n < cap:
            A(bg.pop(0)); n += 1
        if i in flush:
            while side and side[0][0] <= i + 4: A(side.pop(0)[1])
        if hooks and i in hooks: hooks[i]()
    assert not paced
    return [x[1] for x in side]

def gemm_phase(B, loc, finish, swap=False, hooks=None, D=6, gate=None, bg=None, extra_mem=None, ghooks=None, flush=(), pace=0, side0=(), xl=None):
    def bufof(f): return xl + 4*(f - 60) if xl is not None and f >= 60 else RING + 4*(f % 8)
    def rd(f):
        l = loc(f)
        if l[0] == 'lds':
            buf = bufof(f)
            return [f'ds_read_b128 v[{buf}:{buf+3}], v{l[1]} offset:{l[2]}']
        return []
    ms, mem, side, hk, paced = [], dict(extra_mem or {}), list(side0), dict(ghooks or {}), []
    for f in range(D):
        for t in rd(f): A(t)
    for f in range(72):
        sig, s, h = f // 12, (f % 12) // 2, f % 2
        l = loc(f)
        a = bufof(f) if l[0] == 'lds' else l[1]
        accb = ACC + 16*(sig & 1)
        for G in range(2):
            d = accb + 8*G + 4*h
            b = B + 24*G + 4*s
            ms.append(mf(d, b, a, None if s == 0 else d) if swap else mf(d, a, b, None if s == 0 else d))
        fn = f + D
        if xl is not None and fn >= 60:
            if fn < 72: mem[2*(60 - D) + fn - 60] = rd(fn)
        elif fn < 72 and not (gate is not None and f < gate <= fn):
            mem[2*f] = rd(fn)
        if f == 71 and xl is not None:
            ms[120:] = ms[120::2] + ms[121::2]
            fin = finish(sig, accb)
            side += [(135, t) for t in fin[:len(fin)//2]] + [(999, t) for t in fin[len(fin)//2:]]
            continue
        if f % 12 == 11:
            k = 0
            for t in finish(sig, accb):
                if pace and t.startswith('buffer_store') and sig < 5:
                    paced.append((2*f + 1 + 6 + pace*k, t, len(side), len(side) + 23)); k += 1
                else:
                    side.append((2*f + 1 + 3, t, 2*f + 1 + 24))
            if hooks and sig in hooks:
                def mk(sig=sig, f=f):
                    def h():
                        hooks[sig]()
                        if gate is not None and f + 1 == gate:
                            for k in range(gate, gate + D):
                                for t in rd(k): A(t)
                    return h
                hk[2*f + 1] = mk()
    return stream(ms, mem, side, hk, bg=bg, flush=flush, paced=paced)

def poll(label, off, want=1):
    A(f'v_mov_b32 v{vT+2}, 0')
    A(f's_mov_b32 s{sT4}, 0')
    A('s_mov_b64 exec, 1')
    A.label(label)
    A(f'buffer_load_dword v{vT+3}, v{vT+2}, s[{S_DBG}:{S_DBG+3}], 0 offen offset:{off} sc1')
    A('s_waitcnt vmcnt(0)')
    A(f'v_cmp_gt_u32 vcc, {want}, v{vT+3}')
    A(f's_add_u32 s{sT4}, s{sT4}, 1')
    A(f's_cmp_gt_u32 s{sT4}, 200000')
    A(f's_cbranch_scc1 {label}_x')
    A('s_cmp_lg_u64 vcc, 0')
    A(f's_cbranch_scc0 {label}_x')
    A('s_sleep 2')
    A(f's_branch {label}')
    A.label(label + '_x')
    A('s_mov_b64 exec, -1')

def cond(lbl, isE, body):
    A(f's_cmp_lt_u32 s{sW}, 4' if isE else f's_cmp_ge_u32 s{sW}, 4')
    A(f's_cbranch_scc1 {lbl}')
    body()
    A.label(lbl)

nprio = [0]
def prio(e, l):
    nprio[0] += 1
    A(f's_setprio {l}')
    if e != l: cond(f'M_pr{nprio[0]}', True, lambda: A.skip(f's_setprio {e}'))

npad = [0]
def padat(name):
    if OPT.get('padpos') != name: return
    npad[0] += 1
    A.label(f'PADM{npad[0]}')
    A.raw('  s_memrealtime s[98:99]')
    A.raw('  s_waitcnt lgkmcnt(0)')
    A.raw('  s_sub_u32 s98, s98, s96')
    A.raw(f'  s_cmp_lt_u32 s98, {OPT["padt"]}')
    A.raw(f'  s_cbranch_scc1 PADM{npad[0]}')

def gen_main():
    A.raw(f'.globl {NAME}'); A.raw('.p2align 8'); A.raw(f'.type {NAME},@function')
    A.raw(f'{NAME}:'); A.reset()
    A('s_cmp_ge_u32 s2, 256')
    A('s_cbranch_scc1 M_done')
    stamp(0)
    if 'pad' in OPT or 'padpos' in OPT: A.raw('  s_memrealtime s[96:97]')
    A('s_load_dwordx8 s[4:11], s[0:1], 0')
    A('s_load_dwordx4 s[12:15], s[0:1], 32')
    A(f'v_lshrrev_b32 v{vT}, 6, v0')
    A(f'v_and_b32 v{vL}, 63, v0')
    A(f'v_readfirstlane_b32 s{sW}, v{vT}')
    A(f'v_lshrrev_b32 v{vG}, 4, v{vL}')
    A(f'v_and_b32 v{vN}, 15, v{vL}')
    A(f'v_lshlrev_b32 v{vWA0}, 4, v{vL}')
    def decode():
        A(f's_and_b32 s{sT0}, s2, 7')
        A(f's_lshr_b32 s{sT1}, s2, 3')
        MAP = OPT.get('map', '0')
        if MAP == '0':
            A(f's_lshr_b32 s{sPR}, s{sT0}, 2')
            A(f's_bfe_u32 s{sPC}, s{sT0}, 0x10001')
            A(f's_and_b32 s{sT0}, s{sT0}, 1')
            A(f's_lshl_b32 s{sT0}, s{sT0}, 2')
            A(f's_lshr_b32 s{sTR}, s{sT1}, 3')
            A(f's_add_u32 s{sTR}, s{sTR}, s{sT0}')
            A(f's_and_b32 s{sTC}, s{sT1}, 7')
        elif MAP == '1':
            A(f's_mov_b32 s{sTR}, s{sT0}')
            A(f's_and_b32 s{sPR}, s{sT1}, 1')
            A(f's_bfe_u32 s{sPC}, s{sT1}, 0x10001')
            A(f's_lshr_b32 s{sTC}, s{sT1}, 2')
        elif MAP == '2':
            A(f's_lshr_b32 s{sPR}, s{sT0}, 2')
            A(f's_and_b32 s{sT0}, s{sT0}, 3')
            A(f's_lshl_b32 s{sT0}, s{sT0}, 1')
            A(f's_lshr_b32 s{sTR}, s{sT1}, 4')
            A(f's_add_u32 s{sTR}, s{sTR}, s{sT0}')
            A(f's_and_b32 s{sPC}, s{sT1}, 1')
            A(f's_bfe_u32 s{sTC}, s{sT1}, 0x30001')
        else:
            A(f's_and_b32 s{sPR}, s{sT1}, 1')
            A(f's_bfe_u32 s{sPC}, s{sT1}, 0x10001')
            A(f's_and_b32 s{sTR}, s{sT0}, 6')
            A(f's_lshr_b32 s{sT2}, s{sT1}, 4')
            A(f's_add_u32 s{sTR}, s{sTR}, s{sT2}')
            A(f's_and_b32 s{sT0}, s{sT0}, 1')
            A(f's_lshl_b32 s{sT0}, s{sT0}, 2')
            A(f's_bfe_u32 s{sTC}, s{sT1}, 0x20002')
            A(f's_add_u32 s{sTC}, s{sTC}, s{sT0}')
        A(f's_mul_i32 s{sTR}, s{sTR}, 14')
        A(f's_mul_i32 s{sTC}, s{sTC}, 14')
    def srds():
        srd(S_WS, 14, 15, WS_BYTES)
        srd(S_OUT, 10, 11, X_BYTES)
        srd(S_DBG, 12, 13, 256)
    def scalar_setup():
        A(f's_mul_i32 s{sALR}, s{sPR}, 13')
        A(f's_add_i32 s{sALR}, s{sALR}, -6')
        A(f's_cmp_eq_u32 s{sPC}, 0')
        A(f's_cselect_b32 s{sCB}, {223*384}, 0')
        A(f's_cselect_b32 s{sCS}, -1, 1')
        A(f's_mulk_i32 s{sCS}, 384')
        A(f's_cmp_ge_u32 s{sW}, 4')
        A(f's_cselect_b32 s{sSTRIP}, -4, 3')
        A(f's_add_i32 s{sSTRIP}, s{sSTRIP}, s{sW}')
        A(f's_lshl_b32 s{sSTRIP}, s{sSTRIP}, 1')
        A(f's_add_u32 s{sOA}, s{sTR}, s{sSTRIP}')
        A(f's_mov_b32 s{sOA+1}, 86016')
    def scalar_setup2():
        A(f's_mul_i32 s{sT0}, s{sPR}, 6')
        A(f's_add_i32 s{sKR0}, s{sTR}, s{sT0}')
        A(f's_add_i32 s{sKR0}, s{sKR0}, -6')
        A(f's_cmp_eq_i32 s{sKR0}, -6')
        A(f's_cselect_b32 s{sLOR}, 6, 0')
        A(f's_cmp_eq_i32 s{sKR0}, 98')
        A(f's_cselect_b32 s{sHIR}, 7, 13')
        A(f's_cselect_b32 s{sSHR}, 2, 0')
        A(f's_sub_i32 s{sKR0}, s{sKR0}, s{sSHR}')
        A(f's_cmp_eq_i32 s{sTC}, 98')
        A(f's_cselect_b32 s{sHIC}, 7, 13')
        A(f's_lshl_b32 s{sT1}, s{sTC}, 1')
        A(f's_add_i32 s{sT1}, s{sT1}, 1')
        A(f's_mul_i32 s{sKC0B}, s{sT1}, s{sCS}')
        A(f's_add_i32 s{sKC0B}, s{sKC0B}, s{sCB}')
        A(f's_lshl_b32 s{sCC}, s{sCS}, 1')
        A(f's_lshl_b32 s{sPS}, s{sCC}, 3')
        A(f's_add_i32 s{sCC}, s{sCC}, -384')
        A(f's_max_i32 s{sB0}, s{sSTRIP}, s{sLOR}')
        A(f's_min_i32 s{sB0}, s{sB0}, s{sHIR}')
        A(f's_and_b32 s{sB0}, s{sB0}, -2')
        A(f's_add_u32 s{sBASE}, s{sB0}, s{sSHR}')
        A(f's_mov_b32 s{sNEG}, {NEGINF}')
        A(f's_mov_b32 s{sSC}, {SCALE}')
        A(f's_and_b32 s{sF}, s{sW}, 1')
        A(f's_lshl_b32 s{sF}, s{sF}, 3')
        A(f's_and_b32 s{sT1}, s{sW}, 6')
        A(f's_or_b32 s{sF}, s{sF}, s{sT1}')
        A(f's_add_u32 s{sT1}, s{sW}, 8')
        row_soff(sXR, f's{sT1}')
        A(f's_mul_i32 s{sXL}, s{sT1}, {ROWB}')

    def sreg(G, tl): return SACC + 24*G + 4*tl
    TM = [197, 198, 199, 255, 0]
    def pixaddr(dst, sel, lane):
        t0, t1, t2, t3, t4 = TM
        o = [f'v_lshrrev_b32 v{t0}, 1, v{sel}', f'v_and_b32 v{t3}, 1, v{sel}', f'v_add_u32 v{t0}, s{sOA}, v{t0}',
             f'v_lshl_add_u32 v{t4}, v{t3}, 2, s{sTC}',
             f'v_lshl_add_u32 v{t1}, v{t0}, 1, s{sALR}', f'v_add_u32 v{t2}, 112, v{t0}', f'v_lshlrev_b32 v{t3}, 30, v{t3}',
             f'v_med3_i32 v{t0}, v{t1}, v{t0}, v{t2}', f'v_mul_lo_u32 v{t0}, v{t0}, s{sOA+1}'] + lane(t0)
        o += [f'v_add_u32 v{t0}, s{sCB}, v{t0}']
        for G in range(2):
            for r in range(4):
                d = dst(G, r)
                o += [f'v_lshl_add_u32 v{t1}, v{t4}, 1, {2*(6*G+r) + 7}', f'v_add_u32 v{t2}, {6*G+r+112}, v{t4}',
                      f'v_min_u32 v{d}, v{t1}, v{t2}', f'v_mad_i32_i24 v{d}, v{d}, s{sCS}, v{t0}']
                if G == 0 and r >= 2: o += [f'v_add_u32 v{d}, v{d}, v{t3}']
        return o
    def oaddr(): return pixaddr(lambda G, r: vOA + 4*G + r, vG, lambda t: [f'v_lshl_add_u32 v{t}, v{vN}, 3, v{t}'])
    vXS = ACC
    sXRW, sXB = 84, 86
    def xaddr():
        A(f'v_lshrrev_b32 v{vT}, 3, v{vL}')
        A(f'v_and_b32 v{vT+1}, 7, v{vL}')
        A(f'v_and_b32 v{vT+2}, 6, v{vT}')
        A(f'v_xor_b32 v{vT+1}, v{vT+1}, v{vT+2}')
        A(f'v_lshl_add_u32 v{vT+1}, v{vT+1}, 4, s{sCB}')
        A(f'v_add_u32 v{vT+4}, 2, v{vT}')
        A(f'v_lshrrev_b32 v{vT+4}, 3, v{vT+4}')
        A(f'v_add_u32 v{vT}, s{sTC}, v{vT}')
        for G in range(2):
            A(f'v_lshl_add_u32 v{vT+2}, v{vT}, 1, {12*G + 7}')
            A(f'v_add_u32 v{vT+3}, {6*G + 112}, v{vT}')
            A(f'v_min_u32 v{vT+2}, v{vT+2}, v{vT+3}')
            A(f'v_mad_i32_i24 v{vXS+G}, v{vT+2}, s{sCS}, v{vT+1}')
        A(f'v_lshl_add_u32 v{vXS}, v{vT+4}, 30, v{vXS}')
        for rb in range(2):
            A(f's_add_u32 s{sT0}, s{sOA}, {rb}')
            A(f's_lshl_b32 s{sT1}, s{sT0}, 1')
            A(f's_add_i32 s{sT1}, s{sT1}, s{sALR}')
            A(f's_max_i32 s{sT1}, s{sT1}, s{sT0}')
            A(f's_add_i32 s{sT0}, s{sT0}, 112')
            A(f's_min_i32 s{sT1}, s{sT1}, s{sT0}')
            A(f's_mul_i32 s{sXRW+rb}, s{sT1}, 86016')
        A(f's_lshl_b32 s{sXB}, s{sSTRIP}, 12')
        A(f's_lshl_b32 s{sXB+1}, s{sSTRIP}, 11')
    def xload(i):
        j, G, rb = i // 4, (i >> 1) & 1, i & 1
        off = 512 + (j*4 + G*2 + rb)*1024 - 128*j if j < 2 else 61440 + (G*2 + rb)*1024 - 256
        A.skip(f's_add_u32 m0, s{sXB + j//2}, {off}')
        A.skip('s_nop 0')
        A.raw(f'  buffer_load_dwordx4 v{vXS+G}, s[{S_X}:{S_X+3}], s{sXRW+rb} offen offset:{128*j}{XNT} lds')
    def chunk(c):
        for i in range(4*c, 4*c + 4): xload(i)
    def xread_addr():
        A(f'v_and_b32 v{vXS+2}, 6, v{vN}')
        A(f'v_xor_b32 v{vXS+2}, v{vXS+2}, v{vG}')
        A(f'v_lshlrev_b32 v{vXS+6}, 7, v{vN}')
        A(f'v_xor_b32 v{vXS+3}, 4, v{vXS+2}')
        A(f'v_lshl_add_u32 v{vXS+2}, v{vXS+2}, 4, v{vXS+6}')
        A(f'v_lshl_add_u32 v{vXS+3}, v{vXS+3}, 4, v{vXS+6}')
        for q in range(2):
            A(f'v_add_u32 v{vXS+4+q}, s{sXB+1}, v{vXS+2+q}')
            A(f'v_add_u32 v{vXS+2+q}, s{sXB}, v{vXS+2+q}')
    def xread(j):
        for G in range(2):
            for q in range(2):
                r = XQ + 24*G + 4*(2*j + q)
                if j < 2: A(f'ds_read_b128 v[{r}:{r+3}], v{vXS+2+q} offset:{512 + (4*j + 2*G)*1024}')
                else: A(f'ds_read_b128 v[{r}:{r+3}], v{vXS+4+q} offset:{61440 + 2*G*1024}')
    def setup():
        B = Asm()
        def Fv(dst, row):
            B(f'v_and_b32 v{dst}, 1, v{row}')
            B(f'v_lshlrev_b32 v{dst}, 3, v{dst}')
            B(f'v_and_or_b32 v{dst}, v{row}, 6, v{dst}')
        B(f'v_lshrrev_b32 v{vT}, 3, v{vN}')
        B(f'v_add_u32 v{vT}, s{sSTRIP}, v{vT}')
        B(f'v_max_i32 v{vT}, s{sLOR}, v{vT}')
        B(f'v_min_i32 v{vT}, s{sHIR}, v{vT}')
        B(f'v_subrev_u32 v{vT}, s{sB0}, v{vT}')
        B(f'v_and_b32 v{vT+1}, 1, v{vG}')
        B(f'v_sub_u32 v{vT+2}, v{vT+1}, v{vT}')
        B(f'v_ashrrev_i32 v{vR0}, 31, v{vT+2}')
        B(f'v_and_b32 v{vR0}, s{sNEG}, v{vR0}')
        B(f'v_sub_u32 v{vT+2}, v{vT}, v{vT+1}')
        B(f'v_ashrrev_i32 v{vR3}, 31, v{vT+2}')
        B(f'v_and_b32 v{vR3}, s{sNEG}, v{vR3}')
        B(f'v_and_b32 v{vT}, 7, v{vN}')
        B(f'v_lshrrev_b32 v{vT+1}, 1, v{vG}')
        B(f'v_subrev_u32 v{vT+3}, 6, v{vT}')
        B(f'v_ashrrev_i32 v{vT+3}, 31, v{vT+3}')
        B(f'v_and_b32 v{vT+3}, 0x7f, v{vT+3}')
        for G in range(2):
            if G: B(f'v_mov_b32 v{vT+3}, 0x7f')
            B(f'v_add_u32 v{vT+2}, {6*G}, v{vT}')
            B(f'v_min_i32 v{vT+2}, s{sHIC}, v{vT+2}')
            B(f'v_lshlrev_b32 v{vT+2}, v{vT+2}, v{vT+3}')
            B(f'v_lshrrev_b32 v{vT+2}, v{vT+1}, v{vT+2}')
            B(f'v_not_b32 v{vCB+G}, v{vT+2}')
        B(f'v_add_u32 v{vT}, s{sBASE}, v{vT}')
        Fv(vT+1, vT)
        B(f'v_mul_u32_u24 v{vT}, {ROWB}, v{vT}')
        B(f'v_lshrrev_b32 v{vT+2}, 3, v{vN}')
        B(f'v_mul_u32_u24 v{vT+2}, 24, v{vT+2}')
        B(f'v_add_u32 v{vT+2}, v{vT+2}, v{vG}')
        for s in range(4):
            B(f'v_add_u32 v{vT+3}, {4*s}, v{vT+2}')
            B(f'v_xor_b32 v{vT+3}, v{vT+3}, v{vT+1}')
            B(f'v_lshl_add_u32 v{vAS+s}, v{vT+3}, 4, v{vT}')
        B(f'v_and_b32 v{vT}, 1, v{vG}')
        B(f'v_lshlrev_b32 v{vT}, 2, v{vT}')
        B(f'v_lshrrev_b32 v{vT+1}, 2, v{vN}')
        B(f'v_add3_u32 v{vT}, v{vT}, v{vT+1}, s{sBASE}')
        Fv(vT+1, vT)
        B(f'v_mul_u32_u24 v{vT}, {ROWB}, v{vT}')
        B(f'v_and_b32 v{vT+2}, 1, v{vN}')
        B(f'v_lshl_add_u32 v{vT}, v{vT+2}, 3, v{vT}')
        B(f'v_lshrrev_b32 v{vT+2}, 1, v{vG}')
        B(f'v_mul_u32_u24 v{vT+2}, 24, v{vT+2}')
        B(f'v_bfe_u32 v{vT+3}, v{vN}, 1, 1')
        B(f'v_add_u32 v{vT+2}, v{vT+2}, v{vT+3}')
        for ct in range(8):
            B(f'v_add_u32 v{vT+3}, {2*ct}, v{vT+2}')
            B(f'v_xor_b32 v{vT+3}, v{vT+3}, v{vT+1}')
            B(f'v_lshl_add_u32 v{vAP+ct}, v{vT+3}, 4, v{vT}')
        B(f'v_add_u32 v{vWA1}, {SPARE}, v{vWA0}')
        B(f'v_add_u32 v{vWAM}, {MB}, v{vWA0}')
        row_addrs(WF, f's{sF}', B)
        return [l.strip() for l in B.lines]
    def masks():
        out = []
        for G in range(2):
            for tl in range(NT[G]):
                tau = tl + 3*G
                r = sreg(G, tl)
                out += [f'v_bfe_i32 v{r+2}, v{vCB+G}, {2*tau}, 1', f'v_and_b32 v{r+1}, s{sNEG}, v{r+2}',
                        f'v_and_b32 v{r+2}, s{sNEG}, v{r+2}', f'v_or_b32 v{r}, v{r+1}, v{vR0}', f'v_or_b32 v{r+3}, v{r+1}, v{vR3}']
        return out

    M1 = int(OPT.get('m1', '12')); MW = int(OPT.get('mw', '6'))
    def mshare(a, b):
        A(f's_lshl_b32 s{sT0}, s{sW}, 10')
        A(f's_add_u32 s{sT0}, s{sT0}, {MOFF + 4096*a}')
        for i in range(a, b):
            A(f's_sub_u32 m0, s{sT0}, {MOFF - MB}')
            A(f'buffer_load_dwordx4 v{vWA0}, s[{S_WS}:{S_WS+3}], s{sT0} offen sc1 lds')
            if i < b - 1: A(f's_add_u32 s{sT0}, s{sT0}, 4096')
    TA, TB, TD = 64, 112, 160
    def signal(off, last, tag, wait=True):
        A('v_mov_b32 v192, 1'); A('v_mov_b32 v193, 0')
        A('s_mov_b64 exec, 1')
        A('s_waitcnt vmcnt(0)')
        A(f'buffer_atomic_add v192, v193, s[{S_DBG}:{S_DBG+3}], 0 offen offset:{off} sc0 sc1')
        A('s_mov_b64 exec, -1')
    def publish(off, last, tag):
        A(f'v_readfirstlane_b32 s{sT1}, v192')
        A(f's_cmp_lg_u32 s{sT1}, {last}')
        A(f's_cbranch_scc1 {tag}')
        A('s_mov_b64 exec, 1')
        A(f'buffer_store_dword v192, v193, s[{S_DBG}:{S_DBG+3}], 0 offen offset:{128 + off} sc1')
        A('s_mov_b64 exec, -1')
        A.label(tag)
    def swz16():
        A(f'v_bfe_u32 v{vT+1}, v{vL}, 2, 2')
        A(f'v_lshrrev_b32 v{vT+2}, 5, v{vL}')
        A(f'v_lshlrev_b32 v{vT+3}, 1, v{vT+2}')
        A(f'v_and_b32 v{vT+4}, 3, v{vL}')
        A(f'v_xor_b32 v{vT+3}, v{vT+3}, v{vT+4}')
        A(f'v_lshlrev_b32 v{vT+3}, 4, v{vT+3}')
        A(f's_movk_i32 s{sT5}, 1152')
    def wread():
        A(f'v_lshrrev_b32 v{vT}, 3, v{vN}')
        A(f'v_lshlrev_b32 v{vT}, 1, v{vT}')
        A(f'v_xor_b32 v{vT}, v{vT}, v{vG}')
        A(f'v_lshl_add_u32 v{vT}, v{vN}, 2, v{vT}')
        A(f'v_lshlrev_b32 v{MWA+3}, 4, v{vT}')
        A(f'v_add_u32 v{MWA+3}, {MB}, v{MWA+3}')
    def wlanes():
        swz16()
        A(f'v_lshrrev_b32 v{vT}, 2, v{vL}')
        A(f'v_mad_u32_u24 v{vWD+3}, v{vT}, s{sT5}, v{vT+3}')
        wread()
    A(f's_cmp_lg_u32 s{sW}, 0')
    A('s_cbranch_scc1 M_comp')
    A('s_getpc_b64 s[16:17]')
    A('s_and_b32 s16, s16, -256')
    A('s_and_b32 s17, s17, 0xffff')
    A('s_mov_b32 s18, CODE_END-' + NAME)
    A('s_mov_b32 s19, 0x00020000')
    A(f's_lshr_b32 s{sT0}, s2, 3')
    A(f's_lshl_b32 s{sT0}, s{sT0}, 10')
    A(f'buffer_load_dwordx4 v[188:191], v{vWA0}, s[16:19], s{sT0} offen')
    A(f's_cmp_ge_u32 s2, {NMP + 72}')
    A('s_cbranch_scc1 H_nom')
    swz16()
    A(f's_mov_b32 m0, {MB}')
    A(f's_mov_b32 s{S_W+2}, {192*576*2}'); A(f's_mov_b32 s{S_W+3}, 0x00020000')
    A(f's_cmp_ge_u32 s2, {NMP}')
    A('s_cbranch_scc1 H_vf')
    A(f'v_lshl_add_u32 v{vT}, v{vG}, 3, v{vT+1}')
    A(f's_mul_hi_u32 s{sT0}, s2, 0x2aaaaaab')
    A(f's_mul_i32 s{sT1}, s{sT0}, 6')
    A(f's_sub_u32 s{sT1}, s2, s{sT1}')
    A(f's_mul_i32 s{sT1}, s{sT1}, {32*1152}')
    A(f's_mul_i32 s{sT0}, s{sT0}, {32*1152}')
    A(f's_sub_u32 s{sT0}, s{sT0}, s{sT1}')
    A(f's_add_i32 s{sT0}, s{sT0}, {384 - 4608}')
    A(f's_movk_i32 s{sT2}, 4608')
    A(f's_mov_b32 s{sT4}, {MB + 24576}')
    A('s_branch H_tl0')
    A.label('H_vf')
    A(f'v_lshrrev_b32 v{vT}, 2, v{vL}')
    A(f's_sub_u32 s{sVT}, s2, {NMP}')
    A(f's_mul_hi_u32 s{sVO}, s{sVT}, 0x15555556')
    A(f's_mul_i32 s{sT1}, s{sVO}, {32*1152}')
    A(f's_addk_i32 s{sT1}, 768')
    A(f's_movk_i32 s{sT2}, {16*1152}')
    A(f's_mov_b32 s{sT4}, {MB + 12288}')
    A.label('H_tl0')
    A(f'v_mad_u32_u24 v{vWD}, v{vT}, s{sT5}, v{vT+3}')
    A('s_waitcnt lgkmcnt(0)')
    A(f's_mov_b64 s[{S_W}:{S_W+1}], s[6:7]')
    A.label('H_tl')
    for k in range(6):
        A(f'buffer_load_dwordx4 v{vWD}, s[{S_W}:{S_W+3}], s{sT1} offen offset:{64*k} lds')
        A(f's_addk_i32 m0, {960 if k < 5 else 960 + 384}')
    A(f's_add_u32 s{sT1}, s{sT1}, s{sT2}')
    A(f's_mov_b32 s{sT3}, s{sT2}'); A(f's_mov_b32 s{sT2}, s{sT0}'); A(f's_mov_b32 s{sT0}, s{sT3}')
    A(f's_cmp_lt_u32 m0, s{sT4}')
    A('s_cbranch_scc1 H_tl')
    A(f's_cmp_ge_u32 s2, {NMP}')
    A('s_cbranch_scc1 H_vf2')
    A('s_barrier')
    A('s_branch H_task2')
    A.label('H_vf2')
    srd(S_WO, 8, 9, 192*192*2)
    A(f'v_lshrrev_b32 v{vT}, 1, v{vL}')
    A(f'v_mul_u32_u24 v{vT}, 384, v{vT}')
    A(f'v_and_b32 v{vT+1}, 1, v{vL}')
    A(f'v_lshl_add_u32 v{vT}, v{vT+1}, 4, v{vT}')
    A(f's_mul_i32 s{sT1}, s{sVO}, 12')
    A(f's_sub_u32 s{sT1}, s{sVT}, s{sT1}')
    A(f's_lshl_b32 s{sT2}, s{sT1}, 5')
    A.label('H_tl2')
    A(f'buffer_load_dwordx4 v{vT}, s[{S_WO}:{S_WO+3}], s{sT2} offen lds')
    A('s_addk_i32 m0, 1024')
    A(f's_addk_i32 s{sT2}, {32*384}')
    A(f's_cmp_lt_u32 m0, {MB + 18432}')
    A('s_cbranch_scc1 H_tl2')
    A('s_branch H_nom')
    A.label('M_comp'); A.reset()
    nstamp[0] = 1
    decode()
    scalar_setup()
    xaddr()
    A('s_waitcnt lgkmcnt(0)')
    srd(S_X, 4, 5, X_BYTES)
    stamp()
    A(f's_cmp_ge_u32 s2, {NMP}')
    A('s_cbranch_scc1 M_x0')
    A.skip('s_barrier')
    A.label('M_x0')
    XK = int(OPT.get('xk', '0'))
    if XK:
        for i in range(XK): xload(i)
    else:
        HK = int(OPT.get('hk', '0')); HN = int(OPT.get('hn', '72'))
        chunk(0)
        if HK:
            A(f's_sub_u32 s{sT0}, s2, {NMP}')
            A(f's_cmp_ge_u32 s{sT0}, {HN}')
        else:
            A(f's_cmp_lt_u32 s2, {NMP}')
        A('s_cbranch_scc1 M_x1')
        chunk(1)
        chunk(2)
    A.label('M_x1')
    A('s_branch M_c2')
    sv = nstamp[0]
    A.label('H_task2'); A.reset()
    nstamp[0] = 1
    wread()
    srd(S_X, 4, 5, X_BYTES)
    srds()
    A(f's_lshl_b32 s{sT0}, s2, 11')
    A(f's_add_u32 s{sT0}, s{sT0}, {MOFF}')
    A('s_waitcnt vmcnt(0)')
    stamp()
    for k in range(6):
        for q in range(4):
            r = TA + 24*q + 4*k
            A(f'ds_read_b128 v[{r}:{r+3}], v{MWA+3} offset:{(6*q + k)*1024}')
        if k >= 2:
            kk = k - 2
            for h in range(2):
                for hp in range(2):
                    d = TD + 8*h + 4*hp
                    A(mf(d, TA + 24*hp + 4*kk, TB + 24*h + 4*kk, None if kk == 0 else d))
    for kk in (4, 5):
        for h in range(2):
            for hp in range(2):
                d = TD + 8*h + 4*hp
                A(mf(d, TA + 24*hp + 4*kk, TB + 24*h + 4*kk, d))
    for h in range(2):
        for q in range(4):
            A(f'v_cvt_pk_bf16_f32 v{TD+16+4*h+q}, v{TD+8*h+2*q}, v{TD+8*h+2*q+1}')
        A(f'buffer_store_dwordx4 v[{TD+16+4*h}:{TD+19+4*h}], v{vWA0}, s[{S_WS}:{S_WS+3}], s{sT0} offen offset:{1024*h} sc1')
    signal(0, NMP - 1, 'H_p1')
    if not XK: A('s_barrier')
    A('s_waitcnt vmcnt(0)')
    publish(0, NMP - 1, 'H_p1')
    if not XK: A('s_barrier')
    A('s_branch H_join')
    A.label('H_nom'); A.reset()
    nstamp[0] = 1
    A('s_waitcnt lgkmcnt(0)')
    srd(S_X, 4, 5, X_BYTES)
    srds()
    stamp()
    A('s_branch H_join')
    A.label('M_c2'); A.reset()
    nstamp[0] = sv
    stamp()
    if OPT.get('tlb', '0') == '1':
        A(f's_add_u32 s90, s10, s{sXRW}'); A('s_addc_u32 s91, s11, 0')
        A.raw('  s_load_dword s83, s[90:91], 0')
        A.raw('  s_load_dword s83, s[14:15], 0x38000')
        A(f's_movk_i32 s{sOA+2}, 384')
    srds(); scalar_setup2()
    rest = setup() + oaddr() + masks()
    if XK:
        per = int(OPT.get('xv', '24')); XU = int(OPT.get('xu', '12'))
        for i in range(XK, 12):
            if i <= XU:
                for t in rest[:per]: A(t)
                rest = rest[per:]
                A.raw(f'  s_waitcnt vmcnt({XK - 1})')
            xload(i)
        for t in rest: A(t)
        xread_addr()
    else:
        if HK:
            for i in range(4, 12):
                for t in rest[:26]: A(t)
                rest = rest[26:]
                A(f's_cmp_lt_u32 s2, {NMP + HN}')
                A(f's_cbranch_scc1 M_hk{i}')
                A.raw(f'  s_waitcnt vmcnt({HK - 1})')
                xload(i)
                A.label(f'M_hk{i}')
        for t in rest: A(t)
        xread_addr()
        A(f's_cmp_ge_u32 s2, {NMP}')
        A('s_cbranch_scc1 M_x2')
        A.skip('s_barrier')
        chunk(1)
        A.skip('s_barrier')
        chunk(2)
    A.label('M_x2')
    stamp()
    for j in range(3):
        A(f's_waitcnt vmcnt({8 - 4*j})')
        xread(j)
    row_soff(sT2, f's{sW}')
    A('s_waitcnt lgkmcnt(0)')
    stamp()
    A('s_barrier')
    ER = 1
    LR = int(OPT.get('lr', '4'))
    def ownrow():
        for j in range(8):
            A(f's_add_u32 m0, s{sXL}, {16*PIECE[j] - 8*ROWB}')
            A(f'buffer_load_dwordx4 v{WF+j}, s[{S_X}:{S_X+3}], s{sT2} offen{KNT} lds')
    A(f's_cmp_lt_u32 s{sW}, {LR}')
    A('s_cbranch_scc1 M_er')
    ownrow()
    A.label('M_er')
    A('s_barrier')
    stamp()
    A(f's_cmp_lt_u32 s{sW}, 4')
    A('s_cbranch_scc1 M_xl')
    A('s_setprio 1')
    A('s_barrier')
    A('s_branch M_pa')
    A.label('M_xl'); A.reset()
    mshare(0, M1)
    A(f's_waitcnt vmcnt({M1 - MW})')
    A('s_barrier')
    mshare(M1, 18)
    if LR > 1:
        A(f's_cmp_ge_u32 s{sW}, {LR}')
        A('s_cbranch_scc1 M_pa')
        ownrow()
    A.label('M_pa'); A.reset()
    padat('A')
    stamp()
    bgA = []
    xrow = []
    for j in range(8):
        xrow.append(f's_add_u32 m0, s{sXL}, {16*PIECE[j]}\n s_nop 0\n buffer_load_dwordx4 v{WF+j}, s[{S_X}:{S_X+3}], s{sXR} offen{KNT} lds')
    def finA(sig, accb):
        out = []
        for G in range(2):
            for q in range(4):
                out.append(f'v_cvt_pk_bf16_f32 v{QP+24*G+4*sig+q}, v{accb+8*G+2*q}, v{accb+8*G+2*q+1}')
        return out
    def locA(f):
        if f < 60: return ('lds', vWAM, f*1024)
        if f < 62: return ('reg', WF + 4*(f-60))
        return ('lds', vWA1, (f-62)*1024)
    def bar():
        A('s_barrier')
        if OPT.get('hr', '1') == '0': bgA[0:0] = xrow
    def bar4():
        A('s_waitcnt vmcnt(0)'); A('s_barrier')
        prio(3, 2)
    def b0b():
        A(f's_waitcnt vmcnt({8 if LR == 4 else 0})'); A('s_barrier')
    hA = {2: bar, 4: bar4}
    seq = []
    for (a1, a2) in ((0, 3), (1, 4), (2, 5), (6, 7), (8, 9)):
        for s in range(6):
            seq.append((a1, s)); seq.append((a2, s))
    def users(tau):
        u = []
        if tau <= 5: u.append((0, tau))
        if tau >= 3: u.append((1, tau - 3))
        return u
    def rdS(i):
        tau, s = seq[i]
        buf = RING + 4*(i % 8)
        return f'ds_read_b128 v[{buf}:{buf+3}], v{vAS + (s % 4)} offset:{tau*768 + (256 if s >= 4 else 0)}'
    SP = OPT.get('sp', '1') == '1'
    xm = {2*48+1: [f'ds_read_b128 v[{WF}:{WF+3}], v{vWAM} offset:{60*1024}'],
          2*49+1: [f'ds_read_b128 v[{WF+4}:{WF+7}], v{vWAM} offset:{61*1024}']}
    gh = {2*(4*MW - 6) - 1: b0b}
    if SP:
        for i in range(6): xm[2*(66 + i)] = [rdS(i)]
        xm[143] = [rdS(6)]
        gh[131] = lambda: cond('M_l1', False, lambda: (A.raw('  s_waitcnt lgkmcnt(0)'), A.skip('s_barrier')))
    pend = gemm_phase(XQ, locA, finA, hooks=hA, bg=bgA, extra_mem=xm, ghooks=gh)
    assert not bgA
    stamp()
    padat('S')
    if not SP: cond('M_l1', False, lambda: A.skip('s_barrier'))
    D = 7
    if not SP:
        for i in range(D): A(rdS(i))
        for t in pend: A(t)
        pend = []
    vM = [12, 13]; vX = [14, 15]
    A(f's_mov_b32 s{sT1}, 0xff7fffff')
    ms, mem, side = [], {}, [(3, t, 12) for t in pend]
    started = [False, False]; ndone = [0, 0]
    def xl(G):
        o = []
        for sw in ('v_permlane32_swap_b32', 'v_permlane16_swap_b32'):
            o += [f'v_mov_b32 v{vX[G]}, v{vM[G]}', f'{sw} v{vM[G]}, v{vX[G]}', f'v_max_f32 v{vM[G]}, v{vM[G]}, v{vX[G]}']
        return o + [f'v_mul_f32 v{vM[G]}, s{sSC}, v{vM[G]}']
    for i, (tau, s) in enumerate(seq):
        a = RING + 4*(i % 8)
        for (G, tl) in users(tau):
            r = sreg(G, tl)
            ms.append(mf(r, a, QP + 24*G + 4*s, r))
            if s == 5:
                e = len(ms) + 3
                side.append((e, f'v_max3_f32 v{vM[G]}, v{r}, v{r+1}, ' + (f'v{vM[G]}' if started[G] else f's{sT1}')))
                side.append((e, f'v_max3_f32 v{vM[G]}, v{r+2}, v{r+3}, v{vM[G]}'))
                started[G] = True; ndone[G] += 1
        if i % 12 == 11:
            for G in range(2):
                if ndone[G] == NT[G]:
                    side += [(len(ms) + 3, t) for t in xl(G)]; ndone[G] = 8
                    if G == 0 and OPT.get('ef', '1') == '1':
                        side += [(0, f'v_fma_f32 v{q}, v{q}, s{sSC}, -v{vM[0]}') for q in range(sreg(0, 0), sreg(0, 6))]
        if i + D < len(seq): mem[len(ms) - 1] = [rdS(i + D)]
    bgS = [f'v_mov_b32 v{PP+q}, 0' for q in (16, 17)] + [f'v_mov_b32 v{ONES+q}, 0x3f803f80' for q in range(4)]
    rest = stream(ms, mem, side, bg=bgS)
    assert not bgS
    stamp()
    prio(1, 0)
    for t in rest: A(t)
    def preg(G, tl): return PP + 16*G + 2*(tl + G)
    seqP = [(sig, u, h) for sig in range(6) for u in range(5) for h in range(2)]
    def rdP(i):
        sig, u, h = seqP[i]
        ct = 2*sig + h
        buf = RING + 4*(i % 8)
        return [f'ds_read_b64_tr_b16 v[{buf+2*hh}:{buf+2*hh+1}], v{vAP + (ct % 8)} offset:{(4*u+2*hh)*384 + (256 if ct >= 8 else 0)}' for hh in range(2)]
    DP = int(OPT.get('dp', '6'))
    def b4L(): A.skip('s_barrier')
    B3AT, B4AT = int(OPT.get('b3', '1')), int(OPT.get('b4', '6'))
    if B3AT < 0: cond('M_e2', True, lambda: A.skip('s_barrier'))
    def wreg(i):
        return sreg(i % 2, i // 2) if i != 12 else WF
    for tl in range(7):
        for G in range(2):
            if tl >= NT[G]: continue
            r = sreg(G, tl)
            if G == 1 or OPT.get('ef', '1') != '1':
                for k in range(4): A(f'v_fma_f32 v{r+k}, v{r+k}, s{sSC}, -v{vM[G]}')
            for k in range(4): A(f'v_exp_f32 v{r+k}, v{r+k}')
        for G in range(2):
            if tl >= NT[G]: continue
            r = sreg(G, tl)
            p = preg(G, tl)
            A(f'v_cvt_pk_bf16_f32 v{p}, v{r}, v{r+1}')
            A(f'v_cvt_pk_bf16_f32 v{p+1}, v{r+2}, v{r+3}')
        if tl == B3AT: cond('M_e2', True, lambda: A.skip('s_barrier'))
        if tl >= B3AT:
            for t2 in range(0 if tl == max(B3AT, 0) else tl, tl + 1):
                if t2 % 2 == 0: A(f's_mov_b32 s{sT0}, {2*t2*1024}')
                for G in range(2):
                    r = wreg(2*t2 + G)
                    A(f'buffer_load_dwordx4 v[{r}:{r+3}], v{vWA0}, s[{S_WS}:{S_WS+3}], s{sT0} offen offset:{1024*(2*(t2%2)+G)} sc1')
        if tl == 5:
            for i in range(DP):
                for t in rdP(i): A(t)
        if tl == B4AT: cond('M_l2', False, b4L)
    stamp()
    prio(3, 2)
    padat('P')
    ms, first, side, hk = [], [], [], {}
    def b5L():
        cond('M_l3', False, lambda: A.skip('s_barrier'))
    if int(OPT.get('b5', '1')) < 0: b5L()
    sums = [mf(vINV + 4*G, PP + 16*G + 4*u, ONES, None if u == 0 else vINV + 4*G) for u in range(4) for G in range(2) if u < 3 + G]
    for i, (sig, u, h) in enumerate(seqP):
        a = RING + 4*(i % 8)
        accb = ACC + 16*(sig & 1)
        first.append(len(ms))
        for G in range(2):
            uu = u - G
            if 0 <= uu <= 2 + G:
                d = accb + 8*G + 4*h
                ms.append(mf(d, a, PP + 16*G + 4*uu, None if uu == 0 else d))
        if sums and (i % 10 == 7 or i == 11): ms.append(sums.pop(0))
        if i % 10 == 9:
            e = len(ms) - 1
            side += [(e + 4, t, e + 15) for t in finA(sig, accb)]
            if sig == int(OPT.get('b5', '1')): hk[e] = b5L
            if sig == int(OPT.get('pv', '3')) and OPT.get('pe') == '4': hk[e] = lambda: prio(3, 1)
    assert not sums
    mem = {}
    k = 0
    nrd = 2*(len(seqP) - DP)
    ngap = first[-1] - int(OPT.get('ng', '5'))
    for j in range(DP, len(seqP)):
        for t in rdP(j):
            gp = (k * ngap) // nrd
            if j >= 8: gp = max(gp, first[j - 7] - 1)
            assert gp < first[j] - 3, (j, gp, first[j])
            mem.setdefault(gp, []).append(t); k += 1
    pend = stream(ms, mem, side, hk)
    A('s_waitcnt vmcnt(0)')
    stamp()
    W4 = OPT.get('w4', '1') == '1'
    def wvo(f0, n):
        for i in range(n):
            if i % 4 == 0:
                A.skip(f's_mov_b32 m0, {(f0 - 24 + i)*1024}')
                A.skip(f's_mov_b32 s{sT4}, {(f0 + i)*1024}')
            A.raw(f'  buffer_load_dwordx4 v{vWA0}, s[{S_WS}:{S_WS+3}], s{sT4} offen offset:{1024*(i%4)} sc1 lds')
    A(f's_cmp_lg_u32 s{sW}, 4')
    A('s_cbranch_scc1 M_e3b')
    wvo(24, 15)
    A.label('M_e3b')
    def b4E():
        def body():
            A.skip(f's_cmp_lg_u32 s{sW}, 4')
            A.skip('s_cbranch_scc1 M_e3a')
            A.raw('  s_waitcnt vmcnt(0)')
            A.skip('s_barrier')
            wvo(39, 16)
            A.skip('s_branch M_e3')
            A.label('M_e3a')
            A.skip('s_barrier')
        cond('M_e3', True, body)
    def finE(sig, accb):
        out = []
        for G in range(2):
            for r in range(4):
                for h in range(2):
                    out.append(f'v_mul_f32 v{accb+8*G+4*h+r}, v{accb+8*G+4*h+r}, v{vINV+4*G+r}')
                o = OST + 8*G + 2*r
                out.append(f'v_cvt_pk_bf16_f32 v{o+(sig&1)}, v{accb+8*G+r}, v{accb+8*G+4+r}')
                if sig & 1:
                    out.append(f'buffer_store_dwordx2 v[{o}:{o+1}], v{vOA+4*G+r}, s[{S_OUT}:{S_OUT+3}], 0 offen offset:{128*(sig>>1)}{ONT[sig>>1]}')
        return out
    def locE(f):
        if f < 14: return ('reg', wreg(f))
        if f < 24: return ('lds', vWA1, (f - 14)*1024)
        return ('lds', vWA0, (f-24)*1024)
    def b5E():
        def body():
            A.raw(f'  s_waitcnt vmcnt({len(A.vm)})'); A.skip('s_barrier')
        cond('M_e4', True, body)
        padat('O')
        stamp()
    bgE = [t for q in range(8) for t in (f'v_rcp_f32 v{vINV+q}, v{vINV+q}', '')]
    DE = int(OPT.get('de', '4')); GB4 = int(OPT.get('gb4', '13'))
    assert GB4 < 2*(14 - DE)
    pend = gemm_phase(QP, locE, finE, swap=True, bg=bgE, pace=int(OPT.get('pace', '4')), D=DE,
                      ghooks={GB4: b4E, 2*(39 - DE) - 1: b5E}, side0=[(3, t, 16) for t in pend],
                      xl=SACC if OPT.get('xl', '1') == '1' else None)
    padat('Z')
    for t in pend: A(t)
    if STAMP:
        stamp()
        A('s_waitcnt vmcnt(0)')
        stamp(1)
        write_stamps()
    if 'pad' in OPT:
        A('s_waitcnt vmcnt(0)')
        A.label('PADL')
        A.raw('  s_memrealtime s[98:99]')
        A.raw('  s_waitcnt lgkmcnt(0)')
        A('s_sub_u32 s98, s98, s96')
        A(f's_cmp_lt_u32 s98, {OPT["pad"]}')
        A('s_cbranch_scc1 PADL')
    A('s_endpgm')

    A.label('M_helper'); A.reset()
    nstamp[0] = 2
    A.label('H_join'); A.reset()
    stamp()
    wread()
    A(f's_sub_u32 s{sVT}, s2, {NMP}')
    A('v_mov_b32 v192, 1'); A('v_mov_b32 v193, 0')
    A(f'v_bfe_u32 v180, v{vN}, 1, 1')
    A('v_mul_u32_u24 v180, 12288, v180')
    A(f'v_and_b32 v181, 1, v{vN}')
    A('v_lshl_add_u32 v180, v181, 10, v180')
    A(f'v_lshrrev_b32 v181, 2, v{vN}')
    A('v_lshl_add_u32 v180, v181, 4, v180')
    A(f'v_lshl_add_u32 v180, v{vG}, 8, v180')
    A(f'v_lshlrev_b32 v181, 3, v{vN}')
    A(f'v_lshl_add_u32 v181, v{vG}, 8, v181')
    A(f'v_add_u32 v181, {MB + 12288}, v181')
    VS = 4*ROWB + 1024
    VA, VB, VD = 96, 144, 168
    t0, t1 = VD + 12, VD + 13
    def isv(lbl):
        A(f's_cmp_ge_u32 s{sVT}, 72')
        A(f's_cbranch_scc1 {lbl}')
    decode(); scalar_setup(); scalar_setup2()
    row_addrs(WF, '0')
    row_addrs(vAP, '8')
    def rows(lst):
        for i in lst:
            row_soff(sT1, str(i))
            b = vAP if i & 1 else WF
            for j in range(8):
                a = b + j
                if i & 6:
                    a = 64 + j
                    A(f'v_xor_b32 v{a}, {16*(i & 6)}, v{b+j}')
                A(f's_mov_b32 m0, {i*ROWB + 16*PIECE[j]}')
                A(f'buffer_load_dwordx4 v{a}, s[{S_X}:{S_X+3}], s{sT1} offen{KNT} lds')
            if len(A.vm) >= 54: A('s_waitcnt vmcnt(40)')
    isv('H_v2')
    A(f's_mul_hi_u32 s{sT0}, s{sVT}, 0x15555556')
    A(f's_mul_i32 s{sT1}, s{sT0}, 12')
    A(f's_sub_u32 s{sT1}, s{sVT}, s{sT1}')
    A(f's_lshr_b32 s{sT2}, s{sT1}, 2')
    A(f's_mul_i32 s{sVO}, s{sT2}, 24576')
    A(f's_and_b32 s{sT1}, s{sT1}, 3')
    A(f's_lshl_b32 s{sT1}, s{sT1}, 6')
    A(f's_add_u32 s{sVO}, s{sVO}, s{sT1}')
    A(f's_lshl_b32 s{sT1}, s{sT0}, 11')
    A(f's_add_u32 s{sVO}, s{sVO}, s{sT1}')
    A('s_waitcnt vmcnt(0)')
    for i in range(12):
        A(f'ds_read_b128 v[{VA+4*i}:{VA+4*i+3}], v{MWA+3} offset:{1024*i}')
    A('s_waitcnt lgkmcnt(2)')
    for k in range(6):
        for hh in range(2):
            A(f'ds_read_b64_tr_b16 v[{VB+4*k+2*hh}:{VB+4*k+2*hh+1}], v{t1} offset:{1024*k + 128*hh}')
    A('s_waitcnt lgkmcnt(0)')
    for k in range(6):
        for hp in range(2):
            A(mf(VD + 4*hp, VA + 24*hp + 4*k, VB + 4*k, None if k == 0 else VD + 4*hp))
    for q in range(4):
        A(f'v_cvt_pk_bf16_f32 v{VD+8+q}, v{VD+2*q}, v{VD+2*q+1}')
    A(f'buffer_store_dwordx4 v[{VD+8}:{VD+11}], v{t0}, s[{S_WS}:{S_WS+3}], s{sVO} offen sc1')
    A.label('H_v2'); A.reset()
    A('s_barrier')
    if ER == 0: rows([0, 8])
    poll('H_pollM', 128)
    A(f's_lshr_b32 s{sT0}, s2, 3')
    A(f's_mul_i32 s{sT0}, s{sT0}, 2304')
    A(f's_add_u32 s{sT0}, s{sT0}, {MOFF}')
    for i in range(3):
        A(f'buffer_load_dwordx4 v[{80+4*i}:{83+4*i}], v{vWA0}, s[{S_WS}:{S_WS+3}], s{sT0} offen offset:{1024*i} sc1')
    stamp()
    A('s_barrier')
    stamp()
    mshare(0, M1)
    A(f's_waitcnt vmcnt({M1 - MW})')
    A('s_barrier')
    stamp()
    mshare(M1, 18)
    A('s_waitcnt vmcnt(0)')
    isv('H_v3')
    A('s_mov_b64 exec, 1')
    A.raw(f'  buffer_atomic_add v192, v193, s[{S_DBG}:{S_DBG+3}], 0 offen offset:4 sc1')
    A('s_mov_b64 exec, -1')
    A.label('H_v3')
    if ER: rows([0, 8] + list(range(1, ER)))
    A('s_barrier')
    if OPT.get('hr', '1') == '1': rows([9, 10])
    stamp()
    A('s_barrier')
    rows([11, 12, 13, 14, 15])
    A('s_waitcnt vmcnt(0)')
    stamp()
    A('s_barrier')
    rows([16, 17, 18, 19])
    A('s_waitcnt vmcnt(0)')
    stamp()
    poll('H_pollV', 4, 72)
    A(f's_lshr_b32 s{sT0}, s2, 3')
    A(f's_mul_i32 s{sT0}, s{sT0}, 2304')
    for i in range(3):
        A(f'buffer_load_dwordx4 v[{80+4*i}:{83+4*i}], v{vWA0}, s[{S_WS}:{S_WS+3}], s{sT0} offen offset:{1024*i} sc1')
    stamp()
    A('s_barrier')
    def wfr(src0, n, lds0):
        for i in range(n):
            if i % 4 == 0:
                A(f's_mov_b32 m0, {lds0 + i*1024}')
                A(f's_mov_b32 s{sT4}, {(src0 + i)*1024}')
            A(f'buffer_load_dwordx4 v{vWA0}, s[{S_WS}:{S_WS+3}], s{sT4} offen offset:{1024*(i%4)} sc1 lds')
    wfr(14, 10, SPARE)
    A('s_waitcnt vmcnt(0)')
    stamp()
    A('s_barrier')
    if W4: wfr(55, 17, 31*1024)
    else: wfr(24, 12, 0)
    A('s_waitcnt vmcnt(0)')
    stamp()
    A('s_barrier')
    if STAMP:
        stamp(1)
        write_stamps()
    A.label('M_done')
    A('s_endpgm')
    A.label('CODE_END')

gen_main()
A.raw('.section .rodata,"a"')
A.raw('.p2align 6')
A.raw(f'.amdhsa_kernel {NAME}')
A.raw('  .amdhsa_next_free_vgpr 256')
A.raw('  .amdhsa_next_free_sgpr 102')
A.raw('  .amdhsa_accum_offset 256')
A.raw('  .amdhsa_group_segment_fixed_size 0')
A.raw('  .amdhsa_kernarg_size 48')
A.raw('  .amdhsa_user_sgpr_count 2')
A.raw('  .amdhsa_user_sgpr_kernarg_segment_ptr 1')
A.raw('  .amdhsa_system_sgpr_workgroup_id_x 1')
A.raw('.end_amdhsa_kernel')
open(OUT, 'w').write(A.text())
print('instr', A.n_inst, 'nops', A.nops, 'maxv', A.maxv)
```

```python
import sys, struct
sys.path.insert(0, 'gen')
from asmlib import Asm

OUT = sys.argv[1] if len(sys.argv) > 1 else 'standalone__neighborhood_nat__vision.s'
OPT = dict(a.split('=') if '=' in a else (a, '1') for a in sys.argv[2:])
STAMP = 'stamp' in OPT
XNT = ' nt' if OPT.get('xnt', '0') == '1' else ''
KNT = ' nt' if OPT.get('knt', '0') == '1' else ''
ONT = [{'0': '', '1': ' nt', '2': ' sc1', '3': ' sc0 sc1', '4': ' sc0 sc1 nt'}[c] for c in (OPT.get('ont', '2') * 3)[:3]]
NAME = 'standalone__neighborhood_nat__vision_kernel'

X_BYTES = 19267584
WS_BYTES = 268435456
ROWB = 7680
MB = 90112
SPARE = 153600
MOFF = 0x20000
NMP = 36
GAP = 73728
def f32bits(x): return struct.unpack('<I', struct.pack('<f', x))[0]
SCALE = f32bits(192 ** -0.5 * 1.4426950408889634)
NEGINF = 0xff800000
PIECE = [0, 64, 128, 192, 256, 320, 384, 416]

A = Asm()
hdr = open('standalone__neighborhood_nat__vision.s.ref').read().split('\n')
for ln in hdr:
    if ln.startswith('; @launch'): break
    A.raw(ln)
A.raw('; @launch grid=(256,1,1) block=(512,1,1) lds=163840')
A.raw('.amdgcn_target "amdgcn-amd-amdhsa--gfx950"')
A.raw('.text')

def srd(d, lo, hi, nbytes):
    A(f's_mov_b32 s{d}, s{lo}'); A(f's_and_b32 s{d+1}, s{hi}, 0xffff')
    A(f's_mov_b32 s{d+2}, {nbytes}'); A(f's_mov_b32 s{d+3}, 0x00020000')
def mf(d, a, b, c):
    cs = '0' if c is None else f'v[{c}:{c+3}]'
    return f'v_mfma_f32_16x16x32_bf16 v[{d}:{d+3}], v[{a}:{a+3}], v[{b}:{b+3}], {cs}'

S_X, S_OUT, S_WS, S_W, S_WO, S_DBG = 16, 20, 24, 28, 32, 36
sW, sPR, sPC, sTR, sTC = 40, 41, 42, 43, 44
sKR0, sKC0B = 45, 46
sLOR, sHIR, sSHR, sLOC, sHIC = 47, 48, 49, 50, 51
sBASE, sSTRIP, sNEG = 52, 53, 54
sT0, sT1, sT2, sT3, sT4, sT5 = 55, 56, 57, 58, 59, 60
sALR, sCB, sSC = 61, 62, 63
sCS, sCC, sPS = 50, 91, 3
NT = (6, 7)
sST = 64
sXR, sXL = 100, 101
sOA = 88
sB0, sF = 92, 93
sM1, sM2 = 0, 10
sVT, sVO = 94, 95
vL, vG, vN = 1, 2, 3
vT = 4
vR0, vR3, vCB = 12, 13, 14
XQ = 16
PP = 16
vOA = 4
vINV = 56
SACC = 64
OST = 16
W1 = 64
ONES = 48
QP = 120
ACC = 168
RING = 200
WF = 232
vAS = 240
vAP = 244
vWA0, vWA1, vWAM = 252, 253, 254
vSW, vSR = 255, 199
vWD = RING
MBQ = 64
MACC = 136
MPK = 184
MWA = 192

nstamp = [0]
def stamp(real=None):
    if not STAMP: return
    i = nstamp[0]; nstamp[0] += 1
    assert i < 14
    A.raw(f'  s_mem{"real" if "rt" in OPT else ""}time s[{sST+2*i}:{sST+1+2*i}]')
    if real is not None:
        A.raw(f'  s_memrealtime s[{96+2*real}:{97+2*real}]')
def write_stamps():
    n = nstamp[0]
    A('s_waitcnt lgkmcnt(0)')
    A(f'v_mov_b32 v{RING}, 0')
    if 'dbg' in OPT:
        lbl = f'WS_skip{n}'
        A(f's_cmp_lg_u32 s2, {OPT["dbg"].split(",")[0]}')
        A(f's_cbranch_scc1 {lbl}')
        A(f's_cmp_lg_u32 s{sW}, {OPT["dbg"].split(",")[1]}')
        A(f's_cbranch_scc1 {lbl}')
        for i in range(1, n):
            A(f's_sub_u32 s{sT0}, s{sST+2*i}, s{sST}')
            A(f'v_writelane_b32 v{RING}, s{sT0}, {i}')
        A(f's_sub_u32 s{sT0}, s98, s96')
        A(f'v_writelane_b32 v{RING}, s{sT0}, 15')
        srd(S_DBG, 12, 13, 256)
        A(f'v_lshlrev_b32 v{RING+1}, 2, v{vL}')
        A('s_mov_b64 exec, 0xfffe')
        A(f'buffer_store_dword v{RING}, v{RING+1}, s[{S_DBG}:{S_DBG+3}], 0 offen')
        A.label(lbl)
        return
    for i in range(n):
        A(f'v_writelane_b32 v{RING}, s{sST+2*i}, {i}')
    A(f'v_writelane_b32 v{RING}, s96, 14')
    A(f'v_writelane_b32 v{RING}, s98, 15')
    A(f's_lshl_b32 s{sT0}, s2, 3')
    A(f's_add_u32 s{sT0}, s{sT0}, s{sW}')
    A(f's_lshl_b32 s{sT0}, s{sT0}, 6')
    A(f's_add_u32 s{sT0}, s{sT0}, 0x100000')
    A(f'v_lshlrev_b32 v{RING+1}, 2, v{vL}')
    A('s_mov_b64 exec, 0xffff')
    A(f'buffer_store_dword v{RING}, v{RING+1}, s[{S_WS}:{S_WS+3}], s{sT0} offen')

def row_addrs(b, sF, A=A):
    for j in (0, 1, 2, 7):
        A(f'v_add_u32 v{vT}, {PIECE[j]}, v{vL}')
        A(f'v_xor_b32 v{vT}, {sF}, v{vT}')
        A(f'v_mul_u32_u24 v{vT+1}, 2731, v{vT}')
        A(f'v_lshrrev_b32 v{vT+1}, 16, v{vT+1}')
        A(f'v_mul_i32_i24 v{vT+1}, s{sCC}, v{vT+1}')
        A(f'v_lshl_add_u32 v{vT}, v{vT}, 4, v{vT+1}')
        A(f'v_add_u32 v{b+j}, s{sKC0B}, v{vT}')
        if j < 3:
            A(f'v_add_u32 v{b+j+3}, s{sPS}, v{b+j}')
            if j == 0: A(f'v_add_u32 v{b+6}, s{sPS}, v{b+3}')
    for j in (5, 6, 7):
        A(f'v_max_i32 v{b+j}, 0, v{b+j}')
def row_soff(dst, srow):
    A(f's_add_i32 s{dst}, s{sKR0}, {srow}')
    A(f's_lshl_b32 s{dst}, s{dst}, 1')
    A(f's_add_i32 s{dst}, s{dst}, s{sPR}')
    A(f's_max_i32 s{dst}, s{dst}, 0')
    A(f's_min_i32 s{dst}, s{dst}, 223')
    A(f's_mul_i32 s{dst}, s{dst}, 86016')

def stream(ms, mem, side, hooks=None, cap=2, bg=None, flush=(), paced=None):
    side = [x if len(x) == 3 else (x[0], x[1], 10**9) for x in side]
    bg = bg if bg is not None else []
    paced = list(paced or [])
    nside = len(side)
    def slots(lo, hi):
        return sum(max(0, cap - len(mem.get(k, []))) for k in range(lo, hi + 1))
    for i, m in enumerate(ms):
        assert not (side and side[0][2] < i), ('deadline missed', side[0], i)
        A(m)
        if i + 1 < len(ms) and not (hooks and i in hooks): A.prewait(ms[i+1])
        n = 0
        for t in mem.get(i, []):
            A(t); n += 1
        if paced and not mem.get(i) and paced[0][0] <= i and nside - len(side) >= paced[0][2]:
            assert nside - len(side) <= paced[0][3], ('paced item too late', paced[0])
            A(paced.pop(0)[1]); n += 1
        c = cap
        if side and side[0][2] < len(ms):
            dl = side[0][2]
            if sum(1 for x in side if x[2] == dl) > slots(i, dl): c = cap + 1
        while side and n < c and side[0][0] <= i:
            A(side.pop(0)[1]); n += 1
        while bg and n < cap:
            A(bg.pop(0)); n += 1
        if i in flush:
            while side and side[0][0] <= i + 4: A(side.pop(0)[1])
        if hooks and i in hooks: hooks[i]()
    assert not paced
    return [x[1] for x in side]

def gemm_phase(B, loc, finish, swap=False, hooks=None, D=6, gate=None, bg=None, extra_mem=None, ghooks=None, flush=(), pace=0, side0=(), xl=None):
    def bufof(f): return xl + 4*(f - 60) if xl is not None and f >= 60 else RING + 4*(f % 8)
    def rd(f):
        l = loc(f)
        if l[0] == 'lds':
            buf = bufof(f)
            return [f'ds_read_b128 v[{buf}:{buf+3}], v{l[1]} offset:{l[2]}']
        return []
    ms, mem, side, hk, paced = [], dict(extra_mem or {}), list(side0), dict(ghooks or {}), []
    for f in range(D):
        for t in rd(f): A(t)
    for f in range(72):
        sig, s, h = f // 12, (f % 12) // 2, f % 2
        l = loc(f)
        a = bufof(f) if l[0] == 'lds' else l[1]
        accb = ACC + 16*(sig & 1)
        for G in range(2):
            d = accb + 8*G + 4*h
            b = B + 24*G + 4*s
            ms.append(mf(d, b, a, None if s == 0 else d) if swap else mf(d, a, b, None if s == 0 else d))
        fn = f + D
        if xl is not None and fn >= 60:
            if fn < 72: mem[2*(60 - D) + fn - 60] = rd(fn)
        elif fn < 72 and not (gate is not None and f < gate <= fn):
            mem[2*f] = rd(fn)
        if f == 71 and xl is not None:
            ms[120:] = ms[120::2] + ms[121::2]
            fin = finish(sig, accb)
            side += [(135, t) for t in fin[:len(fin)//2]] + [(999, t) for t in fin[len(fin)//2:]]
            continue
        if f % 12 == 11:
            k = 0
            for t in finish(sig, accb):
                if pace and t.startswith('buffer_store') and sig < 5:
                    paced.append((2*f + 1 + 6 + pace*k, t, len(side), len(side) + 23)); k += 1
                else:
                    side.append((2*f + 1 + 3, t, 2*f + 1 + 24))
            if hooks and sig in hooks:
                def mk(sig=sig, f=f):
                    def h():
                        hooks[sig]()
                        if gate is not None and f + 1 == gate:
                            for k in range(gate, gate + D):
                                for t in rd(k): A(t)
                    return h
                hk[2*f + 1] = mk()
    return stream(ms, mem, side, hk, bg=bg, flush=flush, paced=paced)

def poll(label, off, want=1):
    A(f'v_mov_b32 v{vT+2}, 0')
    A(f's_mov_b32 s{sT4}, 0')
    A('s_mov_b64 exec, 1')
    A.label(label)
    A(f'buffer_load_dword v{vT+3}, v{vT+2}, s[{S_DBG}:{S_DBG+3}], 0 offen offset:{off} sc1')
    A('s_waitcnt vmcnt(0)')
    A(f'v_cmp_gt_u32 vcc, {want}, v{vT+3}')
    A(f's_add_u32 s{sT4}, s{sT4}, 1')
    A(f's_cmp_gt_u32 s{sT4}, 200000')
    A(f's_cbranch_scc1 {label}_x')
    A('s_cmp_lg_u64 vcc, 0')
    A(f's_cbranch_scc0 {label}_x')
    A('s_sleep 2')
    A(f's_branch {label}')
    A.label(label + '_x')
    A('s_mov_b64 exec, -1')

def cond(lbl, isE, body):
    A(f's_cmp_lt_u32 s{sW}, 4' if isE else f's_cmp_ge_u32 s{sW}, 4')
    A(f's_cbranch_scc1 {lbl}')
    body()
    A.label(lbl)

nprio = [0]
def prio(e, l):
    nprio[0] += 1
    A(f's_setprio {l}')
    if e != l: cond(f'M_pr{nprio[0]}', True, lambda: A.skip(f's_setprio {e}'))

npad = [0]
def padat(name):
    if OPT.get('padpos') != name: return
    npad[0] += 1
    A.label(f'PADM{npad[0]}')
    A.raw('  s_memrealtime s[98:99]')
    A.raw('  s_waitcnt lgkmcnt(0)')
    A.raw('  s_sub_u32 s98, s98, s96')
    A.raw(f'  s_cmp_lt_u32 s98, {OPT["padt"]}')
    A.raw(f'  s_cbranch_scc1 PADM{npad[0]}')

def gen_main():
    A.raw(f'.globl {NAME}'); A.raw('.p2align 8'); A.raw(f'.type {NAME},@function')
    A.raw(f'{NAME}:'); A.reset()
    A('s_cmp_ge_u32 s2, 256')
    A('s_cbranch_scc1 M_done')
    stamp(0)
    if 'pad' in OPT or 'padpos' in OPT: A.raw('  s_memrealtime s[96:97]')
    A('s_load_dwordx8 s[4:11], s[0:1], 0')
    A('s_load_dwordx4 s[12:15], s[0:1], 32')
    A(f'v_lshrrev_b32 v{vT}, 6, v0')
    A(f'v_and_b32 v{vL}, 63, v0')
    A(f'v_readfirstlane_b32 s{sW}, v{vT}')
    A(f'v_lshrrev_b32 v{vG}, 4, v{vL}')
    A(f'v_and_b32 v{vN}, 15, v{vL}')
    A(f'v_lshlrev_b32 v{vWA0}, 4, v{vL}')
    def decode():
        A(f's_and_b32 s{sT0}, s2, 7')
        A(f's_lshr_b32 s{sT1}, s2, 3')
        MAP = OPT.get('map', '0')
        if MAP == '0':
            A(f's_lshr_b32 s{sPR}, s{sT0}, 2')
            A(f's_bfe_u32 s{sPC}, s{sT0}, 0x10001')
            A(f's_and_b32 s{sT0}, s{sT0}, 1')
            A(f's_lshl_b32 s{sT0}, s{sT0}, 2')
            A(f's_lshr_b32 s{sTR}, s{sT1}, 3')
            A(f's_add_u32 s{sTR}, s{sTR}, s{sT0}')
            A(f's_and_b32 s{sTC}, s{sT1}, 7')
        elif MAP == '1':
            A(f's_mov_b32 s{sTR}, s{sT0}')
            A(f's_and_b32 s{sPR}, s{sT1}, 1')
            A(f's_bfe_u32 s{sPC}, s{sT1}, 0x10001')
            A(f's_lshr_b32 s{sTC}, s{sT1}, 2')
        elif MAP == '2':
            A(f's_lshr_b32 s{sPR}, s{sT0}, 2')
            A(f's_and_b32 s{sT0}, s{sT0}, 3')
            A(f's_lshl_b32 s{sT0}, s{sT0}, 1')
            A(f's_lshr_b32 s{sTR}, s{sT1}, 4')
            A(f's_add_u32 s{sTR}, s{sTR}, s{sT0}')
            A(f's_and_b32 s{sPC}, s{sT1}, 1')
            A(f's_bfe_u32 s{sTC}, s{sT1}, 0x30001')
        else:
            A(f's_and_b32 s{sPR}, s{sT1}, 1')
            A(f's_bfe_u32 s{sPC}, s{sT1}, 0x10001')
            A(f's_and_b32 s{sTR}, s{sT0}, 6')
            A(f's_lshr_b32 s{sT2}, s{sT1}, 4')
            A(f's_add_u32 s{sTR}, s{sTR}, s{sT2}')
            A(f's_and_b32 s{sT0}, s{sT0}, 1')
            A(f's_lshl_b32 s{sT0}, s{sT0}, 2')
            A(f's_bfe_u32 s{sTC}, s{sT1}, 0x20002')
            A(f's_add_u32 s{sTC}, s{sTC}, s{sT0}')
        A(f's_mul_i32 s{sTR}, s{sTR}, 14')
        A(f's_mul_i32 s{sTC}, s{sTC}, 14')
    def srds():
        srd(S_WS, 14, 15, WS_BYTES)
        srd(S_OUT, 10, 11, X_BYTES)
        srd(S_DBG, 12, 13, 256)
    def scalar_setup():
        A(f's_mul_i32 s{sALR}, s{sPR}, 13')
        A(f's_add_i32 s{sALR}, s{sALR}, -6')
        A(f's_cmp_eq_u32 s{sPC}, 0')
        A(f's_cselect_b32 s{sCB}, {223*384}, 0')
        A(f's_cselect_b32 s{sCS}, -1, 1')
        A(f's_mulk_i32 s{sCS}, 384')
        A(f's_cmp_ge_u32 s{sW}, 4')
        A(f's_cselect_b32 s{sSTRIP}, -4, 3')
        A(f's_add_i32 s{sSTRIP}, s{sSTRIP}, s{sW}')
        A(f's_lshl_b32 s{sSTRIP}, s{sSTRIP}, 1')
        A(f's_add_u32 s{sOA}, s{sTR}, s{sSTRIP}')
        A(f's_mov_b32 s{sOA+1}, 86016')
    def scalar_setup2():
        A(f's_mul_i32 s{sT0}, s{sPR}, 6')
        A(f's_add_i32 s{sKR0}, s{sTR}, s{sT0}')
        A(f's_add_i32 s{sKR0}, s{sKR0}, -6')
        A(f's_cmp_eq_i32 s{sKR0}, -6')
        A(f's_cselect_b32 s{sLOR}, 6, 0')
        A(f's_cmp_eq_i32 s{sKR0}, 98')
        A(f's_cselect_b32 s{sHIR}, 7, 13')
        A(f's_cselect_b32 s{sSHR}, 2, 0')
        A(f's_sub_i32 s{sKR0}, s{sKR0}, s{sSHR}')
        A(f's_cmp_eq_i32 s{sTC}, 98')
        A(f's_cselect_b32 s{sHIC}, 7, 13')
        A(f's_lshl_b32 s{sT1}, s{sTC}, 1')
        A(f's_add_i32 s{sT1}, s{sT1}, 1')
        A(f's_mul_i32 s{sKC0B}, s{sT1}, s{sCS}')
        A(f's_add_i32 s{sKC0B}, s{sKC0B}, s{sCB}')
        A(f's_lshl_b32 s{sCC}, s{sCS}, 1')
        A(f's_lshl_b32 s{sPS}, s{sCC}, 3')
        A(f's_add_i32 s{sCC}, s{sCC}, -384')
        A(f's_max_i32 s{sB0}, s{sSTRIP}, s{sLOR}')
        A(f's_min_i32 s{sB0}, s{sB0}, s{sHIR}')
        A(f's_and_b32 s{sB0}, s{sB0}, -2')
        A(f's_add_u32 s{sBASE}, s{sB0}, s{sSHR}')
        A(f's_mov_b32 s{sNEG}, {NEGINF}')
        A(f's_mov_b32 s{sSC}, {SCALE}')
        A(f's_and_b32 s{sF}, s{sW}, 1')
        A(f's_lshl_b32 s{sF}, s{sF}, 3')
        A(f's_and_b32 s{sT1}, s{sW}, 6')
        A(f's_or_b32 s{sF}, s{sF}, s{sT1}')
        A(f's_add_u32 s{sT1}, s{sW}, 8')
        row_soff(sXR, f's{sT1}')
        A(f's_mul_i32 s{sXL}, s{sT1}, {ROWB}')

    def sreg(G, tl): return SACC + 24*G + 4*tl
    TM = [197, 198, 199, 255, 0]
    def pixaddr(dst, sel, lane):
        t0, t1, t2, t3, t4 = TM
        o = [f'v_lshrrev_b32 v{t0}, 1, v{sel}', f'v_and_b32 v{t3}, 1, v{sel}', f'v_add_u32 v{t0}, s{sOA}, v{t0}',
             f'v_lshl_add_u32 v{t4}, v{t3}, 2, s{sTC}',
             f'v_lshl_add_u32 v{t1}, v{t0}, 1, s{sALR}', f'v_add_u32 v{t2}, 112, v{t0}', f'v_lshlrev_b32 v{t3}, 30, v{t3}',
             f'v_med3_i32 v{t0}, v{t1}, v{t0}, v{t2}', f'v_mul_lo_u32 v{t0}, v{t0}, s{sOA+1}'] + lane(t0)
        o += [f'v_add_u32 v{t0}, s{sCB}, v{t0}']
        for G in range(2):
            for r in range(4):
                d = dst(G, r)
                o += [f'v_lshl_add_u32 v{t1}, v{t4}, 1, {2*(6*G+r) + 7}', f'v_add_u32 v{t2}, {6*G+r+112}, v{t4}',
                      f'v_min_u32 v{d}, v{t1}, v{t2}', f'v_mad_i32_i24 v{d}, v{d}, s{sCS}, v{t0}']
                if G == 0 and r >= 2: o += [f'v_add_u32 v{d}, v{d}, v{t3}']
        return o
    def oaddr(): return pixaddr(lambda G, r: vOA + 4*G + r, vG, lambda t: [f'v_lshl_add_u32 v{t}, v{vN}, 3, v{t}'])
    vXS = ACC
    sXRW, sXB = 84, 86
    def xaddr():
        A(f'v_lshrrev_b32 v{vT}, 3, v{vL}')
        A(f'v_and_b32 v{vT+1}, 7, v{vL}')
        A(f'v_and_b32 v{vT+2}, 6, v{vT}')
        A(f'v_xor_b32 v{vT+1}, v{vT+1}, v{vT+2}')
        A(f'v_lshl_add_u32 v{vT+1}, v{vT+1}, 4, s{sCB}')
        A(f'v_add_u32 v{vT+4}, 2, v{vT}')
        A(f'v_lshrrev_b32 v{vT+4}, 3, v{vT+4}')
        A(f'v_add_u32 v{vT}, s{sTC}, v{vT}')
        for G in range(2):
            A(f'v_lshl_add_u32 v{vT+2}, v{vT}, 1, {12*G + 7}')
            A(f'v_add_u32 v{vT+3}, {6*G + 112}, v{vT}')
            A(f'v_min_u32 v{vT+2}, v{vT+2}, v{vT+3}')
            A(f'v_mad_i32_i24 v{vXS+G}, v{vT+2}, s{sCS}, v{vT+1}')
        A(f'v_lshl_add_u32 v{vXS}, v{vT+4}, 30, v{vXS}')
        for rb in range(2):
            A(f's_add_u32 s{sT0}, s{sOA}, {rb}')
            A(f's_lshl_b32 s{sT1}, s{sT0}, 1')
            A(f's_add_i32 s{sT1}, s{sT1}, s{sALR}')
            A(f's_max_i32 s{sT1}, s{sT1}, s{sT0}')
            A(f's_add_i32 s{sT0}, s{sT0}, 112')
            A(f's_min_i32 s{sT1}, s{sT1}, s{sT0}')
            A(f's_mul_i32 s{sXRW+rb}, s{sT1}, 86016')
        A(f's_lshl_b32 s{sXB}, s{sSTRIP}, 12')
        A(f's_lshl_b32 s{sXB+1}, s{sSTRIP}, 11')
    def xload(i):
        j, G, rb = i // 4, (i >> 1) & 1, i & 1
        off = 512 + (j*4 + G*2 + rb)*1024 - 128*j if j < 2 else 61440 + (G*2 + rb)*1024 - 256
        A.skip(f's_add_u32 m0, s{sXB + j//2}, {off}')
        A.skip('s_nop 0')
        A.raw(f'  buffer_load_dwordx4 v{vXS+G}, s[{S_X}:{S_X+3}], s{sXRW+rb} offen offset:{128*j}{XNT} lds')
    def chunk(c):
        for i in range(4*c, 4*c + 4): xload(i)
    def xread_addr():
        A(f'v_and_b32 v{vXS+2}, 6, v{vN}')
        A(f'v_xor_b32 v{vXS+2}, v{vXS+2}, v{vG}')
        A(f'v_lshlrev_b32 v{vXS+6}, 7, v{vN}')
        A(f'v_xor_b32 v{vXS+3}, 4, v{vXS+2}')
        A(f'v_lshl_add_u32 v{vXS+2}, v{vXS+2}, 4, v{vXS+6}')
        A(f'v_lshl_add_u32 v{vXS+3}, v{vXS+3}, 4, v{vXS+6}')
        for q in range(2):
            A(f'v_add_u32 v{vXS+4+q}, s{sXB+1}, v{vXS+2+q}')
            A(f'v_add_u32 v{vXS+2+q}, s{sXB}, v{vXS+2+q}')
    def xread(j):
        for G in range(2):
            for q in range(2):
                r = XQ + 24*G + 4*(2*j + q)
                if j < 2: A(f'ds_read_b128 v[{r}:{r+3}], v{vXS+2+q} offset:{512 + (4*j + 2*G)*1024}')
                else: A(f'ds_read_b128 v[{r}:{r+3}], v{vXS+4+q} offset:{61440 + 2*G*1024}')
    def setup():
        B = Asm()
        def Fv(dst, row):
            B(f'v_and_b32 v{dst}, 1, v{row}')
            B(f'v_lshlrev_b32 v{dst}, 3, v{dst}')
            B(f'v_and_or_b32 v{dst}, v{row}, 6, v{dst}')
        B(f'v_lshrrev_b32 v{vT}, 3, v{vN}')
        B(f'v_add_u32 v{vT}, s{sSTRIP}, v{vT}')
        B(f'v_max_i32 v{vT}, s{sLOR}, v{vT}')
        B(f'v_min_i32 v{vT}, s{sHIR}, v{vT}')
        B(f'v_subrev_u32 v{vT}, s{sB0}, v{vT}')
        B(f'v_and_b32 v{vT+1}, 1, v{vG}')
        B(f'v_sub_u32 v{vT+2}, v{vT+1}, v{vT}')
        B(f'v_ashrrev_i32 v{vR0}, 31, v{vT+2}')
        B(f'v_and_b32 v{vR0}, s{sNEG}, v{vR0}')
        B(f'v_sub_u32 v{vT+2}, v{vT}, v{vT+1}')
        B(f'v_ashrrev_i32 v{vR3}, 31, v{vT+2}')
        B(f'v_and_b32 v{vR3}, s{sNEG}, v{vR3}')
        B(f'v_and_b32 v{vT}, 7, v{vN}')
        B(f'v_lshrrev_b32 v{vT+1}, 1, v{vG}')
        B(f'v_subrev_u32 v{vT+3}, 6, v{vT}')
        B(f'v_ashrrev_i32 v{vT+3}, 31, v{vT+3}')
        B(f'v_and_b32 v{vT+3}, 0x7f, v{vT+3}')
        for G in range(2):
            if G: B(f'v_mov_b32 v{vT+3}, 0x7f')
            B(f'v_add_u32 v{vT+2}, {6*G}, v{vT}')
            B(f'v_min_i32 v{vT+2}, s{sHIC}, v{vT+2}')
            B(f'v_lshlrev_b32 v{vT+2}, v{vT+2}, v{vT+3}')
            B(f'v_lshrrev_b32 v{vT+2}, v{vT+1}, v{vT+2}')
            B(f'v_not_b32 v{vCB+G}, v{vT+2}')
        B(f'v_add_u32 v{vT}, s{sBASE}, v{vT}')
        Fv(vT+1, vT)
        B(f'v_mul_u32_u24 v{vT}, {ROWB}, v{vT}')
        B(f'v_lshrrev_b32 v{vT+2}, 3, v{vN}')
        B(f'v_mul_u32_u24 v{vT+2}, 24, v{vT+2}')
        B(f'v_add_u32 v{vT+2}, v{vT+2}, v{vG}')
        for s in range(4):
            B(f'v_add_u32 v{vT+3}, {4*s}, v{vT+2}')
            B(f'v_xor_b32 v{vT+3}, v{vT+3}, v{vT+1}')
            B(f'v_lshl_add_u32 v{vAS+s}, v{vT+3}, 4, v{vT}')
        B(f'v_and_b32 v{vT}, 1, v{vG}')
        B(f'v_lshlrev_b32 v{vT}, 2, v{vT}')
        B(f'v_lshrrev_b32 v{vT+1}, 2, v{vN}')
        B(f'v_add3_u32 v{vT}, v{vT}, v{vT+1}, s{sBASE}')
        Fv(vT+1, vT)
        B(f'v_mul_u32_u24 v{vT}, {ROWB}, v{vT}')
        B(f'v_and_b32 v{vT+2}, 1, v{vN}')
        B(f'v_lshl_add_u32 v{vT}, v{vT+2}, 3, v{vT}')
        B(f'v_lshrrev_b32 v{vT+2}, 1, v{vG}')
        B(f'v_mul_u32_u24 v{vT+2}, 24, v{vT+2}')
        B(f'v_bfe_u32 v{vT+3}, v{vN}, 1, 1')
        B(f'v_add_u32 v{vT+2}, v{vT+2}, v{vT+3}')
        for ct in range(8):
            B(f'v_add_u32 v{vT+3}, {2*ct}, v{vT+2}')
            B(f'v_xor_b32 v{vT+3}, v{vT+3}, v{vT+1}')
            B(f'v_lshl_add_u32 v{vAP+ct}, v{vT+3}, 4, v{vT}')
        B(f'v_add_u32 v{vWA1}, {SPARE}, v{vWA0}')
        B(f'v_add_u32 v{vWAM}, {MB}, v{vWA0}')
        row_addrs(WF, f's{sF}', B)
        return [l.strip() for l in B.lines]
    def masks():
        out = []
        for G in range(2):
            for tl in range(NT[G]):
                tau = tl + 3*G
                r = sreg(G, tl)
                out += [f'v_bfe_i32 v{r+2}, v{vCB+G}, {2*tau}, 1', f'v_and_b32 v{r+1}, s{sNEG}, v{r+2}',
                        f'v_and_b32 v{r+2}, s{sNEG}, v{r+2}', f'v_or_b32 v{r}, v{r+1}, v{vR0}', f'v_or_b32 v{r+3}, v{r+1}, v{vR3}']
        return out

    M1 = int(OPT.get('m1', '12')); MW = int(OPT.get('mw', '6'))
    def mshare(a, b):
        A(f's_lshl_b32 s{sT0}, s{sW}, 10')
        A(f's_add_u32 s{sT0}, s{sT0}, {MOFF + 4096*a}')
        for i in range(a, b):
            A(f's_sub_u32 m0, s{sT0}, {MOFF - MB}')
            A(f'buffer_load_dwordx4 v{vWA0}, s[{S_WS}:{S_WS+3}], s{sT0} offen sc1 lds')
            if i < b - 1: A(f's_add_u32 s{sT0}, s{sT0}, 4096')
    TA, TB, TD = 64, 112, 160
    def signal(off, last, tag, wait=True):
        A('v_mov_b32 v192, 1'); A('v_mov_b32 v193, 0')
        A('s_mov_b64 exec, 1')
        A('s_waitcnt vmcnt(0)')
        A(f'buffer_atomic_add v192, v193, s[{S_DBG}:{S_DBG+3}], 0 offen offset:{off} sc0 sc1')
        A('s_mov_b64 exec, -1')
    def publish(off, last, tag):
        A(f'v_readfirstlane_b32 s{sT1}, v192')
        A(f's_cmp_lg_u32 s{sT1}, {last}')
        A(f's_cbranch_scc1 {tag}')
        A('s_mov_b64 exec, 1')
        A(f'buffer_store_dword v192, v193, s[{S_DBG}:{S_DBG+3}], 0 offen offset:{128 + off} sc1')
        A('s_mov_b64 exec, -1')
        A.label(tag)
    def swz16():
        A(f'v_bfe_u32 v{vT+1}, v{vL}, 2, 2')
        A(f'v_lshrrev_b32 v{vT+2}, 5, v{vL}')
        A(f'v_lshlrev_b32 v{vT+3}, 1, v{vT+2}')
        A(f'v_and_b32 v{vT+4}, 3, v{vL}')
        A(f'v_xor_b32 v{vT+3}, v{vT+3}, v{vT+4}')
        A(f'v_lshlrev_b32 v{vT+3}, 4, v{vT+3}')
        A(f's_movk_i32 s{sT5}, 1152')
    def wread():
        A(f'v_lshrrev_b32 v{vT}, 3, v{vN}')
        A(f'v_lshlrev_b32 v{vT}, 1, v{vT}')
        A(f'v_xor_b32 v{vT}, v{vT}, v{vG}')
        A(f'v_lshl_add_u32 v{vT}, v{vN}, 2, v{vT}')
        A(f'v_lshlrev_b32 v{MWA+3}, 4, v{vT}')
        A(f'v_add_u32 v{MWA+3}, {MB}, v{MWA+3}')
    def wlanes():
        swz16()
        A(f'v_lshrrev_b32 v{vT}, 2, v{vL}')
        A(f'v_mad_u32_u24 v{vWD+3}, v{vT}, s{sT5}, v{vT+3}')
        wread()
    A(f's_cmp_lg_u32 s{sW}, 0')
    A('s_cbranch_scc1 M_comp')
    A('s_getpc_b64 s[16:17]')
    A('s_and_b32 s16, s16, -256')
    A('s_and_b32 s17, s17, 0xffff')
    A('s_mov_b32 s18, CODE_END-' + NAME)
    A('s_mov_b32 s19, 0x00020000')
    A(f's_lshr_b32 s{sT0}, s2, 3')
    A(f's_lshl_b32 s{sT0}, s{sT0}, 10')
    A(f'buffer_load_dwordx4 v[188:191], v{vWA0}, s[16:19], s{sT0} offen')
    A(f's_cmp_ge_u32 s2, {NMP + 72}')
    A('s_cbranch_scc1 H_nom')
    swz16()
    A(f's_mov_b32 m0, {MB}')
    A(f's_mov_b32 s{S_W+2}, {192*576*2}'); A(f's_mov_b32 s{S_W+3}, 0x00020000')
    A(f's_cmp_ge_u32 s2, {NMP}')
    A('s_cbranch_scc1 H_vf')
    A(f'v_lshl_add_u32 v{vT}, v{vG}, 3, v{vT+1}')
    A(f's_mul_hi_u32 s{sT0}, s2, 0x2aaaaaab')
    A(f's_mul_i32 s{sT1}, s{sT0}, 6')
    A(f's_sub_u32 s{sT1}, s2, s{sT1}')
    A(f's_mul_i32 s{sT1}, s{sT1}, {32*1152}')
    A(f's_mul_i32 s{sT0}, s{sT0}, {32*1152}')
    A(f's_sub_u32 s{sT0}, s{sT0}, s{sT1}')
    A(f's_add_i32 s{sT0}, s{sT0}, {384 - 4608}')
    A(f's_movk_i32 s{sT2}, 4608')
    A(f's_mov_b32 s{sT4}, {MB + 24576}')
    A('s_branch H_tl0')
    A.label('H_vf')
    A(f'v_lshrrev_b32 v{vT}, 2, v{vL}')
    A(f's_sub_u32 s{sVT}, s2, {NMP}')
    A(f's_mul_hi_u32 s{sVO}, s{sVT}, 0x15555556')
    A(f's_mul_i32 s{sT1}, s{sVO}, {32*1152}')
    A(f's_addk_i32 s{sT1}, 768')
    A(f's_movk_i32 s{sT2}, {16*1152}')
    A(f's_mov_b32 s{sT4}, {MB + 12288}')
    A.label('H_tl0')
    A(f'v_mad_u32_u24 v{vWD}, v{vT}, s{sT5}, v{vT+3}')
    A('s_waitcnt lgkmcnt(0)')
    A(f's_mov_b64 s[{S_W}:{S_W+1}], s[6:7]')
    A.label('H_tl')
    for k in range(6):
        A(f'buffer_load_dwordx4 v{vWD}, s[{S_W}:{S_W+3}], s{sT1} offen offset:{64*k} lds')
        A(f's_addk_i32 m0, {960 if k < 5 else 960 + 384}')
    A(f's_add_u32 s{sT1}, s{sT1}, s{sT2}')
    A(f's_mov_b32 s{sT3}, s{sT2}'); A(f's_mov_b32 s{sT2}, s{sT0}'); A(f's_mov_b32 s{sT0}, s{sT3}')
    A(f's_cmp_lt_u32 m0, s{sT4}')
    A('s_cbranch_scc1 H_tl')
    A(f's_cmp_ge_u32 s2, {NMP}')
    A('s_cbranch_scc1 H_vf2')
    A('s_barrier')
    A('s_branch H_task2')
    A.label('H_vf2')
    srd(S_WO, 8, 9, 192*192*2)
    A(f'v_lshrrev_b32 v{vT}, 1, v{vL}')
    A(f'v_mul_u32_u24 v{vT}, 384, v{vT}')
    A(f'v_and_b32 v{vT+1}, 1, v{vL}')
    A(f'v_lshl_add_u32 v{vT}, v{vT+1}, 4, v{vT}')
    A(f's_mul_i32 s{sT1}, s{sVO}, 12')
    A(f's_sub_u32 s{sT1}, s{sVT}, s{sT1}')
    A(f's_lshl_b32 s{sT2}, s{sT1}, 5')
    A.label('H_tl2')
    A(f'buffer_load_dwordx4 v{vT}, s[{S_WO}:{S_WO+3}], s{sT2} offen lds')
    A('s_addk_i32 m0, 1024')
    A(f's_addk_i32 s{sT2}, {32*384}')
    A(f's_cmp_lt_u32 m0, {MB + 18432}')
    A('s_cbranch_scc1 H_tl2')
    A('s_branch H_nom')
    A.label('M_comp'); A.reset()
    nstamp[0] = 1
    decode()
    scalar_setup()
    xaddr()
    A('s_waitcnt lgkmcnt(0)')
    srd(S_X, 4, 5, X_BYTES)
    stamp()
    A(f's_cmp_ge_u32 s2, {NMP}')
    A('s_cbranch_scc1 M_x0')
    A.skip('s_barrier')
    A.label('M_x0')
    chunk(0)
    A(f's_cmp_lt_u32 s2, {NMP}')
    A('s_cbranch_scc1 M_x1')
    chunk(1)
    chunk(2)
    A.label('M_x1')
    A('s_branch M_c2')
    sv = nstamp[0]
    A.label('H_task2'); A.reset()
    nstamp[0] = 1
    wread()
    srd(S_X, 4, 5, X_BYTES)
    srds()
    A(f's_lshl_b32 s{sT0}, s2, 11')
    A(f's_add_u32 s{sT0}, s{sT0}, {MOFF}')
    A('s_waitcnt vmcnt(0)')
    stamp()
    for k in range(6):
        for q in range(4):
            r = TA + 24*q + 4*k
            A(f'ds_read_b128 v[{r}:{r+3}], v{MWA+3} offset:{(6*q + k)*1024}')
        if k >= 2:
            kk = k - 2
            for h in range(2):
                for hp in range(2):
                    d = TD + 8*h + 4*hp
                    A(mf(d, TA + 24*hp + 4*kk, TB + 24*h + 4*kk, None if kk == 0 else d))
    for kk in (4, 5):
        for h in range(2):
            for hp in range(2):
                d = TD + 8*h + 4*hp
                A(mf(d, TA + 24*hp + 4*kk, TB + 24*h + 4*kk, d))
    for h in range(2):
        for q in range(4):
            A(f'v_cvt_pk_bf16_f32 v{TD+16+4*h+q}, v{TD+8*h+2*q}, v{TD+8*h+2*q+1}')
        A(f'buffer_store_dwordx4 v[{TD+16+4*h}:{TD+19+4*h}], v{vWA0}, s[{S_WS}:{S_WS+3}], s{sT0} offen offset:{1024*h} sc1')
    signal(0, NMP - 1, 'H_p1')
    A('s_barrier')
    A('s_waitcnt vmcnt(0)')
    publish(0, NMP - 1, 'H_p1')
    A('s_barrier')
    A('s_branch H_join')
    A.label('H_nom'); A.reset()
    nstamp[0] = 1
    A('s_waitcnt lgkmcnt(0)')
    srd(S_X, 4, 5, X_BYTES)
    srds()
    stamp()
    A('s_branch H_join')
    A.label('M_c2'); A.reset()
    nstamp[0] = sv
    stamp()
    if OPT.get('tlb', '0') == '1':
        A(f's_add_u32 s90, s10, s{sXRW}'); A('s_addc_u32 s91, s11, 0')
        A.raw('  s_load_dword s83, s[90:91], 0')
        A.raw('  s_load_dword s83, s[14:15], 0x38000')
        A(f's_movk_i32 s{sOA+2}, 384')
    srds(); scalar_setup2()
    for t in setup() + oaddr() + masks(): A(t)
    xread_addr()
    A(f's_cmp_ge_u32 s2, {NMP}')
    A('s_cbranch_scc1 M_x2')
    A.skip('s_barrier')
    chunk(1)
    A.skip('s_barrier')
    chunk(2)
    A.label('M_x2')
    stamp()
    for j in range(3):
        A(f's_waitcnt vmcnt({8 - 4*j})')
        xread(j)
    row_soff(sT2, f's{sW}')
    A('s_waitcnt lgkmcnt(0)')
    stamp()
    A('s_barrier')
    ER = 1
    LR = int(OPT.get('lr', '4'))
    def ownrow():
        for j in range(8):
            A(f's_add_u32 m0, s{sXL}, {16*PIECE[j] - 8*ROWB}')
            A(f'buffer_load_dwordx4 v{WF+j}, s[{S_X}:{S_X+3}], s{sT2} offen{KNT} lds')
    A(f's_cmp_lt_u32 s{sW}, {LR}')
    A('s_cbranch_scc1 M_er')
    ownrow()
    A.label('M_er')
    A('s_barrier')
    stamp()
    A(f's_cmp_lt_u32 s{sW}, 4')
    A('s_cbranch_scc1 M_xl')
    A('s_setprio 1')
    A('s_barrier')
    A('s_branch M_pa')
    A.label('M_xl'); A.reset()
    mshare(0, M1)
    A(f's_waitcnt vmcnt({M1 - MW})')
    A('s_barrier')
    mshare(M1, 18)
    if LR > 1:
        A(f's_cmp_ge_u32 s{sW}, {LR}')
        A('s_cbranch_scc1 M_pa')
        ownrow()
    A.label('M_pa'); A.reset()
    padat('A')
    stamp()
    bgA = []
    xrow = []
    for j in range(8):
        xrow.append(f's_add_u32 m0, s{sXL}, {16*PIECE[j]}\n s_nop 0\n buffer_load_dwordx4 v{WF+j}, s[{S_X}:{S_X+3}], s{sXR} offen{KNT} lds')
    def finA(sig, accb):
        out = []
        for G in range(2):
            for q in range(4):
                out.append(f'v_cvt_pk_bf16_f32 v{QP+24*G+4*sig+q}, v{accb+8*G+2*q}, v{accb+8*G+2*q+1}')
        return out
    def locA(f):
        if f < 60: return ('lds', vWAM, f*1024)
        if f < 62: return ('reg', WF + 4*(f-60))
        return ('lds', vWA1, (f-62)*1024)
    def bar():
        A('s_barrier')
        if OPT.get('hr', '1') == '0': bgA[0:0] = xrow
    def bar4():
        A('s_waitcnt vmcnt(0)'); A('s_barrier')
        prio(3, 2)
    def b0b():
        A(f's_waitcnt vmcnt({8 if LR == 4 else 0})'); A('s_barrier')
    hA = {2: bar, 4: bar4}
    seq = []
    for (a1, a2) in ((0, 3), (1, 4), (2, 5), (6, 7), (8, 9)):
        for s in range(6):
            seq.append((a1, s)); seq.append((a2, s))
    def users(tau):
        u = []
        if tau <= 5: u.append((0, tau))
        if tau >= 3: u.append((1, tau - 3))
        return u
    def rdS(i):
        tau, s = seq[i]
        buf = RING + 4*(i % 8)
        return f'ds_read_b128 v[{buf}:{buf+3}], v{vAS + (s % 4)} offset:{tau*768 + (256 if s >= 4 else 0)}'
    SP = OPT.get('sp', '1') == '1'
    xm = {2*48+1: [f'ds_read_b128 v[{WF}:{WF+3}], v{vWAM} offset:{60*1024}'],
          2*49+1: [f'ds_read_b128 v[{WF+4}:{WF+7}], v{vWAM} offset:{61*1024}']}
    gh = {2*(4*MW - 6) - 1: b0b}
    if SP:
        for i in range(6): xm[2*(66 + i)] = [rdS(i)]
        xm[143] = [rdS(6)]
        gh[131] = lambda: cond('M_l1', False, lambda: (A.raw('  s_waitcnt lgkmcnt(0)'), A.skip('s_barrier')))
    pend = gemm_phase(XQ, locA, finA, hooks=hA, bg=bgA, extra_mem=xm, ghooks=gh)
    assert not bgA
    stamp()
    padat('S')
    if not SP: cond('M_l1', False, lambda: A.skip('s_barrier'))
    D = 7
    if not SP:
        for i in range(D): A(rdS(i))
        for t in pend: A(t)
        pend = []
    vM = [12, 13]; vX = [14, 15]
    A(f's_mov_b32 s{sT1}, 0xff7fffff')
    ms, mem, side = [], {}, [(3, t, 12) for t in pend]
    started = [False, False]; ndone = [0, 0]
    def xl(G):
        o = []
        for sw in ('v_permlane32_swap_b32', 'v_permlane16_swap_b32'):
            o += [f'v_mov_b32 v{vX[G]}, v{vM[G]}', f'{sw} v{vM[G]}, v{vX[G]}', f'v_max_f32 v{vM[G]}, v{vM[G]}, v{vX[G]}']
        return o + [f'v_mul_f32 v{vM[G]}, s{sSC}, v{vM[G]}']
    for i, (tau, s) in enumerate(seq):
        a = RING + 4*(i % 8)
        for (G, tl) in users(tau):
            r = sreg(G, tl)
            ms.append(mf(r, a, QP + 24*G + 4*s, r))
            if s == 5:
                e = len(ms) + 3
                side.append((e, f'v_max3_f32 v{vM[G]}, v{r}, v{r+1}, ' + (f'v{vM[G]}' if started[G] else f's{sT1}')))
                side.append((e, f'v_max3_f32 v{vM[G]}, v{r+2}, v{r+3}, v{vM[G]}'))
                started[G] = True; ndone[G] += 1
        if i % 12 == 11:
            for G in range(2):
                if ndone[G] == NT[G]:
                    side += [(len(ms) + 3, t) for t in xl(G)]; ndone[G] = 8
                    if G == 0 and OPT.get('ef', '1') == '1':
                        side += [(0, f'v_fma_f32 v{q}, v{q}, s{sSC}, -v{vM[0]}') for q in range(sreg(0, 0), sreg(0, 6))]
        if i + D < len(seq): mem[len(ms) - 1] = [rdS(i + D)]
    bgS = [f'v_mov_b32 v{PP+q}, 0' for q in (16, 17)] + [f'v_mov_b32 v{ONES+q}, 0x3f803f80' for q in range(4)]
    rest = stream(ms, mem, side, bg=bgS)
    assert not bgS
    stamp()
    prio(1, 0)
    for t in rest: A(t)
    def preg(G, tl): return PP + 16*G + 2*(tl + G)
    seqP = [(sig, u, h) for sig in range(6) for u in range(5) for h in range(2)]
    def rdP(i):
        sig, u, h = seqP[i]
        ct = 2*sig + h
        buf = RING + 4*(i % 8)
        return [f'ds_read_b64_tr_b16 v[{buf+2*hh}:{buf+2*hh+1}], v{vAP + (ct % 8)} offset:{(4*u+2*hh)*384 + (256 if ct >= 8 else 0)}' for hh in range(2)]
    DP = int(OPT.get('dp', '6'))
    def b4L(): A.skip('s_barrier')
    B3AT, B4AT = int(OPT.get('b3', '1')), int(OPT.get('b4', '6'))
    if B3AT < 0: cond('M_e2', True, lambda: A.skip('s_barrier'))
    def wreg(i):
        return sreg(i % 2, i // 2) if i != 12 else WF
    for tl in range(7):
        for G in range(2):
            if tl >= NT[G]: continue
            r = sreg(G, tl)
            if G == 1 or OPT.get('ef', '1') != '1':
                for k in range(4): A(f'v_fma_f32 v{r+k}, v{r+k}, s{sSC}, -v{vM[G]}')
            for k in range(4): A(f'v_exp_f32 v{r+k}, v{r+k}')
        for G in range(2):
            if tl >= NT[G]: continue
            r = sreg(G, tl)
            p = preg(G, tl)
            A(f'v_cvt_pk_bf16_f32 v{p}, v{r}, v{r+1}')
            A(f'v_cvt_pk_bf16_f32 v{p+1}, v{r+2}, v{r+3}')
        if tl == B3AT: cond('M_e2', True, lambda: A.skip('s_barrier'))
        if tl >= B3AT:
            for t2 in range(0 if tl == max(B3AT, 0) else tl, tl + 1):
                if t2 % 2 == 0: A(f's_mov_b32 s{sT0}, {2*t2*1024}')
                for G in range(2):
                    r = wreg(2*t2 + G)
                    A(f'buffer_load_dwordx4 v[{r}:{r+3}], v{vWA0}, s[{S_WS}:{S_WS+3}], s{sT0} offen offset:{1024*(2*(t2%2)+G)} sc1')
        if tl == 5:
            for i in range(DP):
                for t in rdP(i): A(t)
        if tl == B4AT: cond('M_l2', False, b4L)
    stamp()
    prio(3, 2)
    padat('P')
    ms, first, side, hk = [], [], [], {}
    def b5L():
        cond('M_l3', False, lambda: A.skip('s_barrier'))
    if int(OPT.get('b5', '1')) < 0: b5L()
    sums = [mf(vINV + 4*G, PP + 16*G + 4*u, ONES, None if u == 0 else vINV + 4*G) for u in range(4) for G in range(2) if u < 3 + G]
    for i, (sig, u, h) in enumerate(seqP):
        a = RING + 4*(i % 8)
        accb = ACC + 16*(sig & 1)
        first.append(len(ms))
        for G in range(2):
            uu = u - G
            if 0 <= uu <= 2 + G:
                d = accb + 8*G + 4*h
                ms.append(mf(d, a, PP + 16*G + 4*uu, None if uu == 0 else d))
        if sums and (i % 10 == 7 or i == 11): ms.append(sums.pop(0))
        if i % 10 == 9:
            e = len(ms) - 1
            side += [(e + 4, t, e + 15) for t in finA(sig, accb)]
            if sig == int(OPT.get('b5', '1')): hk[e] = b5L
            if sig == int(OPT.get('pv', '3')) and OPT.get('pe') == '4': hk[e] = lambda: prio(3, 1)
    assert not sums
    mem = {}
    k = 0
    nrd = 2*(len(seqP) - DP)
    ngap = first[-1] - int(OPT.get('ng', '5'))
    for j in range(DP, len(seqP)):
        for t in rdP(j):
            gp = (k * ngap) // nrd
            if j >= 8: gp = max(gp, first[j - 7] - 1)
            assert gp < first[j] - 3, (j, gp, first[j])
            mem.setdefault(gp, []).append(t); k += 1
    pend = stream(ms, mem, side, hk)
    A('s_waitcnt vmcnt(0)')
    stamp()
    W4 = OPT.get('w4', '1') == '1'
    def wvo(f0, n):
        for i in range(n):
            if i % 4 == 0:
                A.skip(f's_mov_b32 m0, {(f0 - 24 + i)*1024}')
                A.skip(f's_mov_b32 s{sT4}, {(f0 + i)*1024}')
            A.raw(f'  buffer_load_dwordx4 v{vWA0}, s[{S_WS}:{S_WS+3}], s{sT4} offen offset:{1024*(i%4)} sc1 lds')
    A(f's_cmp_lg_u32 s{sW}, 4')
    A('s_cbranch_scc1 M_e3b')
    wvo(24, 15)
    A.label('M_e3b')
    def b4E():
        def body():
            A.skip(f's_cmp_lg_u32 s{sW}, 4')
            A.skip('s_cbranch_scc1 M_e3a')
            A.raw('  s_waitcnt vmcnt(0)')
            A.skip('s_barrier')
            wvo(39, 16)
            A.skip('s_branch M_e3')
            A.label('M_e3a')
            A.skip('s_barrier')
        cond('M_e3', True, body)
    def finE(sig, accb):
        out = []
        for G in range(2):
            for r in range(4):
                for h in range(2):
                    out.append(f'v_mul_f32 v{accb+8*G+4*h+r}, v{accb+8*G+4*h+r}, v{vINV+4*G+r}')
                o = OST + 8*G + 2*r
                out.append(f'v_cvt_pk_bf16_f32 v{o+(sig&1)}, v{accb+8*G+r}, v{accb+8*G+4+r}')
                if sig & 1:
                    out.append(f'buffer_store_dwordx2 v[{o}:{o+1}], v{vOA+4*G+r}, s[{S_OUT}:{S_OUT+3}], 0 offen offset:{128*(sig>>1)}{ONT[sig>>1]}')
        return out
    def locE(f):
        if f < 14: return ('reg', wreg(f))
        if f < 24: return ('lds', vWA1, (f - 14)*1024)
        return ('lds', vWA0, (f-24)*1024)
    def b5E():
        def body():
            A.raw(f'  s_waitcnt vmcnt({len(A.vm)})'); A.skip('s_barrier')
        cond('M_e4', True, body)
        padat('O')
        stamp()
    bgE = [t for q in range(8) for t in (f'v_rcp_f32 v{vINV+q}, v{vINV+q}', '')]
    DE = int(OPT.get('de', '4')); GB4 = int(OPT.get('gb4', '13'))
    assert GB4 < 2*(14 - DE)
    pend = gemm_phase(QP, locE, finE, swap=True, bg=bgE, pace=int(OPT.get('pace', '4')), D=DE,
                      ghooks={GB4: b4E, 2*(39 - DE) - 1: b5E}, side0=[(3, t, 16) for t in pend],
                      xl=SACC if OPT.get('xl', '1') == '1' else None)
    padat('Z')
    for t in pend: A(t)
    if STAMP:
        stamp()
        A('s_waitcnt vmcnt(0)')
        stamp(1)
        write_stamps()
    if 'pad' in OPT:
        A('s_waitcnt vmcnt(0)')
        A.label('PADL')
        A.raw('  s_memrealtime s[98:99]')
        A.raw('  s_waitcnt lgkmcnt(0)')
        A('s_sub_u32 s98, s98, s96')
        A(f's_cmp_lt_u32 s98, {OPT["pad"]}')
        A('s_cbranch_scc1 PADL')
    A('s_endpgm')

    A.label('M_helper'); A.reset()
    nstamp[0] = 2
    A.label('H_join'); A.reset()
    stamp()
    wread()
    A(f's_sub_u32 s{sVT}, s2, {NMP}')
    A('v_mov_b32 v192, 1'); A('v_mov_b32 v193, 0')
    A(f'v_bfe_u32 v180, v{vN}, 1, 1')
    A('v_mul_u32_u24 v180, 12288, v180')
    A(f'v_and_b32 v181, 1, v{vN}')
    A('v_lshl_add_u32 v180, v181, 10, v180')
    A(f'v_lshrrev_b32 v181, 2, v{vN}')
    A('v_lshl_add_u32 v180, v181, 4, v180')
    A(f'v_lshl_add_u32 v180, v{vG}, 8, v180')
    A(f'v_lshlrev_b32 v181, 3, v{vN}')
    A(f'v_lshl_add_u32 v181, v{vG}, 8, v181')
    A(f'v_add_u32 v181, {MB + 12288}, v181')
    VS = 4*ROWB + 1024
    VA, VB, VD = 96, 144, 168
    t0, t1 = VD + 12, VD + 13
    def isv(lbl):
        A(f's_cmp_ge_u32 s{sVT}, 72')
        A(f's_cbranch_scc1 {lbl}')
    decode(); scalar_setup(); scalar_setup2()
    row_addrs(WF, '0')
    row_addrs(vAP, '8')
    def rows(lst):
        for i in lst:
            row_soff(sT1, str(i))
            b = vAP if i & 1 else WF
            for j in range(8):
                a = b + j
                if i & 6:
                    a = 64 + j
                    A(f'v_xor_b32 v{a}, {16*(i & 6)}, v{b+j}')
                A(f's_mov_b32 m0, {i*ROWB + 16*PIECE[j]}')
                A(f'buffer_load_dwordx4 v{a}, s[{S_X}:{S_X+3}], s{sT1} offen{KNT} lds')
            if len(A.vm) >= 54: A('s_waitcnt vmcnt(40)')
    isv('H_v2')
    A(f's_mul_hi_u32 s{sT0}, s{sVT}, 0x15555556')
    A(f's_mul_i32 s{sT1}, s{sT0}, 12')
    A(f's_sub_u32 s{sT1}, s{sVT}, s{sT1}')
    A(f's_lshr_b32 s{sT2}, s{sT1}, 2')
    A(f's_mul_i32 s{sVO}, s{sT2}, 24576')
    A(f's_and_b32 s{sT1}, s{sT1}, 3')
    A(f's_lshl_b32 s{sT1}, s{sT1}, 6')
    A(f's_add_u32 s{sVO}, s{sVO}, s{sT1}')
    A(f's_lshl_b32 s{sT1}, s{sT0}, 11')
    A(f's_add_u32 s{sVO}, s{sVO}, s{sT1}')
    A('s_waitcnt vmcnt(0)')
    for i in range(12):
        A(f'ds_read_b128 v[{VA+4*i}:{VA+4*i+3}], v{MWA+3} offset:{1024*i}')
    A('s_waitcnt lgkmcnt(2)')
    for k in range(6):
        for hh in range(2):
            A(f'ds_read_b64_tr_b16 v[{VB+4*k+2*hh}:{VB+4*k+2*hh+1}], v{t1} offset:{1024*k + 128*hh}')
    A('s_waitcnt lgkmcnt(0)')
    for k in range(6):
        for hp in range(2):
            A(mf(VD + 4*hp, VA + 24*hp + 4*k, VB + 4*k, None if k == 0 else VD + 4*hp))
    for q in range(4):
        A(f'v_cvt_pk_bf16_f32 v{VD+8+q}, v{VD+2*q}, v{VD+2*q+1}')
    A(f'buffer_store_dwordx4 v[{VD+8}:{VD+11}], v{t0}, s[{S_WS}:{S_WS+3}], s{sVO} offen sc1')
    A.label('H_v2'); A.reset()
    A('s_barrier')
    if ER == 0: rows([0, 8])
    poll('H_pollM', 128)
    A(f's_lshr_b32 s{sT0}, s2, 3')
    A(f's_mul_i32 s{sT0}, s{sT0}, 2304')
    A(f's_add_u32 s{sT0}, s{sT0}, {MOFF}')
    for i in range(3):
        A(f'buffer_load_dwordx4 v[{80+4*i}:{83+4*i}], v{vWA0}, s[{S_WS}:{S_WS+3}], s{sT0} offen offset:{1024*i} sc1')
    stamp()
    A('s_barrier')
    stamp()
    mshare(0, M1)
    A(f's_waitcnt vmcnt({M1 - MW})')
    A('s_barrier')
    stamp()
    mshare(M1, 18)
    A('s_waitcnt vmcnt(0)')
    isv('H_v3')
    A('s_mov_b64 exec, 1')
    A.raw(f'  buffer_atomic_add v192, v193, s[{S_DBG}:{S_DBG+3}], 0 offen offset:4 sc1')
    A('s_mov_b64 exec, -1')
    A.label('H_v3')
    if ER: rows([0, 8] + list(range(1, ER)))
    A('s_barrier')
    if OPT.get('hr', '1') == '1': rows([9, 10])
    stamp()
    A('s_barrier')
    rows([11, 12, 13, 14, 15])
    A('s_waitcnt vmcnt(0)')
    stamp()
    A('s_barrier')
    rows([16, 17, 18, 19])
    A('s_waitcnt vmcnt(0)')
    stamp()
    poll('H_pollV', 4, 72)
    A(f's_lshr_b32 s{sT0}, s2, 3')
    A(f's_mul_i32 s{sT0}, s{sT0}, 2304')
    for i in range(3):
        A(f'buffer_load_dwordx4 v[{80+4*i}:{83+4*i}], v{vWA0}, s[{S_WS}:{S_WS+3}], s{sT0} offen offset:{1024*i} sc1')
    stamp()
    A('s_barrier')
    def wfr(src0, n, lds0):
        for i in range(n):
            if i % 4 == 0:
                A(f's_mov_b32 m0, {lds0 + i*1024}')
                A(f's_mov_b32 s{sT4}, {(src0 + i)*1024}')
            A(f'buffer_load_dwordx4 v{vWA0}, s[{S_WS}:{S_WS+3}], s{sT4} offen offset:{1024*(i%4)} sc1 lds')
    wfr(14, 10, SPARE)
    A('s_waitcnt vmcnt(0)')
    stamp()
    A('s_barrier')
    if W4: wfr(55, 17, 31*1024)
    else: wfr(24, 12, 0)
    A('s_waitcnt vmcnt(0)')
    stamp()
    A('s_barrier')
    if STAMP:
        stamp(1)
        write_stamps()
    A.label('M_done')
    A('s_endpgm')
    A.label('CODE_END')

gen_main()
A.raw('.section .rodata,"a"')
A.raw('.p2align 6')
A.raw(f'.amdhsa_kernel {NAME}')
A.raw('  .amdhsa_next_free_vgpr 256')
A.raw('  .amdhsa_next_free_sgpr 102')
A.raw('  .amdhsa_accum_offset 256')
A.raw('  .amdhsa_group_segment_fixed_size 0')
A.raw('  .amdhsa_kernarg_size 48')
A.raw('  .amdhsa_user_sgpr_count 2')
A.raw('  .amdhsa_user_sgpr_kernarg_segment_ptr 1')
A.raw('  .amdhsa_system_sgpr_workgroup_id_x 1')
A.raw('.end_amdhsa_kernel')
open(OUT, 'w').write(A.text())
print('instr', A.n_inst, 'nops', A.nops, 'maxv', A.maxv)
```

```python
import sys, struct
sys.path.insert(0, 'gen')
from asmlib import Asm

OUT = sys.argv[1] if len(sys.argv) > 1 else 'standalone__neighborhood_nat__vision.s'
OPT = dict(a.split('=') if '=' in a else (a, '1') for a in sys.argv[2:])
STAMP = 'stamp' in OPT
XNT = ' nt' if OPT.get('xnt', '0') == '1' else ''
KNT = ' nt' if OPT.get('knt', '0') == '1' else ''
ONT = [{'0': '', '1': ' nt', '2': ' sc1', '3': ' sc0 sc1', '4': ' sc0 sc1 nt'}[c] for c in (OPT.get('ont', '2') * 3)[:3]]
NAME = 'standalone__neighborhood_nat__vision_kernel'

X_BYTES = 19267584
WS_BYTES = 268435456
ROWB = 7680
MB = 90112
SPARE = 153600
MOFF = 0x20000
NMP = 36
GAP = 73728
def f32bits(x): return struct.unpack('<I', struct.pack('<f', x))[0]
SCALE = f32bits(192 ** -0.5 * 1.4426950408889634)
NEGINF = 0xff800000
PIECE = [0, 64, 128, 192, 256, 320, 384, 416]

A = Asm()
hdr = open('standalone__neighborhood_nat__vision.s.ref').read().split('\n')
for ln in hdr:
    if ln.startswith('; @launch'): break
    A.raw(ln)
A.raw('; @launch grid=(256,1,1) block=(512,1,1) lds=163840')
A.raw('.amdgcn_target "amdgcn-amd-amdhsa--gfx950"')
A.raw('.text')

def srd(d, lo, hi, nbytes):
    A(f's_mov_b32 s{d}, s{lo}'); A(f's_and_b32 s{d+1}, s{hi}, 0xffff')
    A(f's_mov_b32 s{d+2}, {nbytes}'); A(f's_mov_b32 s{d+3}, 0x00020000')
def mf(d, a, b, c):
    cs = '0' if c is None else f'v[{c}:{c+3}]'
    return f'v_mfma_f32_16x16x32_bf16 v[{d}:{d+3}], v[{a}:{a+3}], v[{b}:{b+3}], {cs}'

S_X, S_OUT, S_WS, S_W, S_WO, S_DBG = 16, 20, 24, 28, 32, 36
sW, sPR, sPC, sTR, sTC = 40, 41, 42, 43, 44
sKR0, sKC0B = 45, 46
sLOR, sHIR, sSHR, sLOC, sHIC = 47, 48, 49, 50, 51
sBASE, sSTRIP, sNEG = 52, 53, 54
sT0, sT1, sT2, sT3, sT4, sT5 = 55, 56, 57, 58, 59, 60
sALR, sCB, sSC = 61, 62, 63
sCS, sCC, sPS = 50, 91, 3
NT = (6, 7)
sST = 64
sXR, sXL = 100, 101
sOA = 88
sB0, sF = 92, 93
sM1, sM2 = 0, 10
sVT, sVO = 94, 95
vL, vG, vN = 1, 2, 3
vT = 4
vR0, vR3, vCB = 12, 13, 14
XQ = 16
PP = 16
vOA = 4
vINV = 56
SACC = 64
OST = 16
W1 = 64
ONES = 48
QP = 120
ACC = 168
RING = 200
WF = 232
vAS = 240
vAP = 244
vWA0, vWA1, vWAM = 252, 253, 254
vSW, vSR = 255, 199
vWD = RING
MBQ = 64
MACC = 136
MPK = 184
MWA = 192

nstamp = [0]
def stamp(real=None):
    if not STAMP: return
    i = nstamp[0]; nstamp[0] += 1
    assert i < 14
    A.raw(f'  s_mem{"real" if "rt" in OPT else ""}time s[{sST+2*i}:{sST+1+2*i}]')
    if real is not None:
        A.raw(f'  s_memrealtime s[{96+2*real}:{97+2*real}]')
def write_stamps():
    n = nstamp[0]
    A('s_waitcnt lgkmcnt(0)')
    A(f'v_mov_b32 v{RING}, 0')
    if 'dbg' in OPT:
        lbl = f'WS_skip{n}'
        A(f's_cmp_lg_u32 s2, {OPT["dbg"].split(",")[0]}')
        A(f's_cbranch_scc1 {lbl}')
        A(f's_cmp_lg_u32 s{sW}, {OPT["dbg"].split(",")[1]}')
        A(f's_cbranch_scc1 {lbl}')
        for i in range(1, n):
            A(f's_sub_u32 s{sT0}, s{sST+2*i}, s{sST}')
            A(f'v_writelane_b32 v{RING}, s{sT0}, {i}')
        A(f's_sub_u32 s{sT0}, s98, s96')
        A(f'v_writelane_b32 v{RING}, s{sT0}, 15')
        srd(S_DBG, 12, 13, 256)
        A(f'v_lshlrev_b32 v{RING+1}, 2, v{vL}')
        A('s_mov_b64 exec, 0xfffe')
        A(f'buffer_store_dword v{RING}, v{RING+1}, s[{S_DBG}:{S_DBG+3}], 0 offen')
        A.label(lbl)
        return
    for i in range(n):
        A(f'v_writelane_b32 v{RING}, s{sST+2*i}, {i}')
    A(f'v_writelane_b32 v{RING}, s96, 14')
    A(f'v_writelane_b32 v{RING}, s98, 15')
    A(f's_lshl_b32 s{sT0}, s2, 3')
    A(f's_add_u32 s{sT0}, s{sT0}, s{sW}')
    A(f's_lshl_b32 s{sT0}, s{sT0}, 6')
    A(f's_add_u32 s{sT0}, s{sT0}, 0x100000')
    A(f'v_lshlrev_b32 v{RING+1}, 2, v{vL}')
    A('s_mov_b64 exec, 0xffff')
    A(f'buffer_store_dword v{RING}, v{RING+1}, s[{S_WS}:{S_WS+3}], s{sT0} offen')

def row_addrs(b, sF, A=A):
    for j in (0, 1, 2, 7):
        A(f'v_add_u32 v{vT}, {PIECE[j]}, v{vL}')
        A(f'v_xor_b32 v{vT}, {sF}, v{vT}')
        A(f'v_mul_u32_u24 v{vT+1}, 2731, v{vT}')
        A(f'v_lshrrev_b32 v{vT+1}, 16, v{vT+1}')
        A(f'v_mul_i32_i24 v{vT+1}, s{sCC}, v{vT+1}')
        A(f'v_lshl_add_u32 v{vT}, v{vT}, 4, v{vT+1}')
        A(f'v_add_u32 v{b+j}, s{sKC0B}, v{vT}')
        if j < 3:
            A(f'v_add_u32 v{b+j+3}, s{sPS}, v{b+j}')
            if j == 0: A(f'v_add_u32 v{b+6}, s{sPS}, v{b+3}')
    for j in (5, 6, 7):
        A(f'v_max_i32 v{b+j}, 0, v{b+j}')
def row_soff(dst, srow):
    A(f's_add_i32 s{dst}, s{sKR0}, {srow}')
    A(f's_lshl_b32 s{dst}, s{dst}, 1')
    A(f's_add_i32 s{dst}, s{dst}, s{sPR}')
    A(f's_max_i32 s{dst}, s{dst}, 0')
    A(f's_min_i32 s{dst}, s{dst}, 223')
    A(f's_mul_i32 s{dst}, s{dst}, 86016')

def stream(ms, mem, side, hooks=None, cap=2, bg=None, flush=(), paced=None):
    side = [x if len(x) == 3 else (x[0], x[1], 10**9) for x in side]
    bg = bg if bg is not None else []
    paced = list(paced or [])
    nside = len(side)
    def slots(lo, hi):
        return sum(max(0, cap - len(mem.get(k, []))) for k in range(lo, hi + 1))
    for i, m in enumerate(ms):
        assert not (side and side[0][2] < i), ('deadline missed', side[0], i)
        A(m)
        if i + 1 < len(ms) and not (hooks and i in hooks): A.prewait(ms[i+1])
        n = 0
        for t in mem.get(i, []):
            A(t); n += 1
        if paced and not mem.get(i) and paced[0][0] <= i and nside - len(side) >= paced[0][2]:
            assert nside - len(side) <= paced[0][3], ('paced item too late', paced[0])
            A(paced.pop(0)[1]); n += 1
        c = cap
        if side and side[0][2] < len(ms):
            dl = side[0][2]
            if sum(1 for x in side if x[2] == dl) > slots(i, dl): c = cap + 1
        while side and n < c and side[0][0] <= i:
            A(side.pop(0)[1]); n += 1
        while bg and n < cap:
            A(bg.pop(0)); n += 1
        if i in flush:
            while side and side[0][0] <= i + 4: A(side.pop(0)[1])
        if hooks and i in hooks: hooks[i]()
    assert not paced
    return [x[1] for x in side]

def gemm_phase(B, loc, finish, swap=False, hooks=None, D=6, gate=None, bg=None, extra_mem=None, ghooks=None, flush=(), pace=0, side0=(), xl=None):
    def bufof(f): return xl + 4*(f - 60) if xl is not None and f >= 60 else RING + 4*(f % 8)
    def rd(f):
        l = loc(f)
        if l[0] == 'lds':
            buf = bufof(f)
            return [f'ds_read_b128 v[{buf}:{buf+3}], v{l[1]} offset:{l[2]}']
        return []
    ms, mem, side, hk, paced = [], dict(extra_mem or {}), list(side0), dict(ghooks or {}), []
    for f in range(D):
        for t in rd(f): A(t)
    for f in range(72):
        sig, s, h = f // 12, (f % 12) // 2, f % 2
        l = loc(f)
        a = bufof(f) if l[0] == 'lds' else l[1]
        accb = ACC + 16*(sig & 1)
        for G in range(2):
            d = accb + 8*G + 4*h
            b = B + 24*G + 4*s
            ms.append(mf(d, b, a, None if s == 0 else d) if swap else mf(d, a, b, None if s == 0 else d))
        fn = f + D
        if xl is not None and fn >= 60:
            if fn < 72: mem[2*(60 - D) + fn - 60] = rd(fn)
        elif fn < 72 and not (gate is not None and f < gate <= fn):
            mem[2*f] = rd(fn)
        if f == 71 and xl is not None:
            ms[120:] = ms[120::2] + ms[121::2]
            fin = finish(sig, accb)
            side += [(135, t) for t in fin[:len(fin)//2]] + [(999, t) for t in fin[len(fin)//2:]]
            continue
        if f % 12 == 11:
            k = 0
            for t in finish(sig, accb):
                if pace and t.startswith('buffer_store') and sig < 5:
                    paced.append((2*f + 1 + 6 + pace*k, t, len(side), len(side) + 23)); k += 1
                else:
                    side.append((2*f + 1 + 3, t, 2*f + 1 + 24))
            if hooks and sig in hooks:
                def mk(sig=sig, f=f):
                    def h():
                        hooks[sig]()
                        if gate is not None and f + 1 == gate:
                            for k in range(gate, gate + D):
                                for t in rd(k): A(t)
                    return h
                hk[2*f + 1] = mk()
    return stream(ms, mem, side, hk, bg=bg, flush=flush, paced=paced)

def poll(label, off, want=1):
    A(f'v_mov_b32 v{vT+2}, 0')
    A(f's_mov_b32 s{sT4}, 0')
    A('s_mov_b64 exec, 1')
    A.label(label)
    A(f'buffer_load_dword v{vT+3}, v{vT+2}, s[{S_DBG}:{S_DBG+3}], 0 offen offset:{off} sc1')
    A('s_waitcnt vmcnt(0)')
    A(f'v_cmp_gt_u32 vcc, {want}, v{vT+3}')
    A(f's_add_u32 s{sT4}, s{sT4}, 1')
    A(f's_cmp_gt_u32 s{sT4}, 200000')
    A(f's_cbranch_scc1 {label}_x')
    A('s_cmp_lg_u64 vcc, 0')
    A(f's_cbranch_scc0 {label}_x')
    A('s_sleep 2')
    A(f's_branch {label}')
    A.label(label + '_x')
    A('s_mov_b64 exec, -1')

def cond(lbl, isE, body):
    A(f's_cmp_lt_u32 s{sW}, 4' if isE else f's_cmp_ge_u32 s{sW}, 4')
    A(f's_cbranch_scc1 {lbl}')
    body()
    A.label(lbl)

nprio = [0]
def prio(e, l):
    nprio[0] += 1
    A(f's_setprio {l}')
    if e != l: cond(f'M_pr{nprio[0]}', True, lambda: A.skip(f's_setprio {e}'))

npad = [0]
def padat(name):
    if OPT.get('padpos') != name: return
    npad[0] += 1
    A.label(f'PADM{npad[0]}')
    A.raw('  s_memrealtime s[98:99]')
    A.raw('  s_waitcnt lgkmcnt(0)')
    A.raw('  s_sub_u32 s98, s98, s96')
    A.raw(f'  s_cmp_lt_u32 s98, {OPT["padt"]}')
    A.raw(f'  s_cbranch_scc1 PADM{npad[0]}')

def gen_main():
    A.raw(f'.globl {NAME}'); A.raw('.p2align 8'); A.raw(f'.type {NAME},@function')
    A.raw(f'{NAME}:'); A.reset()
    A('s_cmp_ge_u32 s2, 256')
    A('s_cbranch_scc1 M_done')
    stamp(0)
    if 'pad' in OPT or 'padpos' in OPT: A.raw('  s_memrealtime s[96:97]')
    A('s_load_dwordx8 s[4:11], s[0:1], 0')
    A('s_load_dwordx4 s[12:15], s[0:1], 32')
    A(f'v_lshrrev_b32 v{vT}, 6, v0')
    A(f'v_and_b32 v{vL}, 63, v0')
    A(f'v_readfirstlane_b32 s{sW}, v{vT}')
    A(f'v_lshrrev_b32 v{vG}, 4, v{vL}')
    A(f'v_and_b32 v{vN}, 15, v{vL}')
    A(f'v_lshlrev_b32 v{vWA0}, 4, v{vL}')
    def decode():
        A(f's_and_b32 s{sT0}, s2, 7')
        A(f's_lshr_b32 s{sT1}, s2, 3')
        MAP = OPT.get('map', '0')
        if MAP == '0':
            A(f's_lshr_b32 s{sPR}, s{sT0}, 2')
            A(f's_bfe_u32 s{sPC}, s{sT0}, 0x10001')
            A(f's_and_b32 s{sT0}, s{sT0}, 1')
            A(f's_lshl_b32 s{sT0}, s{sT0}, 2')
            A(f's_lshr_b32 s{sTR}, s{sT1}, 3')
            A(f's_add_u32 s{sTR}, s{sTR}, s{sT0}')
            A(f's_and_b32 s{sTC}, s{sT1}, 7')
        elif MAP == '1':
            A(f's_mov_b32 s{sTR}, s{sT0}')
            A(f's_and_b32 s{sPR}, s{sT1}, 1')
            A(f's_bfe_u32 s{sPC}, s{sT1}, 0x10001')
            A(f's_lshr_b32 s{sTC}, s{sT1}, 2')
        elif MAP == '2':
            A(f's_lshr_b32 s{sPR}, s{sT0}, 2')
            A(f's_and_b32 s{sT0}, s{sT0}, 3')
            A(f's_lshl_b32 s{sT0}, s{sT0}, 1')
            A(f's_lshr_b32 s{sTR}, s{sT1}, 4')
            A(f's_add_u32 s{sTR}, s{sTR}, s{sT0}')
            A(f's_and_b32 s{sPC}, s{sT1}, 1')
            A(f's_bfe_u32 s{sTC}, s{sT1}, 0x30001')
        else:
            A(f's_and_b32 s{sPR}, s{sT1}, 1')
            A(f's_bfe_u32 s{sPC}, s{sT1}, 0x10001')
            A(f's_and_b32 s{sTR}, s{sT0}, 6')
            A(f's_lshr_b32 s{sT2}, s{sT1}, 4')
            A(f's_add_u32 s{sTR}, s{sTR}, s{sT2}')
            A(f's_and_b32 s{sT0}, s{sT0}, 1')
            A(f's_lshl_b32 s{sT0}, s{sT0}, 2')
            A(f's_bfe_u32 s{sTC}, s{sT1}, 0x20002')
            A(f's_add_u32 s{sTC}, s{sTC}, s{sT0}')
        A(f's_mul_i32 s{sTR}, s{sTR}, 14')
        A(f's_mul_i32 s{sTC}, s{sTC}, 14')
    def srds():
        srd(S_WS, 14, 15, WS_BYTES)
        srd(S_OUT, 10, 11, X_BYTES)
        srd(S_DBG, 12, 13, 256)
    def scalar_setup():
        A(f's_mul_i32 s{sALR}, s{sPR}, 13')
        A(f's_add_i32 s{sALR}, s{sALR}, -6')
        A(f's_cmp_eq_u32 s{sPC}, 0')
        A(f's_cselect_b32 s{sCB}, {223*384}, 0')
        A(f's_cselect_b32 s{sCS}, -1, 1')
        A(f's_mulk_i32 s{sCS}, 384')
        A(f's_cmp_ge_u32 s{sW}, 4')
        A(f's_cselect_b32 s{sSTRIP}, -4, 3')
        A(f's_add_i32 s{sSTRIP}, s{sSTRIP}, s{sW}')
        A(f's_lshl_b32 s{sSTRIP}, s{sSTRIP}, 1')
        A(f's_add_u32 s{sOA}, s{sTR}, s{sSTRIP}')
        A(f's_mov_b32 s{sOA+1}, 86016')
    def scalar_setup2():
        A(f's_mul_i32 s{sT0}, s{sPR}, 6')
        A(f's_add_i32 s{sKR0}, s{sTR}, s{sT0}')
        A(f's_add_i32 s{sKR0}, s{sKR0}, -6')
        A(f's_cmp_eq_i32 s{sKR0}, -6')
        A(f's_cselect_b32 s{sLOR}, 6, 0')
        A(f's_cmp_eq_i32 s{sKR0}, 98')
        A(f's_cselect_b32 s{sHIR}, 7, 13')
        A(f's_cselect_b32 s{sSHR}, 2, 0')
        A(f's_sub_i32 s{sKR0}, s{sKR0}, s{sSHR}')
        A(f's_cmp_eq_i32 s{sTC}, 98')
        A(f's_cselect_b32 s{sHIC}, 7, 13')
        A(f's_lshl_b32 s{sT1}, s{sTC}, 1')
        A(f's_add_i32 s{sT1}, s{sT1}, 1')
        A(f's_mul_i32 s{sKC0B}, s{sT1}, s{sCS}')
        A(f's_add_i32 s{sKC0B}, s{sKC0B}, s{sCB}')
        A(f's_lshl_b32 s{sCC}, s{sCS}, 1')
        A(f's_lshl_b32 s{sPS}, s{sCC}, 3')
        A(f's_add_i32 s{sCC}, s{sCC}, -384')
        A(f's_max_i32 s{sB0}, s{sSTRIP}, s{sLOR}')
        A(f's_min_i32 s{sB0}, s{sB0}, s{sHIR}')
        A(f's_and_b32 s{sB0}, s{sB0}, -2')
        A(f's_add_u32 s{sBASE}, s{sB0}, s{sSHR}')
        A(f's_mov_b32 s{sNEG}, {NEGINF}')
        A(f's_mov_b32 s{sSC}, {SCALE}')
        A(f's_and_b32 s{sF}, s{sW}, 1')
        A(f's_lshl_b32 s{sF}, s{sF}, 3')
        A(f's_and_b32 s{sT1}, s{sW}, 6')
        A(f's_or_b32 s{sF}, s{sF}, s{sT1}')
        A(f's_add_u32 s{sT1}, s{sW}, 8')
        row_soff(sXR, f's{sT1}')
        A(f's_mul_i32 s{sXL}, s{sT1}, {ROWB}')

    def sreg(G, tl): return SACC + 24*G + 4*tl
    TM = [197, 198, 199, 255, 0]
    def pixaddr(dst, sel, lane):
        t0, t1, t2, t3, t4 = TM
        o = [f'v_lshrrev_b32 v{t0}, 1, v{sel}', f'v_and_b32 v{t3}, 1, v{sel}', f'v_add_u32 v{t0}, s{sOA}, v{t0}',
             f'v_lshl_add_u32 v{t4}, v{t3}, 2, s{sTC}',
             f'v_lshl_add_u32 v{t1}, v{t0}, 1, s{sALR}', f'v_add_u32 v{t2}, 112, v{t0}', f'v_lshlrev_b32 v{t3}, 30, v{t3}',
             f'v_med3_i32 v{t0}, v{t1}, v{t0}, v{t2}', f'v_mul_lo_u32 v{t0}, v{t0}, s{sOA+1}'] + lane(t0)
        o += [f'v_add_u32 v{t0}, s{sCB}, v{t0}']
        for G in range(2):
            for r in range(4):
                d = dst(G, r)
                o += [f'v_lshl_add_u32 v{t1}, v{t4}, 1, {2*(6*G+r) + 7}', f'v_add_u32 v{t2}, {6*G+r+112}, v{t4}',
                      f'v_min_u32 v{d}, v{t1}, v{t2}', f'v_mad_i32_i24 v{d}, v{d}, s{sCS}, v{t0}']
                if G == 0 and r >= 2: o += [f'v_add_u32 v{d}, v{d}, v{t3}']
        return o
    def oaddr(): return pixaddr(lambda G, r: vOA + 4*G + r, vG, lambda t: [f'v_lshl_add_u32 v{t}, v{vN}, 3, v{t}'])
    vXS = ACC
    sXRW, sXB = 84, 86
    def xaddr():
        A(f'v_lshrrev_b32 v{vT}, 3, v{vL}')
        A(f'v_and_b32 v{vT+1}, 7, v{vL}')
        A(f'v_and_b32 v{vT+2}, 6, v{vT}')
        A(f'v_xor_b32 v{vT+1}, v{vT+1}, v{vT+2}')
        A(f'v_lshl_add_u32 v{vT+1}, v{vT+1}, 4, s{sCB}')
        A(f'v_add_u32 v{vT+4}, 2, v{vT}')
        A(f'v_lshrrev_b32 v{vT+4}, 3, v{vT+4}')
        A(f'v_add_u32 v{vT}, s{sTC}, v{vT}')
        for G in range(2):
            A(f'v_lshl_add_u32 v{vT+2}, v{vT}, 1, {12*G + 7}')
            A(f'v_add_u32 v{vT+3}, {6*G + 112}, v{vT}')
            A(f'v_min_u32 v{vT+2}, v{vT+2}, v{vT+3}')
            A(f'v_mad_i32_i24 v{vXS+G}, v{vT+2}, s{sCS}, v{vT+1}')
        A(f'v_lshl_add_u32 v{vXS}, v{vT+4}, 30, v{vXS}')
        for rb in range(2):
            A(f's_add_u32 s{sT0}, s{sOA}, {rb}')
            A(f's_lshl_b32 s{sT1}, s{sT0}, 1')
            A(f's_add_i32 s{sT1}, s{sT1}, s{sALR}')
            A(f's_max_i32 s{sT1}, s{sT1}, s{sT0}')
            A(f's_add_i32 s{sT0}, s{sT0}, 112')
            A(f's_min_i32 s{sT1}, s{sT1}, s{sT0}')
            A(f's_mul_i32 s{sXRW+rb}, s{sT1}, 86016')
        A(f's_lshl_b32 s{sXB}, s{sSTRIP}, 12')
        A(f's_lshl_b32 s{sXB+1}, s{sSTRIP}, 11')
    def xload(i):
        j, G, rb = (i // 4, (i >> 1) & 1, i & 1) if OPT.get('xo', '0') == '0' else (i % 3, i // 6, (i // 3) & 1)
        off = 512 + (j*4 + G*2 + rb)*1024 - 128*j if j < 2 else 61440 + (G*2 + rb)*1024 - 256
        A.skip(f's_add_u32 m0, s{sXB + j//2}, {off}')
        A.skip('s_nop 0')
        A.raw(f'  buffer_load_dwordx4 v{vXS+G}, s[{S_X}:{S_X+3}], s{sXRW+rb} offen offset:{128*j}{XNT} lds')
    def chunk(c):
        for i in range(4*c, 4*c + 4): xload(i)
    def xread_addr():
        A(f'v_and_b32 v{vXS+2}, 6, v{vN}')
        A(f'v_xor_b32 v{vXS+2}, v{vXS+2}, v{vG}')
        A(f'v_lshlrev_b32 v{vXS+6}, 7, v{vN}')
        A(f'v_xor_b32 v{vXS+3}, 4, v{vXS+2}')
        A(f'v_lshl_add_u32 v{vXS+2}, v{vXS+2}, 4, v{vXS+6}')
        A(f'v_lshl_add_u32 v{vXS+3}, v{vXS+3}, 4, v{vXS+6}')
        for q in range(2):
            A(f'v_add_u32 v{vXS+4+q}, s{sXB+1}, v{vXS+2+q}')
            A(f'v_add_u32 v{vXS+2+q}, s{sXB}, v{vXS+2+q}')
    def xread(j):
        for G in range(2):
            for q in range(2):
                r = XQ + 24*G + 4*(2*j + q)
                if j < 2: A(f'ds_read_b128 v[{r}:{r+3}], v{vXS+2+q} offset:{512 + (4*j + 2*G)*1024}')
                else: A(f'ds_read_b128 v[{r}:{r+3}], v{vXS+4+q} offset:{61440 + 2*G*1024}')
    def setup():
        B = Asm()
        def Fv(dst, row):
            B(f'v_and_b32 v{dst}, 1, v{row}')
            B(f'v_lshlrev_b32 v{dst}, 3, v{dst}')
            B(f'v_and_or_b32 v{dst}, v{row}, 6, v{dst}')
        B(f'v_lshrrev_b32 v{vT}, 3, v{vN}')
        B(f'v_add_u32 v{vT}, s{sSTRIP}, v{vT}')
        B(f'v_max_i32 v{vT}, s{sLOR}, v{vT}')
        B(f'v_min_i32 v{vT}, s{sHIR}, v{vT}')
        B(f'v_subrev_u32 v{vT}, s{sB0}, v{vT}')
        B(f'v_and_b32 v{vT+1}, 1, v{vG}')
        B(f'v_sub_u32 v{vT+2}, v{vT+1}, v{vT}')
        B(f'v_ashrrev_i32 v{vR0}, 31, v{vT+2}')
        B(f'v_and_b32 v{vR0}, s{sNEG}, v{vR0}')
        B(f'v_sub_u32 v{vT+2}, v{vT}, v{vT+1}')
        B(f'v_ashrrev_i32 v{vR3}, 31, v{vT+2}')
        B(f'v_and_b32 v{vR3}, s{sNEG}, v{vR3}')
        B(f'v_and_b32 v{vT}, 7, v{vN}')
        B(f'v_lshrrev_b32 v{vT+1}, 1, v{vG}')
        B(f'v_subrev_u32 v{vT+3}, 6, v{vT}')
        B(f'v_ashrrev_i32 v{vT+3}, 31, v{vT+3}')
        B(f'v_and_b32 v{vT+3}, 0x7f, v{vT+3}')
        for G in range(2):
            if G: B(f'v_mov_b32 v{vT+3}, 0x7f')
            B(f'v_add_u32 v{vT+2}, {6*G}, v{vT}')
            B(f'v_min_i32 v{vT+2}, s{sHIC}, v{vT+2}')
            B(f'v_lshlrev_b32 v{vT+2}, v{vT+2}, v{vT+3}')
            B(f'v_lshrrev_b32 v{vT+2}, v{vT+1}, v{vT+2}')
            B(f'v_not_b32 v{vCB+G}, v{vT+2}')
        B(f'v_add_u32 v{vT}, s{sBASE}, v{vT}')
        Fv(vT+1, vT)
        B(f'v_mul_u32_u24 v{vT}, {ROWB}, v{vT}')
        B(f'v_lshrrev_b32 v{vT+2}, 3, v{vN}')
        B(f'v_mul_u32_u24 v{vT+2}, 24, v{vT+2}')
        B(f'v_add_u32 v{vT+2}, v{vT+2}, v{vG}')
        for s in range(4):
            B(f'v_add_u32 v{vT+3}, {4*s}, v{vT+2}')
            B(f'v_xor_b32 v{vT+3}, v{vT+3}, v{vT+1}')
            B(f'v_lshl_add_u32 v{vAS+s}, v{vT+3}, 4, v{vT}')
        B(f'v_and_b32 v{vT}, 1, v{vG}')
        B(f'v_lshlrev_b32 v{vT}, 2, v{vT}')
        B(f'v_lshrrev_b32 v{vT+1}, 2, v{vN}')
        B(f'v_add3_u32 v{vT}, v{vT}, v{vT+1}, s{sBASE}')
        Fv(vT+1, vT)
        B(f'v_mul_u32_u24 v{vT}, {ROWB}, v{vT}')
        B(f'v_and_b32 v{vT+2}, 1, v{vN}')
        B(f'v_lshl_add_u32 v{vT}, v{vT+2}, 3, v{vT}')
        B(f'v_lshrrev_b32 v{vT+2}, 1, v{vG}')
        B(f'v_mul_u32_u24 v{vT+2}, 24, v{vT+2}')
        B(f'v_bfe_u32 v{vT+3}, v{vN}, 1, 1')
        B(f'v_add_u32 v{vT+2}, v{vT+2}, v{vT+3}')
        for ct in range(8):
            B(f'v_add_u32 v{vT+3}, {2*ct}, v{vT+2}')
            B(f'v_xor_b32 v{vT+3}, v{vT+3}, v{vT+1}')
            B(f'v_lshl_add_u32 v{vAP+ct}, v{vT+3}, 4, v{vT}')
        B(f'v_add_u32 v{vWA1}, {SPARE}, v{vWA0}')
        B(f'v_add_u32 v{vWAM}, {MB}, v{vWA0}')
        row_addrs(WF, f's{sF}', B)
        return [l.strip() for l in B.lines]
    def masks():
        out = []
        for G in range(2):
            for tl in range(NT[G]):
                tau = tl + 3*G
                r = sreg(G, tl)
                out += [f'v_bfe_i32 v{r+2}, v{vCB+G}, {2*tau}, 1', f'v_and_b32 v{r+1}, s{sNEG}, v{r+2}',
                        f'v_and_b32 v{r+2}, s{sNEG}, v{r+2}', f'v_or_b32 v{r}, v{r+1}, v{vR0}', f'v_or_b32 v{r+3}, v{r+1}, v{vR3}']
        return out

    M1 = int(OPT.get('m1', '12')); MW = int(OPT.get('mw', '6'))
    def mshare(a, b):
        A(f's_lshl_b32 s{sT0}, s{sW}, 10')
        A(f's_add_u32 s{sT0}, s{sT0}, {MOFF + 4096*a}')
        for i in range(a, b):
            A(f's_sub_u32 m0, s{sT0}, {MOFF - MB}')
            A(f'buffer_load_dwordx4 v{vWA0}, s[{S_WS}:{S_WS+3}], s{sT0} offen sc1 lds')
            if i < b - 1: A(f's_add_u32 s{sT0}, s{sT0}, 4096')
    TA, TB, TD = 64, 112, 160
    DC = OPT.get('dc', '0') == '1'
    def signal(off, last, tag, wait=True):
        A('v_mov_b32 v192, 1'); A('v_mov_b32 v193, 0')
        A('s_mov_b64 exec, 1')
        A('s_waitcnt vmcnt(0)')
        A(f'buffer_atomic_add v192, v193, s[{S_DBG}:{S_DBG+3}], 0 offen offset:{off}' + (' sc1' if DC else ' sc0 sc1'))
        A('s_mov_b64 exec, -1')
    def publish(off, last, tag):
        A(f'v_readfirstlane_b32 s{sT1}, v192')
        A(f's_cmp_lg_u32 s{sT1}, {last}')
        A(f's_cbranch_scc1 {tag}')
        A('s_mov_b64 exec, 1')
        A(f'buffer_store_dword v192, v193, s[{S_DBG}:{S_DBG+3}], 0 offen offset:{128 + off} sc1')
        A('s_mov_b64 exec, -1')
        A.label(tag)
    def swz16():
        A(f'v_bfe_u32 v{vT+1}, v{vL}, 2, 2')
        A(f'v_lshrrev_b32 v{vT+2}, 5, v{vL}')
        A(f'v_lshlrev_b32 v{vT+3}, 1, v{vT+2}')
        A(f'v_and_b32 v{vT+4}, 3, v{vL}')
        A(f'v_xor_b32 v{vT+3}, v{vT+3}, v{vT+4}')
        A(f'v_lshlrev_b32 v{vT+3}, 4, v{vT+3}')
        A(f's_movk_i32 s{sT5}, 1152')
    def wread():
        A(f'v_lshrrev_b32 v{vT}, 3, v{vN}')
        A(f'v_lshlrev_b32 v{vT}, 1, v{vT}')
        A(f'v_xor_b32 v{vT}, v{vT}, v{vG}')
        A(f'v_lshl_add_u32 v{vT}, v{vN}, 2, v{vT}')
        A(f'v_lshlrev_b32 v{MWA+3}, 4, v{vT}')
        A(f'v_add_u32 v{MWA+3}, {MB}, v{MWA+3}')
    def wlanes():
        swz16()
        A(f'v_lshrrev_b32 v{vT}, 2, v{vL}')
        A(f'v_mad_u32_u24 v{vWD+3}, v{vT}, s{sT5}, v{vT+3}')
        wread()
    def hfront():
        A('s_getpc_b64 s[16:17]')
        A.label('H_pcl')
        A('s_and_b32 s16, s16, -256')
        A('s_and_b32 s17, s17, 0xffff')
        A('s_mov_b32 s18, CODE_END-H_pcl')
        A('s_mov_b32 s19, 0x00020000')
        A(f's_lshr_b32 s{sT0}, s2, 3')
        A(f's_lshl_b32 s{sT0}, s{sT0}, 10')
        A(f'buffer_load_dwordx4 v[188:191], v{vWA0}, s[16:19], s{sT0} offen')
        A(f's_cmp_ge_u32 s2, {NMP + 72}')
        A('s_cbranch_scc1 H_nom')
        swz16()
        A(f's_mov_b32 m0, {MB}')
        A(f's_mov_b32 s{S_W+2}, {192*576*2}'); A(f's_mov_b32 s{S_W+3}, 0x00020000')
        A(f's_cmp_ge_u32 s2, {NMP}')
        A('s_cbranch_scc1 H_vf')
        A(f'v_lshl_add_u32 v{vT}, v{vG}, 3, v{vT+1}')
        A(f's_mul_hi_u32 s{sT0}, s2, 0x2aaaaaab')
        A(f's_mul_i32 s{sT1}, s{sT0}, 6')
        A(f's_sub_u32 s{sT1}, s2, s{sT1}')
        A(f's_mul_i32 s{sT1}, s{sT1}, {32*1152}')
        A(f's_mul_i32 s{sT0}, s{sT0}, {32*1152}')
        A(f's_sub_u32 s{sT0}, s{sT0}, s{sT1}')
        A(f's_add_i32 s{sT0}, s{sT0}, {384 - 4608}')
        A(f's_movk_i32 s{sT2}, 4608')
        A(f's_mov_b32 s{sT4}, {MB + 24576}')
        A('s_branch H_tl0')
        A.label('H_vf')
        A(f'v_lshrrev_b32 v{vT}, 2, v{vL}')
        A(f's_sub_u32 s{sVT}, s2, {NMP}')
        A(f's_mul_hi_u32 s{sVO}, s{sVT}, 0x15555556')
        A(f's_mul_i32 s{sT1}, s{sVO}, {32*1152}')
        A(f's_addk_i32 s{sT1}, 768')
        A(f's_movk_i32 s{sT2}, {16*1152}')
        A(f's_mov_b32 s{sT4}, {MB + 12288}')
        A.label('H_tl0')
        A(f'v_mad_u32_u24 v{vWD}, v{vT}, s{sT5}, v{vT+3}')
        A('s_waitcnt lgkmcnt(0)')
        A(f's_mov_b64 s[{S_W}:{S_W+1}], s[6:7]')
        A.label('H_tl')
        for k in range(6):
            A(f'buffer_load_dwordx4 v{vWD}, s[{S_W}:{S_W+3}], s{sT1} offen offset:{64*k} lds')
            A(f's_addk_i32 m0, {960 if k < 5 else 960 + 384}')
        A(f's_add_u32 s{sT1}, s{sT1}, s{sT2}')
        A(f's_mov_b32 s{sT3}, s{sT2}'); A(f's_mov_b32 s{sT2}, s{sT0}'); A(f's_mov_b32 s{sT0}, s{sT3}')
        A(f's_cmp_lt_u32 m0, s{sT4}')
        A('s_cbranch_scc1 H_tl')
        A(f's_cmp_ge_u32 s2, {NMP}')
        A('s_cbranch_scc1 H_vf2')
        A('s_barrier')
        A('s_branch H_task2')
        A.label('H_vf2')
        srd(S_WO, 8, 9, 192*192*2)
        A(f'v_lshrrev_b32 v{vT}, 1, v{vL}')
        A(f'v_mul_u32_u24 v{vT}, 384, v{vT}')
        A(f'v_and_b32 v{vT+1}, 1, v{vL}')
        A(f'v_lshl_add_u32 v{vT}, v{vT+1}, 4, v{vT}')
        A(f's_mul_i32 s{sT1}, s{sVO}, 12')
        A(f's_sub_u32 s{sT1}, s{sVT}, s{sT1}')
        A(f's_lshl_b32 s{sT2}, s{sT1}, 5')
        A.label('H_tl2')
        A(f'buffer_load_dwordx4 v{vT}, s[{S_WO}:{S_WO+3}], s{sT2} offen lds')
        A('s_addk_i32 m0, 1024')
        A(f's_addk_i32 s{sT2}, {32*384}')
        A(f's_cmp_lt_u32 m0, {MB + 18432}')
        A('s_cbranch_scc1 H_tl2')
        A('s_branch H_nom')
    CF = OPT.get('cf', '0') == '1'
    if CF:
        A(f's_cmp_eq_u32 s{sW}, 0')
        A('s_cbranch_scc1 H_front')
    else:
        A(f's_cmp_lg_u32 s{sW}, 0')
        A('s_cbranch_scc1 M_comp')
        hfront()
    A.label('M_comp'); A.reset()
    nstamp[0] = 1
    decode()
    scalar_setup()
    xaddr()
    A('s_waitcnt lgkmcnt(0)')
    srd(S_X, 4, 5, X_BYTES)
    stamp()
    A(f's_cmp_ge_u32 s2, {NMP}')
    A('s_cbranch_scc1 M_x0')
    A.skip('s_barrier')
    A.label('M_x0')
    XK = int(OPT.get('xk', '0'))
    if XK:
        for i in range(XK): xload(i)
    else:
        HK = int(OPT.get('hk', '4')); HN = int(OPT.get('hn', '72'))
        NA, NB = int(OPT.get('na', '4')), int(OPT.get('nb', '4'))
        for i in range(NA): xload(i)
        if NA < 4:
            A(f's_cmp_lt_u32 s2, {NMP}')
            A('s_cbranch_scc1 M_x1')
            for i in range(NA, 4): xload(i)
        if HK:
            A(f's_sub_u32 s{sT0}, s2, {NMP}')
            A(f's_cmp_ge_u32 s{sT0}, {HN}')
        else:
            A(f's_cmp_lt_u32 s2, {NMP}')
        A('s_cbranch_scc1 M_x1')
        chunk(1)
        chunk(2)
    A.label('M_x1')
    A('s_branch M_c2')
    sv = nstamp[0]
    if CF:
        A.label('H_front'); A.reset()
        hfront()
    A.label('H_task2'); A.reset()
    nstamp[0] = 1
    wread()
    srd(S_X, 4, 5, X_BYTES)
    srds()
    A(f's_lshl_b32 s{sT0}, s2, 11')
    A(f's_add_u32 s{sT0}, s{sT0}, {MOFF}')
    A('s_waitcnt vmcnt(0)')
    stamp()
    for k in range(6):
        for q in range(4):
            r = TA + 24*q + 4*k
            A(f'ds_read_b128 v[{r}:{r+3}], v{MWA+3} offset:{(6*q + k)*1024}')
        if k >= 2:
            kk = k - 2
            for h in range(2):
                for hp in range(2):
                    d = TD + 8*h + 4*hp
                    A(mf(d, TA + 24*hp + 4*kk, TB + 24*h + 4*kk, None if kk == 0 else d))
    for kk in (4, 5):
        for h in range(2):
            for hp in range(2):
                d = TD + 8*h + 4*hp
                A(mf(d, TA + 24*hp + 4*kk, TB + 24*h + 4*kk, d))
    for h in range(2):
        for q in range(4):
            A(f'v_cvt_pk_bf16_f32 v{TD+16+4*h+q}, v{TD+8*h+2*q}, v{TD+8*h+2*q+1}')
        A(f'buffer_store_dwordx4 v[{TD+16+4*h}:{TD+19+4*h}], v{vWA0}, s[{S_WS}:{S_WS+3}], s{sT0} offen offset:{1024*h} sc1')
    if 'pst' in OPT:
        A.raw('  s_memtime s[70:71]'); A.raw('  s_waitcnt vmcnt(0)'); A.raw('  s_memtime s[72:73]')
    signal(0, NMP - 1, 'H_p1')
    if not XK: A('s_barrier')
    if not DC:
        A('s_waitcnt vmcnt(0)')
        publish(0, NMP - 1, 'H_p1')
        if not XK: A('s_barrier')
    A('s_branch H_join')
    A.label('H_nom'); A.reset()
    nstamp[0] = 1
    A('s_waitcnt lgkmcnt(0)')
    srd(S_X, 4, 5, X_BYTES)
    srds()
    stamp()
    A('s_branch H_join')
    A.label('M_c2'); A.reset()
    nstamp[0] = sv
    stamp()
    if OPT.get('tlb', '0') == '1':
        A(f's_add_u32 s90, s10, s{sXRW}'); A('s_addc_u32 s91, s11, 0')
        A.raw('  s_load_dword s83, s[90:91], 0')
        A.raw('  s_load_dword s83, s[14:15], 0x38000')
        A(f's_movk_i32 s{sOA+2}, 384')
    srds(); scalar_setup2()
    rest = setup() + oaddr() + masks()
    if XK:
        per = int(OPT.get('xv', '24')); XU = int(OPT.get('xu', '12'))
        for i in range(XK, 12):
            if i <= XU:
                for t in rest[:per]: A(t)
                rest = rest[per:]
                A.raw(f'  s_waitcnt vmcnt({XK - 1})')
            xload(i)
        for t in rest: A(t)
        xread_addr()
    else:
        if HK:
            for i in range(4, 12):
                for t in rest[:26]: A(t)
                rest = rest[26:]
                A(f's_cmp_lt_u32 s2, {NMP + HN}')
                A(f's_cbranch_scc1 M_hk{i}')
                A.raw(f'  s_waitcnt vmcnt({HK - 1})')
                xload(i)
                A.label(f'M_hk{i}')
        for t in rest: A(t)
        xread_addr()
        A(f's_cmp_ge_u32 s2, {NMP}')
        A('s_cbranch_scc1 M_x2')
        A.skip('s_barrier')
        for i in range(NA, NA + NB): xload(i)
        if not DC: A.skip('s_barrier')
        for i in range(NA + NB, 12): xload(i)
    A.label('M_x2')
    stamp()
    for j in range(3):
        A(f's_waitcnt vmcnt({8 - 4*j if OPT.get("xo", "0") == "0" else 0})')
        xread(j)
    row_soff(sT2, f's{sW}')
    A('s_waitcnt lgkmcnt(0)')
    stamp()
    A('s_barrier')
    ER = 1
    LR = int(OPT.get('lr', '4'))
    def ownrow():
        for j in range(8):
            A(f's_add_u32 m0, s{sXL}, {16*PIECE[j] - 8*ROWB}')
            A(f'buffer_load_dwordx4 v{WF+j}, s[{S_X}:{S_X+3}], s{sT2} offen{KNT} lds')
    A(f's_cmp_lt_u32 s{sW}, {LR}')
    A('s_cbranch_scc1 M_er')
    ownrow()
    A.label('M_er')
    A('s_barrier')
    stamp()
    A(f's_cmp_lt_u32 s{sW}, 4')
    A('s_cbranch_scc1 M_xl')
    A('s_setprio 1')
    A('s_barrier')
    A('s_branch M_pa')
    A.label('M_xl'); A.reset()
    mshare(0, M1)
    A(f's_waitcnt vmcnt({M1 - MW})')
    A('s_barrier')
    mshare(M1, 18)
    if LR > 1:
        A(f's_cmp_ge_u32 s{sW}, {LR}')
        A('s_cbranch_scc1 M_pa')
        ownrow()
    A.label('M_pa'); A.reset()
    padat('A')
    stamp()
    bgA = []
    xrow = []
    for j in range(8):
        xrow.append(f's_add_u32 m0, s{sXL}, {16*PIECE[j]}\n s_nop 0\n buffer_load_dwordx4 v{WF+j}, s[{S_X}:{S_X+3}], s{sXR} offen{KNT} lds')
    def finA(sig, accb):
        out = []
        for G in range(2):
            for q in range(4):
                out.append(f'v_cvt_pk_bf16_f32 v{QP+24*G+4*sig+q}, v{accb+8*G+2*q}, v{accb+8*G+2*q+1}')
        return out
    def locA(f):
        if f < 60: return ('lds', vWAM, f*1024)
        if f < 62: return ('reg', WF + 4*(f-60))
        return ('lds', vWA1, (f-62)*1024)
    def bar():
        A('s_barrier')
        if OPT.get('hr', '1') == '0': bgA[0:0] = xrow
    def bar4():
        A('s_waitcnt vmcnt(0)'); A('s_barrier')
        prio(3, 2)
    def b0b():
        A(f's_waitcnt vmcnt({8 if LR == 4 else 0})'); A('s_barrier')
    hA = {2: bar, 4: bar4}
    seq = []
    for (a1, a2) in ((0, 3), (1, 4), (2, 5), (6, 7), (8, 9)):
        for s in range(6):
            seq.append((a1, s)); seq.append((a2, s))
    def users(tau):
        u = []
        if tau <= 5: u.append((0, tau))
        if tau >= 3: u.append((1, tau - 3))
        return u
    def rdS(i):
        tau, s = seq[i]
        buf = RING + 4*(i % 8)
        return f'ds_read_b128 v[{buf}:{buf+3}], v{vAS + (s % 4)} offset:{tau*768 + (256 if s >= 4 else 0)}'
    SP = OPT.get('sp', '1') == '1'
    xm = {2*48+1: [f'ds_read_b128 v[{WF}:{WF+3}], v{vWAM} offset:{60*1024}'],
          2*49+1: [f'ds_read_b128 v[{WF+4}:{WF+7}], v{vWAM} offset:{61*1024}']}
    gh = {2*(4*MW - 6) - 1: b0b}
    if SP:
        for i in range(6): xm[2*(66 + i)] = [rdS(i)]
        xm[143] = [rdS(6)]
        gh[131] = lambda: cond('M_l1', False, lambda: (A.raw('  s_waitcnt lgkmcnt(0)'), A.skip('s_barrier')))
    pend = gemm_phase(XQ, locA, finA, hooks=hA, bg=bgA, extra_mem=xm, ghooks=gh)
    assert not bgA
    stamp()
    padat('S')
    if not SP: cond('M_l1', False, lambda: A.skip('s_barrier'))
    D = 7
    if not SP:
        for i in range(D): A(rdS(i))
        for t in pend: A(t)
        pend = []
    vM = [12, 13]; vX = [14, 15]
    A(f's_mov_b32 s{sT1}, 0xff7fffff')
    ms, mem, side = [], {}, [(3, t, 12) for t in pend]
    started = [False, False]; ndone = [0, 0]
    def xl(G):
        o = []
        for sw in ('v_permlane32_swap_b32', 'v_permlane16_swap_b32'):
            o += [f'v_mov_b32 v{vX[G]}, v{vM[G]}', f'{sw} v{vM[G]}, v{vX[G]}', f'v_max_f32 v{vM[G]}, v{vM[G]}, v{vX[G]}']
        return o + [f'v_mul_f32 v{vM[G]}, s{sSC}, v{vM[G]}']
    for i, (tau, s) in enumerate(seq):
        a = RING + 4*(i % 8)
        for (G, tl) in users(tau):
            r = sreg(G, tl)
            ms.append(mf(r, a, QP + 24*G + 4*s, r))
            if s == 5:
                e = len(ms) + 3
                side.append((e, f'v_max3_f32 v{vM[G]}, v{r}, v{r+1}, ' + (f'v{vM[G]}' if started[G] else f's{sT1}')))
                side.append((e, f'v_max3_f32 v{vM[G]}, v{r+2}, v{r+3}, v{vM[G]}'))
                started[G] = True; ndone[G] += 1
        if i % 12 == 11:
            for G in range(2):
                if ndone[G] == NT[G]:
                    side += [(len(ms) + 3, t) for t in xl(G)]; ndone[G] = 8
                    if G == 0 and OPT.get('ef', '1') == '1':
                        side += [(0, f'v_fma_f32 v{q}, v{q}, s{sSC}, -v{vM[0]}') for q in range(sreg(0, 0), sreg(0, 6))]
        if i + D < len(seq): mem[len(ms) - 1] = [rdS(i + D)]
    bgS = [f'v_mov_b32 v{PP+q}, 0' for q in (16, 17)] + [f'v_mov_b32 v{ONES+q}, 0x3f803f80' for q in range(4)]
    rest = stream(ms, mem, side, bg=bgS)
    assert not bgS
    stamp()
    prio(1, 0)
    for t in rest: A(t)
    def preg(G, tl): return PP + 16*G + 2*(tl + G)
    seqP = [(sig, u, h) for sig in range(6) for u in range(5) for h in range(2)]
    def rdP(i):
        sig, u, h = seqP[i]
        ct = 2*sig + h
        buf = RING + 4*(i % 8)
        return [f'ds_read_b64_tr_b16 v[{buf+2*hh}:{buf+2*hh+1}], v{vAP + (ct % 8)} offset:{(4*u+2*hh)*384 + (256 if ct >= 8 else 0)}' for hh in range(2)]
    DP = int(OPT.get('dp', '6'))
    def b4L(): A.skip('s_barrier')
    B3AT, B4AT = int(OPT.get('b3', '1')), int(OPT.get('b4', '6'))
    if B3AT < 0: cond('M_e2', True, lambda: A.skip('s_barrier'))
    def wreg(i):
        return sreg(i % 2, i // 2) if i != 12 else WF
    for tl in range(7):
        for G in range(2):
            if tl >= NT[G]: continue
            r = sreg(G, tl)
            if G == 1 or OPT.get('ef', '1') != '1':
                for k in range(4): A(f'v_fma_f32 v{r+k}, v{r+k}, s{sSC}, -v{vM[G]}')
            for k in range(4): A(f'v_exp_f32 v{r+k}, v{r+k}')
        for G in range(2):
            if tl >= NT[G]: continue
            r = sreg(G, tl)
            p = preg(G, tl)
            A(f'v_cvt_pk_bf16_f32 v{p}, v{r}, v{r+1}')
            A(f'v_cvt_pk_bf16_f32 v{p+1}, v{r+2}, v{r+3}')
        if tl == B3AT: cond('M_e2', True, lambda: A.skip('s_barrier'))
        if tl >= B3AT:
            for t2 in range(0 if tl == max(B3AT, 0) else tl, tl + 1):
                if t2 % 2 == 0: A(f's_mov_b32 s{sT0}, {2*t2*1024}')
                for G in range(2):
                    r = wreg(2*t2 + G)
                    A(f'buffer_load_dwordx4 v[{r}:{r+3}], v{vWA0}, s[{S_WS}:{S_WS+3}], s{sT0} offen offset:{1024*(2*(t2%2)+G)} sc1')
        if tl == 5:
            for i in range(DP):
                for t in rdP(i): A(t)
        if tl == B4AT: cond('M_l2', False, b4L)
    stamp()
    prio(3, 2)
    padat('P')
    ms, first, side, hk = [], [], [], {}
    def b5L():
        cond('M_l3', False, lambda: A.skip('s_barrier'))
    if int(OPT.get('b5', '1')) < 0: b5L()
    sums = [mf(vINV + 4*G, PP + 16*G + 4*u, ONES, None if u == 0 else vINV + 4*G) for u in range(4) for G in range(2) if u < 3 + G]
    for i, (sig, u, h) in enumerate(seqP):
        a = RING + 4*(i % 8)
        accb = ACC + 16*(sig & 1)
        first.append(len(ms))
        for G in range(2):
            uu = u - G
            if 0 <= uu <= 2 + G:
                d = accb + 8*G + 4*h
                ms.append(mf(d, a, PP + 16*G + 4*uu, None if uu == 0 else d))
        if sums and (i % 10 == 7 or i == 11): ms.append(sums.pop(0))
        if i % 10 == 9:
            e = len(ms) - 1
            side += [(e + 4, t, e + 15) for t in finA(sig, accb)]
            if sig == int(OPT.get('b5', '1')): hk[e] = b5L
            if sig == int(OPT.get('pv', '3')) and OPT.get('pe') == '4': hk[e] = lambda: prio(3, 1)
    assert not sums
    mem = {}
    k = 0
    nrd = 2*(len(seqP) - DP)
    ngap = first[-1] - int(OPT.get('ng', '5'))
    for j in range(DP, len(seqP)):
        for t in rdP(j):
            gp = (k * ngap) // nrd
            if j >= 8: gp = max(gp, first[j - 7] - 1)
            assert gp < first[j] - 3, (j, gp, first[j])
            mem.setdefault(gp, []).append(t); k += 1
    pend = stream(ms, mem, side, hk)
    A('s_waitcnt vmcnt(0)')
    stamp()
    W4 = OPT.get('w4', '1') == '1'
    def wvo(f0, n):
        for i in range(n):
            if i % 4 == 0:
                A.skip(f's_mov_b32 m0, {(f0 - 24 + i)*1024}')
                A.skip(f's_mov_b32 s{sT4}, {(f0 + i)*1024}')
            A.raw(f'  buffer_load_dwordx4 v{vWA0}, s[{S_WS}:{S_WS+3}], s{sT4} offen offset:{1024*(i%4)} sc1 lds')
    A(f's_cmp_lg_u32 s{sW}, 4')
    A('s_cbranch_scc1 M_e3b')
    wvo(24, 15)
    A.label('M_e3b')
    def b4E():
        def body():
            A.skip(f's_cmp_lg_u32 s{sW}, 4')
            A.skip('s_cbranch_scc1 M_e3a')
            A.raw('  s_waitcnt vmcnt(0)')
            A.skip('s_barrier')
            wvo(39, 16)
            A.skip('s_branch M_e3')
            A.label('M_e3a')
            A.skip('s_barrier')
        cond('M_e3', True, body)
    def finE(sig, accb):
        out = []
        for G in range(2):
            for r in range(4):
                for h in range(2):
                    out.append(f'v_mul_f32 v{accb+8*G+4*h+r}, v{accb+8*G+4*h+r}, v{vINV+4*G+r}')
                o = OST + 8*G + 2*r
                out.append(f'v_cvt_pk_bf16_f32 v{o+(sig&1)}, v{accb+8*G+r}, v{accb+8*G+4+r}')
                if sig & 1:
                    out.append(f'buffer_store_dwordx2 v[{o}:{o+1}], v{vOA+4*G+r}, s[{S_OUT}:{S_OUT+3}], 0 offen offset:{128*(sig>>1)}{ONT[sig>>1]}')
        return out
    def locE(f):
        if f < 14: return ('reg', wreg(f))
        if f < 24: return ('lds', vWA1, (f - 14)*1024)
        return ('lds', vWA0, (f-24)*1024)
    def b5E():
        def body():
            A.raw(f'  s_waitcnt vmcnt({len(A.vm)})'); A.skip('s_barrier')
        cond('M_e4', True, body)
        padat('O')
        stamp()
    bgE = [t for q in range(8) for t in (f'v_rcp_f32 v{vINV+q}, v{vINV+q}', '')]
    DE = int(OPT.get('de', '4')); GB4 = int(OPT.get('gb4', '13'))
    assert GB4 < 2*(14 - DE)
    pend = gemm_phase(QP, locE, finE, swap=True, bg=bgE, pace=int(OPT.get('pace', '4')), D=DE,
                      ghooks={GB4: b4E, 2*(39 - DE) - 1: b5E}, side0=[(3, t, 16) for t in pend],
                      xl=SACC if OPT.get('xl', '1') == '1' else None)
    padat('Z')
    for t in pend: A(t)
    if STAMP:
        stamp()
        A('s_waitcnt vmcnt(0)')
        stamp(1)
        write_stamps()
    if 'pad' in OPT:
        A('s_waitcnt vmcnt(0)')
        A.label('PADL')
        A.raw('  s_memrealtime s[98:99]')
        A.raw('  s_waitcnt lgkmcnt(0)')
        A('s_sub_u32 s98, s98, s96')
        A(f's_cmp_lt_u32 s98, {OPT["pad"]}')
        A('s_cbranch_scc1 PADL')
    A('s_endpgm')

    A.label('M_helper'); A.reset()
    nstamp[0] = 2
    A.label('H_join'); A.reset()
    stamp()
    wread()
    A(f's_sub_u32 s{sVT}, s2, {NMP}')
    A('v_mov_b32 v192, 1'); A('v_mov_b32 v193, 0')
    A(f'v_bfe_u32 v180, v{vN}, 1, 1')
    A('v_mul_u32_u24 v180, 12288, v180')
    A(f'v_and_b32 v181, 1, v{vN}')
    A('v_lshl_add_u32 v180, v181, 10, v180')
    A(f'v_lshrrev_b32 v181, 2, v{vN}')
    A('v_lshl_add_u32 v180, v181, 4, v180')
    A(f'v_lshl_add_u32 v180, v{vG}, 8, v180')
    A(f'v_lshlrev_b32 v181, 3, v{vN}')
    A(f'v_lshl_add_u32 v181, v{vG}, 8, v181')
    A(f'v_add_u32 v181, {MB + 12288}, v181')
    VS = 4*ROWB + 1024
    VA, VB, VD = 96, 144, 168
    t0, t1 = VD + 12, VD + 13
    def isv(lbl):
        A(f's_cmp_ge_u32 s{sVT}, 72')
        A(f's_cbranch_scc1 {lbl}')
    decode(); scalar_setup(); scalar_setup2()
    row_addrs(WF, '0')
    row_addrs(vAP, '8')
    def rows(lst):
        for i in lst:
            row_soff(sT1, str(i))
            b = vAP if i & 1 else WF
            for j in range(8):
                a = b + j
                if i & 6:
                    a = 64 + j
                    A(f'v_xor_b32 v{a}, {16*(i & 6)}, v{b+j}')
                A(f's_mov_b32 m0, {i*ROWB + 16*PIECE[j]}')
                A(f'buffer_load_dwordx4 v{a}, s[{S_X}:{S_X+3}], s{sT1} offen{KNT} lds')
            if len(A.vm) >= 54: A('s_waitcnt vmcnt(40)')
    isv('H_v2')
    A(f's_mul_hi_u32 s{sT0}, s{sVT}, 0x15555556')
    A(f's_mul_i32 s{sT1}, s{sT0}, 12')
    A(f's_sub_u32 s{sT1}, s{sVT}, s{sT1}')
    A(f's_lshr_b32 s{sT2}, s{sT1}, 2')
    A(f's_mul_i32 s{sVO}, s{sT2}, 24576')
    A(f's_and_b32 s{sT1}, s{sT1}, 3')
    A(f's_lshl_b32 s{sT1}, s{sT1}, 6')
    A(f's_add_u32 s{sVO}, s{sVO}, s{sT1}')
    A(f's_lshl_b32 s{sT1}, s{sT0}, 11')
    A(f's_add_u32 s{sVO}, s{sVO}, s{sT1}')
    A('s_waitcnt vmcnt(0)')
    for i in range(12):
        A(f'ds_read_b128 v[{VA+4*i}:{VA+4*i+3}], v{MWA+3} offset:{1024*i}')
    A('s_waitcnt lgkmcnt(2)')
    for k in range(6):
        for hh in range(2):
            A(f'ds_read_b64_tr_b16 v[{VB+4*k+2*hh}:{VB+4*k+2*hh+1}], v{t1} offset:{1024*k + 128*hh}')
    A('s_waitcnt lgkmcnt(0)')
    for k in range(6):
        for hp in range(2):
            A(mf(VD + 4*hp, VA + 24*hp + 4*k, VB + 4*k, None if k == 0 else VD + 4*hp))
    for q in range(4):
        A(f'v_cvt_pk_bf16_f32 v{VD+8+q}, v{VD+2*q}, v{VD+2*q+1}')
    A(f'buffer_store_dwordx4 v[{VD+8}:{VD+11}], v{t0}, s[{S_WS}:{S_WS+3}], s{sVO} offen sc1')
    A.label('H_v2'); A.reset()
    A('s_barrier')
    if ER == 0: rows([0, 8])
    poll('H_pollM', *((0, NMP) if DC else (128, 1)))
    A(f's_lshr_b32 s{sT0}, s2, 3')
    A(f's_mul_i32 s{sT0}, s{sT0}, 2304')
    A(f's_add_u32 s{sT0}, s{sT0}, {MOFF}')
    for i in range(3):
        A(f'buffer_load_dwordx4 v[{80+4*i}:{83+4*i}], v{vWA0}, s[{S_WS}:{S_WS+3}], s{sT0} offen offset:{1024*i} sc1')
    if 'pst' in OPT: nstamp[0] += 1
    else: stamp()
    A('s_barrier')
    if 'pst' in OPT: nstamp[0] += 1
    else: stamp()
    mshare(0, M1)
    A(f's_waitcnt vmcnt({M1 - MW})')
    A('s_barrier')
    stamp()
    mshare(M1, 18)
    A('s_waitcnt vmcnt(0)')
    isv('H_v3')
    A('s_mov_b64 exec, 1')
    A.raw(f'  buffer_atomic_add v192, v193, s[{S_DBG}:{S_DBG+3}], 0 offen offset:{128 if DC else 4} sc1')
    A('s_mov_b64 exec, -1')
    A.label('H_v3')
    if ER: rows([0, 8] + list(range(1, ER)))
    A('s_barrier')
    if OPT.get('hr', '1') == '1': rows([9, 10])
    stamp()
    A('s_barrier')
    rows([11, 12, 13, 14, 15])
    A('s_waitcnt vmcnt(0)')
    stamp()
    A('s_barrier')
    rows([16, 17, 18, 19])
    A('s_waitcnt vmcnt(0)')
    stamp()
    poll('H_pollV', 128 if DC else 4, 72)
    A(f's_lshr_b32 s{sT0}, s2, 3')
    A(f's_mul_i32 s{sT0}, s{sT0}, 2304')
    for i in range(3):
        A(f'buffer_load_dwordx4 v[{80+4*i}:{83+4*i}], v{vWA0}, s[{S_WS}:{S_WS+3}], s{sT0} offen offset:{1024*i} sc1')
    stamp()
    A('s_barrier')
    def wfr(src0, n, lds0):
        for i in range(n):
            if i % 4 == 0:
                A(f's_mov_b32 m0, {lds0 + i*1024}')
                A(f's_mov_b32 s{sT4}, {(src0 + i)*1024}')
            A(f'buffer_load_dwordx4 v{vWA0}, s[{S_WS}:{S_WS+3}], s{sT4} offen offset:{1024*(i%4)} sc1 lds')
    wfr(14, 10, SPARE)
    A('s_waitcnt vmcnt(0)')
    stamp()
    A('s_barrier')
    if W4: wfr(55, 17, 31*1024)
    else: wfr(24, 12, 0)
    A('s_waitcnt vmcnt(0)')
    stamp()
    A('s_barrier')
    if STAMP:
        stamp(1)
        write_stamps()
    A.label('M_done')
    A('s_endpgm')
    A.label('CODE_END')

gen_main()
A.raw('.section .rodata,"a"')
A.raw('.p2align 6')
A.raw(f'.amdhsa_kernel {NAME}')
A.raw('  .amdhsa_next_free_vgpr 256')
A.raw('  .amdhsa_next_free_sgpr 102')
A.raw('  .amdhsa_accum_offset 256')
A.raw('  .amdhsa_group_segment_fixed_size 0')
A.raw('  .amdhsa_kernarg_size 48')
A.raw('  .amdhsa_user_sgpr_count 2')
A.raw('  .amdhsa_user_sgpr_kernarg_segment_ptr 1')
A.raw('  .amdhsa_system_sgpr_workgroup_id_x 1')
A.raw('.end_amdhsa_kernel')
open(OUT, 'w').write(A.text())
print('instr', A.n_inst, 'nops', A.nops, 'maxv', A.maxv)
```

```python
import sys, struct
sys.path.insert(0, 'gen')
from asmlib import Asm

OUT = sys.argv[1] if len(sys.argv) > 1 else 'standalone__neighborhood_nat__vision.s'
OPT = dict(a.split('=') if '=' in a else (a, '1') for a in sys.argv[2:])
STAMP = 'stamp' in OPT
XNT = ' nt' if OPT.get('xnt', '0') == '1' else ''
KNT = ' nt' if OPT.get('knt', '0') == '1' else ''
ONT = [{'0': '', '1': ' nt', '2': ' sc1', '3': ' sc0 sc1', '4': ' sc0 sc1 nt'}[c] for c in (OPT.get('ont', '2') * 3)[:3]]
NAME = 'standalone__neighborhood_nat__vision_kernel'

X_BYTES = 19267584
WS_BYTES = 268435456
ROWB = 7680
MB = 90112
SPARE = 153600
MOFF = 0x20000
NMP = 36
GAP = 73728
def f32bits(x): return struct.unpack('<I', struct.pack('<f', x))[0]
SCALE = f32bits(192 ** -0.5 * 1.4426950408889634)
NEGINF = 0xff800000
PIECE = [0, 64, 128, 192, 256, 320, 384, 416]

A = Asm()
hdr = open('standalone__neighborhood_nat__vision.s.ref').read().split('\n')
for ln in hdr:
    if ln.startswith('; @launch'): break
    A.raw(ln)
A.raw('; @launch grid=(256,1,1) block=(512,1,1) lds=163840')
A.raw('.amdgcn_target "amdgcn-amd-amdhsa--gfx950"')
A.raw('.text')

def srd(d, lo, hi, nbytes):
    A(f's_mov_b32 s{d}, s{lo}'); A(f's_and_b32 s{d+1}, s{hi}, 0xffff')
    A(f's_mov_b32 s{d+2}, {nbytes}'); A(f's_mov_b32 s{d+3}, 0x00020000')
def mf(d, a, b, c):
    cs = '0' if c is None else f'v[{c}:{c+3}]'
    return f'v_mfma_f32_16x16x32_bf16 v[{d}:{d+3}], v[{a}:{a+3}], v[{b}:{b+3}], {cs}'

S_X, S_OUT, S_WS, S_W, S_WO, S_DBG = 16, 20, 24, 28, 32, 36
sW, sPR, sPC, sTR, sTC = 40, 41, 42, 43, 44
sKR0, sKC0B = 45, 46
sLOR, sHIR, sSHR, sLOC, sHIC = 47, 48, 49, 50, 51
sBASE, sSTRIP, sNEG = 52, 53, 54
sT0, sT1, sT2, sT3, sT4, sT5 = 55, 56, 57, 58, 59, 60
sALR, sCB, sSC = 61, 62, 63
sCS, sCC, sPS = 50, 91, 3
NT = (6, 7)
sST = 64
sXR, sXL = 100, 101
sOA = 88
sB0, sF = 92, 93
sM1, sM2 = 0, 10
sVT, sVO = 94, 95
vL, vG, vN = 1, 2, 3
vT = 4
vR0, vR3, vCB = 12, 13, 14
XQ = 16
PP = 16
vOA = 4
vINV = 56
SACC = 64
OST = 16
W1 = 64
ONES = 48
QP = 120
ACC = 168
RING = 200
WF = 232
vAS = 240
vAP = 244
vWA0, vWA1, vWAM = 252, 253, 254
vSW, vSR = 255, 199
vWD = RING
MBQ = 64
MACC = 136
MPK = 184
MWA = 192

nstamp = [0]
def stamp(real=None):
    if not STAMP: return
    i = nstamp[0]; nstamp[0] += 1
    assert i < 14
    A.raw(f'  s_mem{"real" if "rt" in OPT else ""}time s[{sST+2*i}:{sST+1+2*i}]')
    if real is not None:
        A.raw(f'  s_memrealtime s[{96+2*real}:{97+2*real}]')
def write_stamps():
    n = nstamp[0]
    A('s_waitcnt lgkmcnt(0)')
    A(f'v_mov_b32 v{RING}, 0')
    if 'dbg' in OPT:
        lbl = f'WS_skip{n}'
        A(f's_cmp_lg_u32 s2, {OPT["dbg"].split(",")[0]}')
        A(f's_cbranch_scc1 {lbl}')
        A(f's_cmp_lg_u32 s{sW}, {OPT["dbg"].split(",")[1]}')
        A(f's_cbranch_scc1 {lbl}')
        for i in range(1, n):
            A(f's_sub_u32 s{sT0}, s{sST+2*i}, s{sST}')
            A(f'v_writelane_b32 v{RING}, s{sT0}, {i}')
        A(f's_sub_u32 s{sT0}, s98, s96')
        A(f'v_writelane_b32 v{RING}, s{sT0}, 15')
        srd(S_DBG, 12, 13, 256)
        A(f'v_lshlrev_b32 v{RING+1}, 2, v{vL}')
        A('s_mov_b64 exec, 0xfffe')
        A(f'buffer_store_dword v{RING}, v{RING+1}, s[{S_DBG}:{S_DBG+3}], 0 offen')
        A.label(lbl)
        return
    for i in range(n):
        A(f'v_writelane_b32 v{RING}, s{sST+2*i}, {i}')
    A(f'v_writelane_b32 v{RING}, s96, 14')
    A(f'v_writelane_b32 v{RING}, s98, 15')
    A(f's_lshl_b32 s{sT0}, s2, 3')
    A(f's_add_u32 s{sT0}, s{sT0}, s{sW}')
    A(f's_lshl_b32 s{sT0}, s{sT0}, 6')
    A(f's_add_u32 s{sT0}, s{sT0}, 0x100000')
    A(f'v_lshlrev_b32 v{RING+1}, 2, v{vL}')
    A('s_mov_b64 exec, 0xffff')
    A(f'buffer_store_dword v{RING}, v{RING+1}, s[{S_WS}:{S_WS+3}], s{sT0} offen')

def row_addrs(b, sF, A=A):
    for j in (0, 1, 2, 7):
        A(f'v_add_u32 v{vT}, {PIECE[j]}, v{vL}')
        A(f'v_xor_b32 v{vT}, {sF}, v{vT}')
        A(f'v_mul_u32_u24 v{vT+1}, 2731, v{vT}')
        A(f'v_lshrrev_b32 v{vT+1}, 16, v{vT+1}')
        A(f'v_mul_i32_i24 v{vT+1}, s{sCC}, v{vT+1}')
        A(f'v_lshl_add_u32 v{vT}, v{vT}, 4, v{vT+1}')
        A(f'v_add_u32 v{b+j}, s{sKC0B}, v{vT}')
        if j < 3:
            A(f'v_add_u32 v{b+j+3}, s{sPS}, v{b+j}')
            if j == 0: A(f'v_add_u32 v{b+6}, s{sPS}, v{b+3}')
    for j in (5, 6, 7):
        A(f'v_max_i32 v{b+j}, 0, v{b+j}')
def row_soff(dst, srow):
    A(f's_add_i32 s{dst}, s{sKR0}, {srow}')
    A(f's_lshl_b32 s{dst}, s{dst}, 1')
    A(f's_add_i32 s{dst}, s{dst}, s{sPR}')
    A(f's_max_i32 s{dst}, s{dst}, 0')
    A(f's_min_i32 s{dst}, s{dst}, 223')
    A(f's_mul_i32 s{dst}, s{dst}, 86016')

def stream(ms, mem, side, hooks=None, cap=2, bg=None, flush=(), paced=None):
    side = [x if len(x) == 3 else (x[0], x[1], 10**9) for x in side]
    bg = bg if bg is not None else []
    paced = list(paced or [])
    nside = len(side)
    def slots(lo, hi):
        return sum(max(0, cap - len(mem.get(k, []))) for k in range(lo, hi + 1))
    for i, m in enumerate(ms):
        assert not (side and side[0][2] < i), ('deadline missed', side[0], i)
        A(m)
        if i + 1 < len(ms) and not (hooks and i in hooks): A.prewait(ms[i+1])
        n = 0
        for t in mem.get(i, []):
            A(t); n += 1
        if paced and not mem.get(i) and paced[0][0] <= i and nside - len(side) >= paced[0][2]:
            assert nside - len(side) <= paced[0][3], ('paced item too late', paced[0])
            A(paced.pop(0)[1]); n += 1
        c = cap
        if side and side[0][2] < len(ms):
            dl = side[0][2]
            if sum(1 for x in side if x[2] == dl) > slots(i, dl): c = cap + 1
        while side and n < c and side[0][0] <= i:
            A(side.pop(0)[1]); n += 1
        while bg and n < cap:
            A(bg.pop(0)); n += 1
        if i in flush:
            while side and side[0][0] <= i + 4: A(side.pop(0)[1])
        if hooks and i in hooks: hooks[i]()
    assert not paced
    return [x[1] for x in side]

def gemm_phase(B, loc, finish, swap=False, hooks=None, D=6, gate=None, bg=None, extra_mem=None, ghooks=None, flush=(), pace=0, side0=(), xl=None):
    def bufof(f): return xl + 4*(f - 60) if xl is not None and f >= 60 else RING + 4*(f % 8)
    def rd(f):
        l = loc(f)
        if l[0] == 'lds':
            buf = bufof(f)
            return [f'ds_read_b128 v[{buf}:{buf+3}], v{l[1]} offset:{l[2]}']
        return []
    ms, mem, side, hk, paced = [], dict(extra_mem or {}), list(side0), dict(ghooks or {}), []
    for f in range(D):
        for t in rd(f): A(t)
    for f in range(72):
        sig, s, h = f // 12, (f % 12) // 2, f % 2
        l = loc(f)
        a = bufof(f) if l[0] == 'lds' else l[1]
        accb = ACC + 16*(sig & 1)
        for G in range(2):
            d = accb + 8*G + 4*h
            b = B + 24*G + 4*s
            ms.append(mf(d, b, a, None if s == 0 else d) if swap else mf(d, a, b, None if s == 0 else d))
        fn = f + D
        if xl is not None and fn >= 60:
            if fn < 72: mem[2*(60 - D) + fn - 60] = rd(fn)
        elif fn < 72 and not (gate is not None and f < gate <= fn):
            mem[2*f] = rd(fn)
        if f == 71 and xl is not None:
            ms[120:] = ms[120::2] + ms[121::2]
            fin = finish(sig, accb)
            side += [(135, t) for t in fin[:len(fin)//2]] + [(999, t) for t in fin[len(fin)//2:]]
            continue
        if f % 12 == 11:
            k = 0
            for t in finish(sig, accb):
                if pace and t.startswith('buffer_store') and sig < 5:
                    paced.append((2*f + 1 + 6 + pace*k, t, len(side), len(side) + 23)); k += 1
                else:
                    side.append((2*f + 1 + 3, t, 2*f + 1 + 24))
            if hooks and sig in hooks:
                def mk(sig=sig, f=f):
                    def h():
                        hooks[sig]()
                        if gate is not None and f + 1 == gate:
                            for k in range(gate, gate + D):
                                for t in rd(k): A(t)
                    return h
                hk[2*f + 1] = mk()
    return stream(ms, mem, side, hk, bg=bg, flush=flush, paced=paced)

def poll(label, off, want=1):
    A(f'v_mov_b32 v{vT+2}, 0')
    A(f's_mov_b32 s{sT4}, 0')
    A('s_mov_b64 exec, 1')
    A.label(label)
    A(f'buffer_load_dword v{vT+3}, v{vT+2}, s[{S_DBG}:{S_DBG+3}], 0 offen offset:{off} sc1')
    A('s_waitcnt vmcnt(0)')
    A(f'v_cmp_gt_u32 vcc, {want}, v{vT+3}')
    A(f's_add_u32 s{sT4}, s{sT4}, 1')
    A(f's_cmp_gt_u32 s{sT4}, 200000')
    A(f's_cbranch_scc1 {label}_x')
    A('s_cmp_lg_u64 vcc, 0')
    A(f's_cbranch_scc0 {label}_x')
    A('s_sleep 2')
    A(f's_branch {label}')
    A.label(label + '_x')
    A('s_mov_b64 exec, -1')

def cond(lbl, isE, body):
    A(f's_cmp_lt_u32 s{sW}, 4' if isE else f's_cmp_ge_u32 s{sW}, 4')
    A(f's_cbranch_scc1 {lbl}')
    body()
    A.label(lbl)

nprio = [0]
def prio(e, l):
    nprio[0] += 1
    A(f's_setprio {l}')
    if e != l: cond(f'M_pr{nprio[0]}', True, lambda: A.skip(f's_setprio {e}'))

npad = [0]
def padat(name):
    if OPT.get('padpos') != name: return
    npad[0] += 1
    A.label(f'PADM{npad[0]}')
    A.raw('  s_memrealtime s[98:99]')
    A.raw('  s_waitcnt lgkmcnt(0)')
    A.raw('  s_sub_u32 s98, s98, s96')
    A.raw(f'  s_cmp_lt_u32 s98, {OPT["padt"]}')
    A.raw(f'  s_cbranch_scc1 PADM{npad[0]}')

def gen_main():
    A.raw(f'.globl {NAME}'); A.raw('.p2align 8'); A.raw(f'.type {NAME},@function')
    A.raw(f'{NAME}:'); A.reset()
    A('s_cmp_ge_u32 s2, 256')
    A('s_cbranch_scc1 M_done')
    stamp(0)
    if 'pad' in OPT or 'padpos' in OPT: A.raw('  s_memrealtime s[96:97]')
    A('s_load_dwordx8 s[4:11], s[0:1], 0')
    A('s_load_dwordx4 s[12:15], s[0:1], 32')
    A(f'v_lshrrev_b32 v{vT}, 6, v0')
    A(f'v_and_b32 v{vL}, 63, v0')
    A(f'v_readfirstlane_b32 s{sW}, v{vT}')
    A(f'v_lshrrev_b32 v{vG}, 4, v{vL}')
    A(f'v_and_b32 v{vN}, 15, v{vL}')
    A(f'v_lshlrev_b32 v{vWA0}, 4, v{vL}')
    def decode():
        A(f's_and_b32 s{sT0}, s2, 7')
        A(f's_lshr_b32 s{sT1}, s2, 3')
        MAP = OPT.get('map', '0')
        if MAP == '0':
            A(f's_lshr_b32 s{sPR}, s{sT0}, 2')
            A(f's_bfe_u32 s{sPC}, s{sT0}, 0x10001')
            A(f's_and_b32 s{sT0}, s{sT0}, 1')
            A(f's_lshl_b32 s{sT0}, s{sT0}, 2')
            A(f's_lshr_b32 s{sTR}, s{sT1}, 3')
            A(f's_add_u32 s{sTR}, s{sTR}, s{sT0}')
            A(f's_and_b32 s{sTC}, s{sT1}, 7')
        elif MAP == '1':
            A(f's_mov_b32 s{sTR}, s{sT0}')
            A(f's_and_b32 s{sPR}, s{sT1}, 1')
            A(f's_bfe_u32 s{sPC}, s{sT1}, 0x10001')
            A(f's_lshr_b32 s{sTC}, s{sT1}, 2')
        elif MAP == '2':
            A(f's_lshr_b32 s{sPR}, s{sT0}, 2')
            A(f's_and_b32 s{sT0}, s{sT0}, 3')
            A(f's_lshl_b32 s{sT0}, s{sT0}, 1')
            A(f's_lshr_b32 s{sTR}, s{sT1}, 4')
            A(f's_add_u32 s{sTR}, s{sTR}, s{sT0}')
            A(f's_and_b32 s{sPC}, s{sT1}, 1')
            A(f's_bfe_u32 s{sTC}, s{sT1}, 0x30001')
        else:
            A(f's_and_b32 s{sPR}, s{sT1}, 1')
            A(f's_bfe_u32 s{sPC}, s{sT1}, 0x10001')
            A(f's_and_b32 s{sTR}, s{sT0}, 6')
            A(f's_lshr_b32 s{sT2}, s{sT1}, 4')
            A(f's_add_u32 s{sTR}, s{sTR}, s{sT2}')
            A(f's_and_b32 s{sT0}, s{sT0}, 1')
            A(f's_lshl_b32 s{sT0}, s{sT0}, 2')
            A(f's_bfe_u32 s{sTC}, s{sT1}, 0x20002')
            A(f's_add_u32 s{sTC}, s{sTC}, s{sT0}')
        A(f's_mul_i32 s{sTR}, s{sTR}, 14')
        A(f's_mul_i32 s{sTC}, s{sTC}, 14')
    def srds():
        srd(S_WS, 14, 15, WS_BYTES)
        srd(S_OUT, 10, 11, X_BYTES)
        srd(S_DBG, 12, 13, 256)
    def scalar_setup():
        A(f's_mul_i32 s{sALR}, s{sPR}, 13')
        A(f's_add_i32 s{sALR}, s{sALR}, -6')
        A(f's_cmp_eq_u32 s{sPC}, 0')
        A(f's_cselect_b32 s{sCB}, {223*384}, 0')
        A(f's_cselect_b32 s{sCS}, -1, 1')
        A(f's_mulk_i32 s{sCS}, 384')
        A(f's_cmp_ge_u32 s{sW}, 4')
        A(f's_cselect_b32 s{sSTRIP}, -4, 3')
        A(f's_add_i32 s{sSTRIP}, s{sSTRIP}, s{sW}')
        A(f's_lshl_b32 s{sSTRIP}, s{sSTRIP}, 1')
        A(f's_add_u32 s{sOA}, s{sTR}, s{sSTRIP}')
        A(f's_mov_b32 s{sOA+1}, 86016')
    def scalar_setup2():
        A(f's_mul_i32 s{sT0}, s{sPR}, 6')
        A(f's_add_i32 s{sKR0}, s{sTR}, s{sT0}')
        A(f's_add_i32 s{sKR0}, s{sKR0}, -6')
        A(f's_cmp_eq_i32 s{sKR0}, -6')
        A(f's_cselect_b32 s{sLOR}, 6, 0')
        A(f's_cmp_eq_i32 s{sKR0}, 98')
        A(f's_cselect_b32 s{sHIR}, 7, 13')
        A(f's_cselect_b32 s{sSHR}, 2, 0')
        A(f's_sub_i32 s{sKR0}, s{sKR0}, s{sSHR}')
        A(f's_cmp_eq_i32 s{sTC}, 98')
        A(f's_cselect_b32 s{sHIC}, 7, 13')
        A(f's_lshl_b32 s{sT1}, s{sTC}, 1')
        A(f's_add_i32 s{sT1}, s{sT1}, 1')
        A(f's_mul_i32 s{sKC0B}, s{sT1}, s{sCS}')
        A(f's_add_i32 s{sKC0B}, s{sKC0B}, s{sCB}')
        A(f's_lshl_b32 s{sCC}, s{sCS}, 1')
        A(f's_lshl_b32 s{sPS}, s{sCC}, 3')
        A(f's_add_i32 s{sCC}, s{sCC}, -384')
        A(f's_max_i32 s{sB0}, s{sSTRIP}, s{sLOR}')
        A(f's_min_i32 s{sB0}, s{sB0}, s{sHIR}')
        A(f's_and_b32 s{sB0}, s{sB0}, -2')
        A(f's_add_u32 s{sBASE}, s{sB0}, s{sSHR}')
        A(f's_mov_b32 s{sNEG}, {NEGINF}')
        A(f's_mov_b32 s{sSC}, {SCALE}')
        A(f's_and_b32 s{sF}, s{sW}, 1')
        A(f's_lshl_b32 s{sF}, s{sF}, 3')
        A(f's_and_b32 s{sT1}, s{sW}, 6')
        A(f's_or_b32 s{sF}, s{sF}, s{sT1}')
        A(f's_add_u32 s{sT1}, s{sW}, 8')
        row_soff(sXR, f's{sT1}')
        A(f's_mul_i32 s{sXL}, s{sT1}, {ROWB}')

    def sreg(G, tl): return SACC + 24*G + 4*tl
    TM = [197, 198, 199, 255, 0]
    def pixaddr(dst, sel, lane):
        t0, t1, t2, t3, t4 = TM
        o = [f'v_lshrrev_b32 v{t0}, 1, v{sel}', f'v_and_b32 v{t3}, 1, v{sel}', f'v_add_u32 v{t0}, s{sOA}, v{t0}',
             f'v_lshl_add_u32 v{t4}, v{t3}, 2, s{sTC}',
             f'v_lshl_add_u32 v{t1}, v{t0}, 1, s{sALR}', f'v_add_u32 v{t2}, 112, v{t0}', f'v_lshlrev_b32 v{t3}, 30, v{t3}',
             f'v_med3_i32 v{t0}, v{t1}, v{t0}, v{t2}', f'v_mul_lo_u32 v{t0}, v{t0}, s{sOA+1}'] + lane(t0)
        o += [f'v_add_u32 v{t0}, s{sCB}, v{t0}']
        for G in range(2):
            for r in range(4):
                d = dst(G, r)
                o += [f'v_lshl_add_u32 v{t1}, v{t4}, 1, {2*(6*G+r) + 7}', f'v_add_u32 v{t2}, {6*G+r+112}, v{t4}',
                      f'v_min_u32 v{d}, v{t1}, v{t2}', f'v_mad_i32_i24 v{d}, v{d}, s{sCS}, v{t0}']
                if G == 0 and r >= 2: o += [f'v_add_u32 v{d}, v{d}, v{t3}']
        return o
    def oaddr(): return pixaddr(lambda G, r: vOA + 4*G + r, vG, lambda t: [f'v_lshl_add_u32 v{t}, v{vN}, 3, v{t}'])
    vXS = ACC
    sXRW, sXB = 84, 86
    def xaddr():
        A(f'v_lshrrev_b32 v{vT}, 3, v{vL}')
        A(f'v_and_b32 v{vT+1}, 7, v{vL}')
        A(f'v_and_b32 v{vT+2}, 6, v{vT}')
        A(f'v_xor_b32 v{vT+1}, v{vT+1}, v{vT+2}')
        A(f'v_lshl_add_u32 v{vT+1}, v{vT+1}, 4, s{sCB}')
        A(f'v_add_u32 v{vT+4}, 2, v{vT}')
        A(f'v_lshrrev_b32 v{vT+4}, 3, v{vT+4}')
        A(f'v_add_u32 v{vT}, s{sTC}, v{vT}')
        for G in range(2):
            A(f'v_lshl_add_u32 v{vT+2}, v{vT}, 1, {12*G + 7}')
            A(f'v_add_u32 v{vT+3}, {6*G + 112}, v{vT}')
            A(f'v_min_u32 v{vT+2}, v{vT+2}, v{vT+3}')
            A(f'v_mad_i32_i24 v{vXS+G}, v{vT+2}, s{sCS}, v{vT+1}')
        A(f'v_lshl_add_u32 v{vXS}, v{vT+4}, 30, v{vXS}')
        for rb in range(2):
            A(f's_add_u32 s{sT0}, s{sOA}, {rb}')
            A(f's_lshl_b32 s{sT1}, s{sT0}, 1')
            A(f's_add_i32 s{sT1}, s{sT1}, s{sALR}')
            A(f's_max_i32 s{sT1}, s{sT1}, s{sT0}')
            A(f's_add_i32 s{sT0}, s{sT0}, 112')
            A(f's_min_i32 s{sT1}, s{sT1}, s{sT0}')
            A(f's_mul_i32 s{sXRW+rb}, s{sT1}, 86016')
        A(f's_lshl_b32 s{sXB}, s{sSTRIP}, 12')
        A(f's_lshl_b32 s{sXB+1}, s{sSTRIP}, 11')
    def xload(i):
        j, G, rb = (i // 4, (i >> 1) & 1, i & 1) if OPT.get('xo', '0') == '0' else (i % 3, i // 6, (i // 3) & 1)
        off = 512 + (j*4 + G*2 + rb)*1024 - 128*j if j < 2 else 61440 + (G*2 + rb)*1024 - 256
        A.skip(f's_add_u32 m0, s{sXB + j//2}, {off}')
        A.skip('s_nop 0')
        A.raw(f'  buffer_load_dwordx4 v{vXS+G}, s[{S_X}:{S_X+3}], s{sXRW+rb} offen offset:{128*j}{XNT} lds')
    def chunk(c):
        for i in range(4*c, 4*c + 4): xload(i)
    def xread_addr():
        A(f'v_and_b32 v{vXS+2}, 6, v{vN}')
        A(f'v_xor_b32 v{vXS+2}, v{vXS+2}, v{vG}')
        A(f'v_lshlrev_b32 v{vXS+6}, 7, v{vN}')
        A(f'v_xor_b32 v{vXS+3}, 4, v{vXS+2}')
        A(f'v_lshl_add_u32 v{vXS+2}, v{vXS+2}, 4, v{vXS+6}')
        A(f'v_lshl_add_u32 v{vXS+3}, v{vXS+3}, 4, v{vXS+6}')
        for q in range(2):
            A(f'v_add_u32 v{vXS+4+q}, s{sXB+1}, v{vXS+2+q}')
            A(f'v_add_u32 v{vXS+2+q}, s{sXB}, v{vXS+2+q}')
    def xread(j):
        for G in range(2):
            for q in range(2):
                r = XQ + 24*G + 4*(2*j + q)
                if j < 2: A(f'ds_read_b128 v[{r}:{r+3}], v{vXS+2+q} offset:{512 + (4*j + 2*G)*1024}')
                else: A(f'ds_read_b128 v[{r}:{r+3}], v{vXS+4+q} offset:{61440 + 2*G*1024}')
    def setup():
        B = Asm()
        def Fv(dst, row):
            B(f'v_and_b32 v{dst}, 1, v{row}')
            B(f'v_lshlrev_b32 v{dst}, 3, v{dst}')
            B(f'v_and_or_b32 v{dst}, v{row}, 6, v{dst}')
        B(f'v_lshrrev_b32 v{vT}, 3, v{vN}')
        B(f'v_add_u32 v{vT}, s{sSTRIP}, v{vT}')
        B(f'v_max_i32 v{vT}, s{sLOR}, v{vT}')
        B(f'v_min_i32 v{vT}, s{sHIR}, v{vT}')
        B(f'v_subrev_u32 v{vT}, s{sB0}, v{vT}')
        B(f'v_and_b32 v{vT+1}, 1, v{vG}')
        B(f'v_sub_u32 v{vT+2}, v{vT+1}, v{vT}')
        B(f'v_ashrrev_i32 v{vR0}, 31, v{vT+2}')
        B(f'v_and_b32 v{vR0}, s{sNEG}, v{vR0}')
        B(f'v_sub_u32 v{vT+2}, v{vT}, v{vT+1}')
        B(f'v_ashrrev_i32 v{vR3}, 31, v{vT+2}')
        B(f'v_and_b32 v{vR3}, s{sNEG}, v{vR3}')
        B(f'v_and_b32 v{vT}, 7, v{vN}')
        B(f'v_lshrrev_b32 v{vT+1}, 1, v{vG}')
        B(f'v_subrev_u32 v{vT+3}, 6, v{vT}')
        B(f'v_ashrrev_i32 v{vT+3}, 31, v{vT+3}')
        B(f'v_and_b32 v{vT+3}, 0x7f, v{vT+3}')
        for G in range(2):
            if G: B(f'v_mov_b32 v{vT+3}, 0x7f')
            B(f'v_add_u32 v{vT+2}, {6*G}, v{vT}')
            B(f'v_min_i32 v{vT+2}, s{sHIC}, v{vT+2}')
            B(f'v_lshlrev_b32 v{vT+2}, v{vT+2}, v{vT+3}')
            B(f'v_lshrrev_b32 v{vT+2}, v{vT+1}, v{vT+2}')
            B(f'v_not_b32 v{vCB+G}, v{vT+2}')
        B(f'v_add_u32 v{vT}, s{sBASE}, v{vT}')
        Fv(vT+1, vT)
        B(f'v_mul_u32_u24 v{vT}, {ROWB}, v{vT}')
        B(f'v_lshrrev_b32 v{vT+2}, 3, v{vN}')
        B(f'v_mul_u32_u24 v{vT+2}, 24, v{vT+2}')
        B(f'v_add_u32 v{vT+2}, v{vT+2}, v{vG}')
        for s in range(4):
            B(f'v_add_u32 v{vT+3}, {4*s}, v{vT+2}')
            B(f'v_xor_b32 v{vT+3}, v{vT+3}, v{vT+1}')
            B(f'v_lshl_add_u32 v{vAS+s}, v{vT+3}, 4, v{vT}')
        B(f'v_and_b32 v{vT}, 1, v{vG}')
        B(f'v_lshlrev_b32 v{vT}, 2, v{vT}')
        B(f'v_lshrrev_b32 v{vT+1}, 2, v{vN}')
        B(f'v_add3_u32 v{vT}, v{vT}, v{vT+1}, s{sBASE}')
        Fv(vT+1, vT)
        B(f'v_mul_u32_u24 v{vT}, {ROWB}, v{vT}')
        B(f'v_and_b32 v{vT+2}, 1, v{vN}')
        B(f'v_lshl_add_u32 v{vT}, v{vT+2}, 3, v{vT}')
        B(f'v_lshrrev_b32 v{vT+2}, 1, v{vG}')
        B(f'v_mul_u32_u24 v{vT+2}, 24, v{vT+2}')
        B(f'v_bfe_u32 v{vT+3}, v{vN}, 1, 1')
        B(f'v_add_u32 v{vT+2}, v{vT+2}, v{vT+3}')
        for ct in range(8):
            B(f'v_add_u32 v{vT+3}, {2*ct}, v{vT+2}')
            B(f'v_xor_b32 v{vT+3}, v{vT+3}, v{vT+1}')
            B(f'v_lshl_add_u32 v{vAP+ct}, v{vT+3}, 4, v{vT}')
        B(f'v_add_u32 v{vWA1}, {SPARE}, v{vWA0}')
        B(f'v_add_u32 v{vWAM}, {MB}, v{vWA0}')
        row_addrs(WF, f's{sF}', B)
        return [l.strip() for l in B.lines]
    def masks():
        out = []
        for G in range(2):
            for tl in range(NT[G]):
                tau = tl + 3*G
                r = sreg(G, tl)
                out += [f'v_bfe_i32 v{r+2}, v{vCB+G}, {2*tau}, 1', f'v_and_b32 v{r+1}, s{sNEG}, v{r+2}',
                        f'v_and_b32 v{r+2}, s{sNEG}, v{r+2}', f'v_or_b32 v{r}, v{r+1}, v{vR0}', f'v_or_b32 v{r+3}, v{r+1}, v{vR3}']
        return out

    M1 = int(OPT.get('m1', '12')); MW = int(OPT.get('mw', '6'))
    def mshare(a, b):
        A(f's_lshl_b32 s{sT0}, s{sW}, 10')
        A(f's_add_u32 s{sT0}, s{sT0}, {MOFF + 4096*a}')
        for i in range(a, b):
            A(f's_sub_u32 m0, s{sT0}, {MOFF - MB}')
            A(f'buffer_load_dwordx4 v{vWA0}, s[{S_WS}:{S_WS+3}], s{sT0} offen sc1 lds')
            if i < b - 1: A(f's_add_u32 s{sT0}, s{sT0}, 4096')
    TA, TB, TD = 64, 112, 160
    DC = OPT.get('dc', '0') == '1'
    def signal(off, last, tag, wait=True):
        A('v_mov_b32 v192, 1'); A('v_mov_b32 v193, 0')
        A('s_mov_b64 exec, 1')
        A('s_waitcnt vmcnt(0)')
        A(f'buffer_atomic_add v192, v193, s[{S_DBG}:{S_DBG+3}], 0 offen offset:{off}' + (' sc1' if DC else ' sc0 sc1'))
        A('s_mov_b64 exec, -1')
    def publish(off, last, tag):
        A(f'v_readfirstlane_b32 s{sT1}, v192')
        A(f's_cmp_lg_u32 s{sT1}, {last}')
        A(f's_cbranch_scc1 {tag}')
        A('s_mov_b64 exec, 1')
        A(f'buffer_store_dword v192, v193, s[{S_DBG}:{S_DBG+3}], 0 offen offset:{128 + off} sc1')
        A('s_mov_b64 exec, -1')
        A.label(tag)
    def swz16():
        A(f'v_bfe_u32 v{vT+1}, v{vL}, 2, 2')
        A(f'v_lshrrev_b32 v{vT+2}, 5, v{vL}')
        A(f'v_lshlrev_b32 v{vT+3}, 1, v{vT+2}')
        A(f'v_and_b32 v{vT+4}, 3, v{vL}')
        A(f'v_xor_b32 v{vT+3}, v{vT+3}, v{vT+4}')
        A(f'v_lshlrev_b32 v{vT+3}, 4, v{vT+3}')
        A(f's_movk_i32 s{sT5}, 1152')
    def wread():
        A(f'v_lshrrev_b32 v{vT}, 3, v{vN}')
        A(f'v_lshlrev_b32 v{vT}, 1, v{vT}')
        A(f'v_xor_b32 v{vT}, v{vT}, v{vG}')
        A(f'v_lshl_add_u32 v{vT}, v{vN}, 2, v{vT}')
        A(f'v_lshlrev_b32 v{MWA+3}, 4, v{vT}')
        A(f'v_add_u32 v{MWA+3}, {MB}, v{MWA+3}')
    def wlanes():
        swz16()
        A(f'v_lshrrev_b32 v{vT}, 2, v{vL}')
        A(f'v_mad_u32_u24 v{vWD+3}, v{vT}, s{sT5}, v{vT+3}')
        wread()
    def hfront():
        A('s_getpc_b64 s[16:17]')
        A.label('H_pcl')
        A('s_and_b32 s16, s16, -256')
        A('s_and_b32 s17, s17, 0xffff')
        A('s_mov_b32 s18, CODE_END-H_pcl')
        A('s_mov_b32 s19, 0x00020000')
        A(f's_lshr_b32 s{sT0}, s2, 3')
        A(f's_lshl_b32 s{sT0}, s{sT0}, 10')
        A(f'buffer_load_dwordx4 v[188:191], v{vWA0}, s[16:19], s{sT0} offen')
        A(f's_cmp_ge_u32 s2, {NMP + 72}')
        A('s_cbranch_scc1 H_nom')
        swz16()
        A(f's_mov_b32 m0, {MB}')
        A(f's_mov_b32 s{S_W+2}, {192*576*2}'); A(f's_mov_b32 s{S_W+3}, 0x00020000')
        A(f's_cmp_ge_u32 s2, {NMP}')
        A('s_cbranch_scc1 H_vf')
        A(f'v_lshl_add_u32 v{vT}, v{vG}, 3, v{vT+1}')
        A(f's_mul_hi_u32 s{sT0}, s2, 0x2aaaaaab')
        A(f's_mul_i32 s{sT1}, s{sT0}, 6')
        A(f's_sub_u32 s{sT1}, s2, s{sT1}')
        A(f's_mul_i32 s{sT1}, s{sT1}, {32*1152}')
        A(f's_mul_i32 s{sT0}, s{sT0}, {32*1152}')
        A(f's_sub_u32 s{sT0}, s{sT0}, s{sT1}')
        A(f's_add_i32 s{sT0}, s{sT0}, {384 - 4608}')
        A(f's_movk_i32 s{sT2}, 4608')
        A(f's_mov_b32 s{sT4}, {MB + 24576}')
        A('s_branch H_tl0')
        A.label('H_vf')
        A(f'v_lshrrev_b32 v{vT}, 2, v{vL}')
        A(f's_sub_u32 s{sVT}, s2, {NMP}')
        A(f's_mul_hi_u32 s{sVO}, s{sVT}, 0x15555556')
        A(f's_mul_i32 s{sT1}, s{sVO}, {32*1152}')
        A(f's_addk_i32 s{sT1}, 768')
        A(f's_movk_i32 s{sT2}, {16*1152}')
        A(f's_mov_b32 s{sT4}, {MB + 12288}')
        A.label('H_tl0')
        A(f'v_mad_u32_u24 v{vWD}, v{vT}, s{sT5}, v{vT+3}')
        A('s_waitcnt lgkmcnt(0)')
        A(f's_mov_b64 s[{S_W}:{S_W+1}], s[6:7]')
        A.label('H_tl')
        for k in range(6):
            A(f'buffer_load_dwordx4 v{vWD}, s[{S_W}:{S_W+3}], s{sT1} offen offset:{64*k} lds')
            A(f's_addk_i32 m0, {960 if k < 5 else 960 + 384}')
        A(f's_add_u32 s{sT1}, s{sT1}, s{sT2}')
        A(f's_mov_b32 s{sT3}, s{sT2}'); A(f's_mov_b32 s{sT2}, s{sT0}'); A(f's_mov_b32 s{sT0}, s{sT3}')
        A(f's_cmp_lt_u32 m0, s{sT4}')
        A('s_cbranch_scc1 H_tl')
        A(f's_cmp_ge_u32 s2, {NMP}')
        A('s_cbranch_scc1 H_vf2')
        A('s_barrier')
        A('s_branch H_task2')
        A.label('H_vf2')
        srd(S_WO, 8, 9, 192*192*2)
        A(f'v_lshrrev_b32 v{vT}, 1, v{vL}')
        A(f'v_mul_u32_u24 v{vT}, 384, v{vT}')
        A(f'v_and_b32 v{vT+1}, 1, v{vL}')
        A(f'v_lshl_add_u32 v{vT}, v{vT+1}, 4, v{vT}')
        A(f's_mul_i32 s{sT1}, s{sVO}, 12')
        A(f's_sub_u32 s{sT1}, s{sVT}, s{sT1}')
        A(f's_lshl_b32 s{sT2}, s{sT1}, 5')
        A.label('H_tl2')
        A(f'buffer_load_dwordx4 v{vT}, s[{S_WO}:{S_WO+3}], s{sT2} offen lds')
        A('s_addk_i32 m0, 1024')
        A(f's_addk_i32 s{sT2}, {32*384}')
        A(f's_cmp_lt_u32 m0, {MB + 18432}')
        A('s_cbranch_scc1 H_tl2')
        A('s_branch H_nom')
    CF = OPT.get('cf', '0') == '1'
    if CF:
        A(f's_cmp_eq_u32 s{sW}, 0')
        A('s_cbranch_scc1 H_front')
    else:
        A(f's_cmp_lg_u32 s{sW}, 0')
        A('s_cbranch_scc1 M_comp')
        hfront()
    A.label('M_comp'); A.reset()
    nstamp[0] = 1
    decode()
    scalar_setup()
    xaddr()
    A('s_waitcnt lgkmcnt(0)')
    srd(S_X, 4, 5, X_BYTES)
    stamp()
    A(f's_cmp_ge_u32 s2, {NMP}')
    A('s_cbranch_scc1 M_x0')
    A.skip('s_barrier')
    A.label('M_x0')
    XK = int(OPT.get('xk', '0'))
    if XK:
        for i in range(XK): xload(i)
    else:
        HK = int(OPT.get('hk', '4')); HN = int(OPT.get('hn', '72'))
        NA, NB = int(OPT.get('na', '4')), int(OPT.get('nb', '4'))
        for i in range(NA): xload(i)
        if NA < 4:
            A(f's_cmp_lt_u32 s2, {NMP}')
            A('s_cbranch_scc1 M_x1')
            for i in range(NA, 4): xload(i)
        if HK:
            A(f's_sub_u32 s{sT0}, s2, {NMP}')
            A(f's_cmp_ge_u32 s{sT0}, {HN}')
        else:
            A(f's_cmp_lt_u32 s2, {NMP}')
        A('s_cbranch_scc1 M_x1')
        chunk(1)
        chunk(2)
    A.label('M_x1')
    A('s_branch M_c2')
    sv = nstamp[0]
    if CF:
        A.label('H_front'); A.reset()
        hfront()
    A.label('H_task2'); A.reset()
    nstamp[0] = 1
    wread()
    srd(S_X, 4, 5, X_BYTES)
    srds()
    A(f's_lshl_b32 s{sT0}, s2, 11')
    A(f's_add_u32 s{sT0}, s{sT0}, {MOFF}')
    A('s_waitcnt vmcnt(0)')
    stamp()
    for k in range(6):
        for q in range(4):
            r = TA + 24*q + 4*k
            A(f'ds_read_b128 v[{r}:{r+3}], v{MWA+3} offset:{(6*q + k)*1024}')
        if k >= 2:
            kk = k - 2
            for h in range(2):
                for hp in range(2):
                    d = TD + 8*h + 4*hp
                    A(mf(d, TA + 24*hp + 4*kk, TB + 24*h + 4*kk, None if kk == 0 else d))
    for kk in (4, 5):
        for h in range(2):
            for hp in range(2):
                d = TD + 8*h + 4*hp
                A(mf(d, TA + 24*hp + 4*kk, TB + 24*h + 4*kk, d))
    for h in range(2):
        for q in range(4):
            A(f'v_cvt_pk_bf16_f32 v{TD+16+4*h+q}, v{TD+8*h+2*q}, v{TD+8*h+2*q+1}')
        A(f'buffer_store_dwordx4 v[{TD+16+4*h}:{TD+19+4*h}], v{vWA0}, s[{S_WS}:{S_WS+3}], s{sT0} offen offset:{1024*h} sc1')
    if 'pst' in OPT:
        A.raw('  s_memtime s[70:71]'); A.raw('  s_waitcnt vmcnt(0)'); A.raw('  s_memtime s[72:73]')
    signal(0, NMP - 1, 'H_p1')
    if not XK: A('s_barrier')
    if not DC:
        A('s_waitcnt vmcnt(0)')
        publish(0, NMP - 1, 'H_p1')
        if not XK: A('s_barrier')
    A('s_branch H_join')
    A.label('H_nom'); A.reset()
    nstamp[0] = 1
    A('s_waitcnt lgkmcnt(0)')
    srd(S_X, 4, 5, X_BYTES)
    srds()
    stamp()
    A('s_branch H_join')
    A.label('M_c2'); A.reset()
    nstamp[0] = sv
    stamp()
    if OPT.get('tlb', '0') == '1':
        A(f's_add_u32 s90, s10, s{sXRW}'); A('s_addc_u32 s91, s11, 0')
        A.raw('  s_load_dword s83, s[90:91], 0')
        A.raw('  s_load_dword s83, s[14:15], 0x38000')
        A(f's_movk_i32 s{sOA+2}, 384')
    srds(); scalar_setup2()
    rest = setup() + oaddr() + masks()
    if XK:
        per = int(OPT.get('xv', '24')); XU = int(OPT.get('xu', '12'))
        for i in range(XK, 12):
            if i <= XU:
                for t in rest[:per]: A(t)
                rest = rest[per:]
                A.raw(f'  s_waitcnt vmcnt({XK - 1})')
            xload(i)
        for t in rest: A(t)
        xread_addr()
    else:
        if HK:
            for i in range(4, 12):
                for t in rest[:26]: A(t)
                rest = rest[26:]
                A(f's_cmp_lt_u32 s2, {NMP + HN}')
                A(f's_cbranch_scc1 M_hk{i}')
                A.raw(f'  s_waitcnt vmcnt({HK - 1})')
                xload(i)
                A.label(f'M_hk{i}')
        for t in rest: A(t)
        xread_addr()
        A(f's_cmp_ge_u32 s2, {NMP}')
        A('s_cbranch_scc1 M_x2')
        A.skip('s_barrier')
        for i in range(NA, NA + NB): xload(i)
        if not DC: A.skip('s_barrier')
        for i in range(NA + NB, 12): xload(i)
    A.label('M_x2')
    stamp()
    for j in range(3):
        A(f's_waitcnt vmcnt({8 - 4*j if OPT.get("xo", "0") == "0" else 0})')
        xread(j)
    row_soff(sT2, f's{sW}')
    A('s_waitcnt lgkmcnt(0)')
    stamp()
    A('s_barrier')
    ER = 1
    LR = int(OPT.get('lr', '4'))
    def ownrow():
        for j in range(8):
            A(f's_add_u32 m0, s{sXL}, {16*PIECE[j] - 8*ROWB}')
            A(f'buffer_load_dwordx4 v{WF+j}, s[{S_X}:{S_X+3}], s{sT2} offen{KNT} lds')
    A(f's_cmp_lt_u32 s{sW}, {LR}')
    A('s_cbranch_scc1 M_er')
    ownrow()
    A.label('M_er')
    A('s_barrier')
    stamp()
    A(f's_cmp_lt_u32 s{sW}, 4')
    A('s_cbranch_scc1 M_xl')
    A('s_setprio 1')
    A('s_barrier')
    A('s_branch M_pa')
    A.label('M_xl'); A.reset()
    mshare(0, M1)
    A(f's_waitcnt vmcnt({M1 - MW})')
    A('s_barrier')
    mshare(M1, 18)
    if LR > 1:
        A(f's_cmp_ge_u32 s{sW}, {LR}')
        A('s_cbranch_scc1 M_pa')
        ownrow()
    A.label('M_pa'); A.reset()
    padat('A')
    if 'al' in OPT:
        A.raw('  .p2align 3');
        if OPT['al'] == '4': A('s_nop 0')
    stamp()
    bgA = []
    xrow = []
    for j in range(8):
        xrow.append(f's_add_u32 m0, s{sXL}, {16*PIECE[j]}\n s_nop 0\n buffer_load_dwordx4 v{WF+j}, s[{S_X}:{S_X+3}], s{sXR} offen{KNT} lds')
    def finA(sig, accb):
        out = []
        for G in range(2):
            for q in range(4):
                out.append(f'v_cvt_pk_bf16_f32 v{QP+24*G+4*sig+q}, v{accb+8*G+2*q}, v{accb+8*G+2*q+1}')
        return out
    def locA(f):
        if f < 60: return ('lds', vWAM, f*1024)
        if f < 62: return ('reg', WF + 4*(f-60))
        return ('lds', vWA1, (f-62)*1024)
    def bar():
        A('s_barrier')
        if OPT.get('hr', '1') == '0': bgA[0:0] = xrow
    def bar4():
        A('s_waitcnt vmcnt(0)'); A('s_barrier')
        prio(3, 2)
    def b0b():
        A(f's_waitcnt vmcnt({8 if LR == 4 else 0})'); A('s_barrier')
    hA = {2: bar, 4: bar4}
    seq = []
    for (a1, a2) in ((0, 3), (1, 4), (2, 5), (6, 7), (8, 9)):
        for s in range(6):
            seq.append((a1, s)); seq.append((a2, s))
    def users(tau):
        u = []
        if tau <= 5: u.append((0, tau))
        if tau >= 3: u.append((1, tau - 3))
        return u
    def rdS(i):
        tau, s = seq[i]
        buf = RING + 4*(i % 8)
        return f'ds_read_b128 v[{buf}:{buf+3}], v{vAS + (s % 4)} offset:{tau*768 + (256 if s >= 4 else 0)}'
    SP = OPT.get('sp', '1') == '1'
    xm = {2*48+1: [f'ds_read_b128 v[{WF}:{WF+3}], v{vWAM} offset:{60*1024}'],
          2*49+1: [f'ds_read_b128 v[{WF+4}:{WF+7}], v{vWAM} offset:{61*1024}']}
    gh = {2*(4*MW - 6) - 1: b0b}
    if SP:
        for i in range(6): xm[2*(66 + i)] = [rdS(i)]
        xm[143] = [rdS(6)]
        gh[131] = lambda: cond('M_l1', False, lambda: (A.raw('  s_waitcnt lgkmcnt(0)'), A.skip('s_barrier')))
    pend = gemm_phase(XQ, locA, finA, hooks=hA, bg=bgA, extra_mem=xm, ghooks=gh)
    assert not bgA
    stamp()
    padat('S')
    if not SP: cond('M_l1', False, lambda: A.skip('s_barrier'))
    D = 7
    if not SP:
        for i in range(D): A(rdS(i))
        for t in pend: A(t)
        pend = []
    vM = [12, 13]; vX = [14, 15]
    A(f's_mov_b32 s{sT1}, 0xff7fffff')
    ms, mem, side = [], {}, [(3, t, 12) for t in pend]
    started = [False, False]; ndone = [0, 0]
    def xl(G):
        o = []
        for sw in ('v_permlane32_swap_b32', 'v_permlane16_swap_b32'):
            o += [f'v_mov_b32 v{vX[G]}, v{vM[G]}', f'{sw} v{vM[G]}, v{vX[G]}', f'v_max_f32 v{vM[G]}, v{vM[G]}, v{vX[G]}']
        return o + [f'v_mul_f32 v{vM[G]}, s{sSC}, v{vM[G]}']
    for i, (tau, s) in enumerate(seq):
        a = RING + 4*(i % 8)
        for (G, tl) in users(tau):
            r = sreg(G, tl)
            ms.append(mf(r, a, QP + 24*G + 4*s, r))
            if s == 5:
                e = len(ms) + 3
                side.append((e, f'v_max3_f32 v{vM[G]}, v{r}, v{r+1}, ' + (f'v{vM[G]}' if started[G] else f's{sT1}')))
                side.append((e, f'v_max3_f32 v{vM[G]}, v{r+2}, v{r+3}, v{vM[G]}'))
                started[G] = True; ndone[G] += 1
        if i % 12 == 11:
            for G in range(2):
                if ndone[G] == NT[G]:
                    side += [(len(ms) + 3, t) for t in xl(G)]; ndone[G] = 8
                    if G == 0 and OPT.get('ef', '1') == '1':
                        side += [(0, f'v_fma_f32 v{q}, v{q}, s{sSC}, -v{vM[0]}') for q in range(sreg(0, 0), sreg(0, 6))]
        if i + D < len(seq): mem[len(ms) - 1] = [rdS(i + D)]
    bgS = [f'v_mov_b32 v{PP+q}, 0' for q in (16, 17)] + [f'v_mov_b32 v{ONES+q}, 0x3f803f80' for q in range(4)]
    if OPT.get('ds', '0') == '1':
        import copy
        A(f's_cmp_lt_u32 s{sW}, 4')
        A('s_cbranch_scc1 M_sl')
        save = (copy.deepcopy(A.lgkm), copy.deepcopy(A.vm), list(A.hist))
        rest = stream(ms, mem, side, bg=list(bgS))
        stamp()
        A('s_setprio 1')
        for t in rest: A(t)
        A('s_branch M_sj')
        A.label('M_sl')
        A.lgkm, A.vm, A.hist = save
        if STAMP: nstamp[0] -= 1
        rest = stream(ms, mem, side[:len(pend)])
        stamp()
        A('s_setprio 0')
        for t in bgS + rest + [x[1] for x in side[len(pend):]]: A(t)
        A.label('M_sj')
    else:
        hS = {}
        if 'b4s' in OPT: hS[int(OPT['b4s'])] = lambda: cond('M_l2', False, lambda: A.skip('s_barrier'))
        rest = stream(ms, mem, side, hS, bg=bgS)
        assert not bgS
        stamp()
        prio(int(OPT.get('pse', '1')), int(OPT.get('psl', '0')))
        for t in rest: A(t)
    def preg(G, tl): return PP + 16*G + 2*(tl + G)
    seqP = [(sig, u, h) for sig in range(6) for u in range(5) for h in range(2)]
    def rdP(i):
        sig, u, h = seqP[i]
        ct = 2*sig + h
        buf = RING + 4*(i % 8)
        return [f'ds_read_b64_tr_b16 v[{buf+2*hh}:{buf+2*hh+1}], v{vAP + (ct % 8)} offset:{(4*u+2*hh)*384 + (256 if ct >= 8 else 0)}' for hh in range(2)]
    DP = int(OPT.get('dp', '6'))
    def b4L(): A.skip('s_barrier')
    B3AT, B4AT = int(OPT.get('b3', '1')), int(OPT.get('b4', '6'))
    if B3AT < 0: cond('M_e2', True, lambda: A.skip('s_barrier'))
    NW = int(OPT.get('nw', '14')); FL = NW + 10
    NP = (72 - FL - 15) // 2
    def wreg(i):
        return sreg(i % 2, i // 2) if i != 12 else WF
    for tl in range(7):
        for G in range(2):
            if tl >= NT[G]: continue
            r = sreg(G, tl)
            if G == 1 or OPT.get('ef', '1') != '1':
                for k in range(4): A(f'v_fma_f32 v{r+k}, v{r+k}, s{sSC}, -v{vM[G]}')
            for k in range(4): A(f'v_exp_f32 v{r+k}, v{r+k}')
        for G in range(2):
            if tl >= NT[G]: continue
            r = sreg(G, tl)
            p = preg(G, tl)
            A(f'v_cvt_pk_bf16_f32 v{p}, v{r}, v{r+1}')
            A(f'v_cvt_pk_bf16_f32 v{p+1}, v{r+2}, v{r+3}')
        if tl == B3AT: cond('M_e2', True, lambda: A.skip('s_barrier'))
        if tl >= B3AT:
            for t2 in range(0 if tl == max(B3AT, 0) else tl, tl + 1):
                if t2 % 2 == 0: A(f's_mov_b32 s{sT0}, {2*t2*1024}')
                for G in range(2):
                    if 2*t2 + G >= NW: continue
                    r = wreg(2*t2 + G)
                    A(f'buffer_load_dwordx4 v[{r}:{r+3}], v{vWA0}, s[{S_WS}:{S_WS+3}], s{sT0} offen offset:{1024*(2*(t2%2)+G)} sc1')
        if tl == 5:
            for i in range(DP):
                for t in rdP(i): A(t)
        if tl == B4AT and 'b4s' not in OPT: cond('M_l2', False, b4L)
        if tl == int(OPT.get('b5t', '-9')): cond('M_l3', False, b4L)
    stamp()
    prio(3, int(OPT.get('ppl', '2')))
    padat('P')
    ms, first, side, hk = [], [], [], {}
    def b5L():
        cond('M_l3', False, lambda: A.skip('s_barrier'))
    if int(OPT.get('b5', '1')) < 0: b5L()
    sums = [mf(vINV + 4*G, PP + 16*G + 4*u, ONES, None if u == 0 else vINV + 4*G) for u in range(4) for G in range(2) if u < 3 + G]
    for i, (sig, u, h) in enumerate(seqP):
        a = RING + 4*(i % 8)
        accb = ACC + 16*(sig & 1)
        first.append(len(ms))
        for G in range(2):
            uu = u - G
            if 0 <= uu <= 2 + G:
                d = accb + 8*G + 4*h
                ms.append(mf(d, a, PP + 16*G + 4*uu, None if uu == 0 else d))
        if sums and (i % 10 == 7 or i == 11): ms.append(sums.pop(0))
        if i % 10 == 9:
            e = len(ms) - 1
            side += [(e + 4, t, e + 15) for t in finA(sig, accb)]
            if sig == int(OPT.get('b5', '1')): hk[e] = b5L
            if sig == int(OPT.get('pv', '3')) and OPT.get('pe') == '4': hk[e] = lambda: prio(3, 1)
    assert not sums
    mem = {}
    k = 0
    nrd = 2*(len(seqP) - DP)
    ngap = first[-1] - int(OPT.get('ng', '5'))
    for j in range(DP, len(seqP)):
        for t in rdP(j):
            gp = (k * ngap) // nrd
            if j >= 8: gp = max(gp, first[j - 7] - 1)
            assert gp < first[j] - 3, (j, gp, first[j])
            mem.setdefault(gp, []).append(t); k += 1
    pend = stream(ms, mem, side, hk)
    A('s_waitcnt vmcnt(0)')
    stamp()
    W4 = OPT.get('w4', '1') == '1'
    def wvo(f0, n):
        for i in range(n):
            if i % 4 == 0:
                A.skip(f's_mov_b32 m0, {(f0 - FL + i)*1024}')
                A.skip(f's_mov_b32 s{sT4}, {(f0 + i)*1024}')
            A.raw(f'  buffer_load_dwordx4 v{vWA0}, s[{S_WS}:{S_WS+3}], s{sT4} offen offset:{1024*(i%4)} sc1 lds')
    if 'pee' in OPT: prio(int(OPT['pee']), int(OPT.get('ppl', '2')))
    A(f's_cmp_lg_u32 s{sW}, 4')
    A('s_cbranch_scc1 M_e3b')
    wvo(FL, 15)
    A.label('M_e3b')
    def b4E():
        def body():
            A.skip(f's_cmp_lg_u32 s{sW}, 4')
            A.skip('s_cbranch_scc1 M_e3a')
            A.raw('  s_waitcnt vmcnt(0)')
            A.skip('s_barrier')
            wvo(FL + 15, NP)
            A.skip('s_branch M_e3')
            A.label('M_e3a')
            A.skip('s_barrier')
        cond('M_e3', True, body)
    def finE(sig, accb):
        out = []
        for G in range(2):
            for r in range(4):
                for h in range(2):
                    out.append(f'v_mul_f32 v{accb+8*G+4*h+r}, v{accb+8*G+4*h+r}, v{vINV+4*G+r}')
                o = OST + 8*G + 2*r
                out.append(f'v_cvt_pk_bf16_f32 v{o+(sig&1)}, v{accb+8*G+r}, v{accb+8*G+4+r}')
                if sig & 1:
                    out.append(f'buffer_store_dwordx2 v[{o}:{o+1}], v{vOA+4*G+r}, s[{S_OUT}:{S_OUT+3}], 0 offen offset:{128*(sig>>1)}{ONT[sig>>1]}')
        return out
    def locE(f):
        if f < NW: return ('reg', wreg(f))
        if f < FL: return ('lds', vWA1, (f - NW)*1024)
        return ('lds', vWA0, (f - FL)*1024)
    def b5E():
        def body():
            A.raw(f'  s_waitcnt vmcnt({len(A.vm)})'); A.skip('s_barrier')
        cond('M_e4', True, body)
        padat('O')
        stamp()
    bgE = [t for q in range(8) for t in (f'v_rcp_f32 v{vINV+q}, v{vINV+q}', '')]
    DE = int(OPT.get('de', '4')); GB4 = int(OPT.get('gb4', '13'))
    assert GB4 < 2*(NW - DE) and (72 - FL)*1024 <= 8*ROWB
    pend = gemm_phase(QP, locE, finE, swap=True, bg=bgE, pace=int(OPT.get('pace', '4')), D=DE,
                      ghooks={GB4: b4E, 2*(FL + 15 - DE) - 1: b5E}, side0=[(3, t, 16) for t in pend],
                      xl=SACC if OPT.get('xl', '1') == '1' else None)
    padat('Z')
    for t in pend: A(t)
    if STAMP:
        stamp()
        A('s_waitcnt vmcnt(0)')
        stamp(1)
        write_stamps()
    if 'pad' in OPT:
        A('s_waitcnt vmcnt(0)')
        A.label('PADL')
        A.raw('  s_memrealtime s[98:99]')
        A.raw('  s_waitcnt lgkmcnt(0)')
        A('s_sub_u32 s98, s98, s96')
        A(f's_cmp_lt_u32 s98, {OPT["pad"]}')
        A('s_cbranch_scc1 PADL')
    A('s_endpgm')

    A.label('M_helper'); A.reset()
    nstamp[0] = 2
    A.label('H_join'); A.reset()
    stamp()
    wread()
    A(f's_sub_u32 s{sVT}, s2, {NMP}')
    A('v_mov_b32 v192, 1'); A('v_mov_b32 v193, 0')
    A(f'v_bfe_u32 v180, v{vN}, 1, 1')
    A('v_mul_u32_u24 v180, 12288, v180')
    A(f'v_and_b32 v181, 1, v{vN}')
    A('v_lshl_add_u32 v180, v181, 10, v180')
    A(f'v_lshrrev_b32 v181, 2, v{vN}')
    A('v_lshl_add_u32 v180, v181, 4, v180')
    A(f'v_lshl_add_u32 v180, v{vG}, 8, v180')
    A(f'v_lshlrev_b32 v181, 3, v{vN}')
    A(f'v_lshl_add_u32 v181, v{vG}, 8, v181')
    A(f'v_add_u32 v181, {MB + 12288}, v181')
    VS = 4*ROWB + 1024
    VA, VB, VD = 96, 144, 168
    t0, t1 = VD + 12, VD + 13
    def isv(lbl):
        A(f's_cmp_ge_u32 s{sVT}, 72')
        A(f's_cbranch_scc1 {lbl}')
    decode(); scalar_setup(); scalar_setup2()
    row_addrs(WF, '0')
    row_addrs(vAP, '8')
    def rows(lst):
        for i in lst:
            row_soff(sT1, str(i))
            b = vAP if i & 1 else WF
            for j in range(8):
                a = b + j
                if i & 6:
                    a = 64 + j
                    A(f'v_xor_b32 v{a}, {16*(i & 6)}, v{b+j}')
                A(f's_mov_b32 m0, {i*ROWB + 16*PIECE[j]}')
                A(f'buffer_load_dwordx4 v{a}, s[{S_X}:{S_X+3}], s{sT1} offen{KNT} lds')
            if len(A.vm) >= 54: A('s_waitcnt vmcnt(40)')
    isv('H_v2')
    A(f's_mul_hi_u32 s{sT0}, s{sVT}, 0x15555556')
    A(f's_mul_i32 s{sT1}, s{sT0}, 12')
    A(f's_sub_u32 s{sT1}, s{sVT}, s{sT1}')
    A(f's_lshr_b32 s{sT2}, s{sT1}, 2')
    A(f's_mul_i32 s{sVO}, s{sT2}, 24576')
    A(f's_and_b32 s{sT1}, s{sT1}, 3')
    A(f's_lshl_b32 s{sT1}, s{sT1}, 6')
    A(f's_add_u32 s{sVO}, s{sVO}, s{sT1}')
    A(f's_lshl_b32 s{sT1}, s{sT0}, 11')
    A(f's_add_u32 s{sVO}, s{sVO}, s{sT1}')
    A('s_waitcnt vmcnt(0)')
    for i in range(12):
        A(f'ds_read_b128 v[{VA+4*i}:{VA+4*i+3}], v{MWA+3} offset:{1024*i}')
    A('s_waitcnt lgkmcnt(2)')
    for k in range(6):
        for hh in range(2):
            A(f'ds_read_b64_tr_b16 v[{VB+4*k+2*hh}:{VB+4*k+2*hh+1}], v{t1} offset:{1024*k + 128*hh}')
    A('s_waitcnt lgkmcnt(0)')
    for k in range(6):
        for hp in range(2):
            A(mf(VD + 4*hp, VA + 24*hp + 4*k, VB + 4*k, None if k == 0 else VD + 4*hp))
    for q in range(4):
        A(f'v_cvt_pk_bf16_f32 v{VD+8+q}, v{VD+2*q}, v{VD+2*q+1}')
    A(f'buffer_store_dwordx4 v[{VD+8}:{VD+11}], v{t0}, s[{S_WS}:{S_WS+3}], s{sVO} offen sc1')
    A.label('H_v2'); A.reset()
    A('s_barrier')
    if ER == 0: rows([0, 8])
    poll('H_pollM', *((0, NMP) if DC else (128, 1)))
    A(f's_lshr_b32 s{sT0}, s2, 3')
    A(f's_mul_i32 s{sT0}, s{sT0}, 2304')
    A(f's_add_u32 s{sT0}, s{sT0}, {MOFF}')
    for i in range(3):
        A(f'buffer_load_dwordx4 v[{80+4*i}:{83+4*i}], v{vWA0}, s[{S_WS}:{S_WS+3}], s{sT0} offen offset:{1024*i} sc1')
    if 'pst' in OPT: nstamp[0] += 1
    else: stamp()
    A('s_barrier')
    if 'pst' in OPT: nstamp[0] += 1
    else: stamp()
    mshare(0, M1)
    A(f's_waitcnt vmcnt({M1 - MW})')
    A('s_barrier')
    stamp()
    mshare(M1, 18)
    A('s_waitcnt vmcnt(0)')
    isv('H_v3')
    A('s_mov_b64 exec, 1')
    A.raw(f'  buffer_atomic_add v192, v193, s[{S_DBG}:{S_DBG+3}], 0 offen offset:{128 if DC else 4} sc1')
    A('s_mov_b64 exec, -1')
    A.label('H_v3')
    if ER: rows([0, 8] + list(range(1, ER)))
    A('s_barrier')
    if OPT.get('hr', '1') == '1': rows([9, 10])
    stamp()
    A('s_barrier')
    rows([11, 12, 13, 14, 15])
    A('s_waitcnt vmcnt(0)')
    stamp()
    A('s_barrier')
    rows([16, 17, 18, 19])
    A('s_waitcnt vmcnt(0)')
    stamp()
    poll('H_pollV', 128 if DC else 4, 72)
    A(f's_lshr_b32 s{sT0}, s2, 3')
    A(f's_mul_i32 s{sT0}, s{sT0}, 2304')
    for i in range(3):
        A(f'buffer_load_dwordx4 v[{80+4*i}:{83+4*i}], v{vWA0}, s[{S_WS}:{S_WS+3}], s{sT0} offen offset:{1024*i} sc1')
    stamp()
    A('s_barrier')
    def wfr(src0, n, lds0):
        for i in range(n):
            if i % 4 == 0:
                A(f's_mov_b32 m0, {lds0 + i*1024}')
                A(f's_mov_b32 s{sT4}, {(src0 + i)*1024}')
            A(f'buffer_load_dwordx4 v{vWA0}, s[{S_WS}:{S_WS+3}], s{sT4} offen offset:{1024*(i%4)} sc1 lds')
    wfr(NW, 10, SPARE)
    A('s_waitcnt vmcnt(0)')
    stamp()
    A('s_barrier')
    wfr(FL + 15 + NP, 72 - FL - 15 - NP, (15 + NP)*1024)
    A('s_waitcnt vmcnt(0)')
    stamp()
    A('s_barrier')
    if STAMP:
        stamp(1)
        write_stamps()
    A.label('M_done')
    A('s_endpgm')
    A.label('CODE_END')

gen_main()
A.raw('.section .rodata,"a"')
A.raw('.p2align 6')
A.raw(f'.amdhsa_kernel {NAME}')
A.raw('  .amdhsa_next_free_vgpr 256')
A.raw('  .amdhsa_next_free_sgpr 102')
A.raw('  .amdhsa_accum_offset 256')
A.raw('  .amdhsa_group_segment_fixed_size 0')
A.raw('  .amdhsa_kernarg_size 48')
A.raw('  .amdhsa_user_sgpr_count 2')
A.raw('  .amdhsa_user_sgpr_kernarg_segment_ptr 1')
A.raw('  .amdhsa_system_sgpr_workgroup_id_x 1')
A.raw('.end_amdhsa_kernel')
txt = A.text()
if 'e64' in OPT:
    import re
    head, tail = txt.split('M_pa:', 1)
    body, rest = tail.split('M_helper:', 1)
    body = re.sub(r'\bv_mul_f32 (v\d+, v)', r'v_mul_f32_e64 \1', body)
    body = re.sub(r'\bv_exp_f32 ', 'v_exp_f32_e64 ', body)
    txt = head + 'M_pa:' + body + 'M_helper:' + rest
open(OUT, 'w').write(txt)
print('instr', A.n_inst, 'nops', A.nops, 'maxv', A.maxv)
```
